```python
import torch

def _softmax(x, axis=-1):
    return torch.softmax(x, dim=axis)
def _gelu(x):
    return torch.nn.functional.gelu(x, approximate="tanh")
def _silu(x):
    return torch.nn.functional.silu(x)
def _sigmoid(x):
    return torch.sigmoid(x)
def _layernorm(x, axis=-1, eps=1e-5):
    m = x.mean(dim=axis, keepdim=True)
    v = x.var(dim=axis, keepdim=True, unbiased=False)
    return (x - m) / torch.sqrt(v + eps)
def _scatter_add(tgt, idx, src, axis=0):
    return tgt.clone().index_add_(axis, idx, src)
def _segment_sum(src, seg, n):
    out = torch.zeros((n,) + src.shape[1:], dtype=src.dtype)
    return out.index_add_(0, seg, src)
def _pad(x, pw):
    flat = tuple(v for pair in reversed(pw) for v in pair)
    return torch.nn.functional.pad(x, flat)

kernel_name = 'concat_heads__ssm_conv_s4d__linear_attn_block__prompt'

def setup_inputs():

    _w = (lambda a: (lambda t: t.to(torch.bfloat16) if t.is_floating_point() else t)(torch.as_tensor(a)))
    def _A_setup():
        Bsz, L, D, N = 1, 2048, 448, 256
        return {
            "u": _w((lambda *s: torch.randn(*s, dtype=torch.bfloat16) * 0.05)(Bsz, L, D)),
            "log_A_real": _w((lambda *s: torch.randn(*s, dtype=torch.bfloat16) * 6.4)(D, N) * 0.5),
            "A_imag": _w((lambda *s: torch.randn(*s, dtype=torch.bfloat16) * 0.05)(D, N) * 3.14),
            "C_real": _w((lambda *s: torch.randn(*s, dtype=torch.bfloat16) * 0.2)(D, N) / N ** 0.5),
            "C_imag": _w((lambda *s: torch.randn(*s, dtype=torch.bfloat16) * 0.2)(D, N) / N ** 0.5),
            "log_dt": _w((lambda *s: torch.randn(*s, dtype=torch.bfloat16) * 0.05)(D) * 0.5 - 4.0),
            "D_skip": _w((lambda *s: torch.randn(*s, dtype=torch.bfloat16) * 0.05)(D)),
        }
    _A_in = _A_setup()

    def _B_setup():
        B, S, D = 1, 2048, 448
        return {
            "x": _w((lambda *s: torch.randn(*s, dtype=torch.bfloat16) * 0.05)(B, S, D)),
            "wqkv": _w((lambda *s: torch.randn(*s, dtype=torch.bfloat16) * 0.8)(D, 3 * D)),
            "wo": _w((lambda *s: torch.randn(*s, dtype=torch.bfloat16) * 0.05)(D, D)),
        }
    _B_in = _B_setup()

    return {
        "A_u": _A_in["u"],
        "A_log_A_real": _A_in["log_A_real"],
        "A_A_imag": _A_in["A_imag"],
        "A_C_real": _A_in["C_real"],
        "A_C_imag": _A_in["C_imag"],
        "A_log_dt": _A_in["log_dt"],
        "A_D_skip": _A_in["D_skip"],
        "B_x": _B_in["x"],
        "B_wqkv": _B_in["wqkv"],
        "B_wo": _B_in["wo"],
    }

def reference(A_u, A_log_A_real, A_A_imag, A_C_real, A_C_imag, A_log_dt, A_D_skip, B_x, B_wqkv, B_wo):
    def _A_ref(u, log_A_real, A_imag, C_real, C_imag, log_dt, D_skip):
        L = u.shape[1]
        dt = torch.exp(log_dt)
        A = -torch.exp(log_A_real) + 1j * A_imag
        C = (C_real + 1j * C_imag) * dt[:, None]
        pos = (lambda x, dt: x.to(dt))(torch.arange(L), log_dt.dtype)
        P = torch.exp((A * dt[:, None])[:, :, None] * pos[None, None, :])
        K = 2.0 * torch.einsum("dn,dnl->dl", C, P).real
        L2 = 2 * L
        u_t = (lambda x, *d: x.permute(*d))(u, 0, 2, 1)
        Kf = (lambda x, *a, **k: torch.fft.rfft(x.float(), *a, **k))(K, L2)
        Uf = (lambda x, *a, **k: torch.fft.rfft(x.float(), *a, **k))(u_t, L2)
        y = (lambda x, *a, **k: torch.fft.irfft(x, *a, **k).to(torch.bfloat16))(Uf * Kf[None, :, :], L2)[:, :, :L]
        y = (lambda x, *d: x.permute(*d))(y, 0, 2, 1)
        return y + u * D_skip[None, None, :]

    def _B_ref(x, wqkv, wo):
        B, S, D = x.shape
        H = 16; Dh = D // H
        qkv = (lambda x, *d: x.permute(*d))((x @ wqkv).reshape(B, S, 3, H, Dh), 2, 0, 3, 1, 4)
        q, k, v = qkv[0], qkv[1], qkv[2]
        phi = lambda t: torch.where(t > 0, t + 1, torch.exp(t)) + 1e-6
        pq, pk = phi(q), phi(k)
        kv = torch.einsum("bhsd,bhse->bhde", pk, v)
        z = torch.einsum("bhsd->bhd", pk)
        num = torch.einsum("bhqd,bhde->bhqe", pq, kv)
        den = torch.einsum("bhqd,bhd->bhq", pq, z)[..., None] + 1e-6
        o = num / den
        return (lambda x, *d: x.permute(*d))(o, 0, 2, 1, 3).reshape(B, S, D) @ wo

    a = _A_ref(A_u, A_log_A_real, A_A_imag, A_C_real, A_C_imag, A_log_dt, A_D_skip)
    b = _B_ref(B_x, B_wqkv, B_wo)
    return torch.concatenate([a, b], axis=-1)
```

```python
class Asm:
    def __init__(self):
        self.lines = []
        self.lab = 0
    def __call__(self, s):
        for ln in s.strip("\n").split("\n"):
            ln = ln.strip()
            if ln:
                self.lines.append("  " + ln if not ln.endswith(":") else ln)
    def label(self, name):
        self.lines.append(name + ":")
    def newlabel(self, stem="L"):
        self.lab += 1
        return f"{stem}_{self.lab}"
    def comment(self, s):
        self.lines.append("  ; " + s)
    def raw(self, s):
        self.lines.append(s)
    def text(self):
        return "\n".join(self.lines) + "\n"

def vr(b, n=1):
    return f"v{b}" if n == 1 else f"v[{b}:{b+n-1}]"
def sr(b, n=1):
    return f"s{b}" if n == 1 else f"s[{b}:{b+n-1}]"
import struct
def f32bits(x):
    return struct.unpack("<I", struct.pack("<f", x))[0]
def fhex(x):
    return f"0x{f32bits(x):08x}"
```

```python
import math, struct
from asmlib import *
from gen import *

INV2PI = 0.15915494309189535
C_HI = struct.unpack("<f", struct.pack("<f", INV2PI))[0]
C_LO = INV2PI - C_HI

RS = 2064
NROW = 53
UT_L = NROW * RS
T_L = UT_L
WIN2 = 29

def cmul(a, d, x, y):
    a(f"v_pk_mul_f32 v[{d}:{d+1}], v[{x}:{x+1}], v[{y}:{y+1}] op_sel:[0,0] op_sel_hi:[1,0]")
    a(f"v_pk_fma_f32 v[{d}:{d+1}], v[{x}:{x+1}], v[{y}:{y+1}], v[{d}:{d+1}] op_sel:[1,1,0] op_sel_hi:[0,1,1] neg_lo:[1,0,0]")
def cmul_ops(d, x, y):
    return [f"v_pk_mul_f32 v[{d}:{d+1}], v[{x}:{x+1}], v[{y}:{y+1}] op_sel:[0,0] op_sel_hi:[1,0]",
            f"v_pk_fma_f32 v[{d}:{d+1}], v[{x}:{x+1}], v[{y}:{y+1}], v[{d}:{d+1}] op_sel:[1,1,0] op_sel_hi:[0,1,1] neg_lo:[1,0,0]"]
def hmul_ops(d, x, y):
    return [f"v_pk_mul_f16 v{d}, v{x}, v{y} op_sel:[0,0] op_sel_hi:[1,0]",
            f"v_pk_fma_f16 v{d}, v{x}, v{y}, v{d} op_sel:[1,1,0] op_sel_hi:[0,1,1] neg_lo:[1,0,0]"]

def interleave(a, streams):
    idx = [0] * len(streams)
    live = True
    while live:
        live = False
        for i, s in enumerate(streams):
            if idx[i] < len(s):
                a(s[idx[i]]); idx[i] += 1; live = True

def wr(row, v):
    off = row * RS if row < WIN2 else (row - WIN2) * RS
    return f"ds_write_addtid_b32 v{v} offset:{off}"

def k1_a(a):
    a.comment("---- A role: u transposition + K generation ----")
    a("s_sub_u32 s6, s4, 24")
    a("s_mul_i32 s7, s3, 56")
    a("s_lshl_b32 s8, s6, 3")
    a("s_add_u32 s7, s7, s8")
    a("s_add_u32 s7, s7, s5")
    a("v_lshlrev_b32 v3, 3, v2")
    a("s_lshl_b32 s8, s7, 9")
    a("v_add_u32 v3, s8, v3")
    a("s_lshl_b32 s8, s7, 1")
    a("v_mov_b32 v4, s8")
    a("v_mov_b32 v16, 0")
    a("v_mov_b32 v17, 0")
    a("v_lshrrev_b32 v5, 3, v2")
    a("s_lshl_b32 s8, s6, 8")
    a("s_lshl_b32 s9, s5, 3")
    a("s_add_u32 s8, s8, s9")
    a("s_sub_u32 s8, s8, 8")
    a("v_add_u32 v5, s8, v5")
    a("s_movk_i32 s9, 896")
    a("v_mul_lo_u32 v5, v5, s9")
    a("v_bfe_u32 v6, v2, 4, 1")
    a("v_lshlrev_b32 v6, 2, v6")
    a("v_and_b32 v7, 7, v2")
    a("v_xor_b32 v6, v6, v7")
    a("v_lshl_add_u32 v5, v6, 4, v5")
    a("s_mul_i32 s9, s3, 112")
    a("v_add_u32 v5, s9, v5")
    a("s_lshl_b32 s9, s5, 10")
    a(f"s_add_u32 s9, s9, {UT_L}")
    a("s_waitcnt lgkmcnt(0)")
    srd(a, 44, P_U, 2048 * 896)
    srd(a, 48, P_WS, 4 * UB_IMG, WS_UB)
    srd(a, 52, P_WS, 448 * KT_ROW, WS_KT)
    Lnp = a.newlabel("Lnp")
    a("s_cmp_ge_u32 s6, 7")
    a(f"s_cbranch_scc1 {Lnp}")
    a(f"global_load_dwordx2 v[12:13], v3, s[{P_CR}:{P_CR+1}]")
    a(f"global_load_dwordx2 v[14:15], v3, s[{P_CI}:{P_CI+1}]")
    a(f"global_load_short_d16_hi v16, v4, s[{P_LDT}:{P_LDT+1}]")
    a(f"global_load_dwordx2 v[8:9], v3, s[{P_LA}:{P_LA+1}]")
    a(f"global_load_dwordx2 v[10:11], v3, s[{P_AI}:{P_AI+1}]")
    a(f"global_load_short_d16_hi v17, v4, s[{P_D}:{P_D+1}]")
    a.label(Lnp)
    for i in range(4):
        a(f"s_add_u32 m0, s9, {i*8192}")
        a("s_nop 0")
        a("buffer_load_dwordx4 v5, s[44:47], 0 offen lds")
        a(f"v_add_u32 v5, {64*896}, v5")
    L33 = a.newlabel("L33")
    a("s_cmp_lg_u32 s5, 0")
    a(f"s_cbranch_scc1 {L33}")
    a(f"s_add_u32 m0, s9, {4*8192}")
    a("s_nop 0")
    a("buffer_load_dwordx4 v5, s[44:47], 0 offen lds")
    a.label(L33)

    def ut_part():
        a.comment("u transposition")
        a("s_and_b32 s10, s5, 3")
        a("s_lshr_b32 s11, s5, 2")
        a("v_bfe_u32 v5, v2, 2, 2")
        a("s_add_u32 s12, s10, 5")
        a("v_add_u32 v5, s12, v5")
        a("v_bfe_u32 v6, v5, 1, 1")
        a("v_lshlrev_b32 v6, 6, v6")
        a("v_lshrrev_b32 v7, 4, v2")
        a("v_lshlrev_b32 v7, 5, v7")
        a("v_and_b32 v18, 3, v2")
        a("v_lshl_add_u32 v7, v18, 3, v7")
        a("v_xor_b32 v6, v6, v7")
        a("v_lshl_add_u32 v5, v5, 7, v6")
        a("s_lshl_b32 s12, s11, 14")
        a(f"s_add_u32 s12, s12, {UT_L}")
        a("v_add_u32 v5, s12, v5")
        a("v_lshlrev_b32 v6, 4, v2")
        a(f"s_mul_i32 s12, s10, {UB_IMG}")
        a("s_lshl_b32 s13, s6, 5")
        a("s_lshl_b32 s14, s11, 4")
        a("s_add_u32 s13, s13, s14")
        a("s_mul_i32 s13, s13, 7168")
        a("s_add_u32 s12, s12, s13")
        a("s_mul_i32 s13, s3, 896")
        a("s_add_u32 s12, s12, s13")
        a("s_waitcnt vmcnt(0)")
        a("s_barrier")
        UR = 160
        for half in range(2):
            for i in range(8 * half, 8 * half + 8):
                for jj in range(2):
                    d = UR + 4 * i + 2 * jj
                    a(f"ds_read_b64_tr_b16 v[{d}:{d+1}], v5 offset:{i*1024 + jj*512}")
            a("s_waitcnt lgkmcnt(0)")
        a("s_mov_b32 s14, -1")
        a("s_mov_b32 s15, 0x00ffffff")
        a("s_mov_b64 exec, s[14:15]")
        for i in range(16):
            a(f"buffer_store_dwordx4 v[{UR+4*i}:{UR+4*i+3}], v6, s[48:51], s12 offen")
            if i < 15:
                a("s_add_u32 s12, s12, 7168")
        a("s_mov_b64 exec, -1")

    Lk = a.newlabel("Lkgen")
    a("s_cmp_lt_u32 s6, 7")
    a(f"s_cbranch_scc1 {Lk}")
    ut_part()
    a("s_endpgm")
    a.label(Lk)

    a(f"s_mov_b32 s66, {fhex(LOG2E)}")
    a(f"s_mov_b32 s67, {fhex(-LOG2E)}")
    a(f"s_mov_b32 s68, {fhex(C_HI)}")
    a(f"s_mov_b32 s69, {fhex(C_LO)}")
    a(f"s_mov_b32 s70, {fhex(8.0)}")
    a(f"s_mov_b32 s71, {fhex(256.0)}")
    a("s_lshl_b32 s72, s5, 8")
    a(f"s_add_u32 s73, s72, {WIN2*RS}")
    a("v_and_b32 v20, 15, v2")
    a(f"v_mul_u32_u24 v20, {RS}, v20")
    a("v_lshrrev_b32 v21, 4, v2")
    a("v_lshl_add_u32 v20, v21, 4, v20")
    a("v_add_u32 v20, s72, v20")
    a(f"v_add_u32 v21, {21*RS}, v20")
    a("v_mov_b32 v22, 0x00003c00")
    a("s_waitcnt vmcnt(7)")
    a("v_and_b32 v24, 0x7fff7fff, v12")
    a("v_and_b32 v25, 0x7fff7fff, v13")
    a("v_and_b32 v26, 0x7fff7fff, v14")
    a("v_and_b32 v27, 0x7fff7fff, v15")
    a("v_pk_max_u16 v24, v24, v25")
    a("v_pk_max_u16 v26, v26, v27")
    a("v_mul_f32 v16, s66, v16")
    a("v_pk_max_u16 v24, v24, v26")
    a("v_exp_f32 v16, v16")
    a("v_lshrrev_b32 v25, 16, v24")
    a("v_and_b32 v24, 0xffff, v24")
    a("v_max_u32 v24, v24, v25")
    a("v_cvt_pk_bf16_f32 v16, v16, v16")
    a("v_and_b32 v16, 0xffff0000, v16")
    for ctl in ("row_shr:1 row_mask:0xf bank_mask:0xf", "row_shr:2 row_mask:0xf bank_mask:0xf",
                "row_shr:4 row_mask:0xf bank_mask:0xf", "row_shr:8 row_mask:0xf bank_mask:0xf",
                "row_bcast:15 row_mask:0xa bank_mask:0xf", "row_bcast:31 row_mask:0xc bank_mask:0xf"):
        a(f"v_max_u32_dpp v24, v24, v24 {ctl}")
        a("s_nop 1")
    a("v_readlane_b32 s74, v24, 63")
    a("v_readfirstlane_b32 s75, v16")
    a("s_nop 3")
    a("s_lshr_b32 s74, s74, 7")
    a("s_max_u32 s74, s74, 14")
    a("s_min_u32 s74, s74, 254")
    a("s_sub_u32 s76, 267, s74")
    a("s_lshl_b32 s76, s76, 23")
    a("s_sub_u32 s77, s74, 13")
    a("s_lshl_b32 s77, s77, 23")
    a("s_waitcnt vmcnt(4)")

    ACC = 224
    FA = 96
    Z1, Z2, Z4, Z256 = 32, 34, 36, 38
    Q = [None, 40, 42, 44, 46, 48, 50, 52]
    P = [None, 54, 56, 58]
    XA, XB = 60, 62
    RA, RB = 64, 66
    SA, SB = 68, 70
    QH = [22, 72, 73, 74, 75, 76, 77, 78]
    PH = [None, 79, 80, 81]
    H = [82, 83, 84, 85, 86, 87, 88, 89]

    def unpack(dst, src, ps):
        s = src + ps // 2
        if ps % 2 == 0: a(f"v_lshlrev_b32 v{dst}, 16, v{s}")
        else: a(f"v_and_b32 v{dst}, 0xffff0000, v{s}")

    def kpass(ps):
        a.comment(f"K pass {ps}")
        unpack(24, 8, ps)
        unpack(25, 10, ps)
        a("v_mul_f32 v24, s66, v24")
        a("v_exp_f32 v24, v24")
        a("v_mul_f32 v25, s75, v25")
        a("v_mul_f32 v26, s68, v25")
        a("v_cvt_pk_bf16_f32 v24, v24, v24")
        a("v_fma_f32 v27, v25, s68, -v26")
        a("v_and_b32 v24, 0xffff0000, v24")
        a("v_fmac_f32 v27, s69, v25")
        a("v_mul_f32 v24, s75, v24")
        a("v_mul_f32 v24, s67, v24")
        unpack(XA, 12, ps)
        unpack(XA + 1, 14, ps)
        a(f"v_mul_f32 v{XA}, s76, v{XA}")
        a(f"v_mul_f32 v{XA+1}, s76, v{XA+1}")
        st = []
        for (dst, sm, t, neg) in ((Z1, None, 28, False), (Q[1], 70, 90, True), (Z256, 71, 93, False)):
            s = []
            if sm is None:
                s += [f"v_exp_f32 v{t}, v24", f"v_fract_f32 v{t+1}, v26", f"v_add_f32 v{t+1}, v{t+1}, v27"]
            else:
                s += [f"v_mul_f32 v{t}, s{sm}, v24", f"v_exp_f32 v{t}, v{t}", f"v_mul_f32 v{t+1}, s{sm}, v26",
                      f"v_fract_f32 v{t+1}, v{t+1}", f"v_fmac_f32 v{t+1}, s{sm}, v27"]
            s += [f"v_cos_f32 v{t+2}, v{t+1}", f"v_sin_f32 v{t+1}, v{t+1}", "s_nop 0", f"v_mul_f32 v{dst}, v{t}, v{t+2}"]
            s += [f"v_mul_f32_e64 v{dst+1}, v{t}, {'-' if neg else ''}v{t+1}"]
            st.append(s)
        interleave(a, st)
        a("s_mov_b32 m0, s72")
        s1 = []
        cur, oth = XA, XB
        s2 = cmul_ops(RA, XA, Z256)
        hi = [0]
        def cv(stream, src, row):
            h = H[hi[0] % len(H)]; hi[0] += 1
            stream.append(f"v_cvt_pk_f16_f32 v{h}, v{src}, v{src+1}")
            stream.append(wr(row, h))
        for s in s2: a(s)
        a(wr(21, 22))
        s1 = []; H1 = [82, 83]; H2 = [84, 85]; H3 = [86, 87]
        def cvh(stream, hs, k, src, row):
            h = hs[k % 2]
            stream.append(f"v_cvt_pk_f16_f32 v{h}, v{src}, v{src+1}")
            stream.append(wr(row, h))
        cvh(s1, H1, 0, XA, 0)
        for f in range(1, 8):
            s1 += cmul_ops(oth, cur, Z1)
            cvh(s1, H1, f, oth, f)
            cur, oth = oth, cur
        s2 = cmul_ops(Z2, Z1, Z1) + cmul_ops(Z4, Z2, Z2)
        k = 0
        cvh(s2, H2, k, RA, 8); k += 1
        s2 += cmul_ops(RB, RA, Z256)
        s2 += cmul_ops(SA, RA, Z2); cvh(s2, H2, k, SA, 9); k += 1
        s2 += cmul_ops(SB, RA, Z4); cvh(s2, H2, k, SB, 10); k += 1
        s2 += cmul_ops(SA, SB, Z2); cvh(s2, H2, k, SA, 11); k += 1
        cvh(s2, H2, k, RB, 12); k += 1
        s2 += cmul_ops(RA, RB, Z256)
        s2 += cmul_ops(SA, RB, Z4); cvh(s2, H2, k, SA, 13); k += 1
        cvh(s2, H2, k, RA, 14); k += 1
        s2 += cmul_ops(RB, RA, Z256)
        s2 += cmul_ops(SA, RA, Z4); cvh(s2, H2, k, SA, 15); k += 1
        c_, o_ = RB, RA
        for row in range(16, 21):
            cvh(s2, H2, k, c_, row); k += 1
            if row < 20:
                s2 += cmul_ops(o_, c_, Z256)
                c_, o_ = o_, c_
        s3 = []
        def qcv(b):
            s3.append(f"v_cvt_pk_f16_f32 v{QH[b]}, v{Q[b]}, v{Q[b]+1}")
            s3.append(wr(21 + b, QH[b]))
        qcv(1)
        s3 += cmul_ops(Q[2], Q[1], Q[1]); qcv(2)
        s3 += cmul_ops(Q[4], Q[2], Q[2])
        s3 += cmul_ops(Q[3], Q[2], Q[1]); qcv(4); qcv(3)
        s3 += cmul_ops(P[1], Q[4], Q[4])
        s3 += cmul_ops(Q[5], Q[4], Q[1]); qcv(5)
        s3 += cmul_ops(P[2], P[1], P[1])
        s3 += cmul_ops(Q[6], Q[4], Q[2]); qcv(6)
        s3 += cmul_ops(Q[7], Q[4], Q[3]); qcv(7)
        s3 += cmul_ops(P[3], P[2], P[1])
        for k_ in (1, 2, 3):
            s3.append(f"v_cvt_pk_f16_f32 v{PH[k_]}, v{P[k_]}, v{P[k_]+1}")
        interleave(a, [s1, s2, s3])
        for mt in range(2):
            for kk in range(4):
                f = FA + 16 * mt + 4 * kk
                a(f"ds_read_b128 v[{f}:{f+3}], v20 offset:{mt*16*RS + 64*kk}")
        a("s_mov_b32 m0, s73")
        sts = []
        for aa in (1, 2, 3):
            s = [wr(21 + 8 * aa, PH[aa])]
            hs = [H1, H2, H3][aa - 1]
            for b in range(1, 8):
                h = hs[b % 2]
                s += hmul_ops(h, PH[aa], QH[b])
                s.append(wr(21 + 8 * aa + b, h))
            sts.append(s)
        a("s_nop 0")
        interleave(a, sts)
        for nt in range(2):
            for kk in range(4):
                f = FA + 32 + 16 * nt + 4 * kk
                a(f"ds_read_b128 v[{f}:{f+3}], v21 offset:{nt*16*RS + 64*kk}")
        for nt in range(2):
            for kk in range(4):
                a(f"s_waitcnt lgkmcnt({7 - 4*nt - kk})")
                for mt in range(2):
                    fa = FA + 16 * mt + 4 * kk
                    fb = FA + 32 + 16 * nt + 4 * kk
                    d = ACC + 8 * mt + 4 * nt
                    cin = "0" if (ps == 0 and kk == 0) else f"v[{d}:{d+3}]"
                    a(f"v_mfma_f32_16x16x32_f16 v[{d}:{d+3}], v[{fa}:{fa+3}], v[{fb}:{fb+3}], {cin}")

    kpass(0)
    ut_part()
    kpass(1)
    a("s_barrier")
    kpass(2)
    kpass(3)

    a("s_mul_i32 s10, s5, 4608")
    a(f"s_add_u32 s10, s10, {T_L}")
    a("v_and_b32 v24, 15, v2")
    a("v_lshlrev_b32 v24, 4, v24")
    a("v_add_u32 v24, s10, v24")
    AD = 32
    def base(mt, q, r):
        if mt == 0:
            return [r, 4 + r, 256 + 2 * r, 512 + 4 * (r & 1) + 256 * (r >> 1)][q]
        if q == 0: return 1024 + 256 * r
        if q == 1 and r == 0: return 2048
        return 2049
    for q in range(4):
        lo = (0xffff << (16 * q)) & 0xffffffff if q < 2 else 0
        hi_ = (0xffff << (16 * (q - 2))) & 0xffffffff if q >= 2 else 0
        a(f"s_mov_b32 s14, 0x{lo:x}")
        a(f"s_mov_b32 s15, 0x{hi_:x}")
        a("s_mov_b64 exec, s[14:15]")
        for mt in range(2):
            for r in range(4):
                a(f"v_add_u32 v{AD+4*mt+r}, {2*base(mt,q,r)}, v24")
    a("s_mov_b64 exec, -1")
    a("v_mov_b32 v25, s75")
    a("v_mul_f32 v25, s77, v25")
    a("v_add_f32 v25, v25, v25")
    for i in range(16):
        a(f"v_mul_f32 v{ACC+i}, v25, v{ACC+i}")
    a("s_mov_b64 exec, 1")
    a(f"v_add_f32 v{ACC}, v{ACC}, v17")
    a("s_mov_b64 exec, -1")
    for mt in range(2):
        for r in range(4):
            a(f"v_cvt_pk_bf16_f32 v{40+4*mt+r}, v{ACC+8*mt+r}, v{ACC+8*mt+4+r}")
    for mt in range(2):
        for r in range(4):
            a(f"ds_write_b16 v{AD+4*mt+r}, v{40+4*mt+r}")
            a(f"ds_write_b16_d16_hi v{AD+4*mt+r}, v{40+4*mt+r} offset:256")
    a("v_lshlrev_b32 v26, 4, v2")
    a(f"s_add_u32 s11, s10, {16*63}")
    a("v_sub_u32 v27, s11, v26")
    a("v_cmp_gt_u32 vcc, 32, v2")
    a("v_mov_b32 v28, 0")
    a("v_and_b32 v31, 1, v2")
    a("v_cndmask_b32 v28, v28, 2, vcc" if False else "v_cndmask_b32_e64 v28, 0, 2, vcc")
    a("v_add_u32 v29, v27, v28")
    a("v_sub_u32 v30, v27, v28")
    a("v_mul_u32_u24 v31, 0x0404, v31")
    a("v_lshlrev_b32 v31, 16, v31")
    a("v_sub_u32 v31, 0x05040504, v31")
    a("s_mov_b32 s12, 0x05040504")
    a("s_mov_b32 s13, 0x01000100")
    a("s_mov_b32 s14, 0x01000504")
    E = 48
    for m in range(2):
        o = (3 - m) * 1024
        a(f"ds_read_u16 v{80+2*m}, v27 offset:{o}")
        a(f"ds_read_u16 v{81+2*m}, v27 offset:{o+16}")
    o = 1024
    a(f"ds_read_u16 v88, v27 offset:{o}")
    a(f"ds_read_u16 v89, v27 offset:{o+8}")
    a(f"ds_read_u16 v90, v27 offset:{o+16}")
    e3 = E + 12
    for k_, (rlo, ilo, ihi) in enumerate(((29, 7, 6), (30, 5, 4), (29, 3, 2), (30, 1, 0))):
        a(f"ds_read_u16 v{e3+k_}, v{rlo} offset:{2*ilo}")
        a(f"ds_read_u16 v{92+k_}, v27 offset:{2*ihi}")
    a(f"s_mul_i32 s15, s7, {KT_ROW}")
    a("v_mov_b32 v84, 0\nv_mov_b32 v85, 0\nv_mov_b32 v86, 0\nv_mov_b32 v87, 0")
    a("s_waitcnt lgkmcnt(8)")
    for m in range(2):
        e = E + 4 * m
        ra, rb = 80 + 2 * m, 81 + 2 * m
        a(f"v_perm_b32 v{e}, v{rb}, v{ra}, s12")
        a(f"v_perm_b32 v{e+1}, v{rb}, v{ra}, v31")
        a(f"v_perm_b32 v{e+2}, v{rb}, v{ra}, s13")
        a(f"v_perm_b32 v{e+3}, v{rb}, v{ra}, s13")
        a(f"buffer_store_dwordx4 v[{e}:{e+3}], v26, s[52:55], s15 offen offset:{m*1024}")
    e = E + 8
    a(f"v_perm_b32 v{e}, v90, v90, s13")
    a(f"v_perm_b32 v{e+1}, v89, v88, s12")
    a(f"v_perm_b32 v{e+2}, v89, v88, s14")
    a(f"v_perm_b32 v{e+3}, v89, v88, s13")
    a(f"buffer_store_dwordx4 v[{e}:{e+3}], v26, s[52:55], s15 offen offset:2048")
    a("s_waitcnt lgkmcnt(0)")
    for k_ in range(4):
        a(f"v_lshl_or_b32 v{e3+k_}, v{92+k_}, 16, v{e3+k_}")
    a(f"buffer_store_dwordx4 v[{e3}:{e3+3}], v26, s[52:55], s15 offen offset:3072")
    a("s_add_u32 s15, s15, 4096")
    a("s_mov_b64 exec, 0xff")
    a("buffer_store_dwordx4 v[84:87], v26, s[52:55], s15 offen")
    a("s_endpgm")

CS = 280 * 64 + 64
KI_L = 4 * CS
EP_L = KI_L + 17 * 1024

def k2_conv(a):
    a.comment("---- conv role ----")
    a("s_mul_i32 s6, s3, 56")
    a("s_lshl_b32 s7, s4, 2")
    a("s_add_u32 s6, s6, s7")
    a("s_and_b32 s7, s5, 3")
    a("s_lshr_b32 s8, s5, 2")
    a("v_lshrrev_b32 v3, 5, v2")
    a("v_sub_u32 v3, v2, v3")
    a("s_lshl_b32 s9, s8, 1")
    a("s_add_u32 s9, s9, 3")
    a("v_subrev_u32 v3, s9, v3")
    a("v_and_b32 v3, 3, v3")
    a("v_lshrrev_b32 v4, 2, v2")
    a("v_mul_u32_u24 v4, 448, v4")
    a("v_add_lshl_u32 v3, v3, v4, 4")
    a(f"s_mul_i32 s9, s7, {UB_IMG}")
    a(f"s_mul_i32 s10, s8, {16*7168}")
    a("s_add_u32 s9, s9, s10")
    a("s_lshl_b32 s10, s6, 4")
    a("s_add_u32 s9, s9, s10")
    a(f"s_mul_i32 s10, s7, {CS}")
    a("s_lshl_b32 s11, s8, 10")
    a("s_add_u32 s10, s10, s11")
    a(f"s_add_u32 s10, s10, {24*64}")
    a("v_lshlrev_b32 v4, 4, v2")
    a(f"s_mul_i32 s11, s6, {KT_ROW}")
    a("s_lshl_b32 s12, s5, 10")
    a("s_add_u32 s11, s11, s12")
    a(f"s_add_u32 s12, s12, {KI_L}")
    a("v_mov_b32 v8, 0\nv_mov_b32 v9, 0\nv_mov_b32 v10, 0\nv_mov_b32 v11, 0")
    a("s_waitcnt lgkmcnt(0)")
    srd(a, 44, P_WS, 4 * UB_IMG, WS_UB)
    srd(a, 48, P_WS, 448 * KT_ROW, WS_KT)
    srd(a, 52, P_OUT, 2048 * 1792)
    for i in range(2):
        a(f"s_add_u32 m0, s12, {i*8192}")
        a("s_nop 0")
        a("buffer_load_dwordx4 v4, s[48:51], s11 offen lds")
        a("s_add_u32 s11, s11, 8192")
    L = a.newlabel("Lk17")
    a("s_cmp_lg_u32 s5, 0")
    a(f"s_cbranch_scc1 {L}")
    a(f"s_add_u32 m0, s12, 16384")
    a("s_nop 0")
    a("buffer_load_dwordx4 v4, s[48:51], s11 offen lds")
    a.label(L)
    for i in range(8):
        a(f"s_add_u32 m0, s10, {i*2048}")
        a("s_nop 0")
        a("buffer_load_dwordx4 v3, s[44:47], s9 offen lds")
        if i < 7:
            a(f"s_add_u32 s9, s9, {32*7168}")
    a(f"s_mul_i32 s9, s7, {CS}")
    a("s_lshl_b32 s10, s8, 10")
    a("s_add_u32 s9, s9, s10")
    a("v_add_u32 v5, s9, v4")
    a("s_cmp_eq_u32 s8, 0")
    a("s_cselect_b32 s15, -1, 0")
    a("s_mov_b32 s14, -1")
    a("s_mov_b64 exec, s[14:15]")
    a("ds_write_b128 v5, v[8:11]")
    a("s_mov_b64 exec, -1")
    a("v_and_b32 v5, 3, v2")
    a(f"v_mul_u32_u24 v5, {CS}, v5")
    a("v_bfe_u32 v6, v2, 2, 2")
    a("v_lshrrev_b32 v7, 4, v2")
    a("v_lshl_add_u32 v8, v6, 3, v7")
    a("v_lshl_add_u32 v5, v8, 6, v5")
    a("s_lshl_b32 s9, s8, 10")
    a("v_subrev_u32 v5, s9, v5")
    a(f"v_add_u32 v5, {28*64}, v5")
    a("s_lshl_b32 s9, s8, 1")
    a("s_sub_u32 s9, s7, s9")
    a("v_add_u32 v6, s9, v6")
    SAD = 12
    for it in range(4):
        a(f"v_add_u32 v8, {(28-4*it)>>3}, v6")
        a("v_and_b32 v8, 3, v8")
        a(f"v_lshl_add_u32 v{SAD+it}, v8, 4, v5")
        if it:
            a(f"v_subrev_u32 v{SAD+it}, {256*it}, v{SAD+it}")
    a("v_and_b32 v8, 15, v2")
    a("v_lshlrev_b32 v8, 3, v8")
    a("v_lshlrev_b32 v16, 4, v7")
    a("v_sub_u32 v16, v16, v8")
    a(f"s_mul_i32 s9, s7, {KT_ROW}")
    a("s_lshl_b32 s10, s8, 8")
    a("s_sub_u32 s9, s9, s10")
    a(f"s_add_u32 s9, s9, {KI_L + 2*2076 - 512*7 - 64*3}")
    a("v_add_u32 v16, s9, v16")
    a("s_waitcnt vmcnt(0) lgkmcnt(0)")
    a("s_barrier")
    ACC = 32
    SB = [64, 128]
    def rd_list(it):
        s = SB[it % 2]; f = s + 32
        ops = []
        for k in range(8):
            ops.append(f"ds_read_b128 v[{s+4*k}:{s+4*k+3}], v{SAD+it} offset:{2048*k}")
            for jj in range(2):
                d = f + 4 * k + 2 * jj
                ops.append(f"ds_read_b64 v[{d}:{d+1}], v16 offset:{512*(7-k) + 8*jj + 64*(3-it)}")
        return ops
    def mf(it, v, w):
        s = SB[it % 2]; f = s + 32
        n = v + w
        d = ACC + 4 * n
        return d, f"v[{s+4*v}:{s+4*v+3}], v[{f+4*w}:{f+4*w+3}]"
    first = set()
    ops0 = rd_list(0)
    for i, o in enumerate(ops0):
        a(o)
        if i == 11: a("s_waitcnt lgkmcnt(6)")
    a("s_waitcnt lgkmcnt(0)")
    for it in range(4):
        nxt = rd_list(it + 1) if it < 3 else []
        pairs = sorted([(v, w) for v in range(8) for w in range(8) if v + w <= 7], key=lambda p: (p[1], p[0]))
        for i, (v, w) in enumerate(pairs):
            d, opnds = mf(it, v, w)
            cin = f"v[{d}:{d+3}]" if d in first else "0"
            first.add(d)
            a(f"v_mfma_f32_16x16x32_bf16 v[{d}:{d+3}], {opnds}, {cin}")
            if i < len(nxt):
                a(nxt[i])
                if i == 11: a("s_waitcnt lgkmcnt(8)")
        if nxt:
            a("s_waitcnt lgkmcnt(0)")
    a("s_lshl_b32 s9, s5, 13")
    a(f"s_add_u32 s9, s9, {EP_L}")
    a("v_add_u32 v5, s9, v4")
    a("v_lshlrev_b32 v6, 4, v0")
    a(f"v_add_u32 v6, {EP_L}, v6")
    a("v_mul_u32_u24 v7, 7168, v0")
    a("s_lshl_b32 s9, s6, 1")
    a("s_nop 4")
    for n in range(8):
        a(f"ds_write_b128 v5, v[{ACC+4*n}:{ACC+4*n+3}] offset:{n*1024}")
    a("s_waitcnt lgkmcnt(0)")
    a("s_barrier")
    for w in range(8):
        a(f"ds_read_b128 v[{64+4*w}:{67+4*w}], v6 offset:{w*8192}")
    a("s_waitcnt lgkmcnt(0)")
    for c in range(4):
        for r in range(4):
            a(f"v_add_f32 v{64+4*c+r}, v{64+4*c+r}, v{80+4*c+r}")
    for r in range(4):
        a(f"v_cvt_pk_bf16_f32 v{96+2*r}, v{64+r}, v{68+r}")
        a(f"v_cvt_pk_bf16_f32 v{97+2*r}, v{72+r}, v{76+r}")
        if r < 2:
            a(f"buffer_store_dwordx2 v[{96+2*r}:{97+2*r}], v7, s[52:55], s9 offen offset:{r*1792}")
        else:
            if r == 2: a("s_add_u32 s9, s9, 3584")
            a(f"buffer_store_dwordx2 v[{96+2*r}:{97+2*r}], v7, s[52:55], s9 offen offset:{(r-2)*1792}")
    a("s_endpgm")
```

```python
import sys, math
from asmlib import *

NAME = "concat_heads__ssm_conv_s4d__linear_attn_block__prompt"
K1 = "s4dla_k1_kernel"
K2 = "s4dla_k2_kernel"

WS_KV = 0x0
WS_PQ = 0x10000
WS_KT = 0x210000
KT_ROW = 4224
WS_UB = 0x400000
UB_IMG = 256 * 448 * 16
LOG2E = 1.4426950408889634

P_U, P_LA, P_AI, P_CR, P_CI, P_LDT, P_D, P_X, P_W, P_WO, P_OUT, P_DBG, P_WS = 16, 18, 20, 22, 24, 26, 28, 30, 32, 34, 36, 38, 40

def srd(a, d, p, nbytes, off=0):
    if off:
        a(f"s_add_u32 s{d}, s{p}, 0x{off:x}")
        a(f"s_addc_u32 s{d+1}, s{p+1}, 0")
    else:
        a(f"s_mov_b32 s{d}, s{p}")
        a(f"s_mov_b32 s{d+1}, s{p+1}")
    a(f"s_mov_b32 s{d+2}, 0x{nbytes:x}")
    a(f"s_mov_b32 s{d+3}, 0x20000")

def prologue(a, ngrid, endlabel):
    a(f"s_cmp_ge_u32 s2, {ngrid}")
    a(f"s_cbranch_scc1 {endlabel}")
    a("s_load_dwordx16 s[16:31], s[0:1], 0")
    a("s_load_dwordx8 s[32:39], s[0:1], 64")
    a("s_load_dwordx2 s[40:41], s[0:1], 96")
    a("v_lshrrev_b32 v1, 6, v0")
    a("v_and_b32 v2, 63, v0")
    a("s_and_b32 s3, s2, 7")
    a("s_lshr_b32 s4, s2, 3")
    a("v_readfirstlane_b32 s5, v1")

def phi_pack(a, acc, dst, tmp, s_log2e, s_eps):
    for p in range(0, 8, 2):
        t = tmp
        for q in range(2):
            r = 2 * (p + q)
            a(f"v_cvt_pk_bf16_f32 v{t+4*q}, v{acc+r}, v{acc+r+1}")
        for q in range(2):
            a(f"v_and_b32 v{t+4*q+1}, 0xffff0000, v{t+4*q}")
            a(f"v_lshlrev_b32 v{t+4*q}, 16, v{t+4*q}")
        for q in range(2):
            a(f"v_mul_f32 v{t+4*q+2}, s{s_log2e}, v{t+4*q}")
            a(f"v_mul_f32 v{t+4*q+3}, s{s_log2e}, v{t+4*q+1}")
        for q in range(2):
            a(f"v_exp_f32_e64 v{t+4*q+2}, v{t+4*q+2} clamp")
            a(f"v_exp_f32_e64 v{t+4*q+3}, v{t+4*q+3} clamp")
        for q in range(2):
            a(f"v_max_f32 v{t+4*q}, s{s_eps}, v{t+4*q}")
            a(f"v_max_f32 v{t+4*q+1}, s{s_eps}, v{t+4*q+1}")
        for q in range(2):
            a(f"v_add_f32 v{t+4*q}, v{t+4*q}, v{t+4*q+2}")
            a(f"v_add_f32 v{t+4*q+1}, v{t+4*q+1}, v{t+4*q+3}")
        for q in range(2):
            a(f"v_cvt_pk_bf16_f32 v{dst+p+q}, v{t+4*q}, v{t+4*q+1}")

SLOT = 32768
def k1_gemm(a):
    a.comment("---- GEMM roles: decode ----")
    a("s_lshr_b32 s6, s3, 1")
    a("s_lshl_b32 s6, s6, 2")
    a("s_and_b32 s7, s3, 1")
    a("s_lshr_b32 s8, s4, 2")
    a("s_add_u32 s8, s8, s6")
    a("s_and_b32 s9, s4, 3")
    a("s_lshl_b32 s10, s7, 2")
    a("s_add_u32 s9, s9, s10")
    a("s_mul_i32 s10, s9, 112")
    a("s_add_u32 s11, s10, 1792")
    a("s_add_u32 s10, s10, 896")
    a("s_sub_u32 s12, s4, 16")
    a("s_lshr_b32 s13, s12, 1")
    a("s_add_u32 s13, s13, s6")
    a("s_and_b32 s12, s12, 1")
    a("s_lshl_b32 s14, s7, 1")
    a("s_add_u32 s12, s12, s14")
    a("s_mul_i32 s14, s12, 224")
    a("s_add_u32 s15, s14, 112")
    a("s_cmp_lt_u32 s4, 16")
    a("s_cselect_b32 s8, s8, s13")
    a("s_cselect_b32 s9, s9, s12")
    a("s_cselect_b32 s10, s10, s14")
    a("s_cselect_b32 s11, s11, s15")
    a("v_lshrrev_b32 v7, 3, v2")
    a("v_lshrrev_b32 v8, 4, v2")
    a("v_and_b32 v9, 7, v2")
    a("s_lshl_b32 s12, s8, 7")
    a("s_lshl_b32 s13, s5, 4")
    a("s_add_u32 s12, s12, s13")
    a("v_add_u32 v10, s12, v7")
    a("v_mul_u32_u24 v10, 896, v10")
    a("v_xor_b32 v11, v9, v8")
    a("v_lshl_add_u32 v3, v11, 4, v10")
    a("v_xor_b32 v11, 4, v11")
    a("v_lshl_add_u32 v4, v11, 4, v10")
    a("v_add_u32 v4, 7168, v4")
    a("s_lshl_b32 s13, s5, 3")
    a("v_add_u32 v10, s13, v7")
    a("v_mul_u32_u24 v10, 2688, v10")
    a("v_and_b32 v11, 1, v8")
    a("v_lshlrev_b32 v11, 2, v11")
    a("v_xor_b32 v11, v11, v9")
    a("v_lshl_add_u32 v10, v11, 4, v10")
    a("v_add_u32 v5, s10, v10")
    a("v_add_u32 v6, s11, v10")
    a("s_lshl_b32 s12, s5, 11")
    a("s_lshl_b32 s13, s5, 10")
    a("s_add_u32 s13, s13, 16384")
    a("s_waitcnt lgkmcnt(0)")
    srd(a, 44, P_X, 2048 * 896)
    srd(a, 48, P_W, 448 * 2688)
    srd(a, 52, P_WS, 0x10000, WS_KV)
    srd(a, 56, P_WS, 0x200000, WS_PQ)
    srd(a, 60, P_DBG, 256)
    L = a.newlabel("Lnz")
    a("s_mov_b32 s64, 0")
    a("s_cmp_ge_u32 s4, 16")
    a(f"s_cbranch_scc1 {L}")
    a("s_cmp_lg_u32 s8, 0")
    a(f"s_cbranch_scc1 {L}")
    a("s_mov_b32 s64, 1")
    a("v_mov_b32 v12, 0\nv_mov_b32 v13, 0\nv_mov_b32 v14, 0\nv_mov_b32 v15, 0")
    a("v_lshlrev_b32 v10, 4, v0")
    a("s_lshl_b32 s14, s9, 13")
    a("buffer_store_dwordx4 v[12:15], v10, s[52:55], s14 offen sc1")
    a.label(L)

    def issue_chunk(c):
        slot = c % 5
        a(f"s_movk_i32 s14, {128*c}")
        a(f"s_mov_b32 s15, {172032*c}")
        a(f"s_add_u32 m0, s12, {slot*SLOT}")
        a("s_nop 0")
        a("buffer_load_dwordx4 v3, s[44:47], s14 offen lds")
        a(f"s_add_u32 m0, s13, {slot*SLOT}")
        a("s_nop 0")
        a("buffer_load_dwordx4 v5, s[48:51], s15 offen lds")
        a(f"s_add_u32 m0, s12, {slot*SLOT+1024}")
        a("s_nop 0")
        a("buffer_load_dwordx4 v4, s[44:47], s14 offen lds")
        a(f"s_add_u32 m0, s13, {slot*SLOT+8192}")
        a("s_nop 0")
        a("buffer_load_dwordx4 v6, s[48:51], s15 offen lds")
    for c in range(5):
        issue_chunk(c)
    a("v_and_b32 v7, 31, v2")
    a("v_lshrrev_b32 v8, 5, v2")
    a("v_bfe_u32 v9, v2, 1, 3")
    a("v_xor_b32 v9, v9, v8")
    a("s_and_b32 s14, s5, 3")
    a("s_lshl_b32 s15, s14, 12")
    a("v_lshlrev_b32 v7, 7, v7")
    a("v_lshl_add_u32 v7, v9, 4, v7")
    a("v_add_u32 v16, s15, v7")
    a("v_xor_b32 v17, 32, v16")
    a("v_xor_b32 v18, 64, v16")
    a("v_xor_b32 v19, 0x60, v16")
    a("s_lshr_b32 s65, s5, 2")
    a("s_mul_i32 s15, s65, 56")
    a("v_bfe_u32 v7, v2, 4, 1")
    a("v_lshlrev_b32 v7, 5, v7")
    a("v_and_b32 v9, 3, v2")
    a("v_lshl_add_u32 v7, v9, 3, v7")
    a("v_add_u32 v7, s15, v7")
    a("v_bfe_u32 v9, v2, 3, 1")
    a("v_lshlrev_b32 v9, 6, v9")
    a("v_xor_b32 v7, v7, v9")
    a("v_bfe_u32 v9, v2, 2, 2")
    a("v_lshl_add_u32 v9, v8, 3, v9")
    a("v_lshl_add_u32 v7, v9, 7, v7")
    a("v_add_u32 v20, 16384, v7")
    a(f"s_mov_b32 s66, {fhex(LOG2E)}")
    a(f"s_mov_b32 s67, {fhex(1e-6)}")
    a("s_cmp_ge_u32 s4, 16")
    a("s_cbranch_scc1 L_k1_q")

    FR = 32
    ACC0, ACC1 = 80, 96
    def main_loop(is_q):
        waits = [16, 12, 12, 12, 8, 4, 0]
        cur_base = 0
        for c in range(7):
            slot = c % 5
            w = waits[c]
            if (not is_q) and c == 6:
                w = 1
            if (not is_q) and c in (4, 5):
                w += 1
            a(f"s_waitcnt vmcnt({w})")
            a("s_barrier")
            if c == 0 and not is_q:
                L2 = a.newlabel("Lnf")
                a("s_cmp_eq_u32 s64, 0")
                a(f"s_cbranch_scc1 {L2}")
                a("s_cmp_lg_u32 s5, 0")
                a(f"s_cbranch_scc1 {L2}")
                a("v_mov_b32 v10, 1")
                a("v_mov_b32 v11, 0")
                a("s_lshl_b32 s14, s9, 2")
                a("s_mov_b64 exec, 1")
                a("buffer_store_dword v10, v11, s[60:63], s14 offen sc1")
                a("s_mov_b64 exec, -1")
                a("s_waitcnt vmcnt(0)")
                a.label(L2)
            if c in (1, 2):
                issue_chunk(c + 4)
            if c == 3 and not is_q:
                a("v_mov_b32 v11, 0")
                a("s_lshl_b32 s14, s9, 2")
                a("buffer_load_dword v21, v11, s[60:63], s14 offen sc1")
            want = (slot // 2) * 65536
            if want != cur_base:
                d = want - cur_base
                for r in range(16, 21):
                    if d > 0: a(f"v_add_u32 v{r}, 0x{d:x}, v{r}")
                    else: a(f"v_subrev_u32 v{r}, 0x{-d:x}, v{r}")
                cur_base = want
            so = slot * SLOT - cur_base
            def reads(k):
                f = FR + 12 * k
                a(f"ds_read_b128 v[{f}:{f+3}], v{16+k} offset:{so}")
                for seg in range(2):
                    for jj in range(2):
                        d = f + 4 + 4 * seg + 2 * jj
                        a(f"ds_read_b64_tr_b16 v[{d}:{d+1}], v20 offset:{so + seg*8192 + (16*k+4*jj)*128}")
            def mfma(k):
                f = FR + 12 * k
                for seg, acc in ((0, ACC0), (1, ACC1)):
                    wf = f + 4 + 4 * seg
                    cin = "0" if (c == 0 and k == 0) else f"v[{acc}:{acc+15}]"
                    if is_q:
                        a(f"v_mfma_f32_32x32x16_bf16 v[{acc}:{acc+15}], v[{wf}:{wf+3}], v[{f}:{f+3}], {cin}")
                    else:
                        a(f"v_mfma_f32_32x32x16_bf16 v[{acc}:{acc+15}], v[{f}:{f+3}], v[{wf}:{wf+3}], {cin}")
            reads(0); reads(1); reads(2)
            a("s_waitcnt lgkmcnt(10)")
            mfma(0)
            reads(3)
            a("s_waitcnt lgkmcnt(10)")
            mfma(1)
            a("s_waitcnt lgkmcnt(5)")
            mfma(2)
            a("s_waitcnt lgkmcnt(0)")
            mfma(3)

    main_loop(False)
    PK, VV, TMP = 32, 40, 48
    a("s_nop 7")
    a("s_nop 7")
    phi_pack(a, ACC0, PK, TMP, 66, 67)
    for p in range(8):
        a(f"v_cvt_pk_bf16_f32 v{VV+p}, v{ACC1+2*p}, v{ACC1+2*p+1}")
    a("s_mov_b32 s14, 0x10000000")
    a("s_mov_b32 s15, 0x10000000")
    a("s_mov_b64 exec, s[14:15]")
    for p in range(8):
        a(f"v_mov_b32 v{VV+p}, 0x3f803f80")
    a("s_mov_b64 exec, -1")
    a("s_nop 1")
    KV = 56
    a(f"v_mfma_f32_32x32x16_bf16 v[{KV}:{KV+15}], v[{PK}:{PK+3}], v[{VV}:{VV+3}], 0")
    a(f"v_mfma_f32_32x32x16_bf16 v[{KV}:{KV+15}], v[{PK+4}:{PK+7}], v[{VV+4}:{VV+7}], v[{KV}:{KV+15}]")
    XB = 2 * SLOT
    a("v_lshlrev_b32 v10, 4, v2")
    a("s_lshl_b32 s14, s5, 12")
    a(f"s_add_u32 s14, s14, {XB}")
    a("v_add_u32 v11, s14, v10")
    a("s_and_b32 s14, s5, 3")
    a("s_lshl_b32 s14, s14, 10")
    a("s_lshl_b32 s15, s65, 14")
    a("s_add_u32 s14, s14, s15")
    a(f"s_add_u32 s14, s14, {XB}")
    a("v_add_u32 v12, s14, v10")
    a("s_nop 7")
    a("s_nop 3")
    for q in range(4):
        a(f"ds_write_b128 v11, v[{KV+4*q}:{KV+4*q+3}] offset:{q*1024}")
    a("s_waitcnt lgkmcnt(0)")
    a("s_barrier")
    for i in range(4):
        a(f"ds_read_b128 v[{32+4*i}:{35+4*i}], v12 offset:{i*4096}")
    Ls, Lok = a.newlabel("Lspin"), a.newlabel("Lok")
    a("s_waitcnt vmcnt(0)")
    a("s_movk_i32 s68, 4000")
    a("v_mov_b32 v11, 0")
    a("s_lshl_b32 s14, s9, 2")
    a.label(Ls)
    a("v_readfirstlane_b32 s15, v21")
    a("s_cmp_lg_u32 s15, 0")
    a(f"s_cbranch_scc1 {Lok}")
    a("s_sub_u32 s68, s68, 1")
    a("s_cmp_eq_u32 s68, 0")
    a(f"s_cbranch_scc1 {Lok}")
    a("s_sleep 4")
    a("buffer_load_dword v21, v11, s[60:63], s14 offen sc1")
    a("s_waitcnt vmcnt(0)")
    a(f"s_branch {Ls}")
    a.label(Lok)
    a("s_waitcnt lgkmcnt(0)")
    for r in range(4):
        a(f"v_add_f32 v{32+r}, v{32+r}, v{36+r}")
        a(f"v_add_f32 v{40+r}, v{40+r}, v{44+r}")
    for r in range(4):
        a(f"v_add_f32 v{32+r}, v{32+r}, v{40+r}")
    a("s_lshl_b32 s14, s9, 1")
    a("s_add_u32 s14, s14, s65")
    a("s_lshl_b32 s14, s14, 12")
    a("s_and_b32 s15, s5, 3")
    a("s_lshl_b32 s15, s15, 10")
    a("s_add_u32 s14, s14, s15")
    a("v_lshlrev_b32 v10, 2, v2")
    for r in range(4):
        a(f"buffer_atomic_add_f32 v{32+r}, v10, s[52:55], s14 offen offset:{r*256}")
    a("s_endpgm")

    a.label("L_k1_q")
    main_loop(True)
    a("s_nop 7")
    a("s_nop 7")
    a("s_lshl_b32 s14, s8, 2")
    a("s_and_b32 s15, s5, 3")
    a("s_add_u32 s14, s14, s15")
    a("s_lshl_b32 s14, s14, 4")
    a("s_lshl_b32 s15, s9, 2")
    a("s_add_u32 s14, s14, s15")
    a("s_add_u32 s14, s14, s65")
    a("s_lshl_b32 s14, s14, 11")
    a("s_add_u32 s15, s14, 4096")
    a("v_lshlrev_b32 v10, 4, v2")
    phi_pack(a, ACC0, 32, 48, 66, 67)
    a("buffer_store_dwordx4 v[32:35], v10, s[56:59], s14 offen")
    a("buffer_store_dwordx4 v[36:39], v10, s[56:59], s14 offen offset:1024")
    phi_pack(a, ACC1, 40, 48, 66, 67)
    a("buffer_store_dwordx4 v[40:43], v10, s[56:59], s15 offen")
    a("buffer_store_dwordx4 v[44:47], v10, s[56:59], s15 offen offset:1024")
    a("s_endpgm")

def k2_w4(a):
    WO_L, KVF_L, PART_L = 0, 57344, 90112
    PSTR = 272
    PHALF = 128 * PSTR
    a("s_sub_u32 s6, s4, 14")
    a("s_cmp_ge_u32 s6, 7")
    a("s_cselect_b32 s7, 1, 0")
    a("s_lshl_b32 s8, s3, 1")
    a("s_add_u32 s8, s8, s7")
    a("s_mul_i32 s7, s7, 7")
    a("s_sub_u32 s9, s6, s7")
    a("s_and_b32 s10, s5, 3")
    a("s_lshr_b32 s11, s5, 2")
    a("v_and_b32 v4, 3, v2")
    a("v_bfe_u32 v5, v2, 3, 2")
    a("v_lshl_add_u32 v4, v5, 2, v4")
    a("v_bfe_u32 v5, v2, 2, 1")
    a("v_add_u32 v6, 2, v4")
    a("v_lshrrev_b32 v6, 4, v6")
    a("v_or_b32 v5, v5, v6")
    a("v_mad_u32_u24 v4, v5, 14, v4")
    a("v_and_b32 v5, 32, v2")
    a("v_add_lshl_u32 v3, v4, v5, 2")
    a("v_lshlrev_b32 v4, 4, v2")
    a("s_waitcnt lgkmcnt(0)")
    srd(a, 44, P_WS, 0x10000, WS_KV)
    srd(a, 48, P_WS, 0x200000, WS_PQ)
    srd(a, 52, P_WO, 448 * 896)
    srd(a, 56, P_OUT, 2048 * 1792)
    KVR = 64
    a("s_lshl_b32 s12, s5, 13")
    a("s_add_u32 s13, s12, 4096")
    for hh in range(2):
        for r in range(16):
            a(f"buffer_load_dword v{KVR+16*hh+r}, v3, s[44:47], s{12+hh} offen offset:{r*256}")
    PQR = 96
    a("s_lshl_b32 s12, s8, 2")
    a("s_add_u32 s12, s12, s10")
    a("s_lshl_b32 s12, s12, 4")
    a("s_lshl_b32 s13, s11, 3")
    a("s_add_u32 s12, s12, s13")
    a("s_lshl_b32 s12, s12, 11")
    for i in range(16):
        a(f"buffer_load_dwordx4 v[{PQR+4*i}:{PQR+4*i+3}], v4, s[48:51], s12 offen offset:{(i%4)*1024}")
        if i % 4 == 3 and i != 15:
            a("s_add_u32 s12, s12, 4096")
    a("v_lshrrev_b32 v5, 3, v2")
    a("v_bfe_u32 v6, v2, 4, 1")
    a("v_lshlrev_b32 v6, 2, v6")
    a("v_and_b32 v7, 7, v2")
    a("v_xor_b32 v6, v6, v7")
    a("v_lshlrev_b32 v6, 4, v6")
    a("s_mul_i32 s12, s10, 112")
    a("s_mul_i32 s13, s11, 14")
    a("s_add_u32 s12, s12, s13")
    a("s_mul_i32 s12, s12, 896")
    a("s_lshl_b32 s13, s9, 7")
    a("s_add_u32 s12, s12, s13")
    a("s_mul_i32 s13, s5, 7168")
    for i in range(7):
        a(f"v_add_u32 v7, {8*i}, v5")
        a("v_mul_u32_u24 v8, 37, v7")
        a("v_lshrrev_b32 v8, 9, v8")
        a("v_mad_u32_u24 v7, v8, 14, v7")
        a("v_mul_u32_u24 v7, 896, v7")
        a("v_add_u32 v7, v7, v6")
        a(f"s_add_u32 m0, s13, {WO_L + i*1024}")
        a("s_nop 0")
        a("buffer_load_dwordx4 v7, s[52:55], s12 offen lds")
    a("s_lshl_b32 s12, s5, 12")
    a(f"s_add_u32 s12, s12, {KVF_L}")
    a("v_add_u32 v5, s12, v4")
    a("s_waitcnt vmcnt(23)")
    for i in range(16):
        a(f"v_cvt_pk_bf16_f32 v{32+i}, v{KVR+2*i}, v{KVR+2*i+1}")
    a("s_mov_b32 s12, 0")
    a("s_mov_b32 s13, -1")
    a("s_mov_b64 exec, s[12:13]")
    for hh in range(2):
        a(f"v_mov_b32 v{32+8*hh+6}, 0")
        a(f"v_mov_b32 v{32+8*hh+7}, 0")
    a("s_mov_b64 exec, -1")
    for i in range(4):
        a(f"ds_write_b128 v5, v[{32+4*i}:{35+4*i}] offset:{i*1024}")
    a("s_lshl_b32 s12, s11, 14")
    a(f"s_add_u32 s12, s12, {KVF_L}")
    a("v_add_u32 v5, s12, v4")
    a(f"s_mov_b32 s14, {fhex(1e-6)}")
    a("s_waitcnt lgkmcnt(0)")
    a("s_barrier")
    KF = 160
    for i in range(15):
        a(f"ds_read_b128 v[{KF+4*i}:{KF+4*i+3}], v5 offset:{i*1024}")
    D0, D1 = 32, 48
    OF = 64
    OFB = PQR - 8
    a("s_waitcnt vmcnt(7)")
    def num(hI):
        D = D0 if hI % 2 == 0 else D1
        k = KF + 8 * hI; p = PQR + 8 * hI
        a(f"v_mfma_f32_32x32x16_bf16 v[{D}:{D+15}], v[{k}:{k+3}], v[{p}:{p+3}], 0")
        a(f"v_mfma_f32_32x32x16_bf16 v[{D}:{D+15}], v[{k+4}:{k+7}], v[{p+4}:{p+7}], v[{D}:{D+15}]")
    def fin(hI):
        D = D0 if hI % 2 == 0 else D1
        a(f"v_add_f32 v6, s14, v{D+14}")
        a("v_rcp_f32 v6, v6")
        a("s_nop 0")
        for r in range(14):
            a(f"v_mul_f32 v{D+r}, v{D+r}, v6")
        for p in range(7):
            a(f"v_cvt_pk_bf16_f32 v{OFB+7*hI+p}, v{D+2*p}, v{D+2*p+1}")
    a("s_waitcnt lgkmcnt(13)")
    num(0)
    a(f"ds_read_b128 v[{KF+60}:{KF+63}], v5 offset:{15*1024}")
    for hI in range(8):
        if hI < 7:
            a(f"s_waitcnt lgkmcnt({max(0, 12 - 2*hI)})")
            num(hI + 1)
            a("s_nop 7")
            a("s_nop 1")
        else:
            a("s_nop 7")
            a("s_nop 7")
        fin(hI)
    a("v_lshrrev_b32 v6, 5, v2")
    a("v_mul_u32_u24 v6, 224, v6")
    a("v_bfe_u32 v7, v2, 2, 2")
    a("v_add_u32 v6, v6, v7")
    a("s_mul_i32 s12, s11, 112")
    a("v_add_u32 v6, s12, v6")
    a("v_lshlrev_b32 v6, 7, v6")
    a("v_bfe_u32 v7, v2, 4, 1")
    a("v_lshlrev_b32 v7, 5, v7")
    a("v_and_b32 v8, 3, v2")
    a("v_lshl_add_u32 v7, v8, 3, v7")
    a("v_bfe_u32 v8, v2, 3, 1")
    a("v_lshl_add_u32 v7, v8, 6, v7")
    a("v_add_u32 v6, v6, v7")
    a("v_xor_b32 v7, 64, v6")
    a("s_waitcnt vmcnt(0)")
    a("s_barrier")
    WF = 160
    def rd(k):
        f = WF + 8 * (k % 4)
        for nt in range(2):
            for jj in range(2):
                d = f + 4 * nt + 2 * jj
                a(f"ds_read_b64_tr_b16 v[{d}:{d+1}], v{6+nt} offset:{WO_L + k*1024 + jj*512}")
    rd(0); rd(1); rd(2)
    for k in range(14):
        left = min(13 - k, 2)
        a(f"s_waitcnt lgkmcnt({4*left})")
        f = WF + 8 * (k % 4)
        o = OFB + 4 * k
        for nt, D in ((0, D0), (1, D1)):
            cin = "0" if k == 0 else f"v[{D}:{D+15}]"
            a(f"v_mfma_f32_32x32x16_bf16 v[{D}:{D+15}], v[{f+4*nt}:{f+4*nt+3}], v[{o}:{o+3}], {cin}")
        if k + 3 < 14:
            rd(k + 3)
    a("v_and_b32 v6, 31, v2")
    a("s_lshl_b32 s12, s10, 5")
    a("v_add_u32 v6, s12, v6")
    a(f"v_mul_u32_u24 v6, {PSTR}, v6")
    a("v_lshrrev_b32 v7, 5, v2")
    a("v_lshl_add_u32 v6, v7, 4, v6")
    a(f"s_mul_i32 s12, s11, {PHALF}")
    a(f"s_add_u32 s12, s12, {PART_L}")
    a("v_add_u32 v6, s12, v6")
    a("v_lshrrev_b32 v8, 3, v0")
    a("v_and_b32 v9, 7, v0")
    a(f"v_mul_u32_u24 v10, {PSTR}, v8")
    a("v_lshl_add_u32 v10, v9, 5, v10")
    a(f"v_add_u32 v10, {PART_L}, v10")
    a("v_mul_u32_u24 v11, 1792, v8")
    a("v_lshl_add_u32 v11, v9, 4, v11")
    a(f"s_mul_i32 s12, s8, {128*1792}")
    a("s_lshl_b32 s13, s9, 7")
    a("s_add_u32 s12, s12, s13")
    a("s_add_u32 s12, s12, 896")
    a(f"s_add_u32 s13, s12, {64*1792}")
    a("s_nop 3")
    for nt, D in ((0, D0), (1, D1)):
        for q in range(4):
            a(f"ds_write_b128 v6, v[{D+4*q}:{D+4*q+3}] offset:{nt*128 + q*32}")
    a("s_waitcnt lgkmcnt(0)")
    a("s_barrier")
    for t in range(2):
        for h in range(2):
            for u in range(2):
                d = 64 + 16 * t + 8 * h + 4 * u
                a(f"ds_read_b128 v[{d}:{d+3}], v10 offset:{t*64*PSTR + h*PHALF + u*16}")
    for t in range(2):
        a(f"s_waitcnt lgkmcnt({4 - 4*t})")
        b = 64 + 16 * t
        for i in range(8):
            a(f"v_add_f32 v{b+i}, v{b+i}, v{b+8+i}")
        for i in range(4):
            a(f"v_cvt_pk_bf16_f32 v{96+4*t+i}, v{b+2*i}, v{b+2*i+1}")
        a(f"buffer_store_dwordx4 v[{96+4*t}:{99+4*t}], v11, s[56:59], s{12+t} offen")
    a("s_endpgm")

def build(parts=("B",)):
    a = Asm()
    hdr = open("cdna_kernels/" + NAME + ".s.ref").read().split("; Override launch")[0]
    a.raw(hdr.rstrip("\n"))
    a.raw(f"; @launch kernel={K1} grid=(256,1,1) block=(512,1,1) lds=163840")
    a.raw(f"; @launch kernel={K2} grid=(224,1,1) block=(512,1,1) lds=163840")
    a.raw('.amdgcn_target "amdgcn-amd-amdhsa--gfx950"')
    a.raw(".text")
    a.raw(f".globl {K1}\n.p2align 8\n.type {K1},@function")
    a.label(K1)
    prologue(a, 256, "L_k1_end")
    a("s_cmp_ge_u32 s4, 24")
    a("s_cbranch_scc1 L_k1_a")
    k1_gemm(a)
    a.label("L_k1_a")
    if "A" in parts:
        import gen_a
        gen_a.k1_a(a)
    a.label("L_k1_end")
    a("s_endpgm")
    a.raw(f".globl {K2}\n.p2align 8\n.type {K2},@function")
    a.label(K2)
    prologue(a, 224, "L_k2_end")
    a("s_cmp_lt_u32 s4, 14")
    a("s_cbranch_scc1 L_k2_conv")
    k2_w4(a)
    a.label("L_k2_conv")
    if "A" in parts:
        import gen_a
        gen_a.k2_conv(a)
    a.label("L_k2_end")
    a("s_endpgm")
    a.raw('.section .rodata,"a"')
    for k in (K1, K2):
        a.raw(f""".p2align 6
.amdhsa_kernel {k}
  .amdhsa_next_free_vgpr 256
  .amdhsa_next_free_sgpr 96
  .amdhsa_accum_offset 256
  .amdhsa_group_segment_fixed_size 0
  .amdhsa_kernarg_size 104
  .amdhsa_user_sgpr_count 2
  .amdhsa_user_sgpr_kernarg_segment_ptr 1
  .amdhsa_system_sgpr_workgroup_id_x 1
.end_amdhsa_kernel""")
    return a.text()

if __name__ == "__main__":
    parts = sys.argv[2] if len(sys.argv) > 2 else "B"
    out = sys.argv[1] if len(sys.argv) > 1 else "k.s"
    open(out, "w").write(build(parts))
```

```python
class Asm:
    def __init__(self):
        self.lines = []
        self.lab = 0
    def __call__(self, s):
        for ln in s.strip("\n").split("\n"):
            ln = ln.strip()
            if ln:
                self.lines.append("  " + ln if not ln.endswith(":") else ln)
    def label(self, name):
        self.lines.append(name + ":")
    def newlabel(self, stem="L"):
        self.lab += 1
        return f"{stem}_{self.lab}"
    def comment(self, s):
        self.lines.append("  ; " + s)
    def raw(self, s):
        self.lines.append(s)
    def text(self):
        return "\n".join(self.lines) + "\n"

def vr(b, n=1):
    return f"v{b}" if n == 1 else f"v[{b}:{b+n-1}]"
def sr(b, n=1):
    return f"s{b}" if n == 1 else f"s[{b}:{b+n-1}]"
import struct
def f32bits(x):
    return struct.unpack("<I", struct.pack("<f", x))[0]
def fhex(x):
    return f"0x{f32bits(x):08x}"

STAMPS = False
STAMP_BASE = 0x1000000
def stamp(a, i):
    if STAMPS:
        a(f"s_memtime s[{80+2*i}:{81+2*i}]")
def stamp_init(a):
    if STAMPS:
        a("s_memrealtime s[94:95]")
        a("s_memtime s[78:79]")
        for i in range(7):
            a(f"s_mov_b32 s{80+2*i}, 0")
def stamp_flush(a, kern, wait_vm=True):
    if STAMPS:
        if wait_vm: a("s_waitcnt vmcnt(0)")
        a("s_memtime s[92:93]")
        a("s_waitcnt lgkmcnt(0)")
        a("s_mov_b64 exec, 1")
        a(f"s_add_u32 s96, s40, 0x{STAMP_BASE + kern*256*512:x}")
        a("s_addc_u32 s97, s41, 0")
        a("s_lshl_b32 s98, s2, 3")
        a("s_add_u32 s98, s98, s5")
        a("s_lshl_b32 s98, s98, 6")
        a("v_mov_b32 v250, s98")
        a("v_mov_b32 v240, s94")
        a("v_mov_b32 v241, s78")
        for i in range(6):
            a(f"v_mov_b32 v{242+i}, s{80+2*i}")
        a("v_mov_b32 v248, s92")
        a("v_mov_b32 v249, s4")
        a("global_store_dwordx4 v250, v[240:243], s[96:97]")
        a("global_store_dwordx4 v250, v[244:247], s[96:97] offset:16")
        a("global_store_dwordx2 v250, v[248:249], s[96:97] offset:32")
```

```python
import math, struct
from asmlib import *
from gen import *
import sys
OPT = set(sys.argv[3:])

INV2PI = 0.15915494309189535
C_HI = struct.unpack("<f", struct.pack("<f", INV2PI))[0]
C_LO = INV2PI - C_HI

RS = 2064
NROW = 53
UT_L = NROW * RS
T_L = UT_L
WIN2 = 29

def cmul(a, d, x, y):
    a(f"v_pk_mul_f32 v[{d}:{d+1}], v[{x}:{x+1}], v[{y}:{y+1}] op_sel:[0,0] op_sel_hi:[1,0]")
    a(f"v_pk_fma_f32 v[{d}:{d+1}], v[{x}:{x+1}], v[{y}:{y+1}], v[{d}:{d+1}] op_sel:[1,1,0] op_sel_hi:[0,1,1] neg_lo:[1,0,0]")
def cmul_ops(d, x, y):
    return [f"v_pk_mul_f32 v[{d}:{d+1}], v[{x}:{x+1}], v[{y}:{y+1}] op_sel:[0,0] op_sel_hi:[1,0]",
            f"v_pk_fma_f32 v[{d}:{d+1}], v[{x}:{x+1}], v[{y}:{y+1}], v[{d}:{d+1}] op_sel:[1,1,0] op_sel_hi:[0,1,1] neg_lo:[1,0,0]"]
def hmul_ops(d, x, y):
    return [f"v_pk_mul_f16 v{d}, v{x}, v{y} op_sel:[0,0] op_sel_hi:[1,0]",
            f"v_pk_fma_f16 v{d}, v{x}, v{y}, v{d} op_sel:[1,1,0] op_sel_hi:[0,1,1] neg_lo:[1,0,0]"]

def interleave(a, streams):
    idx = [0] * len(streams)
    live = True
    while live:
        live = False
        for i, s in enumerate(streams):
            if idx[i] < len(s):
                a(s[idx[i]]); idx[i] += 1; live = True

def wr(row, v):
    off = row * RS if row < WIN2 else (row - WIN2) * RS
    if "nowr" in OPT: return "s_nop 0"
    if "wrb32" in OPT: return f"ds_write_b32 v{23 if row < WIN2 else 19}, v{v} offset:{off}"
    return f"ds_write_addtid_b32 v{v} offset:{off}"

def k1_a(a):
    a.comment("---- A role: u transposition + K generation ----")
    a("s_sub_u32 s6, s4, 24")
    a("s_mul_i32 s7, s3, 56")
    a("s_lshl_b32 s8, s6, 3")
    a("s_add_u32 s7, s7, s8")
    a("s_add_u32 s7, s7, s5")
    a("v_lshlrev_b32 v3, 3, v2")
    a("s_lshl_b32 s8, s7, 9")
    a("v_add_u32 v3, s8, v3")
    a("s_lshl_b32 s8, s7, 1")
    a("v_mov_b32 v4, s8")
    a("v_mov_b32 v16, 0")
    a("v_mov_b32 v17, 0")
    a("v_lshrrev_b32 v5, 3, v2")
    a("s_lshl_b32 s8, s6, 8")
    a("s_lshl_b32 s9, s5, 3")
    a("s_add_u32 s8, s8, s9")
    a("s_sub_u32 s8, s8, 8")
    a("v_add_u32 v5, s8, v5")
    a("s_movk_i32 s9, 896")
    a("v_mul_lo_u32 v5, v5, s9")
    a("v_bfe_u32 v6, v2, 4, 1")
    a("v_lshlrev_b32 v6, 2, v6")
    a("v_and_b32 v7, 7, v2")
    a("v_xor_b32 v6, v6, v7")
    a("v_lshl_add_u32 v5, v6, 4, v5")
    a("s_mul_i32 s9, s3, 112")
    a("v_add_u32 v5, s9, v5")
    a("s_lshl_b32 s9, s5, 10")
    a(f"s_add_u32 s9, s9, {UT_L}")
    a("s_waitcnt lgkmcnt(0)")
    srd(a, 44, P_U, 2048 * 896)
    srd(a, 48, P_WS, 4 * UB_IMG, WS_UB)
    srd(a, 52, P_WS, 448 * KT_ROW, WS_KT)
    stamp(a, 0)
    Lnp = a.newlabel("Lnp")
    a("s_cmp_ge_u32 s6, 7")
    a(f"s_cbranch_scc1 {Lnp}")
    a(f"global_load_dwordx2 v[12:13], v3, s[{P_CR}:{P_CR+1}]")
    a(f"global_load_dwordx2 v[14:15], v3, s[{P_CI}:{P_CI+1}]")
    a(f"global_load_short_d16_hi v16, v4, s[{P_LDT}:{P_LDT+1}]")
    a(f"global_load_dwordx2 v[8:9], v3, s[{P_LA}:{P_LA+1}]")
    a(f"global_load_dwordx2 v[10:11], v3, s[{P_AI}:{P_AI+1}]")
    a(f"global_load_short_d16_hi v17, v4, s[{P_D}:{P_D+1}]")
    a.label(Lnp)
    for i in range(4):
        a(f"s_add_u32 m0, s9, {i*8192}")
        a("s_nop 0")
        a("buffer_load_dwordx4 v5, s[44:47], 0 offen lds")
        a(f"v_add_u32 v5, {64*896}, v5")
    L33 = a.newlabel("L33")
    a("s_cmp_lg_u32 s5, 0")
    a(f"s_cbranch_scc1 {L33}")
    a(f"s_add_u32 m0, s9, {4*8192}")
    a("s_nop 0")
    a("buffer_load_dwordx4 v5, s[44:47], 0 offen lds")
    a.label(L33)

    def ut_part(st=False):
        a.comment("u transposition")
        if st: stamp(a, 1)
        a("s_and_b32 s10, s5, 3")
        a("s_lshr_b32 s11, s5, 2")
        a("v_bfe_u32 v5, v2, 2, 2")
        a("s_add_u32 s12, s10, 5")
        a("v_add_u32 v5, s12, v5")
        a("v_bfe_u32 v6, v5, 1, 1")
        a("v_lshlrev_b32 v6, 6, v6")
        a("v_lshrrev_b32 v7, 4, v2")
        a("v_lshlrev_b32 v7, 5, v7")
        a("v_and_b32 v18, 3, v2")
        a("v_lshl_add_u32 v7, v18, 3, v7")
        a("v_xor_b32 v6, v6, v7")
        a("v_lshl_add_u32 v5, v5, 7, v6")
        a("s_lshl_b32 s12, s11, 14")
        a(f"s_add_u32 s12, s12, {UT_L}")
        a("v_add_u32 v5, s12, v5")
        a("v_lshlrev_b32 v6, 4, v2")
        a(f"s_mul_i32 s12, s10, {UB_IMG}")
        a("s_lshl_b32 s13, s6, 5")
        a("s_lshl_b32 s14, s11, 4")
        a("s_add_u32 s13, s13, s14")
        a("s_mul_i32 s13, s13, 7168")
        a("s_add_u32 s12, s12, s13")
        a("s_mul_i32 s13, s3, 896")
        a("s_add_u32 s12, s12, s13")
        a("s_waitcnt vmcnt(0)")
        if st: stamp(a, 2)
        a("s_barrier")
        if st: stamp(a, 3)
        UR = 160
        for half in range(2):
            for i in range(8 * half, 8 * half + 8):
                for jj in range(2):
                    d = UR + 4 * i + 2 * jj
                    a(f"ds_read_b64_tr_b16 v[{d}:{d+1}], v5 offset:{i*1024 + jj*512}")
            a("s_waitcnt lgkmcnt(0)")
        if st: stamp(a, 4)
        a("s_mov_b32 s14, -1")
        a("s_mov_b32 s15, 0x00ffffff")
        a("s_mov_b64 exec, s[14:15]")
        for i in range(16):
            a(f"buffer_store_dwordx4 v[{UR+4*i}:{UR+4*i+3}], v6, s[48:51], s12 offen")
            if i < 15:
                a("s_add_u32 s12, s12, 7168")
        a("s_mov_b64 exec, -1")

    Lk = a.newlabel("Lkgen")
    a("s_cmp_lt_u32 s6, 7")
    a(f"s_cbranch_scc1 {Lk}")
    ut_part(True)
    stamp(a, 5)
    stamp_flush(a, 0)
    a("s_endpgm")
    a.label(Lk)

    a(f"s_mov_b32 s66, {fhex(LOG2E)}")
    a(f"s_mov_b32 s67, {fhex(-LOG2E)}")
    a(f"s_mov_b32 s68, {fhex(C_HI)}")
    a(f"s_mov_b32 s69, {fhex(C_LO)}")
    a(f"s_mov_b32 s70, {fhex(8.0)}")
    a(f"s_mov_b32 s71, {fhex(256.0)}")
    a("s_lshl_b32 s72, s5, 8")
    a(f"s_add_u32 s73, s72, {WIN2*RS}")
    a("v_and_b32 v20, 15, v2")
    a(f"v_mul_u32_u24 v20, {RS}, v20")
    a("v_lshrrev_b32 v21, 4, v2")
    a("v_lshl_add_u32 v20, v21, 4, v20")
    a("v_add_u32 v20, s72, v20")
    a(f"v_add_u32 v21, {21*RS}, v20")
    a("v_mov_b32 v22, 0x00003c00")
    a("v_lshlrev_b32 v19, 2, v2")
    a("v_add_u32 v23, s72, v19")
    a("v_add_u32 v19, s73, v19")
    a("s_waitcnt vmcnt(7)")
    a("v_and_b32 v24, 0x7fff7fff, v12")
    a("v_and_b32 v25, 0x7fff7fff, v13")
    a("v_and_b32 v26, 0x7fff7fff, v14")
    a("v_and_b32 v27, 0x7fff7fff, v15")
    a("v_pk_max_u16 v24, v24, v25")
    a("v_pk_max_u16 v26, v26, v27")
    a("v_mul_f32 v16, s66, v16")
    a("v_pk_max_u16 v24, v24, v26")
    a("v_exp_f32 v16, v16")
    a("v_lshrrev_b32 v25, 16, v24")
    a("v_and_b32 v24, 0xffff, v24")
    a("v_max_u32 v24, v24, v25")
    a("v_cvt_pk_bf16_f32 v16, v16, v16")
    a("v_and_b32 v16, 0xffff0000, v16")
    for ctl in ("row_shr:1 row_mask:0xf bank_mask:0xf", "row_shr:2 row_mask:0xf bank_mask:0xf",
                "row_shr:4 row_mask:0xf bank_mask:0xf", "row_shr:8 row_mask:0xf bank_mask:0xf",
                "row_bcast:15 row_mask:0xa bank_mask:0xf", "row_bcast:31 row_mask:0xc bank_mask:0xf"):
        a(f"v_max_u32_dpp v24, v24, v24 {ctl}")
        a("s_nop 1")
    a("v_readlane_b32 s74, v24, 63")
    a("v_readfirstlane_b32 s75, v16")
    a("s_nop 3")
    a("s_lshr_b32 s74, s74, 7")
    a("s_max_u32 s74, s74, 14")
    a("s_min_u32 s74, s74, 254")
    a("s_sub_u32 s76, 267, s74")
    a("s_lshl_b32 s76, s76, 23")
    a("s_sub_u32 s77, s74, 13")
    a("s_lshl_b32 s77, s77, 23")
    a("s_waitcnt vmcnt(4)")

    ACC = 224
    FA = 96
    Z1, Z2, Z4, Z256 = 32, 34, 36, 38
    Q = [None, 40, 42, 44, 46, 48, 50, 52]
    P = [None, 54, 56, 58]
    XA, XB = 60, 62
    RA, RB = 64, 66
    SA, SB = 68, 70
    QH = [22, 72, 73, 74, 75, 76, 77, 78]
    PH = [None, 79, 80, 81]
    H = [82, 83, 84, 85, 86, 87, 88, 89]

    def unpack(dst, src, ps):
        s = src + ps // 2
        if ps % 2 == 0: a(f"v_lshlrev_b32 v{dst}, 16, v{s}")
        else: a(f"v_and_b32 v{dst}, 0xffff0000, v{s}")

    def kpass(ps):
        a.comment(f"K pass {ps}")
        unpack(24, 8, ps)
        unpack(25, 10, ps)
        a("v_mul_f32 v24, s66, v24")
        a("v_exp_f32 v24, v24")
        a("v_mul_f32 v25, s75, v25")
        a("v_mul_f32 v26, s68, v25")
        a("v_cvt_pk_bf16_f32 v24, v24, v24")
        a("v_fma_f32 v27, v25, s68, -v26")
        a("v_and_b32 v24, 0xffff0000, v24")
        a("v_fmac_f32 v27, s69, v25")
        a("v_mul_f32 v24, s75, v24")
        a("v_mul_f32 v24, s67, v24")
        unpack(XA, 12, ps)
        unpack(XA + 1, 14, ps)
        a(f"v_mul_f32 v{XA}, s76, v{XA}")
        a(f"v_mul_f32 v{XA+1}, s76, v{XA+1}")
        st = []
        for (dst, sm, t, neg) in ((Z1, None, 28, False), (Q[1], 70, 90, True), (Z256, 71, 93, False)):
            s = []
            if sm is None:
                s += [f"v_exp_f32 v{t}, v24", f"v_fract_f32 v{t+1}, v26", f"v_add_f32 v{t+1}, v{t+1}, v27"]
            else:
                s += [f"v_mul_f32 v{t}, s{sm}, v24", f"v_exp_f32 v{t}, v{t}", f"v_mul_f32 v{t+1}, s{sm}, v26",
                      f"v_fract_f32 v{t+1}, v{t+1}", f"v_fmac_f32 v{t+1}, s{sm}, v27"]
            s += [f"v_cos_f32 v{t+2}, v{t+1}", f"v_sin_f32 v{t+1}, v{t+1}", "s_nop 0", f"v_mul_f32 v{dst}, v{t}, v{t+2}"]
            s += [f"v_mul_f32_e64 v{dst+1}, v{t}, {'-' if neg else ''}v{t+1}"]
            st.append(s)
        interleave(a, st)
        a("s_mov_b32 m0, s72")
        s1 = []
        cur, oth = XA, XB
        s2 = cmul_ops(RA, XA, Z256)
        hi = [0]
        def cv(stream, src, row):
            h = H[hi[0] % len(H)]; hi[0] += 1
            stream.append(f"v_cvt_pk_f16_f32 v{h}, v{src}, v{src+1}")
            stream.append(wr(row, h))
        for s in s2: a(s)
        a(wr(21, 22))
        s1 = []; H1 = [82, 83]; H2 = [84, 85]; H3 = [86, 87]
        def cvh(stream, hs, k, src, row):
            h = hs[k % 2]
            stream.append(f"v_cvt_pk_f16_f32 v{h}, v{src}, v{src+1}")
            stream.append(wr(row, h))
        cvh(s1, H1, 0, XA, 0)
        for f in range(1, 8):
            s1 += cmul_ops(oth, cur, Z1)
            cvh(s1, H1, f, oth, f)
            cur, oth = oth, cur
        s2 = cmul_ops(Z2, Z1, Z1) + cmul_ops(Z4, Z2, Z2)
        k = 0
        cvh(s2, H2, k, RA, 8); k += 1
        s2 += cmul_ops(RB, RA, Z256)
        s2 += cmul_ops(SA, RA, Z2); cvh(s2, H2, k, SA, 9); k += 1
        s2 += cmul_ops(SB, RA, Z4); cvh(s2, H2, k, SB, 10); k += 1
        s2 += cmul_ops(SA, SB, Z2); cvh(s2, H2, k, SA, 11); k += 1
        cvh(s2, H2, k, RB, 12); k += 1
        s2 += cmul_ops(RA, RB, Z256)
        s2 += cmul_ops(SA, RB, Z4); cvh(s2, H2, k, SA, 13); k += 1
        cvh(s2, H2, k, RA, 14); k += 1
        s2 += cmul_ops(RB, RA, Z256)
        s2 += cmul_ops(SA, RA, Z4); cvh(s2, H2, k, SA, 15); k += 1
        c_, o_ = RB, RA
        for row in range(16, 21):
            cvh(s2, H2, k, c_, row); k += 1
            if row < 20:
                s2 += cmul_ops(o_, c_, Z256)
                c_, o_ = o_, c_
        s3 = []
        def qcv(b):
            s3.append(f"v_cvt_pk_f16_f32 v{QH[b]}, v{Q[b]}, v{Q[b]+1}")
            s3.append(wr(21 + b, QH[b]))
        qcv(1)
        s3 += cmul_ops(Q[2], Q[1], Q[1]); qcv(2)
        s3 += cmul_ops(Q[4], Q[2], Q[2])
        s3 += cmul_ops(Q[3], Q[2], Q[1]); qcv(4); qcv(3)
        s3 += cmul_ops(P[1], Q[4], Q[4])
        s3 += cmul_ops(Q[5], Q[4], Q[1]); qcv(5)
        s3 += cmul_ops(P[2], P[1], P[1])
        s3 += cmul_ops(Q[6], Q[4], Q[2]); qcv(6)
        s3 += cmul_ops(Q[7], Q[4], Q[3]); qcv(7)
        s3 += cmul_ops(P[3], P[2], P[1])
        for k_ in (1, 2, 3):
            s3.append(f"v_cvt_pk_f16_f32 v{PH[k_]}, v{P[k_]}, v{P[k_]+1}")
        interleave(a, [s1, s2, s3])
        for mt in range(2):
            for kk in range(4):
                f = FA + 16 * mt + 4 * kk
                a(f"ds_read_b128 v[{f}:{f+3}], v20 offset:{mt*16*RS + 64*kk}")
        a("s_mov_b32 m0, s73")
        sts = []
        for aa in (1, 2, 3):
            s = [wr(21 + 8 * aa, PH[aa])]
            hs = [H1, H2, H3][aa - 1]
            for b in range(1, 8):
                h = hs[b % 2]
                s += hmul_ops(h, PH[aa], QH[b])
                s.append(wr(21 + 8 * aa + b, h))
            sts.append(s)
        a("s_nop 0")
        interleave(a, sts)
        for nt in range(2):
            for kk in range(4):
                f = FA + 32 + 16 * nt + 4 * kk
                a(f"ds_read_b128 v[{f}:{f+3}], v21 offset:{nt*16*RS + 64*kk}")
        for nt in range(2):
            for kk in range(4):
                a(f"s_waitcnt lgkmcnt({7 - 4*nt - kk})")
                for mt in range(2):
                    fa = FA + 16 * mt + 4 * kk
                    fb = FA + 32 + 16 * nt + 4 * kk
                    d = ACC + 8 * mt + 4 * nt
                    cin = "0" if (ps == 0 and kk == 0) else f"v[{d}:{d+3}]"
                    a(f"v_mfma_f32_16x16x32_f16 v[{d}:{d+3}], v[{fa}:{fa+3}], v[{fb}:{fb+3}], {cin}")

    stamp(a, 1)
    kpass(0)
    stamp(a, 2)
    ut_part()
    stamp(a, 3)
    kpass(1)
    a("s_barrier")
    kpass(2)
    kpass(3)
    stamp(a, 4)

    a("s_mul_i32 s10, s5, 4608")
    a(f"s_add_u32 s10, s10, {T_L}")
    a("v_and_b32 v24, 15, v2")
    a("v_lshlrev_b32 v24, 4, v24")
    a("v_add_u32 v24, s10, v24")
    AD = 32
    def base(mt, q, r):
        if mt == 0:
            return [r, 4 + r, 256 + 2 * r, 512 + 4 * (r & 1) + 256 * (r >> 1)][q]
        if q == 0: return 1024 + 256 * r
        if q == 1 and r == 0: return 2048
        return 2049
    for q in range(4):
        lo = (0xffff << (16 * q)) & 0xffffffff if q < 2 else 0
        hi_ = (0xffff << (16 * (q - 2))) & 0xffffffff if q >= 2 else 0
        a(f"s_mov_b32 s14, 0x{lo:x}")
        a(f"s_mov_b32 s15, 0x{hi_:x}")
        a("s_mov_b64 exec, s[14:15]")
        for mt in range(2):
            for r in range(4):
                a(f"v_add_u32 v{AD+4*mt+r}, {2*base(mt,q,r)}, v24")
    a("s_mov_b64 exec, -1")
    a("v_mov_b32 v25, s75")
    a("v_mul_f32 v25, s77, v25")
    a("v_add_f32 v25, v25, v25")
    for i in range(16):
        a(f"v_mul_f32 v{ACC+i}, v25, v{ACC+i}")
    a("s_mov_b64 exec, 1")
    a(f"v_add_f32 v{ACC}, v{ACC}, v17")
    a("s_mov_b64 exec, -1")
    for mt in range(2):
        for r in range(4):
            a(f"v_cvt_pk_bf16_f32 v{40+4*mt+r}, v{ACC+8*mt+r}, v{ACC+8*mt+4+r}")
    for mt in range(2):
        for r in range(4):
            a(f"ds_write_b16 v{AD+4*mt+r}, v{40+4*mt+r}")
            a(f"ds_write_b16_d16_hi v{AD+4*mt+r}, v{40+4*mt+r} offset:256")
    a("v_lshlrev_b32 v26, 4, v2")
    a(f"s_add_u32 s11, s10, {16*63}")
    a("v_sub_u32 v27, s11, v26")
    a("v_cmp_gt_u32 vcc, 32, v2")
    a("v_mov_b32 v28, 0")
    a("v_and_b32 v31, 1, v2")
    a("v_cndmask_b32 v28, v28, 2, vcc" if False else "v_cndmask_b32_e64 v28, 0, 2, vcc")
    a("v_add_u32 v29, v27, v28")
    a("v_sub_u32 v30, v27, v28")
    a("v_mul_u32_u24 v31, 0x0404, v31")
    a("v_lshlrev_b32 v31, 16, v31")
    a("v_sub_u32 v31, 0x05040504, v31")
    a("s_mov_b32 s12, 0x05040504")
    a("s_mov_b32 s13, 0x01000100")
    a("s_mov_b32 s14, 0x01000504")
    E = 48
    for m in range(2):
        o = (3 - m) * 1024
        a(f"ds_read_u16 v{80+2*m}, v27 offset:{o}")
        a(f"ds_read_u16 v{81+2*m}, v27 offset:{o+16}")
    o = 1024
    a(f"ds_read_u16 v88, v27 offset:{o}")
    a(f"ds_read_u16 v89, v27 offset:{o+8}")
    a(f"ds_read_u16 v90, v27 offset:{o+16}")
    e3 = E + 12
    for k_, (rlo, ilo, ihi) in enumerate(((29, 7, 6), (30, 5, 4), (29, 3, 2), (30, 1, 0))):
        a(f"ds_read_u16 v{e3+k_}, v{rlo} offset:{2*ilo}")
        a(f"ds_read_u16 v{92+k_}, v27 offset:{2*ihi}")
    a(f"s_mul_i32 s15, s7, {KT_ROW}")
    a("v_mov_b32 v84, 0\nv_mov_b32 v85, 0\nv_mov_b32 v86, 0\nv_mov_b32 v87, 0")
    a("s_waitcnt lgkmcnt(8)")
    for m in range(2):
        e = E + 4 * m
        ra, rb = 80 + 2 * m, 81 + 2 * m
        a(f"v_perm_b32 v{e}, v{rb}, v{ra}, s12")
        a(f"v_perm_b32 v{e+1}, v{rb}, v{ra}, v31")
        a(f"v_perm_b32 v{e+2}, v{rb}, v{ra}, s13")
        a(f"v_perm_b32 v{e+3}, v{rb}, v{ra}, s13")
        a(f"buffer_store_dwordx4 v[{e}:{e+3}], v26, s[52:55], s15 offen offset:{m*1024}")
    e = E + 8
    a(f"v_perm_b32 v{e}, v90, v90, s13")
    a(f"v_perm_b32 v{e+1}, v89, v88, s12")
    a(f"v_perm_b32 v{e+2}, v89, v88, s14")
    a(f"v_perm_b32 v{e+3}, v89, v88, s13")
    a(f"buffer_store_dwordx4 v[{e}:{e+3}], v26, s[52:55], s15 offen offset:2048")
    a("s_waitcnt lgkmcnt(0)")
    for k_ in range(4):
        a(f"v_lshl_or_b32 v{e3+k_}, v{92+k_}, 16, v{e3+k_}")
    a(f"buffer_store_dwordx4 v[{e3}:{e3+3}], v26, s[52:55], s15 offen offset:3072")
    a("s_add_u32 s15, s15, 4096")
    a("s_mov_b64 exec, 0xff")
    a("buffer_store_dwordx4 v[84:87], v26, s[52:55], s15 offen")
    stamp(a, 5)
    stamp_flush(a, 0)
    a("s_endpgm")

CS = 280 * 64 + 64
KI_L = 4 * CS
EP_L = KI_L + 17 * 1024

def k2_conv(a):
    a.comment("---- conv role ----")
    a("s_mul_i32 s6, s3, 56")
    a("s_lshl_b32 s7, s4, 2")
    a("s_add_u32 s6, s6, s7")
    a("s_and_b32 s7, s5, 3")
    a("s_lshr_b32 s8, s5, 2")
    a("v_lshrrev_b32 v3, 5, v2")
    a("v_sub_u32 v3, v2, v3")
    a("s_lshl_b32 s9, s8, 1")
    a("s_add_u32 s9, s9, 3")
    a("v_subrev_u32 v3, s9, v3")
    a("v_and_b32 v3, 3, v3")
    a("v_lshrrev_b32 v4, 2, v2")
    a("v_mul_u32_u24 v4, 448, v4")
    a("v_add_lshl_u32 v3, v3, v4, 4")
    a(f"s_mul_i32 s9, s7, {UB_IMG}")
    a(f"s_mul_i32 s10, s8, {16*7168}")
    a("s_add_u32 s9, s9, s10")
    a("s_lshl_b32 s10, s6, 4")
    a("s_add_u32 s9, s9, s10")
    a(f"s_mul_i32 s10, s7, {CS}")
    a("s_lshl_b32 s11, s8, 10")
    a("s_add_u32 s10, s10, s11")
    a(f"s_add_u32 s10, s10, {24*64}")
    a("v_lshlrev_b32 v4, 4, v2")
    a(f"s_mul_i32 s11, s6, {KT_ROW}")
    a("s_lshl_b32 s12, s5, 10")
    a("s_add_u32 s11, s11, s12")
    a(f"s_add_u32 s12, s12, {KI_L}")
    a("v_mov_b32 v8, 0\nv_mov_b32 v9, 0\nv_mov_b32 v10, 0\nv_mov_b32 v11, 0")
    a("s_waitcnt lgkmcnt(0)")
    srd(a, 44, P_WS, 4 * UB_IMG, WS_UB)
    srd(a, 48, P_WS, 448 * KT_ROW, WS_KT)
    srd(a, 52, P_OUT, 2048 * 1792)
    stamp(a, 0)
    for i in range(2):
        a(f"s_add_u32 m0, s12, {i*8192}")
        a("s_nop 0")
        a("buffer_load_dwordx4 v4, s[48:51], s11 offen lds")
        a("s_add_u32 s11, s11, 8192")
    L = a.newlabel("Lk17")
    a("s_cmp_lg_u32 s5, 0")
    a(f"s_cbranch_scc1 {L}")
    a(f"s_add_u32 m0, s12, 16384")
    a("s_nop 0")
    a("buffer_load_dwordx4 v4, s[48:51], s11 offen lds")
    a.label(L)
    for i in range(8):
        a(f"s_add_u32 m0, s10, {i*2048}")
        a("s_nop 0")
        a("buffer_load_dwordx4 v3, s[44:47], s9 offen lds")
        if i < 7:
            a(f"s_add_u32 s9, s9, {32*7168}")
    a(f"s_mul_i32 s9, s7, {CS}")
    a("s_lshl_b32 s10, s8, 10")
    a("s_add_u32 s9, s9, s10")
    a("v_add_u32 v5, s9, v4")
    a("s_cmp_eq_u32 s8, 0")
    a("s_cselect_b32 s15, -1, 0")
    a("s_mov_b32 s14, -1")
    a("s_mov_b64 exec, s[14:15]")
    a("ds_write_b128 v5, v[8:11]")
    a("s_mov_b64 exec, -1")
    a("v_and_b32 v5, 3, v2")
    a(f"v_mul_u32_u24 v5, {CS}, v5")
    a("v_bfe_u32 v6, v2, 2, 2")
    a("v_lshrrev_b32 v7, 4, v2")
    a("v_lshl_add_u32 v8, v6, 3, v7")
    a("v_lshl_add_u32 v5, v8, 6, v5")
    a("s_lshl_b32 s9, s8, 10")
    a("v_subrev_u32 v5, s9, v5")
    a(f"v_add_u32 v5, {28*64}, v5")
    a("s_lshl_b32 s9, s8, 1")
    a("s_sub_u32 s9, s7, s9")
    a("v_add_u32 v6, s9, v6")
    SAD = 12
    for it in range(4):
        a(f"v_add_u32 v8, {(28-4*it)>>3}, v6")
        a("v_and_b32 v8, 3, v8")
        a(f"v_lshl_add_u32 v{SAD+it}, v8, 4, v5")
        if it:
            a(f"v_subrev_u32 v{SAD+it}, {256*it}, v{SAD+it}")
    a("v_and_b32 v8, 15, v2")
    a("v_lshlrev_b32 v8, 3, v8")
    a("v_lshlrev_b32 v16, 4, v7")
    a("v_sub_u32 v16, v16, v8")
    a(f"s_mul_i32 s9, s7, {KT_ROW}")
    a("s_lshl_b32 s10, s8, 8")
    a("s_sub_u32 s9, s9, s10")
    a(f"s_add_u32 s9, s9, {KI_L + 2*2076 - 512*7 - 64*3}")
    a("v_add_u32 v16, s9, v16")
    a("s_waitcnt vmcnt(0) lgkmcnt(0)")
    a("s_barrier")
    stamp(a, 1)
    ACC = 32
    SB = [64, 128]
    def rd_list(it):
        s = SB[it % 2]; f = s + 32
        ops = []
        for k in range(8):
            ops.append(f"ds_read_b128 v[{s+4*k}:{s+4*k+3}], v{SAD+it} offset:{2048*k}")
            for jj in range(2):
                d = f + 4 * k + 2 * jj
                ops.append(f"ds_read_b64 v[{d}:{d+1}], v16 offset:{512*(7-k) + 8*jj + 64*(3-it)}")
        return ops
    def mf(it, v, w):
        s = SB[it % 2]; f = s + 32
        n = v + w
        d = ACC + 4 * n
        return d, f"v[{s+4*v}:{s+4*v+3}], v[{f+4*w}:{f+4*w+3}]"
    first = set()
    ops0 = rd_list(0)
    for i, o in enumerate(ops0):
        a(o)
        if i == 11: a("s_waitcnt lgkmcnt(6)")
    a("s_waitcnt lgkmcnt(0)")
    for it in range(4):
        nxt = rd_list(it + 1) if it < 3 else []
        pairs = sorted([(v, w) for v in range(8) for w in range(8) if v + w <= 7], key=lambda p: (p[1], p[0]))
        for i, (v, w) in enumerate(pairs):
            d, opnds = mf(it, v, w)
            cin = f"v[{d}:{d+3}]" if d in first else "0"
            first.add(d)
            a(f"v_mfma_f32_16x16x32_bf16 v[{d}:{d+3}], {opnds}, {cin}")
            if i < len(nxt):
                a(nxt[i])
                if i == 11: a("s_waitcnt lgkmcnt(8)")
        if nxt:
            a("s_waitcnt lgkmcnt(0)")
    stamp(a, 4)
    a("s_lshl_b32 s9, s5, 13")
    a(f"s_add_u32 s9, s9, {EP_L}")
    a("v_add_u32 v5, s9, v4")
    a("v_lshlrev_b32 v6, 4, v0")
    a(f"v_add_u32 v6, {EP_L}, v6")
    a("v_mul_u32_u24 v7, 7168, v0")
    a("s_lshl_b32 s9, s6, 1")
    a("s_nop 4")
    for n in range(8):
        a(f"ds_write_b128 v5, v[{ACC+4*n}:{ACC+4*n+3}] offset:{n*1024}")
    a("s_waitcnt lgkmcnt(0)")
    a("s_barrier")
    for w in range(8):
        a(f"ds_read_b128 v[{64+4*w}:{67+4*w}], v6 offset:{w*8192}")
    a("s_waitcnt lgkmcnt(0)")
    for c in range(4):
        for r in range(4):
            a(f"v_add_f32 v{64+4*c+r}, v{64+4*c+r}, v{80+4*c+r}")
    for r in range(4):
        a(f"v_cvt_pk_bf16_f32 v{96+2*r}, v{64+r}, v{68+r}")
        a(f"v_cvt_pk_bf16_f32 v{97+2*r}, v{72+r}, v{76+r}")
        if r < 2:
            a(f"buffer_store_dwordx2 v[{96+2*r}:{97+2*r}], v7, s[52:55], s9 offen offset:{r*1792}")
        else:
            if r == 2: a("s_add_u32 s9, s9, 3584")
            a(f"buffer_store_dwordx2 v[{96+2*r}:{97+2*r}], v7, s[52:55], s9 offen offset:{(r-2)*1792}")
    stamp(a, 5)
    stamp_flush(a, 1)
    a("s_endpgm")
```

```python
import sys, math
from asmlib import *
import asmlib

NAME = "concat_heads__ssm_conv_s4d__linear_attn_block__prompt"
K1 = "s4dla_k1_kernel"
K2 = "s4dla_k2_kernel"

WS_KV = 0x0
WS_PQ = 0x10000
WS_KT = 0x210000
KT_ROW = 4224
WS_UB = 0x400000
UB_IMG = 256 * 448 * 16
LOG2E = 1.4426950408889634

P_U, P_LA, P_AI, P_CR, P_CI, P_LDT, P_D, P_X, P_W, P_WO, P_OUT, P_DBG, P_WS = 16, 18, 20, 22, 24, 26, 28, 30, 32, 34, 36, 38, 40

def srd(a, d, p, nbytes, off=0):
    if off:
        a(f"s_add_u32 s{d}, s{p}, 0x{off:x}")
        a(f"s_addc_u32 s{d+1}, s{p+1}, 0")
    else:
        a(f"s_mov_b32 s{d}, s{p}")
        a(f"s_mov_b32 s{d+1}, s{p+1}")
    a(f"s_mov_b32 s{d+2}, 0x{nbytes:x}")
    a(f"s_mov_b32 s{d+3}, 0x20000")

def prologue(a, ngrid, endlabel):
    a(f"s_cmp_ge_u32 s2, {ngrid}")
    a(f"s_cbranch_scc1 {endlabel}")
    stamp_init(a)
    a("s_load_dwordx16 s[16:31], s[0:1], 0")
    a("s_load_dwordx8 s[32:39], s[0:1], 64")
    a("s_load_dwordx2 s[40:41], s[0:1], 96")
    a("v_lshrrev_b32 v1, 6, v0")
    a("v_and_b32 v2, 63, v0")
    a("s_and_b32 s3, s2, 7")
    a("s_lshr_b32 s4, s2, 3")
    a("v_readfirstlane_b32 s5, v1")

def phi_pack(a, acc, dst, tmp, s_log2e, s_eps):
    for p in range(0, 8, 2):
        t = tmp
        for q in range(2):
            r = 2 * (p + q)
            a(f"v_cvt_pk_bf16_f32 v{t+4*q}, v{acc+r}, v{acc+r+1}")
        for q in range(2):
            a(f"v_and_b32 v{t+4*q+1}, 0xffff0000, v{t+4*q}")
            a(f"v_lshlrev_b32 v{t+4*q}, 16, v{t+4*q}")
        for q in range(2):
            a(f"v_mul_f32 v{t+4*q+2}, s{s_log2e}, v{t+4*q}")
            a(f"v_mul_f32 v{t+4*q+3}, s{s_log2e}, v{t+4*q+1}")
        for q in range(2):
            a(f"v_exp_f32_e64 v{t+4*q+2}, v{t+4*q+2} clamp")
            a(f"v_exp_f32_e64 v{t+4*q+3}, v{t+4*q+3} clamp")
        for q in range(2):
            a(f"v_max_f32 v{t+4*q}, s{s_eps}, v{t+4*q}")
            a(f"v_max_f32 v{t+4*q+1}, s{s_eps}, v{t+4*q+1}")
        for q in range(2):
            a(f"v_add_f32 v{t+4*q}, v{t+4*q}, v{t+4*q+2}")
            a(f"v_add_f32 v{t+4*q+1}, v{t+4*q+1}, v{t+4*q+3}")
        for q in range(2):
            a(f"v_cvt_pk_bf16_f32 v{dst+p+q}, v{t+4*q}, v{t+4*q+1}")

SLOT = 32768
def k1_gemm(a):
    a.comment("---- GEMM roles: decode ----")
    a("s_lshr_b32 s6, s3, 1")
    a("s_lshl_b32 s6, s6, 2")
    a("s_and_b32 s7, s3, 1")
    a("s_lshr_b32 s8, s4, 2")
    a("s_add_u32 s8, s8, s6")
    a("s_and_b32 s9, s4, 3")
    a("s_lshl_b32 s10, s7, 2")
    a("s_add_u32 s9, s9, s10")
    a("s_mul_i32 s10, s9, 112")
    a("s_add_u32 s11, s10, 1792")
    a("s_add_u32 s10, s10, 896")
    a("s_sub_u32 s12, s4, 16")
    a("s_lshr_b32 s13, s12, 1")
    a("s_add_u32 s13, s13, s6")
    a("s_and_b32 s12, s12, 1")
    a("s_lshl_b32 s14, s7, 1")
    a("s_add_u32 s12, s12, s14")
    a("s_mul_i32 s14, s12, 224")
    a("s_add_u32 s15, s14, 112")
    a("s_cmp_lt_u32 s4, 16")
    a("s_cselect_b32 s8, s8, s13")
    a("s_cselect_b32 s9, s9, s12")
    a("s_cselect_b32 s10, s10, s14")
    a("s_cselect_b32 s11, s11, s15")
    a("v_lshrrev_b32 v7, 3, v2")
    a("v_lshrrev_b32 v8, 4, v2")
    a("v_and_b32 v9, 7, v2")
    a("s_lshl_b32 s12, s8, 7")
    a("s_lshl_b32 s13, s5, 4")
    a("s_add_u32 s12, s12, s13")
    a("v_add_u32 v10, s12, v7")
    a("v_mul_u32_u24 v10, 896, v10")
    a("v_xor_b32 v11, v9, v8")
    a("v_lshl_add_u32 v3, v11, 4, v10")
    a("v_xor_b32 v11, 4, v11")
    a("v_lshl_add_u32 v4, v11, 4, v10")
    a("v_add_u32 v4, 7168, v4")
    a("s_lshl_b32 s13, s5, 3")
    a("v_add_u32 v10, s13, v7")
    a("v_mul_u32_u24 v10, 2688, v10")
    a("v_and_b32 v11, 1, v8")
    a("v_lshlrev_b32 v11, 2, v11")
    a("v_xor_b32 v11, v11, v9")
    a("v_lshl_add_u32 v10, v11, 4, v10")
    a("v_add_u32 v5, s10, v10")
    a("v_add_u32 v6, s11, v10")
    a("s_lshl_b32 s12, s5, 11")
    a("s_lshl_b32 s13, s5, 10")
    a("s_add_u32 s13, s13, 16384")
    a("s_waitcnt lgkmcnt(0)")
    srd(a, 44, P_X, 2048 * 896)
    srd(a, 48, P_W, 448 * 2688)
    srd(a, 52, P_WS, 0x10000, WS_KV)
    srd(a, 56, P_WS, 0x200000, WS_PQ)
    srd(a, 60, P_DBG, 256)
    L = a.newlabel("Lnz")
    a("s_mov_b32 s64, 0")
    a("s_cmp_ge_u32 s4, 16")
    a(f"s_cbranch_scc1 {L}")
    a("s_cmp_lg_u32 s8, 0")
    a(f"s_cbranch_scc1 {L}")
    a("s_mov_b32 s64, 1")
    a("v_mov_b32 v12, 0\nv_mov_b32 v13, 0\nv_mov_b32 v14, 0\nv_mov_b32 v15, 0")
    a("v_lshlrev_b32 v10, 4, v0")
    a("s_lshl_b32 s14, s9, 13")
    a("buffer_store_dwordx4 v[12:15], v10, s[52:55], s14 offen sc1")
    a.label(L)

    stamp(a, 0)
    def issue_chunk(c):
        slot = c % 5
        a(f"s_movk_i32 s14, {128*c}")
        a(f"s_mov_b32 s15, {172032*c}")
        a(f"s_add_u32 m0, s12, {slot*SLOT}")
        a("s_nop 0")
        a("buffer_load_dwordx4 v3, s[44:47], s14 offen lds")
        a(f"s_add_u32 m0, s13, {slot*SLOT}")
        a("s_nop 0")
        a("buffer_load_dwordx4 v5, s[48:51], s15 offen lds")
        a(f"s_add_u32 m0, s12, {slot*SLOT+1024}")
        a("s_nop 0")
        a("buffer_load_dwordx4 v4, s[44:47], s14 offen lds")
        a(f"s_add_u32 m0, s13, {slot*SLOT+8192}")
        a("s_nop 0")
        a("buffer_load_dwordx4 v6, s[48:51], s15 offen lds")
    for c in range(5):
        issue_chunk(c)
        if "ordered" in OPT and c < 4: a("s_barrier")
    a("v_and_b32 v7, 31, v2")
    a("v_lshrrev_b32 v8, 5, v2")
    a("v_bfe_u32 v9, v2, 1, 3")
    a("v_xor_b32 v9, v9, v8")
    a("s_and_b32 s14, s5, 3")
    a("s_lshl_b32 s15, s14, 12")
    a("v_lshlrev_b32 v7, 7, v7")
    a("v_lshl_add_u32 v7, v9, 4, v7")
    a("v_add_u32 v16, s15, v7")
    a("v_xor_b32 v17, 32, v16")
    a("v_xor_b32 v18, 64, v16")
    a("v_xor_b32 v19, 0x60, v16")
    a("s_lshr_b32 s65, s5, 2")
    a("s_mul_i32 s15, s65, 56")
    a("v_bfe_u32 v7, v2, 4, 1")
    a("v_lshlrev_b32 v7, 5, v7")
    a("v_and_b32 v9, 3, v2")
    a("v_lshl_add_u32 v7, v9, 3, v7")
    a("v_add_u32 v7, s15, v7")
    a("v_bfe_u32 v9, v2, 3, 1")
    a("v_lshlrev_b32 v9, 6, v9")
    a("v_xor_b32 v7, v7, v9")
    a("v_bfe_u32 v9, v2, 2, 2")
    a("v_lshl_add_u32 v9, v8, 3, v9")
    a("v_lshl_add_u32 v7, v9, 7, v7")
    a("v_add_u32 v20, 16384, v7")
    a(f"s_mov_b32 s66, {fhex(LOG2E)}")
    a(f"s_mov_b32 s67, {fhex(1e-6)}")
    a("s_cmp_ge_u32 s4, 16")
    a("s_cbranch_scc1 L_k1_q")

    FR = 32
    ACC0, ACC1 = 80, 96
    def main_loop(is_q):
        waits = [16, 12, 12, 12, 8, 4, 0]
        cur_base = 0
        for c in range(7):
            slot = c % 5
            w = waits[c]
            if (not is_q) and c == 6:
                w = 1
            if (not is_q) and c in (4, 5):
                w += 1
            a(f"s_waitcnt vmcnt({w})")
            a("s_barrier")
            if c == 0: stamp(a, 1)
            if c == 3: stamp(a, 2)
            if c == 6: stamp(a, 3)
            if c == 0 and not is_q:
                L2 = a.newlabel("Lnf")
                a("s_cmp_eq_u32 s64, 0")
                a(f"s_cbranch_scc1 {L2}")
                a("s_cmp_lg_u32 s5, 0")
                a(f"s_cbranch_scc1 {L2}")
                a("v_mov_b32 v10, 1")
                a("v_mov_b32 v11, 0")
                a("s_lshl_b32 s14, s9, 2")
                a("s_mov_b64 exec, 1")
                a("buffer_store_dword v10, v11, s[60:63], s14 offen sc1")
                a("s_mov_b64 exec, -1")
                a("s_waitcnt vmcnt(0)")
                a.label(L2)
            if c in (1, 2):
                issue_chunk(c + 4)
            if c == 3 and not is_q:
                a("v_mov_b32 v11, 0")
                a("s_lshl_b32 s14, s9, 2")
                a("buffer_load_dword v21, v11, s[60:63], s14 offen sc1")
            want = (slot // 2) * 65536
            if want != cur_base:
                d = want - cur_base
                for r in range(16, 21):
                    if d > 0: a(f"v_add_u32 v{r}, 0x{d:x}, v{r}")
                    else: a(f"v_subrev_u32 v{r}, 0x{-d:x}, v{r}")
                cur_base = want
            so = slot * SLOT - cur_base
            def reads(k):
                f = FR + 12 * k
                a(f"ds_read_b128 v[{f}:{f+3}], v{16+k} offset:{so}")
                for seg in range(2):
                    for jj in range(2):
                        d = f + 4 + 4 * seg + 2 * jj
                        a(f"ds_read_b64_tr_b16 v[{d}:{d+1}], v20 offset:{so + seg*8192 + (16*k+4*jj)*128}")
            def mfma(k):
                f = FR + 12 * k
                for seg, acc in ((0, ACC0), (1, ACC1)):
                    wf = f + 4 + 4 * seg
                    cin = "0" if (c == 0 and k == 0) else f"v[{acc}:{acc+15}]"
                    if is_q:
                        a(f"v_mfma_f32_32x32x16_bf16 v[{acc}:{acc+15}], v[{wf}:{wf+3}], v[{f}:{f+3}], {cin}")
                    else:
                        a(f"v_mfma_f32_32x32x16_bf16 v[{acc}:{acc+15}], v[{f}:{f+3}], v[{wf}:{wf+3}], {cin}")
            reads(0); reads(1); reads(2)
            a("s_waitcnt lgkmcnt(10)")
            mfma(0)
            reads(3)
            a("s_waitcnt lgkmcnt(10)")
            mfma(1)
            a("s_waitcnt lgkmcnt(5)")
            mfma(2)
            a("s_waitcnt lgkmcnt(0)")
            mfma(3)

    main_loop(False)
    stamp(a, 4)
    PK, VV, TMP = 32, 40, 48
    a("s_nop 7")
    a("s_nop 7")
    phi_pack(a, ACC0, PK, TMP, 66, 67)
    for p in range(8):
        a(f"v_cvt_pk_bf16_f32 v{VV+p}, v{ACC1+2*p}, v{ACC1+2*p+1}")
    a("s_mov_b32 s14, 0x10000000")
    a("s_mov_b32 s15, 0x10000000")
    a("s_mov_b64 exec, s[14:15]")
    for p in range(8):
        a(f"v_mov_b32 v{VV+p}, 0x3f803f80")
    a("s_mov_b64 exec, -1")
    a("s_nop 1")
    KV = 56
    a(f"v_mfma_f32_32x32x16_bf16 v[{KV}:{KV+15}], v[{PK}:{PK+3}], v[{VV}:{VV+3}], 0")
    a(f"v_mfma_f32_32x32x16_bf16 v[{KV}:{KV+15}], v[{PK+4}:{PK+7}], v[{VV+4}:{VV+7}], v[{KV}:{KV+15}]")
    XB = 2 * SLOT
    a("v_lshlrev_b32 v10, 4, v2")
    a("s_lshl_b32 s14, s5, 12")
    a(f"s_add_u32 s14, s14, {XB}")
    a("v_add_u32 v11, s14, v10")
    a("s_and_b32 s14, s5, 3")
    a("s_lshl_b32 s14, s14, 10")
    a("s_lshl_b32 s15, s65, 14")
    a("s_add_u32 s14, s14, s15")
    a(f"s_add_u32 s14, s14, {XB}")
    a("v_add_u32 v12, s14, v10")
    a("s_nop 7")
    a("s_nop 3")
    for q in range(4):
        a(f"ds_write_b128 v11, v[{KV+4*q}:{KV+4*q+3}] offset:{q*1024}")
    a("s_waitcnt lgkmcnt(0)")
    a("s_barrier")
    for i in range(4):
        a(f"ds_read_b128 v[{32+4*i}:{35+4*i}], v12 offset:{i*4096}")
    Ls, Lok = a.newlabel("Lspin"), a.newlabel("Lok")
    a("s_waitcnt vmcnt(0)")
    a("s_movk_i32 s68, 4000")
    a("v_mov_b32 v11, 0")
    a("s_lshl_b32 s14, s9, 2")
    a.label(Ls)
    a("v_readfirstlane_b32 s15, v21")
    a("s_cmp_lg_u32 s15, 0")
    a(f"s_cbranch_scc1 {Lok}")
    a("s_sub_u32 s68, s68, 1")
    a("s_cmp_eq_u32 s68, 0")
    a(f"s_cbranch_scc1 {Lok}")
    a("s_sleep 4")
    a("buffer_load_dword v21, v11, s[60:63], s14 offen sc1")
    a("s_waitcnt vmcnt(0)")
    a(f"s_branch {Ls}")
    a.label(Lok)
    a("s_waitcnt lgkmcnt(0)")
    for r in range(4):
        a(f"v_add_f32 v{32+r}, v{32+r}, v{36+r}")
        a(f"v_add_f32 v{40+r}, v{40+r}, v{44+r}")
    for r in range(4):
        a(f"v_add_f32 v{32+r}, v{32+r}, v{40+r}")
    a("s_lshl_b32 s14, s9, 1")
    a("s_add_u32 s14, s14, s65")
    a("s_lshl_b32 s14, s14, 12")
    a("s_and_b32 s15, s5, 3")
    a("s_lshl_b32 s15, s15, 10")
    a("s_add_u32 s14, s14, s15")
    a("v_lshlrev_b32 v10, 2, v2")
    for r in range(4):
        a(f"buffer_atomic_add_f32 v{32+r}, v10, s[52:55], s14 offen offset:{r*256}")
    stamp(a, 5)
    stamp_flush(a, 0)
    a("s_endpgm")

    a.label("L_k1_q")
    main_loop(True)
    stamp(a, 4)
    a("s_nop 7")
    a("s_nop 7")
    a("s_lshl_b32 s14, s8, 2")
    a("s_and_b32 s15, s5, 3")
    a("s_add_u32 s14, s14, s15")
    a("s_lshl_b32 s14, s14, 4")
    a("s_lshl_b32 s15, s9, 2")
    a("s_add_u32 s14, s14, s15")
    a("s_add_u32 s14, s14, s65")
    a("s_lshl_b32 s14, s14, 11")
    a("s_add_u32 s15, s14, 4096")
    a("v_lshlrev_b32 v10, 4, v2")
    phi_pack(a, ACC0, 32, 48, 66, 67)
    a("buffer_store_dwordx4 v[32:35], v10, s[56:59], s14 offen")
    a("buffer_store_dwordx4 v[36:39], v10, s[56:59], s14 offen offset:1024")
    phi_pack(a, ACC1, 40, 48, 66, 67)
    a("buffer_store_dwordx4 v[40:43], v10, s[56:59], s15 offen")
    a("buffer_store_dwordx4 v[44:47], v10, s[56:59], s15 offen offset:1024")
    stamp(a, 5)
    stamp_flush(a, 0)
    a("s_endpgm")

def k2_w4(a):
    WO_L, KVF_L, PART_L = 0, 57344, 90112
    PSTR = 272
    PHALF = 128 * PSTR
    a("s_sub_u32 s6, s4, 14")
    a("s_cmp_ge_u32 s6, 7")
    a("s_cselect_b32 s7, 1, 0")
    a("s_lshl_b32 s8, s3, 1")
    a("s_add_u32 s8, s8, s7")
    a("s_mul_i32 s7, s7, 7")
    a("s_sub_u32 s9, s6, s7")
    a("s_and_b32 s10, s5, 3")
    a("s_lshr_b32 s11, s5, 2")
    a("v_and_b32 v4, 3, v2")
    a("v_bfe_u32 v5, v2, 3, 2")
    a("v_lshl_add_u32 v4, v5, 2, v4")
    a("v_bfe_u32 v5, v2, 2, 1")
    a("v_add_u32 v6, 2, v4")
    a("v_lshrrev_b32 v6, 4, v6")
    a("v_or_b32 v5, v5, v6")
    a("v_mad_u32_u24 v4, v5, 14, v4")
    a("v_and_b32 v5, 32, v2")
    a("v_add_lshl_u32 v3, v4, v5, 2")
    a("v_lshlrev_b32 v4, 4, v2")
    a("s_waitcnt lgkmcnt(0)")
    srd(a, 44, P_WS, 0x10000, WS_KV)
    srd(a, 48, P_WS, 0x200000, WS_PQ)
    srd(a, 52, P_WO, 448 * 896)
    srd(a, 56, P_OUT, 2048 * 1792)
    KVR = 64
    stamp(a, 0)
    a("s_lshl_b32 s12, s5, 13")
    a("s_add_u32 s13, s12, 4096")
    for hh in range(2):
        for r in range(16):
            a(f"buffer_load_dword v{KVR+16*hh+r}, v3, s[44:47], s{12+hh} offen offset:{r*256}")
    PQR = 96
    a("s_lshl_b32 s12, s8, 2")
    a("s_add_u32 s12, s12, s10")
    a("s_lshl_b32 s12, s12, 4")
    a("s_lshl_b32 s13, s11, 3")
    a("s_add_u32 s12, s12, s13")
    a("s_lshl_b32 s12, s12, 11")
    for i in range(16):
        a(f"buffer_load_dwordx4 v[{PQR+4*i}:{PQR+4*i+3}], v4, s[48:51], s12 offen offset:{(i%4)*1024}")
        if i % 4 == 3 and i != 15:
            a("s_add_u32 s12, s12, 4096")
    a("v_lshrrev_b32 v5, 3, v2")
    a("v_bfe_u32 v6, v2, 4, 1")
    a("v_lshlrev_b32 v6, 2, v6")
    a("v_and_b32 v7, 7, v2")
    a("v_xor_b32 v6, v6, v7")
    a("v_lshlrev_b32 v6, 4, v6")
    a("s_mul_i32 s12, s10, 112")
    a("s_mul_i32 s13, s11, 14")
    a("s_add_u32 s12, s12, s13")
    a("s_mul_i32 s12, s12, 896")
    a("s_lshl_b32 s13, s9, 7")
    a("s_add_u32 s12, s12, s13")
    a("s_mul_i32 s13, s5, 7168")
    for i in range(7):
        a(f"v_add_u32 v7, {8*i}, v5")
        a("v_mul_u32_u24 v8, 37, v7")
        a("v_lshrrev_b32 v8, 9, v8")
        a("v_mad_u32_u24 v7, v8, 14, v7")
        a("v_mul_u32_u24 v7, 896, v7")
        a("v_add_u32 v7, v7, v6")
        a(f"s_add_u32 m0, s13, {WO_L + i*1024}")
        a("s_nop 0")
        a("buffer_load_dwordx4 v7, s[52:55], s12 offen lds")
    a("s_lshl_b32 s12, s5, 12")
    a(f"s_add_u32 s12, s12, {KVF_L}")
    a("v_add_u32 v5, s12, v4")
    a("s_waitcnt vmcnt(23)")
    stamp(a, 1)
    for i in range(16):
        a(f"v_cvt_pk_bf16_f32 v{32+i}, v{KVR+2*i}, v{KVR+2*i+1}")
    a("s_mov_b32 s12, 0")
    a("s_mov_b32 s13, -1")
    a("s_mov_b64 exec, s[12:13]")
    for hh in range(2):
        a(f"v_mov_b32 v{32+8*hh+6}, 0")
        a(f"v_mov_b32 v{32+8*hh+7}, 0")
    a("s_mov_b64 exec, -1")
    for i in range(4):
        a(f"ds_write_b128 v5, v[{32+4*i}:{35+4*i}] offset:{i*1024}")
    a("s_lshl_b32 s12, s11, 14")
    a(f"s_add_u32 s12, s12, {KVF_L}")
    a("v_add_u32 v5, s12, v4")
    a(f"s_mov_b32 s14, {fhex(1e-6)}")
    a("s_waitcnt lgkmcnt(0)")
    a("s_barrier")
    KF = 160
    for i in range(15):
        a(f"ds_read_b128 v[{KF+4*i}:{KF+4*i+3}], v5 offset:{i*1024}")
    D0, D1 = 32, 48
    OF = 64
    OFB = PQR - 8
    a("s_waitcnt vmcnt(7)")
    stamp(a, 2)
    def num(hI):
        D = D0 if hI % 2 == 0 else D1
        k = KF + 8 * hI; p = PQR + 8 * hI
        a(f"v_mfma_f32_32x32x16_bf16 v[{D}:{D+15}], v[{k}:{k+3}], v[{p}:{p+3}], 0")
        a(f"v_mfma_f32_32x32x16_bf16 v[{D}:{D+15}], v[{k+4}:{k+7}], v[{p+4}:{p+7}], v[{D}:{D+15}]")
    def fin(hI):
        D = D0 if hI % 2 == 0 else D1
        a(f"v_add_f32 v6, s14, v{D+14}")
        a("v_rcp_f32 v6, v6")
        a("s_nop 0")
        for r in range(14):
            a(f"v_mul_f32 v{D+r}, v{D+r}, v6")
        for p in range(7):
            a(f"v_cvt_pk_bf16_f32 v{OFB+7*hI+p}, v{D+2*p}, v{D+2*p+1}")
    a("s_waitcnt lgkmcnt(13)")
    num(0)
    a(f"ds_read_b128 v[{KF+60}:{KF+63}], v5 offset:{15*1024}")
    for hI in range(8):
        if hI < 7:
            a(f"s_waitcnt lgkmcnt({max(0, 12 - 2*hI)})")
            num(hI + 1)
            a("s_nop 7")
            a("s_nop 1")
        else:
            a("s_nop 7")
            a("s_nop 7")
        fin(hI)
    a("v_lshrrev_b32 v6, 5, v2")
    a("v_mul_u32_u24 v6, 224, v6")
    a("v_bfe_u32 v7, v2, 2, 2")
    a("v_add_u32 v6, v6, v7")
    a("s_mul_i32 s12, s11, 112")
    a("v_add_u32 v6, s12, v6")
    a("v_lshlrev_b32 v6, 7, v6")
    a("v_bfe_u32 v7, v2, 4, 1")
    a("v_lshlrev_b32 v7, 5, v7")
    a("v_and_b32 v8, 3, v2")
    a("v_lshl_add_u32 v7, v8, 3, v7")
    a("v_bfe_u32 v8, v2, 3, 1")
    a("v_lshl_add_u32 v7, v8, 6, v7")
    a("v_add_u32 v6, v6, v7")
    a("v_xor_b32 v7, 64, v6")
    a("s_waitcnt vmcnt(0)")
    a("s_barrier")
    stamp(a, 3)
    WF = 160
    def rd(k):
        f = WF + 8 * (k % 4)
        for nt in range(2):
            for jj in range(2):
                d = f + 4 * nt + 2 * jj
                a(f"ds_read_b64_tr_b16 v[{d}:{d+1}], v{6+nt} offset:{WO_L + k*1024 + jj*512}")
    rd(0); rd(1); rd(2)
    for k in range(14):
        left = min(13 - k, 2)
        a(f"s_waitcnt lgkmcnt({4*left})")
        f = WF + 8 * (k % 4)
        o = OFB + 4 * k
        for nt, D in ((0, D0), (1, D1)):
            cin = "0" if k == 0 else f"v[{D}:{D+15}]"
            a(f"v_mfma_f32_32x32x16_bf16 v[{D}:{D+15}], v[{f+4*nt}:{f+4*nt+3}], v[{o}:{o+3}], {cin}")
        if k + 3 < 14:
            rd(k + 3)
    stamp(a, 4)
    a("v_and_b32 v6, 31, v2")
    a("s_lshl_b32 s12, s10, 5")
    a("v_add_u32 v6, s12, v6")
    a(f"v_mul_u32_u24 v6, {PSTR}, v6")
    a("v_lshrrev_b32 v7, 5, v2")
    a("v_lshl_add_u32 v6, v7, 4, v6")
    a(f"s_mul_i32 s12, s11, {PHALF}")
    a(f"s_add_u32 s12, s12, {PART_L}")
    a("v_add_u32 v6, s12, v6")
    a("v_lshrrev_b32 v8, 3, v0")
    a("v_and_b32 v9, 7, v0")
    a(f"v_mul_u32_u24 v10, {PSTR}, v8")
    a("v_lshl_add_u32 v10, v9, 5, v10")
    a(f"v_add_u32 v10, {PART_L}, v10")
    a("v_mul_u32_u24 v11, 1792, v8")
    a("v_lshl_add_u32 v11, v9, 4, v11")
    a(f"s_mul_i32 s12, s8, {128*1792}")
    a("s_lshl_b32 s13, s9, 7")
    a("s_add_u32 s12, s12, s13")
    a("s_add_u32 s12, s12, 896")
    a(f"s_add_u32 s13, s12, {64*1792}")
    a("s_nop 3")
    for nt, D in ((0, D0), (1, D1)):
        for q in range(4):
            a(f"ds_write_b128 v6, v[{D+4*q}:{D+4*q+3}] offset:{nt*128 + q*32}")
    a("s_waitcnt lgkmcnt(0)")
    a("s_barrier")
    for t in range(2):
        for h in range(2):
            for u in range(2):
                d = 64 + 16 * t + 8 * h + 4 * u
                a(f"ds_read_b128 v[{d}:{d+3}], v10 offset:{t*64*PSTR + h*PHALF + u*16}")
    for t in range(2):
        a(f"s_waitcnt lgkmcnt({4 - 4*t})")
        b = 64 + 16 * t
        for i in range(8):
            a(f"v_add_f32 v{b+i}, v{b+i}, v{b+8+i}")
        for i in range(4):
            a(f"v_cvt_pk_bf16_f32 v{96+4*t+i}, v{b+2*i}, v{b+2*i+1}")
        a(f"buffer_store_dwordx4 v[{96+4*t}:{99+4*t}], v11, s[56:59], s{12+t} offen")
    stamp(a, 5)
    stamp_flush(a, 1)
    a("s_endpgm")

OPT = set(sys.argv[3:])
def build(parts=("B",)):
    a = Asm()
    hdr = open("cdna_kernels/" + NAME + ".s.ref").read().split("; Override launch")[0]
    a.raw(hdr.rstrip("\n"))
    a.raw(f"; @launch kernel={K1} grid=(256,1,1) block=(512,1,1) lds=163840")
    a.raw(f"; @launch kernel={K2} grid=(224,1,1) block=(512,1,1) lds=163840")
    a.raw('.amdgcn_target "amdgcn-amd-amdhsa--gfx950"')
    a.raw(".text")
    a.raw(f".globl {K1}\n.p2align 8\n.type {K1},@function")
    a.label(K1)
    prologue(a, 256, "L_k1_end")
    a("s_cmp_ge_u32 s4, 24")
    a("s_cbranch_scc1 L_k1_a" if "nok1a" not in OPT else "s_cbranch_scc1 L_k1_end")
    if "nogemm" in OPT: a("s_endpgm")
    k1_gemm(a)
    a.label("L_k1_a")
    if "A" in parts:
        import gen_a
        gen_a.k1_a(a)
    a.label("L_k1_end")
    a("s_endpgm")
    a.raw(f".globl {K2}\n.p2align 8\n.type {K2},@function")
    a.label(K2)
    prologue(a, 224, "L_k2_end")
    a("s_cmp_lt_u32 s4, 14")
    a("s_cbranch_scc1 L_k2_conv" if "noconv" not in OPT else "s_cbranch_scc1 L_k2_end")
    if "now4" in OPT: a("s_endpgm")
    k2_w4(a)
    a.label("L_k2_conv")
    if "A" in parts:
        import gen_a
        gen_a.k2_conv(a)
    a.label("L_k2_end")
    a("s_endpgm")
    a.raw('.section .rodata,"a"')
    for k in (K1, K2):
        a.raw(f""".p2align 6
.amdhsa_kernel {k}
  .amdhsa_next_free_vgpr 256
  .amdhsa_next_free_sgpr 100
  .amdhsa_accum_offset 256
  .amdhsa_group_segment_fixed_size 0
  .amdhsa_kernarg_size 104
  .amdhsa_user_sgpr_count 2
  .amdhsa_user_sgpr_kernarg_segment_ptr 1
  .amdhsa_system_sgpr_workgroup_id_x 1
.end_amdhsa_kernel""")
    return a.text()

if __name__ == "__main__":
    parts = sys.argv[2] if len(sys.argv) > 2 else "B"
    if "stamps" in sys.argv: asmlib.STAMPS = True
    out = sys.argv[1] if len(sys.argv) > 1 else "k.s"
    open(out, "w").write(build(parts))
```

```python
import sys, math
from asmlib import *
import asmlib

NAME = "concat_heads__ssm_conv_s4d__linear_attn_block__prompt"
K1 = "s4dla_k1_kernel"
K2 = "s4dla_k2_kernel"

WS_KV = 0x0
WS_PQ = 0x10000
WS_KT = 0x210000
KT_ROW = 4224
WS_UB = 0x400000
UB_IMG = 256 * 448 * 16
LOG2E = 1.4426950408889634

P_U, P_LA, P_AI, P_CR, P_CI, P_LDT, P_D, P_X, P_W, P_WO, P_OUT, P_DBG, P_WS = 16, 18, 20, 22, 24, 26, 28, 30, 32, 34, 36, 38, 40

def srd(a, d, p, nbytes, off=0):
    if off:
        a(f"s_add_u32 s{d}, s{p}, 0x{off:x}")
        a(f"s_addc_u32 s{d+1}, s{p+1}, 0")
    else:
        a(f"s_mov_b32 s{d}, s{p}")
        a(f"s_mov_b32 s{d+1}, s{p+1}")
    a(f"s_mov_b32 s{d+2}, 0x{nbytes:x}")
    a(f"s_mov_b32 s{d+3}, 0x20000")

def prologue(a, ngrid, endlabel):
    a(f"s_cmp_ge_u32 s2, {ngrid}")
    a(f"s_cbranch_scc1 {endlabel}")
    stamp_init(a)
    a("s_load_dwordx16 s[16:31], s[0:1], 0")
    a("s_load_dwordx8 s[32:39], s[0:1], 64")
    a("s_load_dwordx2 s[40:41], s[0:1], 96")
    a("v_lshrrev_b32 v1, 6, v0")
    a("v_and_b32 v2, 63, v0")
    a("s_and_b32 s3, s2, 7")
    a("s_lshr_b32 s4, s2, 3")
    a("v_readfirstlane_b32 s5, v1")

def prefetch_code(a, start, nbytes, vtmp=252, stmp=70):
    lab = a.newlabel("Lpc")
    a(f"s_getpc_b64 s[{stmp}:{stmp+1}]")
    a.label(lab)
    a(f"s_add_u32 s{stmp}, s{stmp}, {start}-{lab}")
    a(f"s_addc_u32 s{stmp+1}, s{stmp+1}, 0")
    a(f"v_lshlrev_b32 v{vtmp}, 7, v2")
    n = (nbytes + 8191) // 8192
    for i in range(n):
        a(f"global_load_dword v{vtmp+1}, v{vtmp}, s[{stmp}:{stmp+1}]")
        if i < n - 1:
            a(f"v_add_u32 v{vtmp}, 8192, v{vtmp}")
    return n

def phi_pack(a, acc, dst, tmp, s_log2e, s_eps):
    for p in range(0, 8, 2):
        t = tmp
        for q in range(2):
            r = 2 * (p + q)
            a(f"v_cvt_pk_bf16_f32 v{t+4*q}, v{acc+r}, v{acc+r+1}")
        for q in range(2):
            a(f"v_and_b32 v{t+4*q+1}, 0xffff0000, v{t+4*q}")
            a(f"v_lshlrev_b32 v{t+4*q}, 16, v{t+4*q}")
        for q in range(2):
            a(f"v_mul_f32 v{t+4*q+2}, s{s_log2e}, v{t+4*q}")
            a(f"v_mul_f32 v{t+4*q+3}, s{s_log2e}, v{t+4*q+1}")
        for q in range(2):
            a(f"v_exp_f32_e64 v{t+4*q+2}, v{t+4*q+2} clamp")
            a(f"v_exp_f32_e64 v{t+4*q+3}, v{t+4*q+3} clamp")
        for q in range(2):
            a(f"v_max_f32 v{t+4*q}, s{s_eps}, v{t+4*q}")
            a(f"v_max_f32 v{t+4*q+1}, s{s_eps}, v{t+4*q+1}")
        for q in range(2):
            a(f"v_add_f32 v{t+4*q}, v{t+4*q}, v{t+4*q+2}")
            a(f"v_add_f32 v{t+4*q+1}, v{t+4*q+1}, v{t+4*q+3}")
        for q in range(2):
            a(f"v_cvt_pk_bf16_f32 v{dst+p+q}, v{t+4*q}, v{t+4*q+1}")

SLOT = 32768
def k1_gemm(a):
    a.comment("---- GEMM roles: decode ----")
    a("s_lshr_b32 s6, s3, 1")
    a("s_lshl_b32 s6, s6, 2")
    a("s_and_b32 s7, s3, 1")
    a("s_lshr_b32 s8, s4, 2")
    a("s_add_u32 s8, s8, s6")
    a("s_and_b32 s9, s4, 3")
    a("s_lshl_b32 s10, s7, 2")
    a("s_add_u32 s9, s9, s10")
    a("s_mul_i32 s10, s9, 112")
    a("s_add_u32 s11, s10, 1792")
    a("s_add_u32 s10, s10, 896")
    a("s_sub_u32 s12, s4, 16")
    a("s_lshr_b32 s13, s12, 1")
    a("s_add_u32 s13, s13, s6")
    a("s_and_b32 s12, s12, 1")
    a("s_lshl_b32 s14, s7, 1")
    a("s_add_u32 s12, s12, s14")
    a("s_mul_i32 s14, s12, 224")
    a("s_add_u32 s15, s14, 112")
    a("s_cmp_lt_u32 s4, 16")
    a("s_cselect_b32 s8, s8, s13")
    a("s_cselect_b32 s9, s9, s12")
    a("s_cselect_b32 s10, s10, s14")
    a("s_cselect_b32 s11, s11, s15")
    a("v_lshrrev_b32 v7, 3, v2")
    a("v_lshrrev_b32 v8, 4, v2")
    a("v_and_b32 v9, 7, v2")
    a("s_lshl_b32 s12, s8, 7")
    a("s_lshl_b32 s13, s5, 4")
    a("s_add_u32 s12, s12, s13")
    a("v_add_u32 v10, s12, v7")
    a("v_mul_u32_u24 v10, 896, v10")
    a("v_xor_b32 v11, v9, v8")
    a("v_lshl_add_u32 v3, v11, 4, v10")
    a("v_xor_b32 v11, 4, v11")
    a("v_lshl_add_u32 v4, v11, 4, v10")
    a("v_add_u32 v4, 7168, v4")
    a("s_lshl_b32 s13, s5, 3")
    a("v_add_u32 v10, s13, v7")
    a("v_mul_u32_u24 v10, 2688, v10")
    a("v_and_b32 v11, 1, v8")
    a("v_lshlrev_b32 v11, 2, v11")
    a("v_xor_b32 v11, v11, v9")
    a("v_lshl_add_u32 v10, v11, 4, v10")
    a("v_add_u32 v5, s10, v10")
    a("v_add_u32 v6, s11, v10")
    a("s_lshl_b32 s12, s5, 11")
    a("s_lshl_b32 s13, s5, 10")
    a("s_add_u32 s13, s13, 16384")
    a("s_waitcnt lgkmcnt(0)")
    srd(a, 44, P_X, 2048 * 896)
    srd(a, 48, P_W, 448 * 2688)
    srd(a, 52, P_WS, 0x10000, WS_KV)
    srd(a, 56, P_WS, 0x200000, WS_PQ)
    srd(a, 60, P_DBG, 256)
    L = a.newlabel("Lnz")
    a("s_mov_b32 s64, 0")
    a("s_cmp_ge_u32 s4, 16")
    a(f"s_cbranch_scc1 {L}")
    a("s_cmp_lg_u32 s8, 0")
    a(f"s_cbranch_scc1 {L}")
    a("s_mov_b32 s64, 1")
    a("v_mov_b32 v12, 0\nv_mov_b32 v13, 0\nv_mov_b32 v14, 0\nv_mov_b32 v15, 0")
    a("v_lshlrev_b32 v10, 4, v0")
    a("s_lshl_b32 s14, s9, 13")
    a("buffer_store_dwordx4 v[12:15], v10, s[52:55], s14 offen sc1")
    a.label(L)

    stamp(a, 0)
    def issue_chunk(c):
        slot = c % 5
        a(f"s_movk_i32 s14, {128*c}")
        a(f"s_mov_b32 s15, {172032*c}")
        a(f"s_add_u32 m0, s12, {slot*SLOT}")
        a("s_nop 0")
        a("buffer_load_dwordx4 v3, s[44:47], s14 offen lds")
        a(f"s_add_u32 m0, s13, {slot*SLOT}")
        a("s_nop 0")
        a("buffer_load_dwordx4 v5, s[48:51], s15 offen lds")
        a(f"s_add_u32 m0, s12, {slot*SLOT+1024}")
        a("s_nop 0")
        a("buffer_load_dwordx4 v4, s[44:47], s14 offen lds")
        a(f"s_add_u32 m0, s13, {slot*SLOT+8192}")
        a("s_nop 0")
        a("buffer_load_dwordx4 v6, s[48:51], s15 offen lds")
    for c in range(5):
        issue_chunk(c)
        if "ordered" in OPT and c < 4: a("s_barrier")
    a("v_and_b32 v7, 31, v2")
    a("v_lshrrev_b32 v8, 5, v2")
    a("v_bfe_u32 v9, v2, 1, 3")
    a("v_xor_b32 v9, v9, v8")
    a("s_and_b32 s14, s5, 3")
    a("s_lshl_b32 s15, s14, 12")
    a("v_lshlrev_b32 v7, 7, v7")
    a("v_lshl_add_u32 v7, v9, 4, v7")
    a("v_add_u32 v16, s15, v7")
    a("v_xor_b32 v17, 32, v16")
    a("v_xor_b32 v18, 64, v16")
    a("v_xor_b32 v19, 0x60, v16")
    a("s_lshr_b32 s65, s5, 2")
    a("s_mul_i32 s15, s65, 56")
    a("v_bfe_u32 v7, v2, 4, 1")
    a("v_lshlrev_b32 v7, 5, v7")
    a("v_and_b32 v9, 3, v2")
    a("v_lshl_add_u32 v7, v9, 3, v7")
    a("v_add_u32 v7, s15, v7")
    a("v_bfe_u32 v9, v2, 3, 1")
    a("v_lshlrev_b32 v9, 6, v9")
    a("v_xor_b32 v7, v7, v9")
    a("v_bfe_u32 v9, v2, 2, 2")
    a("v_lshl_add_u32 v9, v8, 3, v9")
    a("v_lshl_add_u32 v7, v9, 7, v7")
    a("v_add_u32 v20, 16384, v7")
    a(f"s_mov_b32 s66, {fhex(LOG2E)}")
    a(f"s_mov_b32 s67, {fhex(1e-6)}")
    a("s_cmp_ge_u32 s4, 16")
    a("s_cbranch_scc1 L_k1_q")

    FR = 32
    ACC0, ACC1 = 80, 96
    def main_loop(is_q):
        waits = [16, 12, 12, 12, 8, 4, 0]
        cur_base = 0
        for c in range(7):
            slot = c % 5
            w = waits[c]
            if (not is_q) and c == 6:
                w = 1
            if (not is_q) and c in (4, 5):
                w += 1
            a(f"s_waitcnt vmcnt({w})")
            a("s_barrier")
            if c == 0: stamp(a, 1)
            if c == 3: stamp(a, 2)
            if c == 6: stamp(a, 3)
            if c == 0 and not is_q:
                L2 = a.newlabel("Lnf")
                a("s_cmp_eq_u32 s64, 0")
                a(f"s_cbranch_scc1 {L2}")
                a("s_cmp_lg_u32 s5, 0")
                a(f"s_cbranch_scc1 {L2}")
                a("v_mov_b32 v10, 1")
                a("v_mov_b32 v11, 0")
                a("s_lshl_b32 s14, s9, 2")
                a("s_mov_b64 exec, 1")
                a("buffer_store_dword v10, v11, s[60:63], s14 offen sc1")
                a("s_mov_b64 exec, -1")
                a("s_waitcnt vmcnt(0)")
                a.label(L2)
            if c in (1, 2):
                issue_chunk(c + 4)
            if c == 3 and not is_q:
                a("v_mov_b32 v11, 0")
                a("s_lshl_b32 s14, s9, 2")
                a("buffer_load_dword v21, v11, s[60:63], s14 offen sc1")
            want = (slot // 2) * 65536
            if want != cur_base:
                d = want - cur_base
                for r in range(16, 21):
                    if d > 0: a(f"v_add_u32 v{r}, 0x{d:x}, v{r}")
                    else: a(f"v_subrev_u32 v{r}, 0x{-d:x}, v{r}")
                cur_base = want
            so = slot * SLOT - cur_base
            def reads(k):
                f = FR + 12 * k
                a(f"ds_read_b128 v[{f}:{f+3}], v{16+k} offset:{so}")
                for seg in range(2):
                    for jj in range(2):
                        d = f + 4 + 4 * seg + 2 * jj
                        a(f"ds_read_b64_tr_b16 v[{d}:{d+1}], v20 offset:{so + seg*8192 + (16*k+4*jj)*128}")
            def mfma(k):
                f = FR + 12 * k
                for seg, acc in ((0, ACC0), (1, ACC1)):
                    wf = f + 4 + 4 * seg
                    cin = "0" if (c == 0 and k == 0) else f"v[{acc}:{acc+15}]"
                    if is_q:
                        a(f"v_mfma_f32_32x32x16_bf16 v[{acc}:{acc+15}], v[{wf}:{wf+3}], v[{f}:{f+3}], {cin}")
                    else:
                        a(f"v_mfma_f32_32x32x16_bf16 v[{acc}:{acc+15}], v[{f}:{f+3}], v[{wf}:{wf+3}], {cin}")
            reads(0); reads(1); reads(2)
            a("s_waitcnt lgkmcnt(10)")
            mfma(0)
            reads(3)
            a("s_waitcnt lgkmcnt(10)")
            mfma(1)
            a("s_waitcnt lgkmcnt(5)")
            mfma(2)
            a("s_waitcnt lgkmcnt(0)")
            mfma(3)

    main_loop(False)
    stamp(a, 4)
    PK, VV, TMP = 32, 40, 48
    a("s_nop 7")
    a("s_nop 7")
    phi_pack(a, ACC0, PK, TMP, 66, 67)
    for p in range(8):
        a(f"v_cvt_pk_bf16_f32 v{VV+p}, v{ACC1+2*p}, v{ACC1+2*p+1}")
    a("s_mov_b32 s14, 0x10000000")
    a("s_mov_b32 s15, 0x10000000")
    a("s_mov_b64 exec, s[14:15]")
    for p in range(8):
        a(f"v_mov_b32 v{VV+p}, 0x3f803f80")
    a("s_mov_b64 exec, -1")
    a("s_nop 1")
    KV = 56
    a(f"v_mfma_f32_32x32x16_bf16 v[{KV}:{KV+15}], v[{PK}:{PK+3}], v[{VV}:{VV+3}], 0")
    a(f"v_mfma_f32_32x32x16_bf16 v[{KV}:{KV+15}], v[{PK+4}:{PK+7}], v[{VV+4}:{VV+7}], v[{KV}:{KV+15}]")
    XB = 2 * SLOT
    a("v_lshlrev_b32 v10, 4, v2")
    a("s_lshl_b32 s14, s5, 12")
    a(f"s_add_u32 s14, s14, {XB}")
    a("v_add_u32 v11, s14, v10")
    a("s_and_b32 s14, s5, 3")
    a("s_lshl_b32 s14, s14, 10")
    a("s_lshl_b32 s15, s65, 14")
    a("s_add_u32 s14, s14, s15")
    a(f"s_add_u32 s14, s14, {XB}")
    a("v_add_u32 v12, s14, v10")
    a("s_nop 7")
    a("s_nop 3")
    for q in range(4):
        a(f"ds_write_b128 v11, v[{KV+4*q}:{KV+4*q+3}] offset:{q*1024}")
    a("s_waitcnt lgkmcnt(0)")
    a("s_barrier")
    for i in range(4):
        a(f"ds_read_b128 v[{32+4*i}:{35+4*i}], v12 offset:{i*4096}")
    Ls, Lok = a.newlabel("Lspin"), a.newlabel("Lok")
    a("s_waitcnt vmcnt(0)")
    a("s_movk_i32 s68, 4000")
    a("v_mov_b32 v11, 0")
    a("s_lshl_b32 s14, s9, 2")
    a.label(Ls)
    a("v_readfirstlane_b32 s15, v21")
    a("s_cmp_lg_u32 s15, 0")
    a(f"s_cbranch_scc1 {Lok}")
    a("s_sub_u32 s68, s68, 1")
    a("s_cmp_eq_u32 s68, 0")
    a(f"s_cbranch_scc1 {Lok}")
    a("s_sleep 4")
    a("buffer_load_dword v21, v11, s[60:63], s14 offen sc1")
    a("s_waitcnt vmcnt(0)")
    a(f"s_branch {Ls}")
    a.label(Lok)
    a("s_waitcnt lgkmcnt(0)")
    for r in range(4):
        a(f"v_add_f32 v{32+r}, v{32+r}, v{36+r}")
        a(f"v_add_f32 v{40+r}, v{40+r}, v{44+r}")
    for r in range(4):
        a(f"v_add_f32 v{32+r}, v{32+r}, v{40+r}")
    a("s_lshl_b32 s14, s9, 1")
    a("s_add_u32 s14, s14, s65")
    a("s_lshl_b32 s14, s14, 12")
    a("s_and_b32 s15, s5, 3")
    a("s_lshl_b32 s15, s15, 10")
    a("s_add_u32 s14, s14, s15")
    a("v_lshlrev_b32 v10, 2, v2")
    for r in range(4):
        a(f"buffer_atomic_add_f32 v{32+r}, v10, s[52:55], s14 offen offset:{r*256}")
    stamp(a, 5)
    stamp_flush(a, 0)
    a("s_endpgm")

    a.label("L_k1_q")
    main_loop(True)
    stamp(a, 4)
    a("s_nop 7")
    a("s_nop 7")
    a("s_lshl_b32 s14, s8, 2")
    a("s_and_b32 s15, s5, 3")
    a("s_add_u32 s14, s14, s15")
    a("s_lshl_b32 s14, s14, 4")
    a("s_lshl_b32 s15, s9, 2")
    a("s_add_u32 s14, s14, s15")
    a("s_add_u32 s14, s14, s65")
    a("s_lshl_b32 s14, s14, 11")
    a("s_add_u32 s15, s14, 4096")
    a("v_lshlrev_b32 v10, 4, v2")
    phi_pack(a, ACC0, 32, 48, 66, 67)
    a("buffer_store_dwordx4 v[32:35], v10, s[56:59], s14 offen")
    a("buffer_store_dwordx4 v[36:39], v10, s[56:59], s14 offen offset:1024")
    phi_pack(a, ACC1, 40, 48, 66, 67)
    a("buffer_store_dwordx4 v[40:43], v10, s[56:59], s15 offen")
    a("buffer_store_dwordx4 v[44:47], v10, s[56:59], s15 offen offset:1024")
    stamp(a, 5)
    stamp_flush(a, 0)
    a("s_endpgm")

def k2_w4(a):
    WO_L, KVF_L, PART_L = 0, 57344, 90112
    PSTR = 272
    PHALF = 128 * PSTR
    a("s_sub_u32 s6, s4, 14")
    a("s_cmp_ge_u32 s6, 7")
    a("s_cselect_b32 s7, 1, 0")
    a("s_lshl_b32 s8, s3, 1")
    a("s_add_u32 s8, s8, s7")
    a("s_mul_i32 s7, s7, 7")
    a("s_sub_u32 s9, s6, s7")
    a("s_and_b32 s10, s5, 3")
    a("s_lshr_b32 s11, s5, 2")
    a("v_and_b32 v4, 3, v2")
    a("v_bfe_u32 v5, v2, 3, 2")
    a("v_lshl_add_u32 v4, v5, 2, v4")
    a("v_bfe_u32 v5, v2, 2, 1")
    a("v_add_u32 v6, 2, v4")
    a("v_lshrrev_b32 v6, 4, v6")
    a("v_or_b32 v5, v5, v6")
    a("v_mad_u32_u24 v4, v5, 14, v4")
    a("v_and_b32 v5, 32, v2")
    a("v_add_lshl_u32 v3, v4, v5, 2")
    a("v_lshlrev_b32 v4, 4, v2")
    a("s_waitcnt lgkmcnt(0)")
    srd(a, 44, P_WS, 0x10000, WS_KV)
    srd(a, 48, P_WS, 0x200000, WS_PQ)
    srd(a, 52, P_WO, 448 * 896)
    srd(a, 56, P_OUT, 2048 * 1792)
    KVR = 64
    stamp(a, 0)
    a("s_lshl_b32 s12, s5, 13")
    a("s_add_u32 s13, s12, 4096")
    for hh in range(2):
        for r in range(16):
            a(f"buffer_load_dword v{KVR+16*hh+r}, v3, s[44:47], s{12+hh} offen offset:{r*256}")
    PQR = 96
    a("s_lshl_b32 s12, s8, 2")
    a("s_add_u32 s12, s12, s10")
    a("s_lshl_b32 s12, s12, 4")
    a("s_lshl_b32 s13, s11, 3")
    a("s_add_u32 s12, s12, s13")
    a("s_lshl_b32 s12, s12, 11")
    for i in range(16):
        a(f"buffer_load_dwordx4 v[{PQR+4*i}:{PQR+4*i+3}], v4, s[48:51], s12 offen offset:{(i%4)*1024}")
        if i % 4 == 3 and i != 15:
            a("s_add_u32 s12, s12, 4096")
    a("v_lshrrev_b32 v5, 3, v2")
    a("v_bfe_u32 v6, v2, 4, 1")
    a("v_lshlrev_b32 v6, 2, v6")
    a("v_and_b32 v7, 7, v2")
    a("v_xor_b32 v6, v6, v7")
    a("v_lshlrev_b32 v6, 4, v6")
    a("s_mul_i32 s12, s10, 112")
    a("s_mul_i32 s13, s11, 14")
    a("s_add_u32 s12, s12, s13")
    a("s_mul_i32 s12, s12, 896")
    a("s_lshl_b32 s13, s9, 7")
    a("s_add_u32 s12, s12, s13")
    a("s_mul_i32 s13, s5, 7168")
    for i in range(7):
        a(f"v_add_u32 v7, {8*i}, v5")
        a("v_mul_u32_u24 v8, 37, v7")
        a("v_lshrrev_b32 v8, 9, v8")
        a("v_mad_u32_u24 v7, v8, 14, v7")
        a("v_mul_u32_u24 v7, 896, v7")
        a("v_add_u32 v7, v7, v6")
        a(f"s_add_u32 m0, s13, {WO_L + i*1024}")
        a("s_nop 0")
        a("buffer_load_dwordx4 v7, s[52:55], s12 offen lds")
    a("s_lshl_b32 s12, s5, 12")
    a(f"s_add_u32 s12, s12, {KVF_L}")
    a("v_add_u32 v5, s12, v4")
    a("s_waitcnt vmcnt(23)")
    stamp(a, 1)
    for i in range(16):
        a(f"v_cvt_pk_bf16_f32 v{32+i}, v{KVR+2*i}, v{KVR+2*i+1}")
    a("s_mov_b32 s12, 0")
    a("s_mov_b32 s13, -1")
    a("s_mov_b64 exec, s[12:13]")
    for hh in range(2):
        a(f"v_mov_b32 v{32+8*hh+6}, 0")
        a(f"v_mov_b32 v{32+8*hh+7}, 0")
    a("s_mov_b64 exec, -1")
    for i in range(4):
        a(f"ds_write_b128 v5, v[{32+4*i}:{35+4*i}] offset:{i*1024}")
    a("s_lshl_b32 s12, s11, 14")
    a(f"s_add_u32 s12, s12, {KVF_L}")
    a("v_add_u32 v5, s12, v4")
    a(f"s_mov_b32 s14, {fhex(1e-6)}")
    a("s_waitcnt lgkmcnt(0)")
    a("s_barrier")
    KF = 160
    for i in range(15):
        a(f"ds_read_b128 v[{KF+4*i}:{KF+4*i+3}], v5 offset:{i*1024}")
    D0, D1 = 32, 48
    OF = 64
    OFB = PQR - 8
    a("s_waitcnt vmcnt(7)")
    stamp(a, 2)
    def num(hI):
        D = D0 if hI % 2 == 0 else D1
        k = KF + 8 * hI; p = PQR + 8 * hI
        a(f"v_mfma_f32_32x32x16_bf16 v[{D}:{D+15}], v[{k}:{k+3}], v[{p}:{p+3}], 0")
        a(f"v_mfma_f32_32x32x16_bf16 v[{D}:{D+15}], v[{k+4}:{k+7}], v[{p+4}:{p+7}], v[{D}:{D+15}]")
    def fin(hI):
        D = D0 if hI % 2 == 0 else D1
        a(f"v_add_f32 v6, s14, v{D+14}")
        a("v_rcp_f32 v6, v6")
        a("s_nop 0")
        for r in range(14):
            a(f"v_mul_f32 v{D+r}, v{D+r}, v6")
        for p in range(7):
            a(f"v_cvt_pk_bf16_f32 v{OFB+7*hI+p}, v{D+2*p}, v{D+2*p+1}")
    a("s_waitcnt lgkmcnt(13)")
    num(0)
    a(f"ds_read_b128 v[{KF+60}:{KF+63}], v5 offset:{15*1024}")
    for hI in range(8):
        if hI < 7:
            a(f"s_waitcnt lgkmcnt({max(0, 12 - 2*hI)})")
            num(hI + 1)
            a("s_nop 7")
            a("s_nop 1")
        else:
            a("s_nop 7")
            a("s_nop 7")
        fin(hI)
    a("v_lshrrev_b32 v6, 5, v2")
    a("v_mul_u32_u24 v6, 224, v6")
    a("v_bfe_u32 v7, v2, 2, 2")
    a("v_add_u32 v6, v6, v7")
    a("s_mul_i32 s12, s11, 112")
    a("v_add_u32 v6, s12, v6")
    a("v_lshlrev_b32 v6, 7, v6")
    a("v_bfe_u32 v7, v2, 4, 1")
    a("v_lshlrev_b32 v7, 5, v7")
    a("v_and_b32 v8, 3, v2")
    a("v_lshl_add_u32 v7, v8, 3, v7")
    a("v_bfe_u32 v8, v2, 3, 1")
    a("v_lshl_add_u32 v7, v8, 6, v7")
    a("v_add_u32 v6, v6, v7")
    a("v_xor_b32 v7, 64, v6")
    a("s_waitcnt vmcnt(0)")
    a("s_barrier")
    stamp(a, 3)
    WF = 160
    def rd(k):
        f = WF + 8 * (k % 4)
        for nt in range(2):
            for jj in range(2):
                d = f + 4 * nt + 2 * jj
                a(f"ds_read_b64_tr_b16 v[{d}:{d+1}], v{6+nt} offset:{WO_L + k*1024 + jj*512}")
    rd(0); rd(1); rd(2)
    for k in range(14):
        left = min(13 - k, 2)
        a(f"s_waitcnt lgkmcnt({4*left})")
        f = WF + 8 * (k % 4)
        o = OFB + 4 * k
        for nt, D in ((0, D0), (1, D1)):
            cin = "0" if k == 0 else f"v[{D}:{D+15}]"
            a(f"v_mfma_f32_32x32x16_bf16 v[{D}:{D+15}], v[{f+4*nt}:{f+4*nt+3}], v[{o}:{o+3}], {cin}")
        if k + 3 < 14:
            rd(k + 3)
    stamp(a, 4)
    a("v_and_b32 v6, 31, v2")
    a("s_lshl_b32 s12, s10, 5")
    a("v_add_u32 v6, s12, v6")
    a(f"v_mul_u32_u24 v6, {PSTR}, v6")
    a("v_lshrrev_b32 v7, 5, v2")
    a("v_lshl_add_u32 v6, v7, 4, v6")
    a(f"s_mul_i32 s12, s11, {PHALF}")
    a(f"s_add_u32 s12, s12, {PART_L}")
    a("v_add_u32 v6, s12, v6")
    a("v_lshrrev_b32 v8, 3, v0")
    a("v_and_b32 v9, 7, v0")
    a(f"v_mul_u32_u24 v10, {PSTR}, v8")
    a("v_lshl_add_u32 v10, v9, 5, v10")
    a(f"v_add_u32 v10, {PART_L}, v10")
    a("v_mul_u32_u24 v11, 1792, v8")
    a("v_lshl_add_u32 v11, v9, 4, v11")
    a(f"s_mul_i32 s12, s8, {128*1792}")
    a("s_lshl_b32 s13, s9, 7")
    a("s_add_u32 s12, s12, s13")
    a("s_add_u32 s12, s12, 896")
    a(f"s_add_u32 s13, s12, {64*1792}")
    a("s_nop 3")
    for nt, D in ((0, D0), (1, D1)):
        for q in range(4):
            a(f"ds_write_b128 v6, v[{D+4*q}:{D+4*q+3}] offset:{nt*128 + q*32}")
    a("s_waitcnt lgkmcnt(0)")
    a("s_barrier")
    for t in range(2):
        for h in range(2):
            for u in range(2):
                d = 64 + 16 * t + 8 * h + 4 * u
                a(f"ds_read_b128 v[{d}:{d+3}], v10 offset:{t*64*PSTR + h*PHALF + u*16}")
    for t in range(2):
        a(f"s_waitcnt lgkmcnt({4 - 4*t})")
        b = 64 + 16 * t
        for i in range(8):
            a(f"v_add_f32 v{b+i}, v{b+i}, v{b+8+i}")
        for i in range(4):
            a(f"v_cvt_pk_bf16_f32 v{96+4*t+i}, v{b+2*i}, v{b+2*i+1}")
        a(f"buffer_store_dwordx4 v[{96+4*t}:{99+4*t}], v11, s[56:59], s{12+t} offen")
    stamp(a, 5)
    stamp_flush(a, 1)
    a("s_endpgm")

OPT = set(sys.argv[3:])
def build(parts=("B",)):
    a = Asm()
    hdr = open("cdna_kernels/" + NAME + ".s.ref").read().split("; Override launch")[0]
    a.raw(hdr.rstrip("\n"))
    a.raw(f"; @launch kernel={K1} grid=(256,1,1) block=(512,1,1) lds=163840")
    a.raw(f"; @launch kernel={K2} grid=(224,1,1) block=(512,1,1) lds=163840")
    a.raw('.amdgcn_target "amdgcn-amd-amdhsa--gfx950"')
    a.raw(".text")
    a.raw(f".globl {K1}\n.p2align 8\n.type {K1},@function")
    a.label(K1)
    prologue(a, 256, "L_k1_end")
    if "pf" in OPT:
        a("s_cmp_lg_u32 s5, 7")
        a("s_cbranch_scc1 L_k1_nopf")
        prefetch_code(a, "L_pf_start", 32768)
        a.label("L_k1_nopf")
        a.label("L_pf_start")
    a("s_cmp_ge_u32 s4, 24")
    a("s_cbranch_scc1 L_k1_a" if "nok1a" not in OPT else "s_cbranch_scc1 L_k1_end")
    if "nogemm" in OPT: a("s_endpgm")
    k1_gemm(a)
    a.label("L_k1_a")
    if "A" in parts:
        import gen_a
        gen_a.k1_a(a)
    a.label("L_k1_end")
    a("s_endpgm")
    a.raw(f".globl {K2}\n.p2align 8\n.type {K2},@function")
    a.label(K2)
    prologue(a, 224, "L_k2_end")
    a("s_cmp_lt_u32 s4, 14")
    a("s_cbranch_scc1 L_k2_conv" if "noconv" not in OPT else "s_cbranch_scc1 L_k2_end")
    if "now4" in OPT: a("s_endpgm")
    k2_w4(a)
    a.label("L_k2_conv")
    if "A" in parts:
        import gen_a
        gen_a.k2_conv(a)
    a.label("L_k2_end")
    a("s_endpgm")
    a.raw("  .fill 2048, 4, 0xbf800000")
    a.raw('.section .rodata,"a"')
    for k in (K1, K2):
        a.raw(f""".p2align 6
.amdhsa_kernel {k}
  .amdhsa_next_free_vgpr 256
  .amdhsa_next_free_sgpr 100
  .amdhsa_accum_offset 256
  .amdhsa_group_segment_fixed_size 0
  .amdhsa_kernarg_size 104
  .amdhsa_user_sgpr_count 2
  .amdhsa_user_sgpr_kernarg_segment_ptr 1
  .amdhsa_system_sgpr_workgroup_id_x 1
.end_amdhsa_kernel""")
    return a.text()

if __name__ == "__main__":
    parts = sys.argv[2] if len(sys.argv) > 2 else "B"
    if "stamps" in sys.argv: asmlib.STAMPS = True
    out = sys.argv[1] if len(sys.argv) > 1 else "k.s"
    open(out, "w").write(build(parts))
```

```python
class Asm:
    def __init__(self):
        self.lines = []
        self.lab = 0
    def __call__(self, s):
        for ln in s.strip("\n").split("\n"):
            ln = ln.strip()
            if ln:
                self.lines.append("  " + ln if not ln.endswith(":") else ln)
    def label(self, name):
        self.lines.append(name + ":")
    def newlabel(self, stem="L"):
        self.lab += 1
        return f"{stem}_{self.lab}"
    def comment(self, s):
        self.lines.append("  ; " + s)
    def raw(self, s):
        self.lines.append(s)
    def text(self):
        return "\n".join(self.lines) + "\n"

def vr(b, n=1):
    return f"v{b}" if n == 1 else f"v[{b}:{b+n-1}]"
def sr(b, n=1):
    return f"s{b}" if n == 1 else f"s[{b}:{b+n-1}]"
import struct
def f32bits(x):
    return struct.unpack("<I", struct.pack("<f", x))[0]
def fhex(x):
    return f"0x{f32bits(x):08x}"

STAMPS = False
STAMP_BASE = 0x1000000
def stamp(a, i):
    if STAMPS:
        a(f"s_memtime s[{80+2*i}:{81+2*i}]")
def stamp_init(a):
    if STAMPS:
        a("s_memrealtime s[94:95]")
        a("s_memtime s[78:79]")
        for i in range(7):
            a(f"s_mov_b32 s{80+2*i}, 0")
def stamp_flush(a, kern, wait_vm=True):
    if STAMPS:
        if wait_vm: a("s_waitcnt vmcnt(0)")
        a("s_memtime s[92:93]")
        a("s_waitcnt lgkmcnt(0)")
        a("s_mov_b64 exec, 1")
        a(f"s_add_u32 s96, s40, 0x{STAMP_BASE + kern*256*1024:x}")
        a("s_addc_u32 s97, s41, 0")
        a("s_lshl_b32 s98, s2, 4")
        a("s_add_u32 s98, s98, s5")
        a("s_lshl_b32 s98, s98, 6")
        a("v_mov_b32 v110, s98")
        a("v_mov_b32 v100, s94")
        a("v_mov_b32 v101, s78")
        for i in range(6):
            a(f"v_mov_b32 v{102+i}, s{80+2*i}")
        a("v_mov_b32 v108, s92")
        a("v_mov_b32 v109, s4")
        a("global_store_dwordx4 v110, v[100:103], s[96:97]")
        a("global_store_dwordx4 v110, v[104:107], s[96:97] offset:16")
        a("global_store_dwordx2 v110, v[108:109], s[96:97] offset:32")
```

```python
import sys
from asmlib import *
import gen6 as G
from gen6 import srd, P_WS, P_WO, P_OUT, WS_KV, WS_PQ, WS_KT, WS_UB, UB_IMG, KT_ROW, KT_IMG

def k2_w4(a):
    WO_L, KVF_L, PART_L = 0, 57344, 90112
    PSTR = 272
    PHALF = 128 * PSTR
    a("s_sub_u32 s6, s4, 14")
    a("s_cmp_ge_u32 s6, 7")
    a("s_cselect_b32 s7, 1, 0")
    a("s_lshl_b32 s8, s3, 1")
    a("s_add_u32 s8, s8, s7")
    a("s_mul_i32 s7, s7, 7")
    a("s_sub_u32 s9, s6, s7")
    a("s_and_b32 s10, s5, 3")
    a("s_lshr_b32 s11, s5, 2")
    a("v_and_b32 v4, 3, v2")
    a("v_bfe_u32 v5, v2, 3, 2")
    a("v_lshl_add_u32 v4, v5, 2, v4")
    a("v_bfe_u32 v5, v2, 2, 1")
    a("v_add_u32 v6, 2, v4")
    a("v_lshrrev_b32 v6, 4, v6")
    a("v_or_b32 v5, v5, v6")
    a("v_mad_u32_u24 v4, v5, 14, v4")
    a("v_and_b32 v5, 32, v2")
    a("v_add_lshl_u32 v3, v4, v5, 4")
    a("v_lshlrev_b32 v4, 4, v2")
    a("s_lshl_b32 s12, s5, 13")
    a("s_add_u32 s13, s12, 4096")
    a("s_lshl_b32 s14, s8, 2")
    a("s_add_u32 s14, s14, s10")
    a("s_lshl_b32 s14, s14, 4")
    a("s_lshl_b32 s15, s11, 3")
    a("s_add_u32 s14, s14, s15")
    a("s_lshl_b32 s14, s14, 11")
    a("s_waitcnt lgkmcnt(0)")
    srd(a, 44, P_WS, 0x10000, WS_KV)
    srd(a, 48, P_WS, 0x200000, WS_PQ)
    KVR = 64
    PQR = 96
    stamp(a, 0)
    if "notouch2" not in G.OPT:
        a("s_lshl_b32 s60, s6, 3")
        a("s_add_u32 s60, s60, s5")
        a("s_mul_i32 s60, s60, 640")
        a("v_lshlrev_b32 v5, 7, v2")
        a("s_mov_b64 exec, 31")
        a("buffer_load_dword v6, v5, s[44:47], s60 offen")
        a("s_lshl_b32 s60, s9, 3")
        a("s_add_u32 s60, s60, s5")
        a("s_mul_i32 s60, s60, 2432")
        a("s_lshl_b32 s61, s8, 17")
        a("s_add_u32 s60, s60, s61")
        a("s_mov_b64 exec, 0x7ffff")
        a("buffer_load_dword v7, v5, s[48:51], s60 offen")
        a("s_mov_b64 exec, -1")
        a("s_waitcnt vmcnt(0)")
    for hh in range(2):
        for q in range(4):
            d = KVR + 16 * hh + 4 * q
            a(f"buffer_load_dwordx4 v[{d}:{d+3}], v3, s[44:47], s{12+hh} offen offset:{q*1024}")
    def pq(i0, i1):
        for i in range(i0, i1):
            a(f"buffer_load_dwordx4 v[{PQR+4*i}:{PQR+4*i+3}], v4, s[48:51], s14 offen offset:{(i%4)*1024}")
            if i % 4 == 3 and i != 15:
                a("s_add_u32 s14, s14, 4096")
    pq(0, 8)
    srd(a, 52, P_WO, 448 * 896)
    srd(a, 56, P_OUT, 2048 * 1792)
    a("v_lshrrev_b32 v5, 3, v2")
    a("v_bfe_u32 v6, v2, 4, 1")
    a("v_lshlrev_b32 v6, 2, v6")
    a("v_and_b32 v7, 7, v2")
    a("v_xor_b32 v6, v6, v7")
    a("v_lshlrev_b32 v6, 4, v6")
    a("s_mul_i32 s60, s10, 112")
    a("s_mul_i32 s61, s11, 14")
    a("s_add_u32 s60, s60, s61")
    a("s_mul_i32 s60, s60, 896")
    a("s_lshl_b32 s61, s9, 7")
    a("s_add_u32 s60, s60, s61")
    a("s_mul_i32 s61, s5, 7168")
    for i in range(7):
        a(f"v_add_u32 v7, {8*i}, v5")
        a("v_mul_u32_u24 v15, 37, v7")
        a("v_lshrrev_b32 v15, 9, v15")
        a("v_mad_u32_u24 v7, v15, 14, v7")
        a("v_mul_u32_u24 v7, 896, v7")
        a(f"v_add_u32 v{8+i}, v7, v6")
    def wo(i):
        a(f"s_add_u32 m0, s61, {WO_L + i*1024}")
        a("s_nop 0")
        a(f"buffer_load_dwordx4 v{8+i}, s[52:55], s60 offen lds")
    a("s_lshl_b32 s12, s5, 12")
    a(f"s_add_u32 s12, s12, {KVF_L}")
    a("v_add_u32 v5, s12, v4")
    a("s_waitcnt vmcnt(8)")
    stamp(a, 1)
    for i in range(16):
        a(f"v_cvt_pk_bf16_f32 v{32+i}, v{KVR+2*i}, v{KVR+2*i+1}")
    a("s_mov_b32 s12, 0")
    a("s_mov_b32 s13, -1")
    a("s_mov_b64 exec, s[12:13]")
    for hh in range(2):
        a(f"v_mov_b32 v{32+8*hh+6}, 0")
        a(f"v_mov_b32 v{32+8*hh+7}, 0")
    a("s_mov_b64 exec, -1")
    for i in range(4):
        a(f"ds_write_b128 v5, v[{32+4*i}:{35+4*i}] offset:{i*1024}")
    pq(8, 16)
    a("s_lshl_b32 s12, s11, 14")
    a(f"s_add_u32 s12, s12, {KVF_L}")
    a("v_add_u32 v5, s12, v4")
    a(f"s_mov_b32 s62, {fhex(1e-6)}")
    a("s_waitcnt lgkmcnt(0)")
    a("s_barrier")
    KF = 160
    for i in range(15):
        a(f"ds_read_b128 v[{KF+4*i}:{KF+4*i+3}], v5 offset:{i*1024}")
    D0, D1 = 32, 48
    OFB = PQR - 8
    def num(hI):
        D = D0 if hI % 2 == 0 else D1
        k = KF + 8 * hI; p = PQR + 8 * hI
        a(f"v_mfma_f32_32x32x16_bf16 v[{D}:{D+15}], v[{k}:{k+3}], v[{p}:{p+3}], 0")
        a(f"v_mfma_f32_32x32x16_bf16 v[{D}:{D+15}], v[{k+4}:{k+7}], v[{p+4}:{p+7}], v[{D}:{D+15}]")
    def fin(hI):
        D = D0 if hI % 2 == 0 else D1
        a(f"v_add_f32 v6, s62, v{D+14}")
        a("v_rcp_f32 v6, v6")
        a("s_nop 0")
        for r in range(14):
            a(f"v_mul_f32 v{D+r}, v{D+r}, v6")
        for p in range(7):
            a(f"v_cvt_pk_bf16_f32 v{OFB+7*hI+p}, v{D+2*p}, v{D+2*p+1}")
    a("s_waitcnt vmcnt(14) lgkmcnt(13)")
    stamp(a, 2)
    num(0)
    a(f"ds_read_b128 v[{KF+60}:{KF+63}], v5 offset:{15*1024}")
    nwo = 0
    for hI in range(8):
        k = min(2, 7 - nwo)
        for _ in range(k):
            wo(nwo); nwo += 1
        if hI < 7:
            a(f"s_waitcnt vmcnt({2*(6-hI) + nwo}) lgkmcnt({max(0, 12 - 2*hI)})")
            num(hI + 1)
        if hI == 0:
            a("s_nop 3")
        fin(hI)
    a("v_lshrrev_b32 v6, 5, v2")
    a("v_mul_u32_u24 v6, 224, v6")
    a("v_bfe_u32 v7, v2, 2, 2")
    a("v_add_u32 v6, v6, v7")
    a("s_mul_i32 s12, s11, 112")
    a("v_add_u32 v6, s12, v6")
    a("v_lshlrev_b32 v6, 7, v6")
    a("v_bfe_u32 v7, v2, 4, 1")
    a("v_lshlrev_b32 v7, 5, v7")
    a("v_and_b32 v8, 3, v2")
    a("v_lshl_add_u32 v7, v8, 3, v7")
    a("v_bfe_u32 v8, v2, 3, 1")
    a("v_lshl_add_u32 v7, v8, 6, v7")
    a("v_add_u32 v6, v6, v7")
    a("v_xor_b32 v7, 64, v6")
    a("s_waitcnt vmcnt(0)")
    a("s_barrier")
    stamp(a, 3)
    WF = 160
    def rd(k):
        f = WF + 8 * (k % 4)
        for nt in range(2):
            for jj in range(2):
                d = f + 4 * nt + 2 * jj
                a(f"ds_read_b64_tr_b16 v[{d}:{d+1}], v{6+nt} offset:{WO_L + k*1024 + jj*512}")
    rd(0); rd(1); rd(2)
    for k in range(14):
        left = min(13 - k, 2)
        a(f"s_waitcnt lgkmcnt({4*left})")
        f = WF + 8 * (k % 4)
        o = OFB + 4 * k
        for nt, D in ((0, D0), (1, D1)):
            cin = "0" if k == 0 else f"v[{D}:{D+15}]"
            a(f"v_mfma_f32_32x32x16_bf16 v[{D}:{D+15}], v[{f+4*nt}:{f+4*nt+3}], v[{o}:{o+3}], {cin}")
        if k + 3 < 14:
            rd(k + 3)
    stamp(a, 4)
    a("v_and_b32 v6, 31, v2")
    a("s_lshl_b32 s12, s10, 5")
    a("v_add_u32 v6, s12, v6")
    a(f"v_mul_u32_u24 v6, {PSTR}, v6")
    a("v_lshrrev_b32 v7, 5, v2")
    a("v_lshl_add_u32 v6, v7, 4, v6")
    a(f"s_mul_i32 s12, s11, {PHALF}")
    a(f"s_add_u32 s12, s12, {PART_L}")
    a("v_add_u32 v6, s12, v6")
    a("v_lshrrev_b32 v8, 3, v0")
    a("v_and_b32 v9, 7, v0")
    a(f"v_mul_u32_u24 v10, {PSTR}, v8")
    a("v_lshl_add_u32 v10, v9, 5, v10")
    a(f"v_add_u32 v10, {PART_L}, v10")
    a("v_mul_u32_u24 v11, 1792, v8")
    a("v_lshl_add_u32 v11, v9, 4, v11")
    a(f"s_mul_i32 s12, s8, {128*1792}")
    a("s_lshl_b32 s13, s9, 7")
    a("s_add_u32 s12, s12, s13")
    a("s_add_u32 s12, s12, 896")
    a(f"s_add_u32 s13, s12, {64*1792}")
    for nt, D in ((0, D0), (1, D1)):
        for q in range(4):
            a(f"ds_write_b128 v6, v[{D+4*q}:{D+4*q+3}] offset:{nt*128 + q*32}")
    a("s_waitcnt lgkmcnt(0)")
    a("s_barrier")
    for t in range(2):
        for h in range(2):
            for u in range(2):
                d = 64 + 16 * t + 8 * h + 4 * u
                a(f"ds_read_b128 v[{d}:{d+3}], v10 offset:{t*64*PSTR + h*PHALF + u*16}")
    for t in range(2):
        a(f"s_waitcnt lgkmcnt({4 - 4*t})")
        b = 64 + 16 * t
        for i in range(8):
            a(f"v_add_f32 v{b+i}, v{b+i}, v{b+8+i}")
        for i in range(4):
            a(f"v_cvt_pk_bf16_f32 v{96+4*t+i}, v{b+2*i}, v{b+2*i+1}")
        a(f"buffer_store_dwordx4 v[{96+4*t}:{99+4*t}], v11, s[56:59], s{12+t} offen")
    stamp(a, 5)
    stamp_flush(a, 1)
    a("s_endpgm")

U_L = 0
KS = 4288
KI_L = 288 * 64
EPA_L = KI_L + 16 * KS
EPB_L = EPA_L + 32768

def k2_conv(a):
    a.comment("---- conv role ----")
    a("s_mul_i32 s6, s3, 56")
    a("s_lshl_b32 s7, s4, 2")
    a("s_add_u32 s6, s6, s7")
    a("s_and_b32 s7, s5, 3")
    a("s_lshr_b32 s8, s5, 2")
    a("v_lshrrev_b32 v3, 4, v2")
    a("v_sub_u32 v3, v2, v3")
    a("v_and_b32 v3, 3, v3")
    a("v_and_b32 v4, 60, v2")
    a("v_add_lshl_u32 v3, v3, v4, 4")
    a("s_lshl_b32 s9, s5, 10")
    a("s_lshl_b32 s10, s6, 12")
    a("s_add_u32 s9, s9, s10")
    a("s_lshl_b32 s10, s5, 10")
    a(f"s_add_u32 s10, s10, {U_L + 2048}")
    a("v_lshlrev_b32 v4, 4, v2")
    a("s_add_u32 s11, s6, s7")
    a(f"s_mul_i32 s11, s11, {KT_ROW}")
    a("s_lshl_b32 s12, s7, 2")
    a("s_add_u32 s12, s12, s8")
    a(f"s_mul_i32 s12, s12, {KS}")
    a(f"s_add_u32 s12, s12, {KI_L}")
    a("v_mov_b32 v8, 0\nv_mov_b32 v9, 0\nv_mov_b32 v10, 0\nv_mov_b32 v11, 0")
    a("s_waitcnt lgkmcnt(0)")
    srd(a, 44, P_WS, UB_IMG, WS_UB)
    srd(a, 48, P_WS, 448 * KT_ROW, WS_KT)
    srd(a, 52, P_OUT, 2048 * 1792)
    stamp(a, 0)
    def kdma(i, sh):
        a(f"s_add_u32 s13, s11, {i*1024 + 4*sh}")
        a(f"s_add_u32 m0, s12, {2*KS*sh + i*1024}")
        a("s_nop 0")
        a("buffer_load_dwordx4 v4, s[48:51], s13 offen lds")
    def udma(h):
        if h: a("s_add_u32 s9, s9, 8192")
        a(f"s_add_u32 m0, s10, {h*8192}")
        a("s_nop 0")
        a("buffer_load_dwordx4 v3, s[44:47], s9 offen lds")
    KR_ = 64
    def kreg(i):
        r = KR_ + 8 * i
        a(f"buffer_load_dwordx4 v[{r}:{r+3}], v4, s[48:51], s11 offen offset:{i*1024}")
        a(f"buffer_load_dwordx2 v[{r+4}:{r+5}], v4, s[48:51], s11 offen offset:{i*1024+16}")
    Lh, Lj = a.newlabel("Lch"), a.newlabel("Lcj")
    a("s_cmp_lg_u32 s8, 0")
    a(f"s_cbranch_scc1 {Lh}")
    udma(0); kdma(3, 0); kdma(3, 1); kdma(2, 0); kdma(2, 1)
    udma(1); kdma(1, 0); kdma(1, 1); kdma(0, 0); kdma(0, 1)
    a(f"s_branch {Lj}")
    a.label(Lh)
    udma(0); kreg(3); kreg(2)
    udma(1); kreg(1); kreg(0)
    a.label(Lj)
    a("v_add_u32 v20, s12, v4")
    def kbuild(i):
        r = KR_ + 8 * i; o = 96
        for k_ in range(5):
            a(f"v_alignbyte_b32 v{o+k_}, v{r+k_+1}, v{r+k_}, 2")
        for k_ in range(3):
            a(f"v_mov_b32 v{o+8+k_}, v{o+1+k_}")
        a(f"v_mov_b32 v{o+11}, v{o+4}")
        a(f"ds_write_b128 v20, v[{o}:{o+3}] offset:{i*1024}")
        a(f"ds_write_b128 v20, v[{o+8}:{o+11}] offset:{2*KS + i*1024}")
    a("s_lshl_b32 s13, s5, 10")
    a("v_add_u32 v5, s13, v4")
    a("s_cmp_lt_u32 s5, 2")
    a("s_cselect_b32 s14, -1, 0")
    a("s_cselect_b32 s15, -1, 0")
    a("s_mov_b64 exec, s[14:15]")
    a("ds_write_b128 v5, v[8:11]")
    a("s_mov_b64 exec, 15")
    a("v_add_u32 v5, s12, v4")
    a("ds_write_b128 v5, v[8:11] offset:4096")
    a(f"ds_write_b128 v5, v[8:11] offset:{4096 + 2*KS}")
    a("s_mov_b64 exec, -1")
    a("v_and_b32 v5, 15, v2")
    a("v_lshrrev_b32 v7, 4, v2")
    a("v_lshl_add_u32 v6, v5, 1, v7")
    a("s_lshl_b32 s13, s8, 4")
    a("s_sub_u32 s13, 30, s13")
    a("v_add_u32 v6, s13, v6")
    SAD = 12
    for it in range(4):
        a(f"v_subrev_u32 v8, {4*it}, v6")
        a("v_lshrrev_b32 v9, 2, v8")
        a("v_add_u32 v9, s7, v9")
        a("v_and_b32 v9, 3, v9")
        a("v_lshlrev_b32 v9, 4, v9")
        a(f"v_lshl_add_u32 v{SAD+it}, v8, 6, v9")
    a("v_sub_u32 v8, 3, v5")
    a("v_and_b32 v8, 3, v8")
    a(f"v_mul_u32_u24 v16, {KS}, v8")
    a("v_add_u32 v8, v8, v5")
    a("v_lshlrev_b32 v9, 3, v7")
    a("v_sub_u32 v9, v9, v8")
    a("v_lshl_add_u32 v16, v9, 1, v16")
    a(f"s_mul_i32 s13, s7, {4*KS}")
    a("s_lshl_b32 s14, s8, 8")
    a("s_sub_u32 s13, s13, s14")
    a(f"s_add_u32 s13, s13, {KI_L + 2*2031 - 512*7 - 64*3}")
    a("v_add_u32 v16, s13, v16")
    a("s_lshl_b32 s13, s5, 12")
    a(f"s_add_u32 s13, s13, {EPA_L}")
    a("v_add_u32 v17, s13, v4")
    a("v_lshlrev_b32 v18, 3, v0")
    a(f"v_add_u32 v18, {EPA_L}, v18")
    a("v_lshrrev_b32 v8, 5, v0")
    a("v_lshlrev_b32 v8, 6, v8")
    a("v_and_b32 v9, 1, v0")
    a("v_lshl_add_u32 v8, v9, 5, v8")
    a("v_bfe_u32 v9, v0, 1, 4")
    a("v_add_u32 v8, v8, v9")
    a("v_mul_u32_u24 v19, 1792, v8")
    a("s_lshl_b32 s60, s6, 1")
    a(f"s_add_u32 s61, s60, {16*1792}")
    a("s_waitcnt vmcnt(5)")
    Lb = a.newlabel("Lnb1")
    a("s_cmp_eq_u32 s8, 0")
    a(f"s_cbranch_scc1 {Lb}")
    kbuild(3); kbuild(2)
    a("s_waitcnt vmcnt(0)")
    kbuild(1); kbuild(0)
    a.label(Lb)
    a("s_waitcnt lgkmcnt(0)")
    a("s_barrier")
    stamp(a, 1)
    ACC = 32
    SB = [64, 128]
    def rd_list(it, nk):
        s = SB[it % 2]; f = s + 32
        ops = []
        for k in range(nk):
            ops.append(f"ds_read_b128 v[{s+4*k}:{s+4*k+3}], v{SAD+it} offset:{2048*k}")
            for jj in range(2):
                d = f + 4 * k + 2 * jj
                ops.append(f"ds_read_b64 v[{d}:{d+1}], v16 offset:{512*(7-k) + 8*jj + 64*(3-it)}")
        return ops
    first = set()
    def phase(nlo, nhi, nk, extra=None):
        for it in range(4):
            nxt = rd_list(it + 1, nk) if it < 3 else []
            fill = list(nxt)
            pairs = sorted([(v, w) for v in range(nk) for w in range(nk) if nlo <= v + w <= nhi], key=lambda p: (p[1], p[0]))
            ex = list(extra) if (extra and it == 0) else []
            per = -(-len(fill) // len(pairs))
            cnt = 0
            for i, (v, w) in enumerate(pairs):
                s = SB[it % 2]; f = s + 32
                d = ACC + 4 * (v + w)
                cin = f"v[{d}:{d+3}]" if d in first else "0"
                first.add(d)
                a(f"v_mfma_f32_16x16x32_bf16 v[{d}:{d+3}], v[{s+4*v}:{s+4*v+3}], v[{f+4*w}:{f+4*w+3}], {cin}")
                for _ in range(per):
                    if fill:
                        a(fill.pop(0)); cnt += 1
                        if cnt == 12: a("s_waitcnt lgkmcnt(8)")
                if ex:
                    a(ex.pop(0))
            for e_ in ex: a(e_)
            if nxt:
                a("s_waitcnt lgkmcnt(0)")
    def store_ops(R, soff):
        ops = []
        for c in range(4):
            for r in range(2):
                ops.append(f"v_add_f32 v{R+2*c+r}, v{R+2*c+r}, v{R+8+2*c+r}")
        for r in range(2):
            ops.append(f"v_cvt_pk_bf16_f32 v{R+16+2*r}, v{R+r}, v{R+2+r}")
            ops.append(f"v_cvt_pk_bf16_f32 v{R+17+2*r}, v{R+4+r}, v{R+6+r}")
            ops.append(f"buffer_store_dwordx2 v[{R+16+2*r}:{R+17+2*r}], v19, s[52:55], s{60+r} offen")
        return ops
    for o in rd_list(0, 4): a(o)
    a("s_waitcnt lgkmcnt(0)")
    phase(0, 3, 4)
    a("s_nop 7")
    for n in range(4):
        a(f"ds_write_b128 v17, v[{ACC+4*n}:{ACC+4*n+3}] offset:{n*1024}")
    a("s_waitcnt vmcnt(0) lgkmcnt(0)")
    a("s_barrier")
    stamp(a, 2)
    R = 192
    for w in range(8):
        a(f"ds_read_b64 v[{R+2*w}:{R+2*w+1}], v18 offset:{w*4096}")
    for i, o in enumerate(rd_list(0, 8)):
        a(o)
        if i == 6: a("s_waitcnt lgkmcnt(7)")
    a("s_waitcnt lgkmcnt(0)")
    phase(4, 7, 8, store_ops(R, 0))
    stamp(a, 4)
    a(f"s_add_u32 s60, s60, {1024*1792}")
    a(f"s_add_u32 s61, s61, {1024*1792}")
    a("s_nop 5")
    for n in range(4):
        a(f"ds_write_b128 v17, v[{ACC+16+4*n}:{ACC+16+4*n+3}] offset:{32768 + n*1024}")
    a("s_waitcnt lgkmcnt(0)")
    a("s_barrier")
    for w in range(8):
        a(f"ds_read_b64 v[{R+2*w}:{R+2*w+1}], v18 offset:{32768 + w*4096}")
    a("s_waitcnt lgkmcnt(0)")
    for o in store_ops(R, 0): a(o)
    stamp(a, 5)
    stamp_flush(a, 1)
    a("s_endpgm")
```

```python
import sys, math, struct
from asmlib import *
import asmlib

NAME = "concat_heads__ssm_conv_s4d__linear_attn_block__prompt"
K1 = "s4dla_k1_kernel"
K2 = "s4dla_k2_kernel"
OPT = set(sys.argv[2:])

WS_KV = 0x0
WS_PQ = 0x10000
WS_KT = 0x210000
KT_IMG = 4224
KT_ROW = KT_IMG
WS_UB = 0x600000
UB_IMG = 256 * 448 * 16
LOG2E = 1.4426950408889634
INV2PI = 0.15915494309189535
C_HI = struct.unpack("<f", struct.pack("<f", INV2PI))[0]
C_LO = INV2PI - C_HI
ST = " sc1" if "wt" in OPT else (" nt" if "nt" in OPT else "")

P_U, P_LA, P_AI, P_CR, P_CI, P_LDT, P_D, P_X, P_W, P_WO, P_OUT, P_DBG, P_WS = 16, 18, 20, 22, 24, 26, 28, 30, 32, 34, 36, 38, 40

def srd(a, d, p, nbytes, off=0):
    if off:
        a(f"s_add_u32 s{d}, s{p}, 0x{off:x}")
        a(f"s_addc_u32 s{d+1}, s{p+1}, 0")
    else:
        a(f"s_mov_b32 s{d}, s{p}")
        a(f"s_mov_b32 s{d+1}, s{p+1}")
    a(f"s_mov_b32 s{d+2}, 0x{nbytes:x}")
    a(f"s_mov_b32 s{d+3}, 0x20000")

def prologue(a, ngrid, endlabel):
    a(f"s_cmp_ge_u32 s2, {ngrid}")
    a(f"s_cbranch_scc1 {endlabel}")
    stamp_init(a)
    a("s_load_dwordx16 s[16:31], s[0:1], 0")
    a("s_load_dwordx8 s[32:39], s[0:1], 64")
    a("s_load_dwordx2 s[40:41], s[0:1], 96")
    a("v_lshrrev_b32 v1, 6, v0")
    a("v_and_b32 v2, 63, v0")
    a("s_and_b32 s3, s2, 7")
    a("s_lshr_b32 s4, s2, 3")
    a("v_readfirstlane_b32 s5, v1")

def prefetch_code(a, swave, n, vtmp, stmp=70):
    lab = a.newlabel("Lpc")
    a(f"s_getpc_b64 s[{stmp}:{stmp+1}]")
    a.label(lab)
    a(f"s_sub_u32 s{stmp}, s{stmp}, {lab}-{K1}")
    a(f"s_subb_u32 s{stmp+1}, s{stmp+1}, 0")
    a(f"v_lshlrev_b32 v{vtmp}, 7, v2")
    if swave is not None:
        a(f"s_mul_i32 s{stmp+2}, s{swave}, {8192*n}")
        a(f"v_add_u32 v{vtmp}, s{stmp+2}, v{vtmp}")
    for i in range(n):
        a(f"global_load_dword v{vtmp+1}, v{vtmp}, s[{stmp}:{stmp+1}]")
        if i < n - 1:
            a(f"v_add_u32 v{vtmp}, 8192, v{vtmp}")

def phi_pack(a, acc, dst, tmp, s_log2e, s_eps):
    for p in range(0, 8, 2):
        t = tmp
        for q in range(2):
            r = 2 * (p + q)
            a(f"v_cvt_pk_bf16_f32 v{t+4*q}, v{acc+r}, v{acc+r+1}")
        for q in range(2):
            a(f"v_and_b32 v{t+4*q+1}, 0xffff0000, v{t+4*q}")
            a(f"v_lshlrev_b32 v{t+4*q}, 16, v{t+4*q}")
        for q in range(2):
            a(f"v_mul_f32 v{t+4*q+2}, s{s_log2e}, v{t+4*q}")
            a(f"v_mul_f32 v{t+4*q+3}, s{s_log2e}, v{t+4*q+1}")
        for q in range(2):
            a(f"v_exp_f32_e64 v{t+4*q+2}, v{t+4*q+2} clamp")
            a(f"v_exp_f32_e64 v{t+4*q+3}, v{t+4*q+3} clamp")
        for q in range(2):
            a(f"v_max_f32 v{t+4*q}, s{s_eps}, v{t+4*q}")
            a(f"v_max_f32 v{t+4*q+1}, s{s_eps}, v{t+4*q+1}")
        for q in range(2):
            a(f"v_add_f32 v{t+4*q}, v{t+4*q}, v{t+4*q+2}")
            a(f"v_add_f32 v{t+4*q+1}, v{t+4*q+1}, v{t+4*q+3}")
        for q in range(2):
            a(f"v_cvt_pk_bf16_f32 v{dst+p+q}, v{t+4*q}, v{t+4*q+1}")


SLOT = 32768
RS = 4 * 256 + 32
SCRG = 16 * RS
TSTR = 4736
RING0 = 21760
FLG_L = 21648
A_TAB = 2 * SCRG
A_CNT = A_TAB + 4 * TSTR
A_UT = 53248

def k1_gemm(a):
    a.comment("---- GEMM roles: decode ----")
    a("s_cmp_ge_u32 s5, 12")
    a("s_cbranch_scc1 L_k1_host")
    a("s_lshr_b32 s6, s3, 1")
    a("s_lshl_b32 s6, s6, 2")
    a("s_and_b32 s7, s3, 1")
    a("s_lshr_b32 s8, s4, 2")
    a("s_add_u32 s8, s8, s6")
    a("s_and_b32 s9, s4, 3")
    a("s_lshl_b32 s10, s7, 2")
    a("s_add_u32 s9, s9, s10")
    a("s_mul_i32 s10, s9, 112")
    a("s_add_u32 s11, s10, 1792")
    a("s_add_u32 s10, s10, 896")
    a("s_sub_u32 s12, s4, 16")
    a("s_lshr_b32 s13, s12, 1")
    a("s_add_u32 s13, s13, s6")
    a("s_and_b32 s12, s12, 1")
    a("s_lshl_b32 s14, s7, 1")
    a("s_add_u32 s12, s12, s14")
    a("s_mul_i32 s14, s12, 224")
    a("s_add_u32 s15, s14, 112")
    a("s_cmp_lt_u32 s4, 16")
    a("s_cselect_b32 s8, s8, s13")
    a("s_cselect_b32 s9, s9, s12")
    a("s_cselect_b32 s10, s10, s14")
    a("s_cselect_b32 s11, s11, s15")
    a("s_cmp_lt_u32 s5, 8")
    a("s_cbranch_scc1 L_k1_comp")
    a("s_setprio 2")
    a("s_sub_u32 s6, s5, 8")
    a("v_lshrrev_b32 v7, 3, v2")
    a("v_lshrrev_b32 v8, 4, v2")
    a("v_and_b32 v9, 7, v2")
    a("s_lshl_b32 s12, s8, 7")
    a("s_lshl_b32 s13, s6, 5")
    a("s_add_u32 s12, s12, s13")
    a("v_add_u32 v10, s12, v7")
    a("v_mul_u32_u24 v10, 896, v10")
    a("v_xor_b32 v11, v9, v8")
    a("v_lshl_add_u32 v3, v11, 4, v10")
    a("v_xor_b32 v11, 4, v11")
    a("v_lshl_add_u32 v4, v11, 4, v10")
    a("v_add_u32 v4, 7168, v4")
    a("s_lshl_b32 s13, s6, 4")
    a("v_add_u32 v10, s13, v7")
    a("v_mul_u32_u24 v10, 2688, v10")
    a("v_and_b32 v11, 1, v8")
    a("v_lshlrev_b32 v11, 2, v11")
    a("v_xor_b32 v11, v11, v9")
    a("v_lshl_add_u32 v10, v11, 4, v10")
    a("v_add_u32 v5, s10, v10")
    a("v_add_u32 v6, s11, v10")
    a("s_lshl_b32 s12, s6, 12")
    a(f"s_add_u32 s12, s12, {RING0}")
    a("s_lshl_b32 s13, s6, 11")
    a(f"s_add_u32 s13, s13, {RING0 + 16384}")
    a("s_waitcnt lgkmcnt(0)")
    srd(a, 44, P_X, 2048 * 896)
    srd(a, 48, P_W, 448 * 2688)
    stamp(a, 0)
    def issue_chunk(c):
        so = (c % 4) * SLOT
        for h in range(2):
            a(f"s_movk_i32 s14, {128*c + h*14336}")
            a(f"s_add_u32 m0, s12, {so + h*2048}")
            a(f"s_mov_b32 s15, {172032*c + h*21504}")
            a("buffer_load_dwordx4 v3, s[44:47], s14 offen lds")
            a(f"s_add_u32 m0, s13, {so + h*1024}")
            a("s_nop 0")
            a("buffer_load_dwordx4 v5, s[48:51], s15 offen lds")
            a(f"s_add_u32 m0, s12, {so + h*2048 + 1024}")
            a("s_nop 0")
            a("buffer_load_dwordx4 v4, s[44:47], s14 offen lds")
            a(f"s_add_u32 m0, s13, {so + h*1024 + 8192}")
            a("s_nop 0")
            a("buffer_load_dwordx4 v6, s[48:51], s15 offen lds")
    issue_chunk(0); issue_chunk(1); issue_chunk(2)
    stamp(a, 2)
    for c in range(7):
        a(f"s_waitcnt vmcnt({[16,16,8,8,8,8,0][c]})")
        if c == 0: stamp(a, 3)
        a("s_barrier")
        if c == 0:
            stamp(a, 4)
            issue_chunk(3)
        if 2 <= c <= 4:
            issue_chunk(c + 2)
    stamp_flush(a, 0)
    a("s_endpgm")

    a.label("L_k1_comp")
    a("v_and_b32 v7, 31, v2")
    a("v_lshrrev_b32 v8, 5, v2")
    a("v_bfe_u32 v9, v2, 1, 3")
    a("v_xor_b32 v9, v9, v8")
    a("s_and_b32 s14, s5, 3")
    a("s_lshl_b32 s15, s14, 12")
    a(f"s_add_u32 s15, s15, {RING0}")
    a("v_lshlrev_b32 v7, 7, v7")
    a("v_lshl_add_u32 v7, v9, 4, v7")
    a("v_add_u32 v16, s15, v7")
    a("v_xor_b32 v17, 32, v16")
    a("v_xor_b32 v18, 64, v16")
    a("v_xor_b32 v19, 0x60, v16")
    a("s_lshr_b32 s65, s5, 2")
    a("s_mul_i32 s15, s65, 56")
    a("v_bfe_u32 v7, v2, 4, 1")
    a("v_lshlrev_b32 v7, 5, v7")
    a("v_and_b32 v9, 3, v2")
    a("v_lshl_add_u32 v7, v9, 3, v7")
    a("v_add_u32 v7, s15, v7")
    a("v_bfe_u32 v9, v2, 3, 1")
    a("v_lshlrev_b32 v9, 6, v9")
    a("v_xor_b32 v7, v7, v9")
    a("v_bfe_u32 v9, v2, 2, 2")
    a("v_lshl_add_u32 v9, v8, 3, v9")
    a("v_lshl_add_u32 v7, v9, 7, v7")
    a(f"v_add_u32 v20, {RING0 + 16384}, v7")
    a(f"s_mov_b32 s66, {fhex(LOG2E)}")
    a(f"s_mov_b32 s67, {fhex(1e-6)}")
    a("s_waitcnt lgkmcnt(0)")
    srd(a, 52, P_WS, 0x10000, WS_KV)
    srd(a, 56, P_WS, 0x200000, WS_PQ)
    srd(a, 60, P_DBG, 256)
    stamp(a, 0)
    a("s_cmp_ge_u32 s4, 16")
    a("s_cbranch_scc1 L_k1_q")

    FR = 32
    ACC0, ACC1 = 80, 96
    def main_loop(is_q, hook=None):
        st = {"base": 0}
        def setbase(c):
            want = ((c % 4) // 2) * 65536
            if want != st["base"]:
                d = want - st["base"]
                for r in range(16, 21):
                    if d > 0: a(f"v_add_u32 v{r}, 0x{d:x}, v{r}")
                    else: a(f"v_subrev_u32 v{r}, 0x{-d:x}, v{r}")
                st["base"] = want
        def reads(c, k):
            so = (c % 4) * SLOT - st["base"]
            f = FR + 12 * k
            a(f"ds_read_b128 v[{f}:{f+3}], v{16+k} offset:{so}")
            for seg in range(2):
                for jj in range(2):
                    d = f + 4 + 4 * seg + 2 * jj
                    a(f"ds_read_b64_tr_b16 v[{d}:{d+1}], v20 offset:{so + seg*8192 + (16*k+4*jj)*128}")
        def mfma(c, k):
            f = FR + 12 * k
            for seg, acc in ((0, ACC0), (1, ACC1)):
                wf = f + 4 + 4 * seg
                cin = "0" if (c == 0 and k == 0) else f"v[{acc}:{acc+15}]"
                if is_q:
                    a(f"v_mfma_f32_32x32x16_bf16 v[{acc}:{acc+15}], v[{wf}:{wf+3}], v[{f}:{f+3}], {cin}")
                else:
                    a(f"v_mfma_f32_32x32x16_bf16 v[{acc}:{acc+15}], v[{f}:{f+3}], v[{wf}:{wf+3}], {cin}")
        a("s_barrier")
        stamp(a, 1)
        reads(0, 0); reads(0, 1)
        for c in range(7):
            if c == 3: stamp(a, 2)
            if c == 6: stamp(a, 3)
            reads(c, 2)
            a("s_waitcnt lgkmcnt(10)")
            mfma(c, 0)
            reads(c, 3)
            a("s_waitcnt lgkmcnt(10)")
            mfma(c, 1)
            if hook: hook(c)
            if c < 6:
                a("s_barrier")
                setbase(c + 1)
            a("s_waitcnt lgkmcnt(5)")
            mfma(c, 2)
            if c < 6:
                reads(c + 1, 0)
                a("s_waitcnt lgkmcnt(5)")
            else:
                a("s_waitcnt lgkmcnt(0)")
            mfma(c, 3)
            if c < 6:
                reads(c + 1, 1)
        stamp(a, 4)

    def hook(c):
        if c == 5:
            a("v_mov_b32 v11, 0")
            a("s_lshl_b32 s14, s9, 2")
            a("s_mov_b64 exec, 1")
            a("buffer_load_dword v21, v11, s[60:63], s14 offen sc1")
            a("s_mov_b64 exec, -1")
    main_loop(False, hook)
    PK, VV, TMP = 32, 40, 48
    XB = RING0
    a("v_lshlrev_b32 v10, 4, v2")
    a("s_lshl_b32 s14, s5, 12")
    a(f"s_add_u32 s14, s14, {XB}")
    a("v_add_u32 v11, s14, v10")
    a("s_and_b32 s14, s5, 3")
    a("s_lshl_b32 s14, s14, 10")
    a("s_lshl_b32 s15, s65, 14")
    a("s_add_u32 s14, s14, s15")
    a(f"s_add_u32 s14, s14, {XB}")
    a("v_lshlrev_b32 v10, 2, v2")
    a("v_add_u32 v12, s14, v10")
    a("s_nop 3")
    phi_pack(a, ACC0, PK, TMP, 66, 67)
    for p in range(8):
        a(f"v_cvt_pk_bf16_f32 v{VV+p}, v{ACC1+2*p}, v{ACC1+2*p+1}")
    a("s_mov_b32 exec_lo, 0x10000000")
    a("s_mov_b32 exec_hi, 0x10000000")
    for p in range(8):
        a(f"v_mov_b32 v{VV+p}, 0x3f803f80")
    a("s_mov_b64 exec, -1")
    a("s_nop 1")
    KV = 56
    a(f"v_mfma_f32_32x32x16_bf16 v[{KV}:{KV+15}], v[{PK}:{PK+3}], v[{VV}:{VV+3}], 0")
    a(f"v_mfma_f32_32x32x16_bf16 v[{KV}:{KV+15}], v[{PK+4}:{PK+7}], v[{VV+4}:{VV+7}], v[{KV}:{KV+15}]")
    Ls, Lok = a.newlabel("Lspin"), a.newlabel("Lok")
    a("s_waitcnt vmcnt(0)")
    a("s_movk_i32 s68, 4000")
    a("v_mov_b32 v13, 0")
    a("s_lshl_b32 s14, s9, 2")
    a.label(Ls)
    a("v_readfirstlane_b32 s15, v21")
    a("s_cmp_lg_u32 s15, 0")
    a(f"s_cbranch_scc1 {Lok}")
    a("s_sub_u32 s68, s68, 1")
    a("s_cmp_eq_u32 s68, 0")
    a(f"s_cbranch_scc1 {Lok}")
    a("s_sleep 4")
    a("buffer_load_dword v21, v13, s[60:63], s14 offen sc1")
    a("s_waitcnt vmcnt(0)")
    a(f"s_branch {Ls}")
    a.label(Lok)
    a("s_lshl_b32 s14, s9, 1")
    a("s_add_u32 s14, s14, s65")
    a("s_lshl_b32 s14, s14, 12")
    a("s_and_b32 s15, s5, 3")
    a("s_lshl_b32 s15, s15, 10")
    a("s_add_u32 s14, s14, s15")
    for q in range(4):
        a(f"ds_write_b128 v11, v[{KV+4*q}:{KV+4*q+3}] offset:{q*1024}")
    a("s_waitcnt lgkmcnt(0)")
    a("s_barrier")
    for i in range(4):
        a(f"ds_read2st64_b32 v[{32+4*i}:{33+4*i}], v12 offset0:{i} offset1:{16+i}")
        a(f"ds_read2st64_b32 v[{34+4*i}:{35+4*i}], v12 offset0:{32+i} offset1:{48+i}")
    for i in range(4):
        a(f"s_waitcnt lgkmcnt({6-2*i})")
        b = 32 + 4 * i
        a(f"v_add_f32 v{b}, v{b}, v{b+1}")
        a(f"v_add_f32 v{b+2}, v{b+2}, v{b+3}")
        a(f"v_add_f32 v{b}, v{b}, v{b+2}")
        a(f"buffer_atomic_add_f32 v{b}, v10, s[52:55], s14 offen offset:{i*256}")
    stamp(a, 5)
    stamp_flush(a, 0)
    a("s_endpgm")

    a.label("L_k1_q")
    main_loop(True)
    a("s_lshl_b32 s14, s8, 2")
    a("s_and_b32 s15, s5, 3")
    a("s_add_u32 s14, s14, s15")
    a("s_lshl_b32 s14, s14, 4")
    a("s_lshl_b32 s15, s9, 2")
    a("s_add_u32 s14, s14, s15")
    a("s_add_u32 s14, s14, s65")
    a("s_lshl_b32 s14, s14, 11")
    a("s_add_u32 s15, s14, 4096")
    a("v_lshlrev_b32 v10, 4, v2")
    a("s_nop 5")
    phi_pack(a, ACC0, 32, 48, 66, 67)
    a(f"buffer_store_dwordx4 v[32:35], v10, s[56:59], s14 offen{ST}")
    a(f"buffer_store_dwordx4 v[36:39], v10, s[56:59], s14 offen offset:1024{ST}")
    phi_pack(a, ACC1, 40, 48, 66, 67)
    a(f"buffer_store_dwordx4 v[40:43], v10, s[56:59], s15 offen{ST}")
    a(f"buffer_store_dwordx4 v[44:47], v10, s[56:59], s15 offen offset:1024{ST}")
    stamp(a, 5)
    stamp_flush(a, 0)
    a("s_endpgm")

def cmul_ops(d, x, y):
    return [f"v_pk_mul_f32 v[{d}:{d+1}], v[{x}:{x+1}], v[{y}:{y+1}] op_sel:[0,0] op_sel_hi:[1,0]",
            f"v_pk_fma_f32 v[{d}:{d+1}], v[{x}:{x+1}], v[{y}:{y+1}], v[{d}:{d+1}] op_sel:[1,1,0] op_sel_hi:[0,1,1] neg_lo:[1,0,0]"]
def hmul_ops(d, x, y):
    return [f"v_pk_mul_f16 v{d}, v{x}, v{y} op_sel:[0,0] op_sel_hi:[1,0]",
            f"v_pk_fma_f16 v{d}, v{x}, v{y}, v{d} op_sel:[1,1,0] op_sel_hi:[0,1,1] neg_lo:[1,0,0]"]
def interleave(a, streams):
    idx = [0] * len(streams)
    live = True
    while live:
        live = False
        for i, s in enumerate(streams):
            if idx[i] < len(s):
                a(s[idx[i]]); idx[i] += 1; live = True


def k1_a(a):
    a.comment("---- A role ----")
    a("s_sub_u32 s6, s4, 24")
    a("s_cmp_ge_u32 s5, 12")
    a("s_cbranch_scc1 L_k1_ut")
    a("s_cmp_ge_u32 s5, 8")
    a("s_cbranch_scc1 L_k1_touch")
    a("s_lshr_b32 s8, s5, 1")
    a("s_lshl_b32 s7, s6, 2")
    a("s_add_u32 s7, s7, s8")
    a("s_add_u32 s7, s7, 24")
    a("s_and_b32 s10, s5, 1")
    a("s_mov_b32 s9, 0")
    a("s_mov_b32 s73, 2")
    a("s_mov_b32 s64, 0")
    a("s_mov_b32 s12, 1")
    a("s_lshr_b32 s72, s5, 2")
    a(f"s_mul_i32 s72, s72, {SCRG}")
    a("s_and_b32 s11, s5, 3")
    a("s_lshl_b32 s11, s11, 8")
    a("s_add_u32 s72, s72, s11")
    a(f"s_mul_i32 s13, s8, {TSTR}")
    a(f"s_add_u32 s13, s13, {A_TAB + 16}")
    a("s_lshl_b32 s65, s8, 2")
    a(f"s_add_u32 s65, s65, {A_CNT}")
    a("s_branch L_k1_kg")
    a.label("L_k1_host")
    if "x_nohost" in OPT: a("s_endpgm")
    a("s_setprio 3")
    a("s_mov_b32 s7, s4")
    a("s_bfe_u32 s10, s5, 0x10001")
    a("s_and_b32 s9, s5, 1")
    a("s_mov_b32 s73, 1")
    a("s_mov_b32 s64, 1")
    a("s_mov_b32 s12, 3")
    a("s_and_b32 s72, s5, 3")
    a("s_lshl_b32 s72, s72, 8")
    a(f"s_movk_i32 s13, {SCRG + 16}")
    a(f"s_movk_i32 s65, {SCRG + TSTR}")
    a.label("L_k1_kg")
    def hb(): pass
    def hbar():
        L = a.newlabel("Lhb")
        a("s_cmp_eq_u32 s64, 0")
        a(f"s_cbranch_scc1 {L}")
        a("s_barrier")
        a.label(L)
    a("s_mul_i32 s11, s3, 56")
    a("s_add_u32 s7, s7, s11")
    a("v_lshlrev_b32 v3, 2, v2")
    a("s_lshl_b32 s11, s7, 9")
    a("s_lshl_b32 s10, s10, 8")
    a("s_add_u32 s10, s10, s11")
    a("v_add_u32 v3, s10, v3")
    a("s_lshl_b32 s10, s7, 1")
    a("v_mov_b32 v4, s10")
    a("v_mov_b32 v5, 0")
    a("v_mov_b32 v23, s65")
    a("s_waitcnt lgkmcnt(0)")
    stamp(a, 0)
    a(f"global_load_dword v10, v3, s[{P_CR}:{P_CR+1}]")
    a(f"global_load_dword v11, v3, s[{P_CI}:{P_CI+1}]")
    a(f"global_load_short_d16_hi v16, v4, s[{P_LDT}:{P_LDT+1}]")
    a(f"global_load_dword v8, v3, s[{P_LA}:{P_LA+1}]")
    a(f"global_load_dword v9, v3, s[{P_AI}:{P_AI+1}]")
    a(f"global_load_short_d16_hi v17, v4, s[{P_D}:{P_D+1}]")
    a("ds_write_b32 v23, v5")
    Lnb = a.newlabel("Lnb")
    a("s_cmp_lg_u32 s64, 0")
    a(f"s_cbranch_scc1 {Lnb}")
    a("s_waitcnt lgkmcnt(0)")
    a("s_barrier")
    a.label(Lnb)
    a(f"s_mov_b32 s66, {fhex(LOG2E)}")
    a(f"s_mov_b32 s67, {fhex(-LOG2E)}")
    a(f"s_mov_b32 s68, {fhex(C_HI)}")
    a(f"s_mov_b32 s69, {fhex(C_LO)}")
    a(f"s_mov_b32 s70, {fhex(8.0)}")
    a(f"s_mov_b32 s71, {fhex(256.0)}")
    a("v_and_b32 v24, 15, v2")
    a(f"v_mul_u32_u24 v20, {RS}, v24")
    a("v_lshrrev_b32 v21, 4, v2")
    a("v_lshl_add_u32 v20, v21, 4, v20")
    a("v_add_u32 v20, s72, v20")
    a(f"v_mul_u32_u24 v21, {RS}, v21")
    a("v_lshl_add_u32 v21, v24, 4, v21")
    a("v_mov_b32 v22, 0x00003c00")
    srd(a, 52, P_WS, 448 * KT_ROW, WS_KT)
    TA = [3, 4, 5, 6, 7, 14, 15, 18]
    a("v_lshl_add_u32 v24, v24, 4, s13")
    def base(mt, q, r):
        if mt == 0:
            return [r, 4 + r, 256 + 2 * r, 512 + 4 * (r & 1) + 256 * (r >> 1)][q]
        if q == 0: return 1024 + 256 * r
        if q == 1 and r == 0: return 2048
        return 2049
    for q in range(4):
        lo = (0xffff << (16 * q)) & 0xffffffff if q < 2 else 0
        hi_ = (0xffff << (16 * (q - 2))) & 0xffffffff if q >= 2 else 0
        a(f"s_mov_b32 exec_lo, 0x{lo:x}")
        a(f"s_mov_b32 exec_hi, 0x{hi_:x}")
        for mt in range(2):
            for r in range(4):
                a(f"v_add_u32 v{TA[4*mt+r]}, {2*base(mt,q,r)}, v24")
    a("s_mov_b64 exec, -1")
    ACC = 112
    for i in range(16):
        a(f"v_mov_b32 v{ACC+i}, 0")
    a("s_mov_b32 m0, s72")
    a("s_waitcnt vmcnt(3) lgkmcnt(0)")
    a("v_and_b32 v24, 0x7fff7fff, v10")
    a("v_and_b32 v25, 0x7fff7fff, v11")
    a("v_and_b32 v16, 0xffff0000, v16")
    a("v_pk_max_u16 v24, v24, v25")
    a("v_mul_f32 v16, s66, v16")
    a("v_exp_f32 v16, v16")
    a("v_lshrrev_b32 v25, 16, v24")
    a("v_and_b32 v24, 0xffff, v24")
    a("v_max_u32 v24, v24, v25")
    a("v_cvt_pk_bf16_f32 v16, v16, v16")
    a("v_and_b32 v16, 0xffff0000, v16")
    for ctl in ("row_shr:1 row_mask:0xf bank_mask:0xf", "row_shr:2 row_mask:0xf bank_mask:0xf",
                "row_shr:4 row_mask:0xf bank_mask:0xf", "row_shr:8 row_mask:0xf bank_mask:0xf",
                "row_bcast:15 row_mask:0xa bank_mask:0xf", "row_bcast:31 row_mask:0xc bank_mask:0xf"):
        a(f"v_max_u32_dpp v24, v24, v24 {ctl}")
        a("s_nop 1")
    a("v_readlane_b32 s74, v24, 63")
    a("v_readfirstlane_b32 s75, v16")
    a("s_nop 3")
    a("s_lshr_b32 s74, s74, 7")
    a("s_max_u32 s74, s74, 14")
    a("s_min_u32 s74, s74, 254")
    a("s_sub_u32 s76, 267, s74")
    a("s_lshl_b32 s76, s76, 23")
    a("s_sub_u32 s77, s74, 13")
    a("s_lshl_b32 s77, s77, 23")
    a("s_waitcnt vmcnt(0)")
    Ls = a.newlabel("Lsh")
    a("s_cmp_eq_u32 s9, 0")
    a(f"s_cbranch_scc1 {Ls}")
    for r in range(8, 12):
        a(f"v_lshrrev_b32 v{r}, 16, v{r}")
    a.label(Ls)
    hb()
    stamp(a, 1)

    FX = 80
    Z1, Z2, Z4, Z256 = 32, 34, 36, 38
    Q1, Q2, Q3, Q4, QT = 40, 42, 44, 46, 48
    P1, P2 = 50, 52
    XA, XB_, RA, RB, SA, SB = 54, 56, 58, 60, 62, 12
    QH = [22, 64, 65, 66, 67, 68, 69, 70]
    PH = [None, 71, 72, 73]
    H1, H2, H3 = [74, 75], [76, 77], [78, 79]
    def wr(row, v):
        return f"ds_write_addtid_b32 v{v} offset:{(row % 16) * RS}"

    a.label("L_kpass")
    a("v_lshlrev_b32 v24, 16, v8")
    a("v_lshlrev_b32 v25, 16, v9")
    a("v_mul_f32 v24, s66, v24")
    a("v_exp_f32 v24, v24")
    a("v_mul_f32 v25, s75, v25")
    a("v_mul_f32 v26, s68, v25")
    a("v_cvt_pk_bf16_f32 v24, v24, v24")
    a("v_fma_f32 v27, v25, s68, -v26")
    a("v_and_b32 v24, 0xffff0000, v24")
    a("v_fmac_f32 v27, s69, v25")
    a("v_mul_f32 v24, s75, v24")
    a("v_mul_f32 v24, s67, v24")
    a(f"v_lshlrev_b32 v{XA}, 16, v10")
    a(f"v_lshlrev_b32 v{XA+1}, 16, v11")
    a(f"v_mul_f32 v{XA}, s76, v{XA}")
    a(f"v_mul_f32 v{XA+1}, s76, v{XA+1}")
    st = []
    for (dst, sm, t, neg) in ((Z1, None, 28, False), (Q1, 70, 74, True), (Z256, 71, 77, False)):
        s_ = []
        if sm is None:
            s_ += [f"v_exp_f32 v{t}, v24", f"v_fract_f32 v{t+1}, v26", f"v_add_f32 v{t+1}, v{t+1}, v27"]
        else:
            s_ += [f"v_mul_f32 v{t}, s{sm}, v24", f"v_exp_f32 v{t}, v{t}", f"v_mul_f32 v{t+1}, s{sm}, v26",
                   f"v_fract_f32 v{t+1}, v{t+1}", f"v_fmac_f32 v{t+1}, s{sm}, v27"]
        s_ += [f"v_cos_f32 v{t+2}, v{t+1}", f"v_sin_f32 v{t+1}, v{t+1}", "s_nop 0", f"v_mul_f32 v{dst}, v{t}, v{t+2}"]
        s_ += [f"v_mul_f32_e64 v{dst+1}, v{t}, {'-' if neg else ''}v{t+1}"]
        st.append(s_)
    st.append([f"v_lshrrev_b32 v{r}, 16, v{r}" for r in range(8, 12)])
    interleave(a, st)
    hb()
    for s_ in cmul_ops(RA, XA, Z256): a(s_)
    def cvh(stream, hs, k, src, row):
        h = hs[k % 2]
        stream.append(f"v_cvt_pk_f16_f32 v{h}, v{src}, v{src+1}")
        stream.append(wr(row, h))
    s1 = []
    cur, oth = XA, XB_
    cvh(s1, H1, 0, XA, 0)
    for f in range(1, 8):
        s1 += cmul_ops(oth, cur, Z1)
        cvh(s1, H1, f, oth, f)
        cur, oth = oth, cur
    s2 = cmul_ops(Z2, Z1, Z1) + cmul_ops(Z4, Z2, Z2)
    k = 0
    cvh(s2, H2, k, RA, 8); k += 1
    s2 += cmul_ops(RB, RA, Z256)
    s2 += cmul_ops(SA, RA, Z2); cvh(s2, H2, k, SA, 9); k += 1
    s2 += cmul_ops(SB, RA, Z4); cvh(s2, H2, k, SB, 10); k += 1
    s2 += cmul_ops(SA, SB, Z2); cvh(s2, H2, k, SA, 11); k += 1
    cvh(s2, H2, k, RB, 12); k += 1
    s2 += cmul_ops(RA, RB, Z256)
    s2 += cmul_ops(SA, RB, Z4); cvh(s2, H2, k, SA, 13); k += 1
    cvh(s2, H2, k, RA, 14); k += 1
    s2 += cmul_ops(RB, RA, Z256)
    s2 += cmul_ops(SA, RA, Z4); cvh(s2, H2, k, SA, 15); k += 1
    s3 = []
    def qcv(b, src):
        s3.append(f"v_cvt_pk_f16_f32 v{QH[b]}, v{src}, v{src+1}")
    qcv(1, Q1)
    s3 += cmul_ops(Q2, Q1, Q1); qcv(2, Q2)
    s3 += cmul_ops(Q4, Q2, Q2)
    s3 += cmul_ops(Q3, Q2, Q1); qcv(4, Q4); qcv(3, Q3)
    s3 += cmul_ops(P1, Q4, Q4)
    s3 += cmul_ops(QT, Q4, Q1); qcv(5, QT)
    s3 += cmul_ops(P2, P1, P1)
    s3 += cmul_ops(QT, Q4, Q2); qcv(6, QT)
    s3 += cmul_ops(QT, Q4, Q3); qcv(7, QT)
    s3 += cmul_ops(QT, P2, P1)
    s3.append(f"v_cvt_pk_f16_f32 v{PH[1]}, v{P1}, v{P1+1}")
    s3.append(f"v_cvt_pk_f16_f32 v{PH[2]}, v{P2}, v{P2+1}")
    s3.append(f"v_cvt_pk_f16_f32 v{PH[3]}, v{QT}, v{QT+1}")
    interleave(a, [s1[:20], s2[:20], s3[:20]])
    hb()
    interleave(a, [s1[20:], s2[20:], s3[20:]])
    def rdf(f0):
        for kk in range(4):
            f = f0 + 4 * kk
            a(f"ds_read_b128 v[{f}:{f+3}], v20 offset:{64*kk}")
    rdf(FX)
    s4 = []
    c_, o_ = RB, RA
    for row in range(16, 21):
        cvh(s4, H2, row, c_, row)
        if row < 20:
            s4 += cmul_ops(o_, c_, Z256)
            c_, o_ = o_, c_
    s5 = []
    Y1 = [None, 32, 33, 34, 35, 36, 37, 40]
    for b in range(1, 8):
        s5 += hmul_ops(Y1[b], PH[1], QH[b])
    interleave(a, [s4[:10], s5[:10]])
    hb()
    interleave(a, [s4[10:], s5[10:]])
    rdf(FX + 16)
    w0 = [wr(b, QH[b]) for b in range(8)] + [wr(8, PH[1])] + [wr(8 + b, Y1[b]) for b in range(1, 8)]
    Y2 = [None, 41, 42, 43, 44, 45, 46, 47]
    s6 = []
    for b in range(1, 8):
        s6 += hmul_ops(Y2[b], PH[2], QH[b])
    interleave(a, [w0, s6])
    rdf(48)
    hb()
    w1 = [wr(0, PH[2])] + [wr(b, Y2[b]) for b in range(1, 8)] + [wr(8, PH[3])]
    s7 = []
    for b in range(1, 8):
        h = H1[b % 2]
        s7 += hmul_ops(h, PH[3], QH[b])
        s7.append(wr(8 + b, h))
    interleave(a, [w1, s7])
    rdf(32)
    def mm(nt, kk):
        for mt in range(2):
            fa = FX + 16 * mt + 4 * kk
            fb = (48 if nt == 0 else 32) + 4 * kk
            d = ACC + 8 * mt + 4 * nt
            a(f"v_mfma_f32_16x16x32_f16 v[{d}:{d+3}], v[{fa}:{fa+3}], v[{fb}:{fb+3}], v[{d}:{d+3}]")
    a("s_waitcnt lgkmcnt(15)")
    for kk in range(4): mm(0, kk)
    for kk in range(4):
        a(f"s_waitcnt lgkmcnt({3-kk})")
        mm(1, kk)
    a("s_sub_u32 s73, s73, 1")
    a("s_cmp_lg_u32 s73, 0")
    a("s_cbranch_scc1 L_kpass")
    stamp(a, 3)
    hbar()

    a("v_mov_b32 v25, s75")
    a("v_mul_f32 v25, s77, v25")
    a("v_add_f32 v25, v25, v25")
    a("v_add_u32 v30, s72, v21")
    a("v_mov_b32 v28, 1")
    a("v_lshlrev_b32 v26, 4, v2")
    a("s_nop 1")
    for q in range(4):
        for r in range(4):
            a(f"v_mul_f32 v{ACC+4*q+r}, v25, v{ACC+4*q+r}")
        a(f"ds_write_b128 v30, v[{ACC+4*q}:{ACC+4*q+3}] offset:{4*q*RS}")
    a("s_mov_b64 exec, 1")
    a("ds_add_rtn_u32 v29, v23, v28")
    a("s_mov_b64 exec, -1")
    a("v_and_b32 v17, 0xffff0000, v17")
    a(f"s_add_u32 s11, s13, {16*63}")
    a("v_sub_u32 v27, s11, v26")
    a("v_cmp_gt_u32 vcc, 32, v2")
    a("v_and_b32 v31, 1, v2")
    a("v_mul_u32_u24 v31, 0x0404, v31")
    a("v_cndmask_b32_e64 v28, 0, 2, vcc")
    a("s_waitcnt lgkmcnt(0)")
    a("v_readfirstlane_b32 s11, v29")
    a("s_cmp_eq_u32 s11, s12")
    a("s_cbranch_scc1 L_kfin")
    stamp_flush(a, 0)
    a("s_endpgm")
    a.label("L_kfin")
    def rdpart(x, r0):
        a(f"s_xor_b32 s14, s72, {x*256}")
        a("v_add_u32 v30, s14, v21")
        for q in range(4):
            a(f"ds_read_b128 v[{r0+4*q}:{r0+4*q+3}], v30 offset:{4*q*RS}")
    def addp(r0):
        for i in range(16):
            a(f"v_add_f32 v{ACC+i}, v{ACC+i}, v{r0+i}")
    rdpart(1, 32)
    L1 = a.newlabel("Lone")
    a("s_cmp_eq_u32 s64, 0")
    a(f"s_cbranch_scc1 {L1}")
    rdpart(2, 48); rdpart(3, 64)
    a("s_waitcnt lgkmcnt(4)")
    addp(48)
    a("s_waitcnt lgkmcnt(0)")
    addp(64)
    a("s_barrier")
    a.label(L1)
    a("s_waitcnt lgkmcnt(0)")
    addp(32)
    stamp(a, 4)
    a("s_mov_b64 exec, 1")
    a(f"v_add_f32 v{ACC}, v{ACC}, v17")
    a("s_mov_b64 exec, -1")
    for mt in range(2):
        for r in range(4):
            a(f"v_cvt_pk_bf16_f32 v{40+4*mt+r}, v{ACC+8*mt+r}, v{ACC+8*mt+4+r}")
            a(f"ds_write_b16 v{TA[4*mt+r]}, v{40+4*mt+r}")
            a(f"ds_write_b16_d16_hi v{TA[4*mt+r]}, v{40+4*mt+r} offset:256")
    a("v_add_u32 v29, v27, v28")
    a("v_sub_u32 v30, v27, v28")
    hbar()
    for m in range(2):
        o = (3 - m) * 1024
        a(f"ds_read_u16 v{80+2*m}, v27 offset:{o}")
        a(f"ds_read_u16 v{81+2*m}, v27 offset:{o+16}")
    a("ds_read_u16 v88, v27 offset:1024")
    a("ds_read_u16 v89, v27 offset:1032")
    a("ds_read_u16 v90, v27 offset:1040")
    for k_, (reg, idx) in enumerate(((29, 7), (27, 6), (30, 5), (27, 4), (29, 3), (27, 2), (30, 1), (27, 0))):
        a(f"ds_read_u16 v{92+k_}, v{reg} offset:{2*idx}")
    a("s_mov_b32 s60, 0x05040504")
    a("s_mov_b32 s61, 0x01000100")
    a("s_mov_b32 s62, 0x01000504")
    a(f"s_mul_i32 s13, s7, {KT_ROW}")
    a("v_mov_b32 v84, 0\nv_mov_b32 v85, 0\nv_mov_b32 v86, 0\nv_mov_b32 v87, 0")
    a("v_lshlrev_b32 v31, 16, v31")
    a("v_sub_u32 v31, 0x05040504, v31")
    E = 48
    a("s_waitcnt lgkmcnt(8)")
    for m in range(2):
        ra, rb = 80 + 2 * m, 81 + 2 * m
        e = E + 4 * m
        a(f"v_perm_b32 v{e}, v{rb}, v{ra}, s60")
        a(f"v_perm_b32 v{e+1}, v{rb}, v{ra}, v31")
        a(f"v_perm_b32 v{e+2}, v{rb}, v{ra}, s61")
        a(f"v_perm_b32 v{e+3}, v{rb}, v{ra}, s61")
        a(f"buffer_store_dwordx4 v[{e}:{e+3}], v26, s[52:55], s13 offen offset:{m*1024}{ST}")
    e = E + 8
    a(f"v_perm_b32 v{e}, v90, v90, s61")
    a(f"v_perm_b32 v{e+1}, v89, v88, s60")
    a(f"v_perm_b32 v{e+2}, v89, v88, s62")
    a(f"v_perm_b32 v{e+3}, v89, v88, s61")
    a(f"buffer_store_dwordx4 v[{e}:{e+3}], v26, s[52:55], s13 offen offset:2048{ST}")
    a("s_waitcnt lgkmcnt(0)")
    e = E + 12
    for k_ in range(4):
        a(f"v_lshl_or_b32 v{e+k_}, v{93+2*k_}, 16, v{92+2*k_}")
    a(f"buffer_store_dwordx4 v[{e}:{e+3}], v26, s[52:55], s13 offen offset:3072{ST}")
    a("s_add_u32 s13, s13, 4096")
    a("s_mov_b64 exec, 1")
    a(f"buffer_store_dwordx4 v[84:87], v26, s[52:55], s13 offen{ST}")
    stamp(a, 5)
    stamp_flush(a, 0)
    a("s_endpgm")

    a.label("L_k1_touch")
    a("s_setprio 3")
    a("s_sub_u32 s7, s5, 8")
    a("s_lshl_b32 s8, s6, 2")
    a("s_add_u32 s8, s8, s7")
    a("v_cmp_le_u32 vcc, 12, v2")
    a("v_mov_b32 v5, 0")
    a("s_lshl_b32 s9, s8, 1")
    a("v_cndmask_b32_e64 v5, 0, 1, vcc")
    a("v_mul_u32_u24 v6, 12, v5")
    a("v_sub_u32 v6, v2, v6")
    a("v_add_u32 v5, s9, v5")
    a("v_mul_u32_u24 v5, 2688, v5")
    a("v_lshl_add_u32 v5, v6, 7, v5")
    a("v_lshrrev_b32 v6, 2, v6")
    a("v_mul_u32_u24 v6, 384, v6")
    a("v_add_u32 v5, v5, v6")
    a("s_and_b32 s9, s3, 1")
    a("s_mul_i32 s9, s9, 384")
    a("v_add_u32 v5, s9, v5")
    a("s_lshl_b32 s9, s8, 4")
    a("s_lshr_b32 s10, s3, 1")
    a("s_lshl_b32 s10, s10, 9")
    a("s_add_u32 s9, s9, s10")
    a("v_and_b32 v6, 15, v2")
    a("v_add_u32 v6, s9, v6")
    a("v_mul_u32_u24 v6, 896, v6")
    a("v_mov_b32 v12, 172032")
    a("s_waitcnt lgkmcnt(0)")
    stamp(a, 0)
    a(f"v_mov_b32 v11, s{P_W+1}")
    a(f"v_add_co_u32 v10, vcc, s{P_W}, v5")
    a("s_nop 1")
    a("v_addc_co_u32 v11, vcc, 0, v11, vcc")
    a("s_mov_b32 exec_lo, 0")
    a("s_mov_b32 exec_hi, 0xffff")
    a(f"v_mov_b32 v11, s{P_X+1}")
    a(f"v_add_co_u32 v10, vcc, s{P_X}, v6")
    a("v_mov_b32 v12, 128")
    a("s_nop 0")
    a("v_addc_co_u32 v11, vcc, 0, v11, vcc")
    a("s_mov_b32 exec_lo, 0xffffff")
    WIN = int([o for o in OPT if o.startswith("win")][0][3:]) if [o for o in OPT if o.startswith("win")] else 3
    def touch(last=False):
        a("global_load_dword v13, v[10:11], off")
        if not last:
            a("v_add_co_u32 v10, vcc, v10, v12")
            a("s_nop 1")
            a("v_addc_co_u32 v11, vcc, 0, v11, vcc")
    for c in range(7):
        if c >= WIN:
            a(f"s_waitcnt vmcnt({WIN-1})")
        if "notouch" not in OPT: touch(c == 6)
        if c == WIN - 1:
            a("s_barrier")
            stamp(a, 1)
    a("s_mov_b64 exec, -1")
    stamp(a, 2)
    srd(a, 52, P_WO, 448 * 896)
    a(f"s_mul_i32 s10, s8, {98*128}")
    a("v_lshlrev_b32 v5, 7, v2")
    a("s_waitcnt vmcnt(1)")
    a("buffer_load_dword v13, v5, s[52:55], s10 offen")
    a("s_add_u32 s10, s10, 8192")
    a("s_mov_b32 exec_hi, 3")
    a("buffer_load_dword v13, v5, s[52:55], s10 offen")
    stamp(a, 5)
    stamp_flush(a, 0)
    a("s_endpgm")

    a.label("L_k1_ut")
    a("s_sub_u32 s7, s5, 12")
    Lp = a.newlabel("Lnopf")
    a("s_cmp_lg_u32 s6, 0")
    a(f"s_cbranch_scc1 {Lp}")
    prefetch_code(a, 7, 1, 120, 60)
    a.label(Lp)
    a("s_lshl_b32 s9, s3, 3")
    a("s_add_u32 s9, s9, s6")
    a("s_lshl_b32 s9, s9, 2")
    a("s_add_u32 s9, s9, s7")
    a("s_mul_i32 s10, s9, 7168")
    a("s_mul_i32 s11, s7, 7168")
    a(f"s_add_u32 s11, s11, {A_UT}")
    a("v_lshlrev_b32 v4, 4, v2")
    a("v_mov_b32 v8, 0\nv_mov_b32 v9, 0\nv_mov_b32 v10, 0\nv_mov_b32 v11, 0")
    a("s_waitcnt lgkmcnt(0)")
    a("s_barrier")
    stamp(a, 0)
    srd(a, 44, P_U, 2048 * 896)
    srd(a, 48, P_WS, UB_IMG, WS_UB)
    srd(a, 52, P_WS, 0x10000, WS_KV)
    srd(a, 56, P_DBG, 256)
    Lz = a.newlabel("Lnz")
    a("s_cmp_lg_u32 s6, 1")
    a(f"s_cbranch_scc1 {Lz}")
    a("s_cmp_lg_u32 s7, 0")
    a(f"s_cbranch_scc1 {Lz}")
    a("s_lshl_b32 s12, s3, 13")
    for i in range(8):
        a(f"buffer_store_dwordx4 v[8:11], v4, s[52:55], s12 offen offset:{(i%4)*1024} sc1")
        if i == 3: a("s_add_u32 s12, s12, 4096")
    a("s_waitcnt vmcnt(0)")
    a("v_mov_b32 v12, 1")
    a("s_lshl_b32 s12, s3, 2")
    a("s_mov_b64 exec, 1")
    a("buffer_store_dword v12, v8, s[56:59], s12 offen sc1")
    a("s_mov_b64 exec, -1")
    a.label(Lz)
    a("s_mov_b64 exec, 1")
    a("buffer_load_dword v13, v4, s[44:47], s10 offen")
    a("s_mov_b64 exec, -1")
    a("s_waitcnt vmcnt(0)")
    stamp(a, 1)
    for i in range(7):
        a(f"s_add_u32 m0, s11, {i*1024}")
        a("s_nop 0")
        a("buffer_load_dwordx4 v4, s[44:47], s10 offen lds")
        a("s_add_u32 s10, s10, 1024")
    a("v_bfe_u32 v5, v2, 2, 2")
    a("v_mul_u32_u24 v5, 896, v5")
    a("v_lshrrev_b32 v6, 4, v2")
    a("v_lshl_add_u32 v5, v6, 5, v5")
    a("v_and_b32 v6, 3, v2")
    a("v_lshl_add_u32 v5, v6, 3, v5")
    a("v_add_u32 v5, s11, v5")
    a("v_lshrrev_b32 v7, 2, v2")
    a("v_lshlrev_b32 v7, 14, v7")
    a("v_lshl_add_u32 v7, v6, 4, v7")
    a("s_lshl_b32 s10, s9, 6")
    a("s_waitcnt vmcnt(0)")
    stamp(a, 3)
    UR = 32
    for cg in range(7):
        for jj in range(2):
            d = UR + 4 * cg + 2 * jj
            a(f"ds_read_b64_tr_b16 v[{d}:{d+1}], v5 offset:{cg*128 + jj*3584}")
    for cg in range(7):
        a(f"s_waitcnt lgkmcnt({12 - 2*cg})")
        a(f"buffer_store_dwordx4 v[{UR+4*cg}:{UR+4*cg+3}], v7, s[48:51], s10 offen{ST}")
        a(f"s_add_u32 s10, s10, {16*16384}")
    stamp(a, 5)
    stamp_flush(a, 0)
    a("s_endpgm")

def build():
    from gen6_k2 import k2_w4, k2_conv
    a = Asm()
    hdr = open("cdna_kernels/" + NAME + ".s.ref").read().split("; Override launch")[0]
    a.raw(hdr.rstrip("\n"))
    a.raw(f"; @launch kernel={K1} grid=(256,1,1) block=(1024,1,1) lds=163840")
    a.raw(f"; @launch kernel={K2} grid=(224,1,1) block=(512,1,1) lds=163840")
    a.raw('.amdgcn_target "amdgcn-amd-amdhsa--gfx950"')
    a.raw(".text")
    a.raw(f".globl {K1}\n.p2align 8\n.type {K1},@function")
    a.label(K1)
    prologue(a, 256, "L_k1_end")
    a("s_cmp_ge_u32 s4, 24")
    a("s_cbranch_scc1 L_k1_a" if "nok1a" not in OPT else "s_cbranch_scc1 L_k1_end")
    if "nogemm" in OPT: a("s_endpgm")
    k1_gemm(a)
    a.label("L_k1_a")
    k1_a(a)
    a.label("L_k1_end")
    a("s_endpgm")
    a.raw(f".globl {K2}\n.p2align 8\n.type {K2},@function")
    a.label(K2)
    prologue(a, 224, "L_k2_end")
    a("s_cmp_lt_u32 s4, 14")
    a("s_cbranch_scc1 L_k2_conv" if "noconv" not in OPT else "s_cbranch_scc1 L_k2_end")
    if "now4" in OPT: a("s_endpgm")
    k2_w4(a)
    a.label("L_k2_conv")
    k2_conv(a)
    a.label("L_k2_end")
    a("s_endpgm")
    a.raw("  .fill 3072, 4, 0xbf800000")
    a.raw('.section .rodata,"a"')
    for k, nv in ((K1, 128), (K2, 256)):
        a.raw(f""".p2align 6
.amdhsa_kernel {k}
  .amdhsa_next_free_vgpr {nv}
  .amdhsa_next_free_sgpr 100
  .amdhsa_accum_offset {nv}
  .amdhsa_group_segment_fixed_size 0
  .amdhsa_kernarg_size 104
  .amdhsa_user_sgpr_count 2
  .amdhsa_user_sgpr_kernarg_segment_ptr 1
  .amdhsa_system_sgpr_workgroup_id_x 1
.end_amdhsa_kernel""")
    return a.text()

if __name__ == "__main__":
    if "stamps" in OPT: asmlib.STAMPS = True
    open(sys.argv[1], "w").write(build())
```

```python
import sys
from asmlib import *
import gen7 as G
from gen7 import srd, P_WS, P_WO, P_OUT, WS_KV, WS_PQ, WS_KT, WS_UB, UB_IMG, KT_ROW, KT_IMG

def k2_w4(a):
    WO_L, KVF_L, PART_L = 0, 57344, 90112
    PSTR = 272
    PHALF = 128 * PSTR
    a("s_sub_u32 s6, s4, 14")
    a("s_cmp_ge_u32 s6, 7")
    a("s_cselect_b32 s7, 1, 0")
    a("s_lshl_b32 s8, s3, 1")
    a("s_add_u32 s8, s8, s7")
    a("s_mul_i32 s7, s7, 7")
    a("s_sub_u32 s9, s6, s7")
    a("s_and_b32 s10, s5, 3")
    a("s_lshr_b32 s11, s5, 2")
    a("v_and_b32 v4, 3, v2")
    a("v_bfe_u32 v5, v2, 3, 2")
    a("v_lshl_add_u32 v4, v5, 2, v4")
    a("v_bfe_u32 v5, v2, 2, 1")
    a("v_add_u32 v6, 2, v4")
    a("v_lshrrev_b32 v6, 4, v6")
    a("v_or_b32 v5, v5, v6")
    a("v_mad_u32_u24 v4, v5, 14, v4")
    a("v_and_b32 v5, 32, v2")
    a("v_add_lshl_u32 v3, v4, v5, 4")
    a("v_lshlrev_b32 v4, 4, v2")
    a("s_lshl_b32 s12, s5, 13")
    a("s_add_u32 s13, s12, 4096")
    a("s_lshl_b32 s14, s8, 2")
    a("s_add_u32 s14, s14, s10")
    a("s_lshl_b32 s14, s14, 4")
    a("s_lshl_b32 s15, s11, 3")
    a("s_add_u32 s14, s14, s15")
    a("s_lshl_b32 s14, s14, 11")
    a("s_waitcnt lgkmcnt(0)")
    srd(a, 44, P_WS, 0x10000, WS_KV)
    srd(a, 48, P_WS, 0x200000, WS_PQ)
    KVR = 64
    PQR = 96
    stamp(a, 0)
    if "notouch2" not in G.OPT:
        a("s_lshl_b32 s60, s6, 3")
        a("s_add_u32 s60, s60, s5")
        a("s_mul_i32 s60, s60, 640")
        a("v_lshlrev_b32 v5, 7, v2")
        a("s_mov_b64 exec, 31")
        a("buffer_load_dword v6, v5, s[44:47], s60 offen")
        a("s_lshl_b32 s60, s9, 3")
        a("s_add_u32 s60, s60, s5")
        a("s_mul_i32 s60, s60, 2432")
        a("s_lshl_b32 s61, s8, 17")
        a("s_add_u32 s60, s60, s61")
        a("s_mov_b64 exec, 0x7ffff")
        a("buffer_load_dword v7, v5, s[48:51], s60 offen")
        a("s_mov_b64 exec, -1")
        a("s_waitcnt vmcnt(0)")
    for hh in range(2):
        for q in range(4):
            d = KVR + 16 * hh + 4 * q
            a(f"buffer_load_dwordx4 v[{d}:{d+3}], v3, s[44:47], s{12+hh} offen offset:{q*1024}")
    def pq(i0, i1):
        for i in range(i0, i1):
            a(f"buffer_load_dwordx4 v[{PQR+4*i}:{PQR+4*i+3}], v4, s[48:51], s14 offen offset:{(i%4)*1024}")
            if i % 4 == 3 and i != 15:
                a("s_add_u32 s14, s14, 4096")
    pq(0, 8)
    srd(a, 52, P_WO, 448 * 896)
    srd(a, 56, P_OUT, 2048 * 1792)
    a("v_lshrrev_b32 v5, 3, v2")
    a("v_bfe_u32 v6, v2, 4, 1")
    a("v_lshlrev_b32 v6, 2, v6")
    a("v_and_b32 v7, 7, v2")
    a("v_xor_b32 v6, v6, v7")
    a("v_lshlrev_b32 v6, 4, v6")
    a("s_mul_i32 s60, s10, 112")
    a("s_mul_i32 s61, s11, 14")
    a("s_add_u32 s60, s60, s61")
    a("s_mul_i32 s60, s60, 896")
    a("s_lshl_b32 s61, s9, 7")
    a("s_add_u32 s60, s60, s61")
    a("s_mul_i32 s61, s5, 7168")
    for i in range(7):
        a(f"v_add_u32 v7, {8*i}, v5")
        a("v_mul_u32_u24 v15, 37, v7")
        a("v_lshrrev_b32 v15, 9, v15")
        a("v_mad_u32_u24 v7, v15, 14, v7")
        a("v_mul_u32_u24 v7, 896, v7")
        a(f"v_add_u32 v{8+i}, v7, v6")
    def wo(i):
        a(f"s_add_u32 m0, s61, {WO_L + i*1024}")
        a("s_nop 0")
        a(f"buffer_load_dwordx4 v{8+i}, s[52:55], s60 offen lds")
    a("s_lshl_b32 s12, s5, 12")
    a(f"s_add_u32 s12, s12, {KVF_L}")
    a("v_add_u32 v5, s12, v4")
    a("s_waitcnt vmcnt(8)")
    stamp(a, 1)
    for i in range(16):
        a(f"v_cvt_pk_bf16_f32 v{32+i}, v{KVR+2*i}, v{KVR+2*i+1}")
    a("s_mov_b32 s12, 0")
    a("s_mov_b32 s13, -1")
    a("s_mov_b64 exec, s[12:13]")
    for hh in range(2):
        a(f"v_mov_b32 v{32+8*hh+6}, 0")
        a(f"v_mov_b32 v{32+8*hh+7}, 0")
    a("s_mov_b64 exec, -1")
    for i in range(4):
        a(f"ds_write_b128 v5, v[{32+4*i}:{35+4*i}] offset:{i*1024}")
    pq(8, 16)
    a("s_lshl_b32 s12, s11, 14")
    a(f"s_add_u32 s12, s12, {KVF_L}")
    a("v_add_u32 v5, s12, v4")
    a(f"s_mov_b32 s62, {fhex(1e-6)}")
    a("s_waitcnt lgkmcnt(0)")
    a("s_barrier")
    KF = 160
    for i in range(15):
        a(f"ds_read_b128 v[{KF+4*i}:{KF+4*i+3}], v5 offset:{i*1024}")
    D0, D1 = 32, 48
    OFB = PQR - 8
    def num(hI):
        D = D0 if hI % 2 == 0 else D1
        k = KF + 8 * hI; p = PQR + 8 * hI
        a(f"v_mfma_f32_32x32x16_bf16 v[{D}:{D+15}], v[{k}:{k+3}], v[{p}:{p+3}], 0")
        a(f"v_mfma_f32_32x32x16_bf16 v[{D}:{D+15}], v[{k+4}:{k+7}], v[{p+4}:{p+7}], v[{D}:{D+15}]")
    def fin(hI):
        D = D0 if hI % 2 == 0 else D1
        a(f"v_add_f32 v6, s62, v{D+14}")
        a("v_rcp_f32 v6, v6")
        a("s_nop 0")
        for r in range(14):
            a(f"v_mul_f32 v{D+r}, v{D+r}, v6")
        for p in range(7):
            a(f"v_cvt_pk_bf16_f32 v{OFB+7*hI+p}, v{D+2*p}, v{D+2*p+1}")
    a("s_waitcnt vmcnt(14) lgkmcnt(13)")
    stamp(a, 2)
    num(0)
    a(f"ds_read_b128 v[{KF+60}:{KF+63}], v5 offset:{15*1024}")
    nwo = 0
    for hI in range(8):
        k = min(2, 7 - nwo)
        for _ in range(k):
            wo(nwo); nwo += 1
        if hI < 7:
            a(f"s_waitcnt vmcnt({2*(6-hI) + nwo}) lgkmcnt({max(0, 12 - 2*hI)})")
            num(hI + 1)
        if hI == 0:
            a("s_nop 3")
        fin(hI)
    a("v_lshrrev_b32 v6, 5, v2")
    a("v_mul_u32_u24 v6, 224, v6")
    a("v_bfe_u32 v7, v2, 2, 2")
    a("v_add_u32 v6, v6, v7")
    a("s_mul_i32 s12, s11, 112")
    a("v_add_u32 v6, s12, v6")
    a("v_lshlrev_b32 v6, 7, v6")
    a("v_bfe_u32 v7, v2, 4, 1")
    a("v_lshlrev_b32 v7, 5, v7")
    a("v_and_b32 v8, 3, v2")
    a("v_lshl_add_u32 v7, v8, 3, v7")
    a("v_bfe_u32 v8, v2, 3, 1")
    a("v_lshl_add_u32 v7, v8, 6, v7")
    a("v_add_u32 v6, v6, v7")
    a("v_xor_b32 v7, 64, v6")
    a("s_waitcnt vmcnt(0)")
    a("s_barrier")
    stamp(a, 3)
    WF = 160
    def rd(k):
        f = WF + 8 * (k % 4)
        for nt in range(2):
            for jj in range(2):
                d = f + 4 * nt + 2 * jj
                a(f"ds_read_b64_tr_b16 v[{d}:{d+1}], v{6+nt} offset:{WO_L + k*1024 + jj*512}")
    rd(0); rd(1); rd(2)
    for k in range(14):
        left = min(13 - k, 2)
        a(f"s_waitcnt lgkmcnt({4*left})")
        f = WF + 8 * (k % 4)
        o = OFB + 4 * k
        for nt, D in ((0, D0), (1, D1)):
            cin = "0" if k == 0 else f"v[{D}:{D+15}]"
            a(f"v_mfma_f32_32x32x16_bf16 v[{D}:{D+15}], v[{f+4*nt}:{f+4*nt+3}], v[{o}:{o+3}], {cin}")
        if k + 3 < 14:
            rd(k + 3)
    stamp(a, 4)
    a("v_and_b32 v6, 31, v2")
    a("s_lshl_b32 s12, s10, 5")
    a("v_add_u32 v6, s12, v6")
    a(f"v_mul_u32_u24 v6, {PSTR}, v6")
    a("v_lshrrev_b32 v7, 5, v2")
    a("v_lshl_add_u32 v6, v7, 4, v6")
    a(f"s_mul_i32 s12, s11, {PHALF}")
    a(f"s_add_u32 s12, s12, {PART_L}")
    a("v_add_u32 v6, s12, v6")
    a("v_lshrrev_b32 v8, 3, v0")
    a("v_and_b32 v9, 7, v0")
    a(f"v_mul_u32_u24 v10, {PSTR}, v8")
    a("v_lshl_add_u32 v10, v9, 5, v10")
    a(f"v_add_u32 v10, {PART_L}, v10")
    a("v_mul_u32_u24 v11, 1792, v8")
    a("v_lshl_add_u32 v11, v9, 4, v11")
    a(f"s_mul_i32 s12, s8, {128*1792}")
    a("s_lshl_b32 s13, s9, 7")
    a("s_add_u32 s12, s12, s13")
    a("s_add_u32 s12, s12, 896")
    a(f"s_add_u32 s13, s12, {64*1792}")
    for nt, D in ((0, D0), (1, D1)):
        for q in range(4):
            a(f"ds_write_b128 v6, v[{D+4*q}:{D+4*q+3}] offset:{nt*128 + q*32}")
    a("s_waitcnt lgkmcnt(0)")
    a("s_barrier")
    for t in range(2):
        for h in range(2):
            for u in range(2):
                d = 64 + 16 * t + 8 * h + 4 * u
                a(f"ds_read_b128 v[{d}:{d+3}], v10 offset:{t*64*PSTR + h*PHALF + u*16}")
    for t in range(2):
        a(f"s_waitcnt lgkmcnt({4 - 4*t})")
        b = 64 + 16 * t
        for i in range(8):
            a(f"v_add_f32 v{b+i}, v{b+i}, v{b+8+i}")
        for i in range(4):
            a(f"v_cvt_pk_bf16_f32 v{96+4*t+i}, v{b+2*i}, v{b+2*i+1}")
        a(f"buffer_store_dwordx4 v[{96+4*t}:{99+4*t}], v11, s[56:59], s{12+t} offen")
    stamp(a, 5)
    stamp_flush(a, 1)
    a("s_endpgm")

U_L = 0
KS = 4288
KI_L = 288 * 64
EPA_L = KI_L + 16 * KS
EPB_L = EPA_L + 32768

def k2_conv(a):
    a.comment("---- conv role ----")
    a("s_mul_i32 s6, s3, 56")
    a("s_lshl_b32 s7, s4, 2")
    a("s_add_u32 s6, s6, s7")
    a("s_and_b32 s7, s5, 3")
    a("s_lshr_b32 s8, s5, 2")
    a("v_lshrrev_b32 v3, 4, v2")
    a("v_sub_u32 v3, v2, v3")
    a("v_and_b32 v3, 3, v3")
    a("v_and_b32 v4, 60, v2")
    a("v_add_lshl_u32 v3, v3, v4, 4")
    a("s_lshl_b32 s9, s5, 10")
    a("s_lshl_b32 s10, s6, 12")
    a("s_add_u32 s9, s9, s10")
    a("s_lshl_b32 s10, s5, 10")
    a(f"s_add_u32 s10, s10, {U_L + 2048}")
    a("v_lshlrev_b32 v4, 4, v2")
    a("s_add_u32 s11, s6, s7")
    a(f"s_mul_i32 s11, s11, {KT_ROW}")
    a("s_lshl_b32 s12, s7, 2")
    a("s_add_u32 s12, s12, s8")
    a(f"s_mul_i32 s12, s12, {KS}")
    a(f"s_add_u32 s12, s12, {KI_L}")
    a("v_mov_b32 v8, 0\nv_mov_b32 v9, 0\nv_mov_b32 v10, 0\nv_mov_b32 v11, 0")
    a("s_waitcnt lgkmcnt(0)")
    srd(a, 44, P_WS, UB_IMG, WS_UB)
    srd(a, 48, P_WS, 448 * KT_ROW, WS_KT)
    srd(a, 52, P_OUT, 2048 * 1792)
    stamp(a, 0)
    def kdma(i, sh):
        a(f"s_add_u32 s13, s11, {i*1024 + 4*sh}")
        a(f"s_add_u32 m0, s12, {2*KS*sh + i*1024}")
        a("s_nop 0")
        a("buffer_load_dwordx4 v4, s[48:51], s13 offen lds")
    def udma(h):
        if h: a("s_add_u32 s9, s9, 8192")
        a(f"s_add_u32 m0, s10, {h*8192}")
        a("s_nop 0")
        a("buffer_load_dwordx4 v3, s[44:47], s9 offen lds")
    KR_ = 64
    def kreg(i):
        r = KR_ + 8 * i
        a(f"buffer_load_dwordx4 v[{r}:{r+3}], v4, s[48:51], s11 offen offset:{i*1024}")
        a(f"buffer_load_dwordx2 v[{r+4}:{r+5}], v4, s[48:51], s11 offen offset:{i*1024+16}")
    Lh, Lj = a.newlabel("Lch"), a.newlabel("Lcj")
    a("s_cmp_lg_u32 s8, 0")
    a(f"s_cbranch_scc1 {Lh}")
    udma(0); kdma(3, 0); kdma(3, 1); kdma(2, 0); kdma(2, 1)
    udma(1); kdma(1, 0); kdma(1, 1); kdma(0, 0); kdma(0, 1)
    a(f"s_branch {Lj}")
    a.label(Lh)
    udma(0); kreg(3); kreg(2)
    udma(1); kreg(1); kreg(0)
    a.label(Lj)
    a("v_add_u32 v20, s12, v4")
    def kbuild(i):
        r = KR_ + 8 * i; o = 96
        for k_ in range(5):
            a(f"v_alignbyte_b32 v{o+k_}, v{r+k_+1}, v{r+k_}, 2")
        for k_ in range(3):
            a(f"v_mov_b32 v{o+8+k_}, v{o+1+k_}")
        a(f"v_mov_b32 v{o+11}, v{o+4}")
        a(f"ds_write_b128 v20, v[{o}:{o+3}] offset:{i*1024}")
        a(f"ds_write_b128 v20, v[{o+8}:{o+11}] offset:{2*KS + i*1024}")
    a("s_lshl_b32 s13, s5, 10")
    a("v_add_u32 v5, s13, v4")
    a("s_cmp_lt_u32 s5, 2")
    a("s_cselect_b32 s14, -1, 0")
    a("s_cselect_b32 s15, -1, 0")
    a("s_mov_b64 exec, s[14:15]")
    a("ds_write_b128 v5, v[8:11]")
    a("s_mov_b64 exec, 15")
    a("v_add_u32 v5, s12, v4")
    a("ds_write_b128 v5, v[8:11] offset:4096")
    a(f"ds_write_b128 v5, v[8:11] offset:{4096 + 2*KS}")
    a("s_mov_b64 exec, -1")
    a("v_and_b32 v5, 15, v2")
    a("v_lshrrev_b32 v7, 4, v2")
    a("v_lshl_add_u32 v6, v5, 1, v7")
    a("s_lshl_b32 s13, s8, 4")
    a("s_sub_u32 s13, 30, s13")
    a("v_add_u32 v6, s13, v6")
    SAD = 12
    for it in range(4):
        a(f"v_subrev_u32 v8, {4*it}, v6")
        a("v_lshrrev_b32 v9, 2, v8")
        a("v_add_u32 v9, s7, v9")
        a("v_and_b32 v9, 3, v9")
        a("v_lshlrev_b32 v9, 4, v9")
        a(f"v_lshl_add_u32 v{SAD+it}, v8, 6, v9")
    a("v_sub_u32 v8, 3, v5")
    a("v_and_b32 v8, 3, v8")
    a(f"v_mul_u32_u24 v16, {KS}, v8")
    a("v_add_u32 v8, v8, v5")
    a("v_lshlrev_b32 v9, 3, v7")
    a("v_sub_u32 v9, v9, v8")
    a("v_lshl_add_u32 v16, v9, 1, v16")
    a(f"s_mul_i32 s13, s7, {4*KS}")
    a("s_lshl_b32 s14, s8, 8")
    a("s_sub_u32 s13, s13, s14")
    a(f"s_add_u32 s13, s13, {KI_L + 2*2031 - 512*7 - 64*3}")
    a("v_add_u32 v16, s13, v16")
    a("s_lshl_b32 s13, s5, 12")
    a(f"s_add_u32 s13, s13, {EPA_L}")
    a("v_add_u32 v17, s13, v4")
    a("v_lshlrev_b32 v18, 3, v0")
    a(f"v_add_u32 v18, {EPA_L}, v18")
    a("v_lshrrev_b32 v8, 5, v0")
    a("v_lshlrev_b32 v8, 6, v8")
    a("v_and_b32 v9, 1, v0")
    a("v_lshl_add_u32 v8, v9, 5, v8")
    a("v_bfe_u32 v9, v0, 1, 4")
    a("v_add_u32 v8, v8, v9")
    a("v_mul_u32_u24 v19, 1792, v8")
    a("s_lshl_b32 s60, s6, 1")
    a(f"s_add_u32 s61, s60, {16*1792}")
    a("s_waitcnt vmcnt(5)")
    Lb = a.newlabel("Lnb1")
    a("s_cmp_eq_u32 s8, 0")
    a(f"s_cbranch_scc1 {Lb}")
    kbuild(3); kbuild(2)
    a("s_waitcnt vmcnt(0)")
    kbuild(1); kbuild(0)
    a.label(Lb)
    a("s_waitcnt lgkmcnt(0)")
    a("s_barrier")
    stamp(a, 1)
    ACC = 32
    SB = [64, 128]
    def rd_list(it, nk):
        s = SB[it % 2]; f = s + 32
        ops = []
        for k in range(nk):
            ops.append(f"ds_read_b128 v[{s+4*k}:{s+4*k+3}], v{SAD+it} offset:{2048*k}")
            for jj in range(2):
                d = f + 4 * k + 2 * jj
                ops.append(f"ds_read_b64 v[{d}:{d+1}], v16 offset:{512*(7-k) + 8*jj + 64*(3-it)}")
        return ops
    first = set()
    def phase(nlo, nhi, nk, extra=None):
        for it in range(4):
            nxt = rd_list(it + 1, nk) if it < 3 else []
            fill = list(nxt)
            pairs = sorted([(v, w) for v in range(nk) for w in range(nk) if nlo <= v + w <= nhi], key=lambda p: (p[1], p[0]))
            ex = list(extra) if (extra and it == 0) else []
            per = -(-len(fill) // len(pairs))
            cnt = 0
            for i, (v, w) in enumerate(pairs):
                s = SB[it % 2]; f = s + 32
                d = ACC + 4 * (v + w)
                cin = f"v[{d}:{d+3}]" if d in first else "0"
                first.add(d)
                a(f"v_mfma_f32_16x16x32_bf16 v[{d}:{d+3}], v[{s+4*v}:{s+4*v+3}], v[{f+4*w}:{f+4*w+3}], {cin}")
                for _ in range(per):
                    if fill:
                        a(fill.pop(0)); cnt += 1
                        if cnt == 12: a("s_waitcnt lgkmcnt(8)")
                if ex:
                    a(ex.pop(0))
            for e_ in ex: a(e_)
            if nxt:
                a("s_waitcnt lgkmcnt(0)")
    def store_ops(R, soff):
        ops = []
        for c in range(4):
            for r in range(2):
                ops.append(f"v_add_f32 v{R+2*c+r}, v{R+2*c+r}, v{R+8+2*c+r}")
        for r in range(2):
            ops.append(f"v_cvt_pk_bf16_f32 v{R+16+2*r}, v{R+r}, v{R+2+r}")
            ops.append(f"v_cvt_pk_bf16_f32 v{R+17+2*r}, v{R+4+r}, v{R+6+r}")
            ops.append(f"buffer_store_dwordx2 v[{R+16+2*r}:{R+17+2*r}], v19, s[52:55], s{60+r} offen")
        return ops
    for o in rd_list(0, 4): a(o)
    a("s_waitcnt lgkmcnt(0)")
    phase(0, 3, 4)
    a("s_nop 7")
    for n in range(4):
        a(f"ds_write_b128 v17, v[{ACC+4*n}:{ACC+4*n+3}] offset:{n*1024}")
    a("s_waitcnt vmcnt(0) lgkmcnt(0)")
    a("s_barrier")
    stamp(a, 2)
    R = 192
    for w in range(8):
        a(f"ds_read_b64 v[{R+2*w}:{R+2*w+1}], v18 offset:{w*4096}")
    for i, o in enumerate(rd_list(0, 8)):
        a(o)
        if i == 6: a("s_waitcnt lgkmcnt(7)")
    a("s_waitcnt lgkmcnt(0)")
    phase(4, 7, 8, store_ops(R, 0))
    stamp(a, 4)
    a(f"s_add_u32 s60, s60, {1024*1792}")
    a(f"s_add_u32 s61, s61, {1024*1792}")
    a("s_nop 5")
    for n in range(4):
        a(f"ds_write_b128 v17, v[{ACC+16+4*n}:{ACC+16+4*n+3}] offset:{32768 + n*1024}")
    a("s_waitcnt lgkmcnt(0)")
    a("s_barrier")
    for w in range(8):
        a(f"ds_read_b64 v[{R+2*w}:{R+2*w+1}], v18 offset:{32768 + w*4096}")
    a("s_waitcnt lgkmcnt(0)")
    for o in store_ops(R, 0): a(o)
    stamp(a, 5)
    stamp_flush(a, 1)
    a("s_endpgm")
```

```python
import sys, math, struct
from asmlib import *
import asmlib

NAME = "concat_heads__ssm_conv_s4d__linear_attn_block__prompt"
K1 = "s4dla_k1_kernel"
K2 = "s4dla_k2_kernel"
OPT = set(sys.argv[2:])

WS_KV = 0x0
WS_PQ = 0x10000
WS_KT = 0x210000
KT_IMG = 4224
KT_ROW = KT_IMG
WS_UB = 0x600000
UB_IMG = 256 * 448 * 16
LOG2E = 1.4426950408889634
INV2PI = 0.15915494309189535
C_HI = struct.unpack("<f", struct.pack("<f", INV2PI))[0]
C_LO = INV2PI - C_HI
ST = " sc1" if "wt" in OPT else (" nt" if "nt" in OPT else "")

P_U, P_LA, P_AI, P_CR, P_CI, P_LDT, P_D, P_X, P_W, P_WO, P_OUT, P_DBG, P_WS = 16, 18, 20, 22, 24, 26, 28, 30, 32, 34, 36, 38, 40

def srd(a, d, p, nbytes, off=0):
    if off:
        a(f"s_add_u32 s{d}, s{p}, 0x{off:x}")
        a(f"s_addc_u32 s{d+1}, s{p+1}, 0")
    else:
        a(f"s_mov_b32 s{d}, s{p}")
        a(f"s_mov_b32 s{d+1}, s{p+1}")
    a(f"s_mov_b32 s{d+2}, 0x{nbytes:x}")
    a(f"s_mov_b32 s{d+3}, 0x20000")

def prologue(a, ngrid, endlabel):
    a(f"s_cmp_ge_u32 s2, {ngrid}")
    a(f"s_cbranch_scc1 {endlabel}")
    stamp_init(a)
    a("s_load_dwordx16 s[16:31], s[0:1], 0")
    a("s_load_dwordx8 s[32:39], s[0:1], 64")
    a("s_load_dwordx2 s[40:41], s[0:1], 96")
    a("v_lshrrev_b32 v1, 6, v0")
    a("v_and_b32 v2, 63, v0")
    a("s_and_b32 s3, s2, 7")
    a("s_lshr_b32 s4, s2, 3")
    a("v_readfirstlane_b32 s5, v1")

def prefetch_code(a, swave, n, vtmp, stmp=70):
    lab = a.newlabel("Lpc")
    a(f"s_getpc_b64 s[{stmp}:{stmp+1}]")
    a.label(lab)
    a(f"s_sub_u32 s{stmp}, s{stmp}, {lab}-{K1}")
    a(f"s_subb_u32 s{stmp+1}, s{stmp+1}, 0")
    a(f"v_lshlrev_b32 v{vtmp}, 7, v2")
    if swave is not None:
        a(f"s_mul_i32 s{stmp+2}, s{swave}, {8192*n}")
        a(f"v_add_u32 v{vtmp}, s{stmp+2}, v{vtmp}")
    for i in range(n):
        a(f"global_load_dword v{vtmp+1}, v{vtmp}, s[{stmp}:{stmp+1}]")
        if i < n - 1:
            a(f"v_add_u32 v{vtmp}, 8192, v{vtmp}")

def phi_pack(a, acc, dst, tmp, s_log2e, s_eps):
    for p in range(0, 8, 2):
        t = tmp
        for q in range(2):
            r = 2 * (p + q)
            a(f"v_cvt_pk_bf16_f32 v{t+4*q}, v{acc+r}, v{acc+r+1}")
        for q in range(2):
            a(f"v_and_b32 v{t+4*q+1}, 0xffff0000, v{t+4*q}")
            a(f"v_lshlrev_b32 v{t+4*q}, 16, v{t+4*q}")
        for q in range(2):
            a(f"v_mul_f32 v{t+4*q+2}, s{s_log2e}, v{t+4*q}")
            a(f"v_mul_f32 v{t+4*q+3}, s{s_log2e}, v{t+4*q+1}")
        for q in range(2):
            a(f"v_exp_f32_e64 v{t+4*q+2}, v{t+4*q+2} clamp")
            a(f"v_exp_f32_e64 v{t+4*q+3}, v{t+4*q+3} clamp")
        for q in range(2):
            a(f"v_max_f32 v{t+4*q}, s{s_eps}, v{t+4*q}")
            a(f"v_max_f32 v{t+4*q+1}, s{s_eps}, v{t+4*q+1}")
        for q in range(2):
            a(f"v_add_f32 v{t+4*q}, v{t+4*q}, v{t+4*q+2}")
            a(f"v_add_f32 v{t+4*q+1}, v{t+4*q+1}, v{t+4*q+3}")
        for q in range(2):
            a(f"v_cvt_pk_bf16_f32 v{dst+p+q}, v{t+4*q}, v{t+4*q+1}")


SLOT = 32768
RS = 4 * 256 + 32
SCRG = 16 * RS
TSTR = 4736
RING0 = 21760
FLG_L = 21648
A_TAB = 2 * SCRG
A_CNT = A_TAB + 4 * TSTR
A_UT = 53248

def k1_gemm(a):
    a.comment("---- GEMM roles: decode ----")
    a("s_cmp_lt_u32 s5, 4")
    a("s_cbranch_scc1 L_k1_host")
    a("s_add_u32 s6, s5, 4")
    a("s_sub_u32 s7, s5, 8")
    a("s_cmp_lt_u32 s5, 8")
    a("s_cselect_b32 s5, s6, s7")
    a("s_lshr_b32 s6, s3, 1")
    a("s_lshl_b32 s6, s6, 2")
    a("s_and_b32 s7, s3, 1")
    a("s_lshr_b32 s8, s4, 2")
    a("s_add_u32 s8, s8, s6")
    a("s_and_b32 s9, s4, 3")
    a("s_lshl_b32 s10, s7, 2")
    a("s_add_u32 s9, s9, s10")
    a("s_mul_i32 s10, s9, 112")
    a("s_add_u32 s11, s10, 1792")
    a("s_add_u32 s10, s10, 896")
    a("s_sub_u32 s12, s4, 16")
    a("s_lshr_b32 s13, s12, 1")
    a("s_add_u32 s13, s13, s6")
    a("s_and_b32 s12, s12, 1")
    a("s_lshl_b32 s14, s7, 1")
    a("s_add_u32 s12, s12, s14")
    a("s_mul_i32 s14, s12, 224")
    a("s_add_u32 s15, s14, 112")
    a("s_cmp_lt_u32 s4, 16")
    a("s_cselect_b32 s8, s8, s13")
    a("s_cselect_b32 s9, s9, s12")
    a("s_cselect_b32 s10, s10, s14")
    a("s_cselect_b32 s11, s11, s15")
    a("s_cmp_lt_u32 s5, 8")
    a("s_cbranch_scc1 L_k1_comp")
    a("s_setprio 2")
    a("s_sub_u32 s6, s5, 8")
    a("v_lshrrev_b32 v7, 3, v2")
    a("v_lshrrev_b32 v8, 4, v2")
    a("v_and_b32 v9, 7, v2")
    a("s_lshl_b32 s12, s8, 7")
    a("s_lshl_b32 s13, s6, 5")
    a("s_add_u32 s12, s12, s13")
    a("v_add_u32 v10, s12, v7")
    a("v_mul_u32_u24 v10, 896, v10")
    a("v_xor_b32 v11, v9, v8")
    a("v_lshl_add_u32 v3, v11, 4, v10")
    a("v_xor_b32 v11, 4, v11")
    a("v_lshl_add_u32 v4, v11, 4, v10")
    a("v_add_u32 v4, 7168, v4")
    a("s_lshl_b32 s13, s6, 4")
    a("v_add_u32 v10, s13, v7")
    a("v_mul_u32_u24 v10, 2688, v10")
    a("v_and_b32 v11, 1, v8")
    a("v_lshlrev_b32 v11, 2, v11")
    a("v_xor_b32 v11, v11, v9")
    a("v_lshl_add_u32 v10, v11, 4, v10")
    a("v_add_u32 v5, s10, v10")
    a("v_add_u32 v6, s11, v10")
    a("s_lshl_b32 s12, s6, 12")
    a(f"s_add_u32 s12, s12, {RING0}")
    a("s_lshl_b32 s13, s6, 11")
    a(f"s_add_u32 s13, s13, {RING0 + 16384}")
    a("s_waitcnt lgkmcnt(0)")
    srd(a, 44, P_X, 2048 * 896)
    srd(a, 48, P_W, 448 * 2688)
    stamp(a, 0)
    def issue_chunk(c):
        so = (c % 4) * SLOT
        for h in range(2):
            a(f"s_movk_i32 s14, {128*c + h*14336}")
            a(f"s_add_u32 m0, s12, {so + h*2048}")
            a(f"s_mov_b32 s15, {172032*c + h*21504}")
            a("buffer_load_dwordx4 v3, s[44:47], s14 offen lds")
            a(f"s_add_u32 m0, s13, {so + h*1024}")
            a("s_nop 0")
            a("buffer_load_dwordx4 v5, s[48:51], s15 offen lds")
            a(f"s_add_u32 m0, s12, {so + h*2048 + 1024}")
            a("s_nop 0")
            a("buffer_load_dwordx4 v4, s[44:47], s14 offen lds")
            a(f"s_add_u32 m0, s13, {so + h*1024 + 8192}")
            a("s_nop 0")
            a("buffer_load_dwordx4 v6, s[48:51], s15 offen lds")
    issue_chunk(0); issue_chunk(1); issue_chunk(2)
    stamp(a, 2)
    for c in range(7):
        a(f"s_waitcnt vmcnt({[16,16,8,8,8,8,0][c]})")
        if c == 0: stamp(a, 3)
        a("s_barrier")
        if c == 0:
            stamp(a, 4)
            issue_chunk(3)
        if 2 <= c <= 4:
            issue_chunk(c + 2)
    stamp_flush(a, 0)
    a("s_endpgm")

    a.label("L_k1_comp")
    a("v_and_b32 v7, 31, v2")
    a("v_lshrrev_b32 v8, 5, v2")
    a("v_bfe_u32 v9, v2, 1, 3")
    a("v_xor_b32 v9, v9, v8")
    a("s_and_b32 s14, s5, 3")
    a("s_lshl_b32 s15, s14, 12")
    a(f"s_add_u32 s15, s15, {RING0}")
    a("v_lshlrev_b32 v7, 7, v7")
    a("v_lshl_add_u32 v7, v9, 4, v7")
    a("v_add_u32 v16, s15, v7")
    a("v_xor_b32 v17, 32, v16")
    a("v_xor_b32 v18, 64, v16")
    a("v_xor_b32 v19, 0x60, v16")
    a("s_lshr_b32 s65, s5, 2")
    a("s_mul_i32 s15, s65, 56")
    a("v_bfe_u32 v7, v2, 4, 1")
    a("v_lshlrev_b32 v7, 5, v7")
    a("v_and_b32 v9, 3, v2")
    a("v_lshl_add_u32 v7, v9, 3, v7")
    a("v_add_u32 v7, s15, v7")
    a("v_bfe_u32 v9, v2, 3, 1")
    a("v_lshlrev_b32 v9, 6, v9")
    a("v_xor_b32 v7, v7, v9")
    a("v_bfe_u32 v9, v2, 2, 2")
    a("v_lshl_add_u32 v9, v8, 3, v9")
    a("v_lshl_add_u32 v7, v9, 7, v7")
    a(f"v_add_u32 v20, {RING0 + 16384}, v7")
    a(f"s_mov_b32 s66, {fhex(LOG2E)}")
    a(f"s_mov_b32 s67, {fhex(1e-6)}")
    a("s_waitcnt lgkmcnt(0)")
    srd(a, 52, P_WS, 0x10000, WS_KV)
    srd(a, 56, P_WS, 0x200000, WS_PQ)
    srd(a, 60, P_DBG, 256)
    stamp(a, 0)
    a("s_cmp_ge_u32 s4, 16")
    a("s_cbranch_scc1 L_k1_q")

    FR = 32
    ACC0, ACC1 = 80, 96
    def main_loop(is_q, hook=None):
        st = {"base": 0}
        def setbase(c):
            want = ((c % 4) // 2) * 65536
            if want != st["base"]:
                d = want - st["base"]
                for r in range(16, 21):
                    if d > 0: a(f"v_add_u32 v{r}, 0x{d:x}, v{r}")
                    else: a(f"v_subrev_u32 v{r}, 0x{-d:x}, v{r}")
                st["base"] = want
        def reads(c, k):
            so = (c % 4) * SLOT - st["base"]
            f = FR + 12 * k
            a(f"ds_read_b128 v[{f}:{f+3}], v{16+k} offset:{so}")
            for seg in range(2):
                for jj in range(2):
                    d = f + 4 + 4 * seg + 2 * jj
                    a(f"ds_read_b64_tr_b16 v[{d}:{d+1}], v20 offset:{so + seg*8192 + (16*k+4*jj)*128}")
        def mfma(c, k):
            f = FR + 12 * k
            for seg, acc in ((0, ACC0), (1, ACC1)):
                wf = f + 4 + 4 * seg
                cin = "0" if (c == 0 and k == 0) else f"v[{acc}:{acc+15}]"
                if is_q:
                    a(f"v_mfma_f32_32x32x16_bf16 v[{acc}:{acc+15}], v[{wf}:{wf+3}], v[{f}:{f+3}], {cin}")
                else:
                    a(f"v_mfma_f32_32x32x16_bf16 v[{acc}:{acc+15}], v[{f}:{f+3}], v[{wf}:{wf+3}], {cin}")
        a("s_barrier")
        stamp(a, 1)
        reads(0, 0); reads(0, 1)
        for c in range(7):
            if c == 3: stamp(a, 2)
            if c == 6: stamp(a, 3)
            reads(c, 2)
            a("s_waitcnt lgkmcnt(10)")
            mfma(c, 0)
            reads(c, 3)
            a("s_waitcnt lgkmcnt(10)")
            mfma(c, 1)
            if hook: hook(c)
            if c < 6:
                a("s_barrier")
                setbase(c + 1)
            a("s_waitcnt lgkmcnt(5)")
            mfma(c, 2)
            if c < 6:
                reads(c + 1, 0)
                a("s_waitcnt lgkmcnt(5)")
            else:
                a("s_waitcnt lgkmcnt(0)")
            mfma(c, 3)
            if c < 6:
                reads(c + 1, 1)
        stamp(a, 4)

    def hook(c):
        if c == 5:
            a("v_mov_b32 v11, 0")
            a("s_lshl_b32 s14, s9, 2")
            a("s_mov_b64 exec, 1")
            a("buffer_load_dword v21, v11, s[60:63], s14 offen sc1")
            a("s_mov_b64 exec, -1")
    main_loop(False, hook)
    PK, VV, TMP = 32, 40, 48
    XB = RING0
    a("v_lshlrev_b32 v10, 4, v2")
    a("s_lshl_b32 s14, s5, 12")
    a(f"s_add_u32 s14, s14, {XB}")
    a("v_add_u32 v11, s14, v10")
    a("s_and_b32 s14, s5, 3")
    a("s_lshl_b32 s14, s14, 10")
    a("s_lshl_b32 s15, s65, 14")
    a("s_add_u32 s14, s14, s15")
    a(f"s_add_u32 s14, s14, {XB}")
    a("v_lshlrev_b32 v10, 2, v2")
    a("v_add_u32 v12, s14, v10")
    a("s_nop 3")
    phi_pack(a, ACC0, PK, TMP, 66, 67)
    for p in range(8):
        a(f"v_cvt_pk_bf16_f32 v{VV+p}, v{ACC1+2*p}, v{ACC1+2*p+1}")
    a("s_mov_b32 exec_lo, 0x10000000")
    a("s_mov_b32 exec_hi, 0x10000000")
    for p in range(8):
        a(f"v_mov_b32 v{VV+p}, 0x3f803f80")
    a("s_mov_b64 exec, -1")
    a("s_nop 1")
    KV = 56
    a(f"v_mfma_f32_32x32x16_bf16 v[{KV}:{KV+15}], v[{PK}:{PK+3}], v[{VV}:{VV+3}], 0")
    a(f"v_mfma_f32_32x32x16_bf16 v[{KV}:{KV+15}], v[{PK+4}:{PK+7}], v[{VV+4}:{VV+7}], v[{KV}:{KV+15}]")
    Ls, Lok = a.newlabel("Lspin"), a.newlabel("Lok")
    a("s_waitcnt vmcnt(0)")
    a("s_movk_i32 s68, 4000")
    a("v_mov_b32 v13, 0")
    a("s_lshl_b32 s14, s9, 2")
    a.label(Ls)
    a("v_readfirstlane_b32 s15, v21")
    a("s_cmp_lg_u32 s15, 0")
    a(f"s_cbranch_scc1 {Lok}")
    a("s_sub_u32 s68, s68, 1")
    a("s_cmp_eq_u32 s68, 0")
    a(f"s_cbranch_scc1 {Lok}")
    a("s_sleep 4")
    a("buffer_load_dword v21, v13, s[60:63], s14 offen sc1")
    a("s_waitcnt vmcnt(0)")
    a(f"s_branch {Ls}")
    a.label(Lok)
    a("s_lshl_b32 s14, s9, 1")
    a("s_add_u32 s14, s14, s65")
    a("s_lshl_b32 s14, s14, 12")
    a("s_and_b32 s15, s5, 3")
    a("s_lshl_b32 s15, s15, 10")
    a("s_add_u32 s14, s14, s15")
    for q in range(4):
        a(f"ds_write_b128 v11, v[{KV+4*q}:{KV+4*q+3}] offset:{q*1024}")
    a("s_waitcnt lgkmcnt(0)")
    a("s_barrier")
    for i in range(4):
        a(f"ds_read2st64_b32 v[{32+4*i}:{33+4*i}], v12 offset0:{i} offset1:{16+i}")
        a(f"ds_read2st64_b32 v[{34+4*i}:{35+4*i}], v12 offset0:{32+i} offset1:{48+i}")
    for i in range(4):
        a(f"s_waitcnt lgkmcnt({6-2*i})")
        b = 32 + 4 * i
        a(f"v_add_f32 v{b}, v{b}, v{b+1}")
        a(f"v_add_f32 v{b+2}, v{b+2}, v{b+3}")
        a(f"v_add_f32 v{b}, v{b}, v{b+2}")
        a(f"buffer_atomic_add_f32 v{b}, v10, s[52:55], s14 offen offset:{i*256}")
    stamp(a, 5)
    stamp_flush(a, 0)
    a("s_endpgm")

    a.label("L_k1_q")
    main_loop(True)
    a("s_lshl_b32 s14, s8, 2")
    a("s_and_b32 s15, s5, 3")
    a("s_add_u32 s14, s14, s15")
    a("s_lshl_b32 s14, s14, 4")
    a("s_lshl_b32 s15, s9, 2")
    a("s_add_u32 s14, s14, s15")
    a("s_add_u32 s14, s14, s65")
    a("s_lshl_b32 s14, s14, 11")
    a("s_add_u32 s15, s14, 4096")
    a("v_lshlrev_b32 v10, 4, v2")
    a("s_nop 5")
    phi_pack(a, ACC0, 32, 48, 66, 67)
    a(f"buffer_store_dwordx4 v[32:35], v10, s[56:59], s14 offen{ST}")
    a(f"buffer_store_dwordx4 v[36:39], v10, s[56:59], s14 offen offset:1024{ST}")
    phi_pack(a, ACC1, 40, 48, 66, 67)
    a(f"buffer_store_dwordx4 v[40:43], v10, s[56:59], s15 offen{ST}")
    a(f"buffer_store_dwordx4 v[44:47], v10, s[56:59], s15 offen offset:1024{ST}")
    stamp(a, 5)
    stamp_flush(a, 0)
    a("s_endpgm")

def cmul_ops(d, x, y):
    return [f"v_pk_mul_f32 v[{d}:{d+1}], v[{x}:{x+1}], v[{y}:{y+1}] op_sel:[0,0] op_sel_hi:[1,0]",
            f"v_pk_fma_f32 v[{d}:{d+1}], v[{x}:{x+1}], v[{y}:{y+1}], v[{d}:{d+1}] op_sel:[1,1,0] op_sel_hi:[0,1,1] neg_lo:[1,0,0]"]
def hmul_ops(d, x, y):
    return [f"v_pk_mul_f16 v{d}, v{x}, v{y} op_sel:[0,0] op_sel_hi:[1,0]",
            f"v_pk_fma_f16 v{d}, v{x}, v{y}, v{d} op_sel:[1,1,0] op_sel_hi:[0,1,1] neg_lo:[1,0,0]"]
def interleave(a, streams):
    idx = [0] * len(streams)
    live = True
    while live:
        live = False
        for i, s in enumerate(streams):
            if idx[i] < len(s):
                a(s[idx[i]]); idx[i] += 1; live = True


def k1_a(a):
    a.comment("---- A role ----")
    a("s_sub_u32 s6, s4, 24")
    a("s_cmp_ge_u32 s5, 12")
    a("s_cbranch_scc1 L_k1_ut")
    a("s_cmp_ge_u32 s5, 8")
    a("s_cbranch_scc1 L_k1_touch")
    a("s_lshr_b32 s8, s5, 1")
    a("s_lshl_b32 s7, s6, 2")
    a("s_add_u32 s7, s7, s8")
    a("s_add_u32 s7, s7, 24")
    a("s_and_b32 s10, s5, 1")
    a("s_mov_b32 s9, 0")
    a("s_mov_b32 s73, 2")
    a("s_mov_b32 s64, 0")
    a("s_mov_b32 s12, 1")
    a("s_lshr_b32 s72, s5, 2")
    a(f"s_mul_i32 s72, s72, {SCRG}")
    a("s_and_b32 s11, s5, 3")
    a("s_lshl_b32 s11, s11, 8")
    a("s_add_u32 s72, s72, s11")
    a(f"s_mul_i32 s13, s8, {TSTR}")
    a(f"s_add_u32 s13, s13, {A_TAB + 16}")
    a("s_lshl_b32 s65, s8, 2")
    a(f"s_add_u32 s65, s65, {A_CNT}")
    a("s_branch L_k1_kg")
    a.label("L_k1_host")
    a("s_add_u32 s5, s5, 12")
    if "x_nohost" in OPT: a("s_endpgm")
    a("s_setprio 3")
    a("s_mov_b32 s7, s4")
    a("s_bfe_u32 s10, s5, 0x10001")
    a("s_and_b32 s9, s5, 1")
    a("s_mov_b32 s73, 1")
    a("s_mov_b32 s64, 1")
    a("s_mov_b32 s12, 12")
    a("s_and_b32 s72, s5, 3")
    a("s_lshl_b32 s72, s72, 8")
    a(f"s_movk_i32 s13, {SCRG + 16}")
    a(f"s_movk_i32 s65, {SCRG + TSTR}")
    a.label("L_k1_kg")
    def hb(): pass
    def hbar():
        L = a.newlabel("Lhb")
        a("s_cmp_eq_u32 s64, 0")
        a(f"s_cbranch_scc1 {L}")
        a("s_barrier")
        a.label(L)
    a("s_mul_i32 s11, s3, 56")
    a("s_add_u32 s7, s7, s11")
    a("v_lshlrev_b32 v3, 2, v2")
    a("s_lshl_b32 s11, s7, 9")
    a("s_lshl_b32 s10, s10, 8")
    a("s_add_u32 s10, s10, s11")
    a("v_add_u32 v3, s10, v3")
    a("s_lshl_b32 s10, s7, 1")
    a("v_mov_b32 v4, s10")
    a("v_mov_b32 v5, 0")
    a("v_mov_b32 v23, s65")
    a("s_waitcnt lgkmcnt(0)")
    stamp(a, 0)
    a(f"global_load_dword v10, v3, s[{P_CR}:{P_CR+1}]")
    a(f"global_load_dword v11, v3, s[{P_CI}:{P_CI+1}]")
    a(f"global_load_short_d16_hi v16, v4, s[{P_LDT}:{P_LDT+1}]")
    a(f"global_load_dword v8, v3, s[{P_LA}:{P_LA+1}]")
    a(f"global_load_dword v9, v3, s[{P_AI}:{P_AI+1}]")
    a(f"global_load_short_d16_hi v17, v4, s[{P_D}:{P_D+1}]")
    a("ds_write_b32 v23, v5")
    Lnb = a.newlabel("Lnb")
    a("s_cmp_lg_u32 s64, 0")
    a(f"s_cbranch_scc1 {Lnb}")
    a("s_waitcnt lgkmcnt(0)")
    a("s_barrier")
    a.label(Lnb)
    a(f"s_mov_b32 s66, {fhex(LOG2E)}")
    a(f"s_mov_b32 s67, {fhex(-LOG2E)}")
    a(f"s_mov_b32 s68, {fhex(C_HI)}")
    a(f"s_mov_b32 s69, {fhex(C_LO)}")
    a(f"s_mov_b32 s70, {fhex(8.0)}")
    a(f"s_mov_b32 s71, {fhex(256.0)}")
    a("v_and_b32 v24, 15, v2")
    a(f"v_mul_u32_u24 v20, {RS}, v24")
    a("v_lshrrev_b32 v21, 4, v2")
    a("v_lshl_add_u32 v20, v21, 4, v20")
    a("v_add_u32 v20, s72, v20")
    a(f"v_mul_u32_u24 v21, {RS}, v21")
    a("v_lshl_add_u32 v21, v24, 4, v21")
    a("v_mov_b32 v22, 0x00003c00")
    srd(a, 52, P_WS, 448 * KT_ROW, WS_KT)
    TA = [3, 4, 5, 6, 7, 14, 15, 18]
    a("v_lshl_add_u32 v24, v24, 4, s13")
    def base(mt, q, r):
        if mt == 0:
            return [r, 4 + r, 256 + 2 * r, 512 + 4 * (r & 1) + 256 * (r >> 1)][q]
        if q == 0: return 1024 + 256 * r
        if q == 1 and r == 0: return 2048
        return 2049
    for q in range(4):
        lo = (0xffff << (16 * q)) & 0xffffffff if q < 2 else 0
        hi_ = (0xffff << (16 * (q - 2))) & 0xffffffff if q >= 2 else 0
        a(f"s_mov_b32 exec_lo, 0x{lo:x}")
        a(f"s_mov_b32 exec_hi, 0x{hi_:x}")
        for mt in range(2):
            for r in range(4):
                a(f"v_add_u32 v{TA[4*mt+r]}, {2*base(mt,q,r)}, v24")
    a("s_mov_b64 exec, -1")
    ACC = 112
    for i in range(16):
        a(f"v_mov_b32 v{ACC+i}, 0")
    a("s_mov_b32 m0, s72")
    a("s_waitcnt vmcnt(3) lgkmcnt(0)")
    a("v_and_b32 v24, 0x7fff7fff, v10")
    a("v_and_b32 v25, 0x7fff7fff, v11")
    a("v_and_b32 v16, 0xffff0000, v16")
    a("v_pk_max_u16 v24, v24, v25")
    a("v_mul_f32 v16, s66, v16")
    a("v_exp_f32 v16, v16")
    a("v_lshrrev_b32 v25, 16, v24")
    a("v_and_b32 v24, 0xffff, v24")
    a("v_max_u32 v24, v24, v25")
    a("v_cvt_pk_bf16_f32 v16, v16, v16")
    a("v_and_b32 v16, 0xffff0000, v16")
    for ctl in ("row_shr:1 row_mask:0xf bank_mask:0xf", "row_shr:2 row_mask:0xf bank_mask:0xf",
                "row_shr:4 row_mask:0xf bank_mask:0xf", "row_shr:8 row_mask:0xf bank_mask:0xf",
                "row_bcast:15 row_mask:0xa bank_mask:0xf", "row_bcast:31 row_mask:0xc bank_mask:0xf"):
        a(f"v_max_u32_dpp v24, v24, v24 {ctl}")
        a("s_nop 1")
    a("v_readlane_b32 s74, v24, 63")
    a("v_readfirstlane_b32 s75, v16")
    a("s_nop 3")
    a("s_lshr_b32 s74, s74, 7")
    a("s_max_u32 s74, s74, 14")
    a("s_min_u32 s74, s74, 254")
    a("s_sub_u32 s76, 267, s74")
    a("s_lshl_b32 s76, s76, 23")
    a("s_sub_u32 s77, s74, 13")
    a("s_lshl_b32 s77, s77, 23")
    a("s_waitcnt vmcnt(0)")
    Ls = a.newlabel("Lsh")
    a("s_cmp_eq_u32 s9, 0")
    a(f"s_cbranch_scc1 {Ls}")
    for r in range(8, 12):
        a(f"v_lshrrev_b32 v{r}, 16, v{r}")
    a.label(Ls)
    hb()
    stamp(a, 1)

    FX = 80
    Z1, Z2, Z4, Z256 = 32, 34, 36, 38
    Q1, Q2, Q3, Q4, QT = 40, 42, 44, 46, 48
    P1, P2 = 50, 52
    XA, XB_, RA, RB, SA, SB = 54, 56, 58, 60, 62, 12
    QH = [22, 64, 65, 66, 67, 68, 69, 70]
    PH = [None, 71, 72, 73]
    H1, H2, H3 = [74, 75], [76, 77], [78, 79]
    def wr(row, v):
        return f"ds_write_addtid_b32 v{v} offset:{(row % 16) * RS}"

    a.label("L_kpass")
    a("v_lshlrev_b32 v24, 16, v8")
    a("v_lshlrev_b32 v25, 16, v9")
    a("v_mul_f32 v24, s66, v24")
    a("v_exp_f32 v24, v24")
    a("v_mul_f32 v25, s75, v25")
    a("v_mul_f32 v26, s68, v25")
    a("v_cvt_pk_bf16_f32 v24, v24, v24")
    a("v_fma_f32 v27, v25, s68, -v26")
    a("v_and_b32 v24, 0xffff0000, v24")
    a("v_fmac_f32 v27, s69, v25")
    a("v_mul_f32 v24, s75, v24")
    a("v_mul_f32 v24, s67, v24")
    a(f"v_lshlrev_b32 v{XA}, 16, v10")
    a(f"v_lshlrev_b32 v{XA+1}, 16, v11")
    a(f"v_mul_f32 v{XA}, s76, v{XA}")
    a(f"v_mul_f32 v{XA+1}, s76, v{XA+1}")
    st = []
    for (dst, sm, t, neg) in ((Z1, None, 28, False), (Q1, 70, 74, True), (Z256, 71, 77, False)):
        s_ = []
        if sm is None:
            s_ += [f"v_exp_f32 v{t}, v24", f"v_fract_f32 v{t+1}, v26", f"v_add_f32 v{t+1}, v{t+1}, v27"]
        else:
            s_ += [f"v_mul_f32 v{t}, s{sm}, v24", f"v_exp_f32 v{t}, v{t}", f"v_mul_f32 v{t+1}, s{sm}, v26",
                   f"v_fract_f32 v{t+1}, v{t+1}", f"v_fmac_f32 v{t+1}, s{sm}, v27"]
        s_ += [f"v_cos_f32 v{t+2}, v{t+1}", f"v_sin_f32 v{t+1}, v{t+1}", "s_nop 0", f"v_mul_f32 v{dst}, v{t}, v{t+2}"]
        s_ += [f"v_mul_f32_e64 v{dst+1}, v{t}, {'-' if neg else ''}v{t+1}"]
        st.append(s_)
    st.append([f"v_lshrrev_b32 v{r}, 16, v{r}" for r in range(8, 12)])
    interleave(a, st)
    hb()
    for s_ in cmul_ops(RA, XA, Z256): a(s_)
    def cvh(stream, hs, k, src, row):
        h = hs[k % 2]
        stream.append(f"v_cvt_pk_f16_f32 v{h}, v{src}, v{src+1}")
        stream.append(wr(row, h))
    s1 = []
    cur, oth = XA, XB_
    cvh(s1, H1, 0, XA, 0)
    for f in range(1, 8):
        s1 += cmul_ops(oth, cur, Z1)
        cvh(s1, H1, f, oth, f)
        cur, oth = oth, cur
    s2 = cmul_ops(Z2, Z1, Z1) + cmul_ops(Z4, Z2, Z2)
    k = 0
    cvh(s2, H2, k, RA, 8); k += 1
    s2 += cmul_ops(RB, RA, Z256)
    s2 += cmul_ops(SA, RA, Z2); cvh(s2, H2, k, SA, 9); k += 1
    s2 += cmul_ops(SB, RA, Z4); cvh(s2, H2, k, SB, 10); k += 1
    s2 += cmul_ops(SA, SB, Z2); cvh(s2, H2, k, SA, 11); k += 1
    cvh(s2, H2, k, RB, 12); k += 1
    s2 += cmul_ops(RA, RB, Z256)
    s2 += cmul_ops(SA, RB, Z4); cvh(s2, H2, k, SA, 13); k += 1
    cvh(s2, H2, k, RA, 14); k += 1
    s2 += cmul_ops(RB, RA, Z256)
    s2 += cmul_ops(SA, RA, Z4); cvh(s2, H2, k, SA, 15); k += 1
    s3 = []
    def qcv(b, src):
        s3.append(f"v_cvt_pk_f16_f32 v{QH[b]}, v{src}, v{src+1}")
    qcv(1, Q1)
    s3 += cmul_ops(Q2, Q1, Q1); qcv(2, Q2)
    s3 += cmul_ops(Q4, Q2, Q2)
    s3 += cmul_ops(Q3, Q2, Q1); qcv(4, Q4); qcv(3, Q3)
    s3 += cmul_ops(P1, Q4, Q4)
    s3 += cmul_ops(QT, Q4, Q1); qcv(5, QT)
    s3 += cmul_ops(P2, P1, P1)
    s3 += cmul_ops(QT, Q4, Q2); qcv(6, QT)
    s3 += cmul_ops(QT, Q4, Q3); qcv(7, QT)
    s3 += cmul_ops(QT, P2, P1)
    s3.append(f"v_cvt_pk_f16_f32 v{PH[1]}, v{P1}, v{P1+1}")
    s3.append(f"v_cvt_pk_f16_f32 v{PH[2]}, v{P2}, v{P2+1}")
    s3.append(f"v_cvt_pk_f16_f32 v{PH[3]}, v{QT}, v{QT+1}")
    interleave(a, [s1[:20], s2[:20], s3[:20]])
    hb()
    interleave(a, [s1[20:], s2[20:], s3[20:]])
    def rdf(f0):
        for kk in range(4):
            f = f0 + 4 * kk
            a(f"ds_read_b128 v[{f}:{f+3}], v20 offset:{64*kk}")
    rdf(FX)
    s4 = []
    c_, o_ = RB, RA
    for row in range(16, 21):
        cvh(s4, H2, row, c_, row)
        if row < 20:
            s4 += cmul_ops(o_, c_, Z256)
            c_, o_ = o_, c_
    s5 = []
    Y1 = [None, 32, 33, 34, 35, 36, 37, 40]
    for b in range(1, 8):
        s5 += hmul_ops(Y1[b], PH[1], QH[b])
    interleave(a, [s4[:10], s5[:10]])
    hb()
    interleave(a, [s4[10:], s5[10:]])
    rdf(FX + 16)
    w0 = [wr(b, QH[b]) for b in range(8)] + [wr(8, PH[1])] + [wr(8 + b, Y1[b]) for b in range(1, 8)]
    Y2 = [None, 41, 42, 43, 44, 45, 46, 47]
    s6 = []
    for b in range(1, 8):
        s6 += hmul_ops(Y2[b], PH[2], QH[b])
    interleave(a, [w0, s6])
    rdf(48)
    hb()
    w1 = [wr(0, PH[2])] + [wr(b, Y2[b]) for b in range(1, 8)] + [wr(8, PH[3])]
    s7 = []
    for b in range(1, 8):
        h = H1[b % 2]
        s7 += hmul_ops(h, PH[3], QH[b])
        s7.append(wr(8 + b, h))
    interleave(a, [w1, s7])
    rdf(32)
    def mm(nt, kk):
        for mt in range(2):
            fa = FX + 16 * mt + 4 * kk
            fb = (48 if nt == 0 else 32) + 4 * kk
            d = ACC + 8 * mt + 4 * nt
            a(f"v_mfma_f32_16x16x32_f16 v[{d}:{d+3}], v[{fa}:{fa+3}], v[{fb}:{fb+3}], v[{d}:{d+3}]")
    a("s_waitcnt lgkmcnt(15)")
    for kk in range(4): mm(0, kk)
    for kk in range(4):
        a(f"s_waitcnt lgkmcnt({3-kk})")
        mm(1, kk)
    a("s_sub_u32 s73, s73, 1")
    a("s_cmp_lg_u32 s73, 0")
    a("s_cbranch_scc1 L_kpass")
    stamp(a, 3)

    a("v_mov_b32 v25, s75")
    a("v_mul_f32 v25, s77, v25")
    a("v_add_f32 v25, v25, v25")
    a("v_add_u32 v30, s72, v21")
    a("v_mov_b32 v28, 1")
    a("v_lshlrev_b32 v26, 4, v2")
    a("s_nop 1")
    for q in range(4):
        for r in range(4):
            a(f"v_mul_f32 v{ACC+4*q+r}, v25, v{ACC+4*q+r}")
        a(f"ds_write_b128 v30, v[{ACC+4*q}:{ACC+4*q+3}] offset:{4*q*RS}")
    a("s_mov_b64 exec, 1")
    a("ds_add_rtn_u32 v29, v23, v28")
    a("s_mov_b64 exec, -1")
    a("v_and_b32 v17, 0xffff0000, v17")
    a(f"s_add_u32 s11, s13, {16*63}")
    a("v_sub_u32 v27, s11, v26")
    a("v_cmp_gt_u32 vcc, 32, v2")
    a("v_and_b32 v31, 1, v2")
    a("v_mul_u32_u24 v31, 0x0404, v31")
    a("v_cndmask_b32_e64 v28, 0, 2, vcc")
    a("s_waitcnt lgkmcnt(0)")
    a("v_readfirstlane_b32 s11, v29")
    a("s_cmp_lg_u32 s64, 0")
    a("s_cselect_b32 s11, s5, s11")
    a("s_cmp_eq_u32 s11, s12")
    a("s_cbranch_scc1 L_kfin")
    stamp_flush(a, 0)
    a("s_endpgm")
    a.label("L_kfin")
    def rdpart(x, r0):
        a(f"s_xor_b32 s14, s72, {x*256}")
        a("v_add_u32 v30, s14, v21")
        for q in range(4):
            a(f"ds_read_b128 v[{r0+4*q}:{r0+4*q+3}], v30 offset:{4*q*RS}")
    def addp(r0):
        for i in range(16):
            a(f"v_add_f32 v{ACC+i}, v{ACC+i}, v{r0+i}")
    hbar()
    rdpart(1, 32)
    L1 = a.newlabel("Lone")
    a("s_cmp_eq_u32 s64, 0")
    a(f"s_cbranch_scc1 {L1}")
    rdpart(2, 48); rdpart(3, 64)
    a("s_waitcnt lgkmcnt(4)")
    addp(48)
    a("s_waitcnt lgkmcnt(0)")
    addp(64)
    a("s_barrier")
    a.label(L1)
    a("s_waitcnt lgkmcnt(0)")
    addp(32)
    stamp(a, 4)
    a("s_mov_b64 exec, 1")
    a(f"v_add_f32 v{ACC}, v{ACC}, v17")
    a("s_mov_b64 exec, -1")
    for mt in range(2):
        for r in range(4):
            a(f"v_cvt_pk_bf16_f32 v{40+4*mt+r}, v{ACC+8*mt+r}, v{ACC+8*mt+4+r}")
            a(f"ds_write_b16 v{TA[4*mt+r]}, v{40+4*mt+r}")
            a(f"ds_write_b16_d16_hi v{TA[4*mt+r]}, v{40+4*mt+r} offset:256")
    a("v_add_u32 v29, v27, v28")
    a("v_sub_u32 v30, v27, v28")
    hbar()
    for m in range(2):
        o = (3 - m) * 1024
        a(f"ds_read_u16 v{80+2*m}, v27 offset:{o}")
        a(f"ds_read_u16 v{81+2*m}, v27 offset:{o+16}")
    a("ds_read_u16 v88, v27 offset:1024")
    a("ds_read_u16 v89, v27 offset:1032")
    a("ds_read_u16 v90, v27 offset:1040")
    for k_, (reg, idx) in enumerate(((29, 7), (27, 6), (30, 5), (27, 4), (29, 3), (27, 2), (30, 1), (27, 0))):
        a(f"ds_read_u16 v{92+k_}, v{reg} offset:{2*idx}")
    a("s_mov_b32 s60, 0x05040504")
    a("s_mov_b32 s61, 0x01000100")
    a("s_mov_b32 s62, 0x01000504")
    a(f"s_mul_i32 s13, s7, {KT_ROW}")
    a("v_mov_b32 v84, 0\nv_mov_b32 v85, 0\nv_mov_b32 v86, 0\nv_mov_b32 v87, 0")
    a("v_lshlrev_b32 v31, 16, v31")
    a("v_sub_u32 v31, 0x05040504, v31")
    E = 48
    a("s_waitcnt lgkmcnt(8)")
    for m in range(2):
        ra, rb = 80 + 2 * m, 81 + 2 * m
        e = E + 4 * m
        a(f"v_perm_b32 v{e}, v{rb}, v{ra}, s60")
        a(f"v_perm_b32 v{e+1}, v{rb}, v{ra}, v31")
        a(f"v_perm_b32 v{e+2}, v{rb}, v{ra}, s61")
        a(f"v_perm_b32 v{e+3}, v{rb}, v{ra}, s61")
        a(f"buffer_store_dwordx4 v[{e}:{e+3}], v26, s[52:55], s13 offen offset:{m*1024}{ST}")
    e = E + 8
    a(f"v_perm_b32 v{e}, v90, v90, s61")
    a(f"v_perm_b32 v{e+1}, v89, v88, s60")
    a(f"v_perm_b32 v{e+2}, v89, v88, s62")
    a(f"v_perm_b32 v{e+3}, v89, v88, s61")
    a(f"buffer_store_dwordx4 v[{e}:{e+3}], v26, s[52:55], s13 offen offset:2048{ST}")
    a("s_waitcnt lgkmcnt(0)")
    e = E + 12
    for k_ in range(4):
        a(f"v_lshl_or_b32 v{e+k_}, v{93+2*k_}, 16, v{92+2*k_}")
    a(f"buffer_store_dwordx4 v[{e}:{e+3}], v26, s[52:55], s13 offen offset:3072{ST}")
    a("s_add_u32 s13, s13, 4096")
    a("s_mov_b64 exec, 1")
    a(f"buffer_store_dwordx4 v[84:87], v26, s[52:55], s13 offen{ST}")
    stamp(a, 5)
    hbar(); hbar(); hbar()
    stamp_flush(a, 0)
    a("s_endpgm")

    a.label("L_k1_touch")
    a("s_setprio 3")
    a("s_sub_u32 s7, s5, 8")
    a("s_lshl_b32 s8, s6, 2")
    a("s_add_u32 s8, s8, s7")
    a("v_cmp_le_u32 vcc, 12, v2")
    a("v_mov_b32 v5, 0")
    a("s_lshl_b32 s9, s8, 1")
    a("v_cndmask_b32_e64 v5, 0, 1, vcc")
    a("v_mul_u32_u24 v6, 12, v5")
    a("v_sub_u32 v6, v2, v6")
    a("v_add_u32 v5, s9, v5")
    a("v_mul_u32_u24 v5, 2688, v5")
    a("v_lshl_add_u32 v5, v6, 7, v5")
    a("v_lshrrev_b32 v6, 2, v6")
    a("v_mul_u32_u24 v6, 384, v6")
    a("v_add_u32 v5, v5, v6")
    a("s_and_b32 s9, s3, 1")
    a("s_mul_i32 s9, s9, 384")
    T0 = int([o for o in OPT if o.startswith("tfrom")][0][5:]) if [o for o in OPT if o.startswith("tfrom")] else 3
    a(f"s_add_u32 s9, s9, {T0*172032}")
    a("v_add_u32 v5, s9, v5")
    a("s_lshl_b32 s9, s8, 4")
    a("s_lshr_b32 s10, s3, 1")
    a("s_lshl_b32 s10, s10, 9")
    a("s_add_u32 s9, s9, s10")
    a("v_and_b32 v6, 15, v2")
    a("v_add_u32 v6, s9, v6")
    a("v_mul_u32_u24 v6, 896, v6")
    a(f"v_add_u32 v6, {T0*128}, v6")
    a("v_mov_b32 v12, 172032")
    a("s_waitcnt lgkmcnt(0)")
    stamp(a, 0)
    a(f"v_mov_b32 v11, s{P_W+1}")
    a(f"v_add_co_u32 v10, vcc, s{P_W}, v5")
    a("s_nop 1")
    a("v_addc_co_u32 v11, vcc, 0, v11, vcc")
    a("s_mov_b32 exec_lo, 0")
    a("s_mov_b32 exec_hi, 0xffff")
    a(f"v_mov_b32 v11, s{P_X+1}")
    a(f"v_add_co_u32 v10, vcc, s{P_X}, v6")
    a("v_mov_b32 v12, 128")
    a("s_nop 0")
    a("v_addc_co_u32 v11, vcc, 0, v11, vcc")
    a("s_mov_b32 exec_lo, 0xffffff")
    WIN = int([o for o in OPT if o.startswith("win")][0][3:]) if [o for o in OPT if o.startswith("win")] else 3
    def touch(last=False):
        a("global_load_dword v13, v[10:11], off")
        if not last:
            a("v_add_co_u32 v10, vcc, v10, v12")
            a("s_nop 1")
            a("v_addc_co_u32 v11, vcc, 0, v11, vcc")
    NT = 7 - T0
    for c in range(NT):
        if c >= WIN:
            a(f"s_waitcnt vmcnt({WIN-1})")
        touch(c == NT - 1)
        if c == min(WIN, NT) - 1:
            a("s_barrier")
            stamp(a, 1)
    stamp(a, 5)
    stamp_flush(a, 0)
    a("s_endpgm")

    a.label("L_k1_ut")
    a("s_sub_u32 s7, s5, 12")
    Lp = a.newlabel("Lnopf")
    a("s_cmp_lg_u32 s6, 0")
    a(f"s_cbranch_scc1 {Lp}")
    prefetch_code(a, 7, 1, 120, 60)
    a.label(Lp)
    a("s_lshl_b32 s9, s3, 3")
    a("s_add_u32 s9, s9, s6")
    a("s_lshl_b32 s9, s9, 2")
    a("s_add_u32 s9, s9, s7")
    a("s_mul_i32 s10, s9, 7168")
    a("s_mul_i32 s11, s7, 7168")
    a(f"s_add_u32 s11, s11, {A_UT}")
    a("v_lshlrev_b32 v4, 4, v2")
    a("v_mov_b32 v8, 0\nv_mov_b32 v9, 0\nv_mov_b32 v10, 0\nv_mov_b32 v11, 0")
    a("s_waitcnt lgkmcnt(0)")
    a("s_barrier")
    stamp(a, 0)
    srd(a, 44, P_U, 2048 * 896)
    srd(a, 48, P_WS, UB_IMG, WS_UB)
    srd(a, 52, P_WS, 0x10000, WS_KV)
    srd(a, 56, P_DBG, 256)
    Lz = a.newlabel("Lnz")
    a("s_cmp_lg_u32 s6, 1")
    a(f"s_cbranch_scc1 {Lz}")
    a("s_cmp_lg_u32 s7, 0")
    a(f"s_cbranch_scc1 {Lz}")
    a("s_lshl_b32 s12, s3, 13")
    for i in range(8):
        a(f"buffer_store_dwordx4 v[8:11], v4, s[52:55], s12 offen offset:{(i%4)*1024} sc1")
        if i == 3: a("s_add_u32 s12, s12, 4096")
    a("s_waitcnt vmcnt(0)")
    a("v_mov_b32 v12, 1")
    a("s_lshl_b32 s12, s3, 2")
    a("s_mov_b64 exec, 1")
    a("buffer_store_dword v12, v8, s[56:59], s12 offen sc1")
    a("s_mov_b64 exec, -1")
    a.label(Lz)
    if "noprobe" not in OPT:
        a("s_mov_b64 exec, 1")
        a("buffer_load_dword v13, v4, s[44:47], s10 offen")
        a("s_mov_b64 exec, -1")
        a("s_waitcnt vmcnt(0)")
    stamp(a, 1)
    for i in range(7):
        a(f"s_add_u32 m0, s11, {i*1024}")
        a("s_nop 0")
        a("buffer_load_dwordx4 v4, s[44:47], s10 offen lds")
        a("s_add_u32 s10, s10, 1024")
    a("v_bfe_u32 v5, v2, 2, 2")
    a("v_mul_u32_u24 v5, 896, v5")
    a("v_lshrrev_b32 v6, 4, v2")
    a("v_lshl_add_u32 v5, v6, 5, v5")
    a("v_and_b32 v6, 3, v2")
    a("v_lshl_add_u32 v5, v6, 3, v5")
    a("v_add_u32 v5, s11, v5")
    a("v_lshrrev_b32 v7, 2, v2")
    a("v_lshlrev_b32 v7, 14, v7")
    a("v_lshl_add_u32 v7, v6, 4, v7")
    a("s_lshl_b32 s10, s9, 6")
    a("s_waitcnt vmcnt(0)")
    stamp(a, 3)
    UR = 32
    for cg in range(7):
        for jj in range(2):
            d = UR + 4 * cg + 2 * jj
            a(f"ds_read_b64_tr_b16 v[{d}:{d+1}], v5 offset:{cg*128 + jj*3584}")
    for cg in range(7):
        a(f"s_waitcnt lgkmcnt({12 - 2*cg})")
        a(f"buffer_store_dwordx4 v[{UR+4*cg}:{UR+4*cg+3}], v7, s[48:51], s10 offen{ST}")
        a(f"s_add_u32 s10, s10, {16*16384}")
    stamp(a, 5)
    stamp_flush(a, 0)
    a("s_endpgm")

def build():
    from gen7_k2 import k2_w4, k2_conv
    a = Asm()
    hdr = open("cdna_kernels/" + NAME + ".s.ref").read().split("; Override launch")[0]
    a.raw(hdr.rstrip("\n"))
    a.raw(f"; @launch kernel={K1} grid=(256,1,1) block=(1024,1,1) lds=163840")
    a.raw(f"; @launch kernel={K2} grid=(224,1,1) block=(512,1,1) lds=163840")
    a.raw('.amdgcn_target "amdgcn-amd-amdhsa--gfx950"')
    a.raw(".text")
    a.raw(f".globl {K1}\n.p2align 8\n.type {K1},@function")
    a.label(K1)
    prologue(a, 256, "L_k1_end")
    a("s_cmp_ge_u32 s4, 24")
    a("s_cbranch_scc1 L_k1_a" if "nok1a" not in OPT else "s_cbranch_scc1 L_k1_end")
    if "nogemm" in OPT: a("s_endpgm")
    k1_gemm(a)
    a.label("L_k1_a")
    k1_a(a)
    a.label("L_k1_end")
    a("s_endpgm")
    a.raw(f".globl {K2}\n.p2align 8\n.type {K2},@function")
    a.label(K2)
    prologue(a, 224, "L_k2_end")
    a("s_cmp_lt_u32 s4, 14")
    a("s_cbranch_scc1 L_k2_conv" if "noconv" not in OPT else "s_cbranch_scc1 L_k2_end")
    if "now4" in OPT: a("s_endpgm")
    k2_w4(a)
    a.label("L_k2_conv")
    k2_conv(a)
    a.label("L_k2_end")
    a("s_endpgm")
    a.raw("  .fill 3072, 4, 0xbf800000")
    a.raw('.section .rodata,"a"')
    for k, nv in ((K1, 128), (K2, 256)):
        a.raw(f""".p2align 6
.amdhsa_kernel {k}
  .amdhsa_next_free_vgpr {nv}
  .amdhsa_next_free_sgpr 100
  .amdhsa_accum_offset {nv}
  .amdhsa_group_segment_fixed_size 0
  .amdhsa_kernarg_size 104
  .amdhsa_user_sgpr_count 2
  .amdhsa_user_sgpr_kernarg_segment_ptr 1
  .amdhsa_system_sgpr_workgroup_id_x 1
.end_amdhsa_kernel""")
    return a.text()

if __name__ == "__main__":
    if "stamps" in OPT: asmlib.STAMPS = True
    open(sys.argv[1], "w").write(build())
```

```python
class Asm:
    def __init__(self):
        self.lines = []
        self.lab = 0
    def __call__(self, s):
        for ln in s.strip("\n").split("\n"):
            ln = ln.strip()
            if ln:
                self.lines.append("  " + ln if not ln.endswith(":") else ln)
    def label(self, name):
        self.lines.append(name + ":")
    def newlabel(self, stem="L"):
        self.lab += 1
        return f"{stem}_{self.lab}"
    def comment(self, s):
        self.lines.append("  ; " + s)
    def raw(self, s):
        self.lines.append(s)
    def text(self):
        return "\n".join(self.lines) + "\n"

def vr(b, n=1):
    return f"v{b}" if n == 1 else f"v[{b}:{b+n-1}]"
def sr(b, n=1):
    return f"s{b}" if n == 1 else f"s[{b}:{b+n-1}]"
import struct
def f32bits(x):
    return struct.unpack("<I", struct.pack("<f", x))[0]
def fhex(x):
    return f"0x{f32bits(x):08x}"

STAMPS = False
STAMP_BASE = 0x1000000
def stamp(a, i):
    if STAMPS:
        a(f"s_memtime s[{80+2*i}:{81+2*i}]")
def stamp_init(a):
    if STAMPS:
        a("s_memrealtime s[94:95]")
        a("s_memtime s[78:79]")
        for i in range(7):
            a(f"s_mov_b32 s{80+2*i}, 0")
def stamp_flush(a, kern, wait_vm=True):
    if STAMPS:
        if wait_vm: a("s_waitcnt vmcnt(0)")
        a("s_memtime s[92:93]")
        a("s_waitcnt lgkmcnt(0)")
        a("s_mov_b64 exec, 1")
        a(f"s_add_u32 s96, s40, 0x{STAMP_BASE + kern*256*1024:x}")
        a("s_addc_u32 s97, s41, 0")
        a("s_lshl_b32 s98, s2, 4")
        a("s_add_u32 s98, s98, s5")
        a("s_lshl_b32 s98, s98, 6")
        a("v_mov_b32 v110, s98")
        a("v_mov_b32 v100, s94")
        a("v_mov_b32 v101, s78")
        for i in range(6):
            a(f"v_mov_b32 v{102+i}, s{80+2*i}")
        a("v_mov_b32 v108, s92")
        a("v_mov_b32 v109, s4")
        a("global_store_dwordx4 v110, v[100:103], s[96:97]")
        a("global_store_dwordx4 v110, v[104:107], s[96:97] offset:16")
        a("global_store_dwordx2 v110, v[108:109], s[96:97] offset:32")

def stamp_mid(a):
    if STAMPS:
        stamp_flush(a, 0, wait_vm=False)
        a("s_mov_b64 exec, -1")
        for i in range(7):
            a(f"s_mov_b32 s{80+2*i}, 0")
```

```python
import sys
from asmlib import *
import gen9 as G
from gen9 import srd, P_WS, P_WO, P_OUT, WS_KV, WS_PQ, WS_KT, WS_UB, UB_IMG, KT_ROW, WS_FL, FL_U, FL_KV, FL_Q, FL_K

def poll(a, loads):
    L, Ls = a.newlabel("Lpo"), a.newlabel("Lps")
    n = len(loads)
    a("s_cmp_lg_u32 s5, 0")
    a(f"s_cbranch_scc1 {Ls}")
    a("s_movk_i32 s64, 4000")
    def issue(b):
        for i, (v, so) in enumerate(loads):
            a(f"buffer_load_dword v{b+i}, v{v}, s[68:71], {so} offen sc1")
    def check(b):
        a(f"s_waitcnt vmcnt({n})")
        for i in range(1, n):
            a(f"v_and_b32 v{b}, v{b}, v{b+i}")
        a(f"v_cmp_ne_u32 vcc, 1, v{b}")
        a("s_sub_u32 s64, s64, 1")
        a(f"s_cbranch_scc1 {Ls}")
        a(f"s_cbranch_vccz {Ls}")
    issue(240)
    a("s_sleep 6")
    a.label(L)
    issue(244)
    check(240)
    issue(240)
    check(244)
    a(f"s_branch {L}")
    a.label(Ls)
    a("s_barrier")

def p2_w4(a):
    WO_L, KVF_L, PART_L = 0, 57344, 90112
    PSTR = 272
    PHALF = 128 * PSTR
    stamp_mid(a)
    a("s_mov_b32 s6, s4")
    a("s_cmp_ge_u32 s6, 7")
    a("s_cselect_b32 s7, 1, 0")
    a("s_lshl_b32 s8, s3, 1")
    a("s_add_u32 s8, s8, s7")
    a("s_mul_i32 s7, s7, 7")
    a("s_sub_u32 s9, s6, s7")
    a("s_and_b32 s10, s5, 3")
    a("s_lshr_b32 s11, s5, 2")
    srd(a, 44, P_WS, 0x10000, WS_KV)
    srd(a, 48, P_WS, 0x200000, WS_PQ)
    srd(a, 52, P_WO, 448 * 896)
    srd(a, 56, P_OUT, 2048 * 1792)
    srd(a, 68, P_WS, 4096, WS_FL)
    a("v_lshrrev_b32 v5, 3, v2")
    a("v_bfe_u32 v6, v2, 4, 1")
    a("v_lshlrev_b32 v6, 2, v6")
    a("v_and_b32 v7, 7, v2")
    a("v_xor_b32 v6, v6, v7")
    a("v_lshlrev_b32 v6, 4, v6")
    a("s_mul_i32 s60, s10, 112")
    a("s_mul_i32 s61, s11, 14")
    a("s_add_u32 s60, s60, s61")
    a("s_mul_i32 s60, s60, 896")
    a("s_lshl_b32 s61, s9, 7")
    a("s_add_u32 s60, s60, s61")
    a("s_mul_i32 s61, s5, 7168")
    for i in range(7):
        a(f"v_add_u32 v7, {8*i}, v5")
        a("v_mul_u32_u24 v15, 37, v7")
        a("v_lshrrev_b32 v15, 9, v15")
        a("v_mad_u32_u24 v7, v15, 14, v7")
        a("v_mul_u32_u24 v7, 896, v7")
        a("v_add_u32 v7, v7, v6")
        a(f"s_add_u32 m0, s61, {WO_L + i*1024}")
        a("s_nop 0")
        a("buffer_load_dwordx4 v7, s[52:55], s60 offen lds")
    a("v_and_b32 v4, 3, v2")
    a("v_lshlrev_b32 v8, 2, v4")
    a("v_bfe_u32 v5, v2, 3, 2")
    a("v_lshl_add_u32 v4, v5, 2, v4")
    a("v_bfe_u32 v5, v2, 2, 1")
    a("v_add_u32 v6, 2, v4")
    a("v_lshrrev_b32 v6, 4, v6")
    a("v_or_b32 v5, v5, v6")
    a("v_mad_u32_u24 v4, v5, 14, v4")
    a("v_and_b32 v5, 32, v2")
    a("v_add_lshl_u32 v3, v4, v5, 4")
    a("v_lshlrev_b32 v4, 4, v2")
    a("v_lshlrev_b32 v9, 2, v2")
    a("s_lshl_b32 s12, s5, 13")
    a("s_add_u32 s13, s12, 4096")
    a("s_lshl_b32 s14, s8, 2")
    a("s_add_u32 s14, s14, s10")
    a("s_lshl_b32 s14, s14, 4")
    a("s_lshl_b32 s15, s11, 3")
    a("s_add_u32 s14, s14, s15")
    a("s_lshl_b32 s14, s14, 11")
    a("s_lshl_b32 s15, s8, 4")
    a(f"s_add_u32 s15, s15, {FL_Q}")
    KVR = 64
    PQR = 96
    poll(a, [(8, "s15")])
    stamp(a, 0)
    for i in range(16):
        a(f"buffer_load_dwordx4 v[{PQR+4*i}:{PQR+4*i+3}], v4, s[48:51], s14 offen offset:{(i%4)*1024}")
        if i % 4 == 3 and i != 15:
            a("s_add_u32 s14, s14, 4096")
    a(f"s_movk_i32 s15, {FL_KV}")
    a(f"s_movk_i32 s60, {FL_KV + 256}")
    poll(a, [(9, "s15"), (9, "s60")])
    stamp(a, 1)
    if "notouch2" not in G.OPT:
        a("s_lshl_b32 s60, s6, 3")
        a("s_add_u32 s60, s60, s5")
        a("s_mul_i32 s60, s60, 640")
        a("v_lshlrev_b32 v5, 7, v2")
        a("s_mov_b64 exec, 31")
        a("buffer_load_dword v6, v5, s[44:47], s60 offen")
        a("s_mov_b64 exec, -1")
        a("s_waitcnt vmcnt(0)")
    for hh in range(2):
        for q in range(4):
            d = KVR + 16 * hh + 4 * q
            a(f"buffer_load_dwordx4 v[{d}:{d+3}], v3, s[44:47], s{12+hh} offen offset:{q*1024}")
    a("s_lshl_b32 s12, s5, 12")
    a(f"s_add_u32 s12, s12, {KVF_L}")
    a("v_add_u32 v5, s12, v4")
    a("s_waitcnt vmcnt(0)")
    for i in range(16):
        a(f"v_cvt_pk_bf16_f32 v{32+i}, v{KVR+2*i}, v{KVR+2*i+1}")
    a("s_mov_b32 exec_lo, 0")
    for hh in range(2):
        a(f"v_mov_b32 v{32+8*hh+6}, 0")
        a(f"v_mov_b32 v{32+8*hh+7}, 0")
    a("s_mov_b64 exec, -1")
    for i in range(4):
        a(f"ds_write_b128 v5, v[{32+4*i}:{35+4*i}] offset:{i*1024}")
    a("s_lshl_b32 s12, s11, 14")
    a(f"s_add_u32 s12, s12, {KVF_L}")
    a("v_add_u32 v5, s12, v4")
    a(f"s_mov_b32 s62, {fhex(1e-6)}")
    a("s_waitcnt lgkmcnt(0)")
    a("s_barrier")
    KF = 160
    for i in range(15):
        a(f"ds_read_b128 v[{KF+4*i}:{KF+4*i+3}], v5 offset:{i*1024}")
    D0, D1 = 32, 48
    OFB = PQR - 8
    def num(hI):
        D = D0 if hI % 2 == 0 else D1
        k = KF + 8 * hI; p = PQR + 8 * hI
        a(f"v_mfma_f32_32x32x16_bf16 v[{D}:{D+15}], v[{k}:{k+3}], v[{p}:{p+3}], 0")
        a(f"v_mfma_f32_32x32x16_bf16 v[{D}:{D+15}], v[{k+4}:{k+7}], v[{p+4}:{p+7}], v[{D}:{D+15}]")
    def fin(hI):
        D = D0 if hI % 2 == 0 else D1
        a(f"v_add_f32 v6, s62, v{D+14}")
        a("v_rcp_f32 v6, v6")
        a("s_nop 0")
        for r in range(14):
            a(f"v_mul_f32 v{D+r}, v{D+r}, v6")
        for p in range(7):
            a(f"v_cvt_pk_bf16_f32 v{OFB+7*hI+p}, v{D+2*p}, v{D+2*p+1}")
    a("s_waitcnt lgkmcnt(13)")
    stamp(a, 2)
    num(0)
    a(f"ds_read_b128 v[{KF+60}:{KF+63}], v5 offset:{15*1024}")
    for hI in range(8):
        if hI < 7:
            a(f"s_waitcnt lgkmcnt({max(0, 12 - 2*hI)})")
            num(hI + 1)
        if hI == 0:
            a("s_nop 7")
            a("s_nop 1")
        fin(hI)
    a("v_lshrrev_b32 v6, 5, v2")
    a("v_mul_u32_u24 v6, 224, v6")
    a("v_bfe_u32 v7, v2, 2, 2")
    a("v_add_u32 v6, v6, v7")
    a("s_mul_i32 s12, s11, 112")
    a("v_add_u32 v6, s12, v6")
    a("v_lshlrev_b32 v6, 7, v6")
    a("v_bfe_u32 v7, v2, 4, 1")
    a("v_lshlrev_b32 v7, 5, v7")
    a("v_and_b32 v8, 3, v2")
    a("v_lshl_add_u32 v7, v8, 3, v7")
    a("v_bfe_u32 v8, v2, 3, 1")
    a("v_lshl_add_u32 v7, v8, 6, v7")
    a("v_add_u32 v6, v6, v7")
    a("v_xor_b32 v7, 64, v6")
    stamp(a, 3)
    WF = 160
    def rd(k):
        f = WF + 8 * (k % 4)
        for nt in range(2):
            for jj in range(2):
                d = f + 4 * nt + 2 * jj
                a(f"ds_read_b64_tr_b16 v[{d}:{d+1}], v{6+nt} offset:{WO_L + k*1024 + jj*512}")
    rd(0); rd(1); rd(2)
    for k in range(14):
        left = min(13 - k, 2)
        a(f"s_waitcnt lgkmcnt({4*left})")
        f = WF + 8 * (k % 4)
        o = OFB + 4 * k
        for nt, D in ((0, D0), (1, D1)):
            cin = "0" if k == 0 else f"v[{D}:{D+15}]"
            a(f"v_mfma_f32_32x32x16_bf16 v[{D}:{D+15}], v[{f+4*nt}:{f+4*nt+3}], v[{o}:{o+3}], {cin}")
        if k + 3 < 14:
            rd(k + 3)
    stamp(a, 4)
    a("v_and_b32 v6, 31, v2")
    a("s_lshl_b32 s12, s10, 5")
    a("v_add_u32 v6, s12, v6")
    a(f"v_mul_u32_u24 v6, {PSTR}, v6")
    a("v_lshrrev_b32 v7, 5, v2")
    a("v_lshl_add_u32 v6, v7, 4, v6")
    a(f"s_mul_i32 s12, s11, {PHALF}")
    a(f"s_add_u32 s12, s12, {PART_L}")
    a("v_add_u32 v6, s12, v6")
    a("v_lshrrev_b32 v8, 3, v0")
    a("v_and_b32 v9, 7, v0")
    a(f"v_mul_u32_u24 v10, {PSTR}, v8")
    a("v_lshl_add_u32 v10, v9, 5, v10")
    a(f"v_add_u32 v10, {PART_L}, v10")
    a("v_mul_u32_u24 v11, 1792, v8")
    a("v_lshl_add_u32 v11, v9, 4, v11")
    a(f"s_mul_i32 s12, s8, {128*1792}")
    a("s_lshl_b32 s13, s9, 7")
    a("s_add_u32 s12, s12, s13")
    a("s_add_u32 s12, s12, 896")
    a(f"s_add_u32 s13, s12, {64*1792}")
    for nt, D in ((0, D0), (1, D1)):
        for q in range(4):
            a(f"ds_write_b128 v6, v[{D+4*q}:{D+4*q+3}] offset:{nt*128 + q*32}")
    a("s_waitcnt lgkmcnt(0)")
    a("s_barrier")
    for t in range(2):
        for h in range(2):
            for u in range(2):
                d = 64 + 16 * t + 8 * h + 4 * u
                a(f"ds_read_b128 v[{d}:{d+3}], v10 offset:{t*64*PSTR + h*PHALF + u*16}")
    for t in range(2):
        a(f"s_waitcnt lgkmcnt({4 - 4*t})")
        b = 64 + 16 * t
        for i in range(8):
            a(f"v_add_f32 v{b+i}, v{b+i}, v{b+8+i}")
        for i in range(4):
            a(f"v_cvt_pk_bf16_f32 v{96+4*t+i}, v{b+2*i}, v{b+2*i+1}")
        a(f"buffer_store_dwordx4 v[{96+4*t}:{99+4*t}], v11, s[56:59], s{12+t} offen")
    stamp(a, 5)
    stamp_flush(a, 1)
    a("s_endpgm")

U_L = 0
KS = 4288
KI_L = 288 * 64
EPA_L = KI_L + 16 * KS
EPB_L = EPA_L + 32768

def p2_conv(a):
    a.comment("---- conv role ----")
    stamp_mid(a)
    a("s_mul_i32 s6, s3, 56")
    a("s_lshl_b32 s7, s4, 2")
    a("s_add_u32 s6, s6, s7")
    a("s_and_b32 s7, s5, 3")
    a("s_lshr_b32 s8, s5, 2")
    a("v_lshrrev_b32 v3, 4, v2")
    a("v_sub_u32 v3, v2, v3")
    a("v_and_b32 v3, 3, v3")
    a("v_and_b32 v4, 60, v2")
    a("v_add_lshl_u32 v3, v3, v4, 4")
    a("s_lshl_b32 s9, s5, 10")
    a("s_lshl_b32 s10, s6, 12")
    a("s_add_u32 s9, s9, s10")
    a("s_lshl_b32 s10, s5, 10")
    a(f"s_add_u32 s10, s10, {U_L + 2048}")
    a("v_lshlrev_b32 v4, 4, v2")
    a("s_add_u32 s11, s6, s7")
    a(f"s_mul_i32 s11, s11, {KT_ROW}")
    a("s_lshl_b32 s12, s7, 2")
    a("s_add_u32 s12, s12, s8")
    a(f"s_mul_i32 s12, s12, {KS}")
    a(f"s_add_u32 s12, s12, {KI_L}")
    a("v_mov_b32 v8, 0\nv_mov_b32 v9, 0\nv_mov_b32 v10, 0\nv_mov_b32 v11, 0")
    srd(a, 44, P_WS, UB_IMG, WS_UB)
    srd(a, 48, P_WS, 448 * KT_ROW, WS_KT)
    srd(a, 52, P_OUT, 2048 * 1792)
    srd(a, 68, P_WS, 4096, WS_FL)
    a("v_lshlrev_b32 v5, 2, v2")
    a("v_and_b32 v6, 12, v5")
    a("s_lshl_b32 s13, s6, 2")
    a(f"s_add_u32 s13, s13, {FL_K}")
    a("s_movk_i32 s14, 256")
    a("s_waitcnt vmcnt(0) lgkmcnt(0)")
    poll(a, [(5, "0"), (5, "s14"), (6, "s13")])
    stamp(a, 0)
    def kdma(i, sh):
        a(f"s_add_u32 s13, s11, {i*1024 + 4*sh}")
        a(f"s_add_u32 m0, s12, {2*KS*sh + i*1024}")
        a("s_nop 0")
        a("buffer_load_dwordx4 v4, s[48:51], s13 offen lds")
    def udma(h):
        if h: a("s_add_u32 s9, s9, 8192")
        a(f"s_add_u32 m0, s10, {h*8192}")
        a("s_nop 0")
        a("buffer_load_dwordx4 v3, s[44:47], s9 offen lds")
    KR_ = 64
    def kreg(i):
        r = KR_ + 8 * i
        a(f"buffer_load_dwordx4 v[{r}:{r+3}], v4, s[48:51], s11 offen offset:{i*1024}")
        a(f"buffer_load_dwordx2 v[{r+4}:{r+5}], v4, s[48:51], s11 offen offset:{i*1024+16}")
    Lh, Lj = a.newlabel("Lch"), a.newlabel("Lcj")
    a("s_cmp_lg_u32 s8, 0")
    a(f"s_cbranch_scc1 {Lh}")
    udma(0); kdma(3, 0); kdma(3, 1); kdma(2, 0); kdma(2, 1)
    udma(1); kdma(1, 0); kdma(1, 1); kdma(0, 0); kdma(0, 1)
    a(f"s_branch {Lj}")
    a.label(Lh)
    udma(0); kreg(3); kreg(2)
    udma(1); kreg(1); kreg(0)
    a.label(Lj)
    a("v_add_u32 v20, s12, v4")
    def kbuild(i):
        r = KR_ + 8 * i; o = 96
        for k_ in range(5):
            a(f"v_alignbyte_b32 v{o+k_}, v{r+k_+1}, v{r+k_}, 2")
        for k_ in range(3):
            a(f"v_mov_b32 v{o+8+k_}, v{o+1+k_}")
        a(f"v_mov_b32 v{o+11}, v{o+4}")
        a(f"ds_write_b128 v20, v[{o}:{o+3}] offset:{i*1024}")
        a(f"ds_write_b128 v20, v[{o+8}:{o+11}] offset:{2*KS + i*1024}")
    a("s_lshl_b32 s13, s5, 10")
    a("v_add_u32 v5, s13, v4")
    a("s_cmp_lt_u32 s5, 2")
    a("s_cselect_b32 s14, -1, 0")
    a("s_cselect_b32 s15, -1, 0")
    a("s_mov_b64 exec, s[14:15]")
    a("ds_write_b128 v5, v[8:11]")
    a("s_mov_b64 exec, 15")
    a("v_add_u32 v5, s12, v4")
    a("ds_write_b128 v5, v[8:11] offset:4096")
    a(f"ds_write_b128 v5, v[8:11] offset:{4096 + 2*KS}")
    a("s_mov_b64 exec, -1")
    a("v_and_b32 v5, 15, v2")
    a("v_lshrrev_b32 v7, 4, v2")
    a("v_lshl_add_u32 v6, v5, 1, v7")
    a("s_lshl_b32 s13, s8, 4")
    a("s_sub_u32 s13, 30, s13")
    a("v_add_u32 v6, s13, v6")
    SAD = 12
    for it in range(4):
        a(f"v_subrev_u32 v8, {4*it}, v6")
        a("v_lshrrev_b32 v9, 2, v8")
        a("v_add_u32 v9, s7, v9")
        a("v_and_b32 v9, 3, v9")
        a("v_lshlrev_b32 v9, 4, v9")
        a(f"v_lshl_add_u32 v{SAD+it}, v8, 6, v9")
    a("v_sub_u32 v8, 3, v5")
    a("v_and_b32 v8, 3, v8")
    a(f"v_mul_u32_u24 v16, {KS}, v8")
    a("v_add_u32 v8, v8, v5")
    a("v_lshlrev_b32 v9, 3, v7")
    a("v_sub_u32 v9, v9, v8")
    a("v_lshl_add_u32 v16, v9, 1, v16")
    a(f"s_mul_i32 s13, s7, {4*KS}")
    a("s_lshl_b32 s14, s8, 8")
    a("s_sub_u32 s13, s13, s14")
    a(f"s_add_u32 s13, s13, {KI_L + 2*2031 - 512*7 - 64*3}")
    a("v_add_u32 v16, s13, v16")
    a("s_lshl_b32 s13, s5, 12")
    a(f"s_add_u32 s13, s13, {EPA_L}")
    a("v_add_u32 v17, s13, v4")
    a("v_lshlrev_b32 v18, 3, v0")
    a(f"v_add_u32 v18, {EPA_L}, v18")
    a("v_lshrrev_b32 v8, 5, v0")
    a("v_lshlrev_b32 v8, 6, v8")
    a("v_and_b32 v9, 1, v0")
    a("v_lshl_add_u32 v8, v9, 5, v8")
    a("v_bfe_u32 v9, v0, 1, 4")
    a("v_add_u32 v8, v8, v9")
    a("v_mul_u32_u24 v19, 1792, v8")
    a("s_lshl_b32 s60, s6, 1")
    a(f"s_add_u32 s61, s60, {16*1792}")
    a("s_waitcnt vmcnt(5)")
    Lb = a.newlabel("Lnb1")
    a("s_cmp_eq_u32 s8, 0")
    a(f"s_cbranch_scc1 {Lb}")
    kbuild(3); kbuild(2)
    a("s_waitcnt vmcnt(0)")
    kbuild(1); kbuild(0)
    a.label(Lb)
    a("s_waitcnt lgkmcnt(0)")
    a("s_barrier")
    stamp(a, 1)
    ACC = 32
    SB = [64, 128]
    def rd_list(it, nk):
        s = SB[it % 2]; f = s + 32
        ops = []
        for k in range(nk):
            ops.append(f"ds_read_b128 v[{s+4*k}:{s+4*k+3}], v{SAD+it} offset:{2048*k}")
            for jj in range(2):
                d = f + 4 * k + 2 * jj
                ops.append(f"ds_read_b64 v[{d}:{d+1}], v16 offset:{512*(7-k) + 8*jj + 64*(3-it)}")
        return ops
    first = set()
    def phase(nlo, nhi, nk, extra=None):
        for it in range(4):
            nxt = rd_list(it + 1, nk) if it < 3 else []
            fill = list(nxt)
            pairs = sorted([(v, w) for v in range(nk) for w in range(nk) if nlo <= v + w <= nhi], key=lambda p: (p[1], p[0]))
            ex = list(extra) if (extra and it == 0) else []
            per = -(-len(fill) // len(pairs))
            cnt = 0
            for i, (v, w) in enumerate(pairs):
                s = SB[it % 2]; f = s + 32
                d = ACC + 4 * (v + w)
                cin = f"v[{d}:{d+3}]" if d in first else "0"
                first.add(d)
                a(f"v_mfma_f32_16x16x32_bf16 v[{d}:{d+3}], v[{s+4*v}:{s+4*v+3}], v[{f+4*w}:{f+4*w+3}], {cin}")
                for _ in range(per):
                    if fill:
                        a(fill.pop(0)); cnt += 1
                        if cnt == 12: a("s_waitcnt lgkmcnt(8)")
                if ex:
                    a(ex.pop(0))
            for e_ in ex: a(e_)
            if nxt:
                a("s_waitcnt lgkmcnt(0)")
    def store_ops(R, soff):
        ops = []
        for c in range(4):
            for r in range(2):
                ops.append(f"v_add_f32 v{R+2*c+r}, v{R+2*c+r}, v{R+8+2*c+r}")
        for r in range(2):
            ops.append(f"v_cvt_pk_bf16_f32 v{R+16+2*r}, v{R+r}, v{R+2+r}")
            ops.append(f"v_cvt_pk_bf16_f32 v{R+17+2*r}, v{R+4+r}, v{R+6+r}")
            ops.append(f"buffer_store_dwordx2 v[{R+16+2*r}:{R+17+2*r}], v19, s[52:55], s{60+r} offen")
        return ops
    for o in rd_list(0, 4): a(o)
    a("s_waitcnt lgkmcnt(0)")
    phase(0, 3, 4)
    a("s_nop 7")
    for n in range(4):
        a(f"ds_write_b128 v17, v[{ACC+4*n}:{ACC+4*n+3}] offset:{n*1024}")
    a("s_waitcnt vmcnt(0) lgkmcnt(0)")
    a("s_barrier")
    stamp(a, 2)
    R = 192
    for w in range(8):
        a(f"ds_read_b64 v[{R+2*w}:{R+2*w+1}], v18 offset:{w*4096}")
    for i, o in enumerate(rd_list(0, 8)):
        a(o)
        if i == 6: a("s_waitcnt lgkmcnt(7)")
    a("s_waitcnt lgkmcnt(0)")
    phase(4, 7, 8, store_ops(R, 0))
    stamp(a, 4)
    a(f"s_add_u32 s60, s60, {1024*1792}")
    a(f"s_add_u32 s61, s61, {1024*1792}")
    a("s_nop 5")
    for n in range(4):
        a(f"ds_write_b128 v17, v[{ACC+16+4*n}:{ACC+16+4*n+3}] offset:{32768 + n*1024}")
    a("s_waitcnt lgkmcnt(0)")
    a("s_barrier")
    for w in range(8):
        a(f"ds_read_b64 v[{R+2*w}:{R+2*w+1}], v18 offset:{32768 + w*4096}")
    a("s_waitcnt lgkmcnt(0)")
    for o in store_ops(R, 0): a(o)
    stamp(a, 5)
    stamp_flush(a, 1)
    a("s_endpgm")
```

```python
import sys, math, struct
from asmlib import *
import asmlib

NAME = "concat_heads__ssm_conv_s4d__linear_attn_block__prompt"
KN = NAME + "_kernel"
OPT = set(sys.argv[2:])
def optint(prefix, default):
    v = [o for o in OPT if o.startswith(prefix) and o[len(prefix):].isdigit()]
    return int(v[0][len(prefix):]) if v else default

WS_KV = 0x0
WS_PQ = 0x10000
WS_KT = 0x210000
KT_ROW = 4224
WS_UB = 0x600000
UB_IMG = 256 * 448 * 16
WS_FL = 0x800000
FL_U, FL_KV, FL_Q, FL_K = 0, 512, 1024, 2048
LOG2E = 1.4426950408889634
INV2PI = 0.15915494309189535
C_HI = struct.unpack("<f", struct.pack("<f", INV2PI))[0]
C_LO = INV2PI - C_HI
ST = " sc1"
P_U, P_LA, P_AI, P_CR, P_CI, P_LDT, P_D, P_X, P_W, P_WO, P_OUT, P_DBG, P_WS = 16, 18, 20, 22, 24, 26, 28, 30, 32, 34, 36, 38, 40

def srd(a, d, p, nbytes, off=0):
    if off:
        a(f"s_add_u32 s{d}, s{p}, 0x{off:x}")
        a(f"s_addc_u32 s{d+1}, s{p+1}, 0")
    else:
        a(f"s_mov_b32 s{d}, s{p}")
        a(f"s_mov_b32 s{d+1}, s{p+1}")
    a(f"s_mov_b32 s{d+2}, 0x{nbytes:x}")
    a(f"s_mov_b32 s{d+3}, 0x20000")

def prefetch_code(a, n, vtmp, stmp):
    lab = a.newlabel("Lpc")
    a(f"s_getpc_b64 s[{stmp}:{stmp+1}]")
    a.label(lab)
    a(f"s_sub_u32 s{stmp}, s{stmp}, {lab}-{KN}")
    a(f"s_subb_u32 s{stmp+1}, s{stmp+1}, 0")
    a(f"v_lshlrev_b32 v{vtmp}, 7, v2")
    for i in range(n):
        a(f"global_load_dword v{vtmp+1}, v{vtmp}, s[{stmp}:{stmp+1}]")
        if i < n - 1:
            a(f"v_add_u32 v{vtmp}, 8192, v{vtmp}")

def phi_pack(a, acc, dst, tmp, s_log2e, s_eps):
    for p in range(0, 8, 2):
        t = tmp
        for q in range(2):
            r = 2 * (p + q)
            a(f"v_cvt_pk_bf16_f32 v{t+4*q}, v{acc+r}, v{acc+r+1}")
        for q in range(2):
            a(f"v_and_b32 v{t+4*q+1}, 0xffff0000, v{t+4*q}")
            a(f"v_lshlrev_b32 v{t+4*q}, 16, v{t+4*q}")
        for q in range(2):
            a(f"v_mul_f32 v{t+4*q+2}, s{s_log2e}, v{t+4*q}")
            a(f"v_mul_f32 v{t+4*q+3}, s{s_log2e}, v{t+4*q+1}")
        for q in range(2):
            a(f"v_exp_f32_e64 v{t+4*q+2}, v{t+4*q+2} clamp")
            a(f"v_exp_f32_e64 v{t+4*q+3}, v{t+4*q+3} clamp")
        for q in range(2):
            a(f"v_max_f32 v{t+4*q}, s{s_eps}, v{t+4*q}")
            a(f"v_max_f32 v{t+4*q+1}, s{s_eps}, v{t+4*q+1}")
        for q in range(2):
            a(f"v_add_f32 v{t+4*q}, v{t+4*q}, v{t+4*q+2}")
            a(f"v_add_f32 v{t+4*q+1}, v{t+4*q+1}, v{t+4*q+3}")
        for q in range(2):
            a(f"v_cvt_pk_bf16_f32 v{dst+p+q}, v{t+4*q}, v{t+4*q+1}")

def cmul_ops(d, x, y):
    return [f"v_pk_mul_f32 v[{d}:{d+1}], v[{x}:{x+1}], v[{y}:{y+1}] op_sel:[0,0] op_sel_hi:[1,0]",
            f"v_pk_fma_f32 v[{d}:{d+1}], v[{x}:{x+1}], v[{y}:{y+1}], v[{d}:{d+1}] op_sel:[1,1,0] op_sel_hi:[0,1,1] neg_lo:[1,0,0]"]
def hmul_ops(d, x, y):
    return [f"v_pk_mul_f16 v{d}, v{x}, v{y} op_sel:[0,0] op_sel_hi:[1,0]",
            f"v_pk_fma_f16 v{d}, v{x}, v{y}, v{d} op_sel:[1,1,0] op_sel_hi:[0,1,1] neg_lo:[1,0,0]"]
def interleave(a, streams):
    idx = [0] * len(streams)
    live = True
    while live:
        live = False
        for i, s in enumerate(streams):
            if idx[i] < len(s):
                a(s[idx[i]]); idx[i] += 1; live = True

def wait_init(a, v, sdbg, pre):
    L, Lk = a.newlabel("Lwi"), a.newlabel("Lwik")
    a("s_movk_i32 s64, 3000")
    if not pre:
        a(f"buffer_load_dword v{v}, v{v+1}, s[{sdbg}:{sdbg+3}], 0 offen sc1")
    a.label(L)
    a("s_waitcnt vmcnt(0)")
    a(f"v_cmp_ne_u32 vcc, 1, v{v}")
    a("s_sub_u32 s64, s64, 1")
    a(f"s_cbranch_scc1 {Lk}")
    a(f"s_cbranch_vccz {Lk}")
    a("s_sleep 2")
    a(f"buffer_load_dword v{v}, v{v+1}, s[{sdbg}:{sdbg+3}], 0 offen sc1")
    a(f"s_branch {L}")
    a.label(Lk)

RS = 4 * 256 + 32
SCRG = 16 * RS
TSTR = 4736
SLOT = 32768
SB0 = 21760
SLOT_OFF = [SB0 + i * SLOT for i in range(4)]
TAB_L = SCRG
A_TAB = SCRG
A_UT = 36864

ACC = 112
TA = [3, 4, 5, 6, 7, 14, 15, 18]
def kbase(mt, q, r):
    if mt == 0:
        return [r, 4 + r, 256 + 2 * r, 512 + 4 * (r & 1) + 256 * (r >> 1)][q]
    if q == 0: return 1024 + 256 * r
    if q == 1 and r == 0: return 2048
    return 2049

def kgen_load4(a):
    a(f"global_load_dwordx2 v[148:149], v3, s[{P_CR}:{P_CR+1}]")
    a(f"global_load_dwordx2 v[150:151], v3, s[{P_CI}:{P_CI+1}]")
    a(f"global_load_short_d16_hi v16, v4, s[{P_LDT}:{P_LDT+1}]")
    a(f"global_load_dwordx2 v[152:153], v3, s[{P_LA}:{P_LA+1}]")
    a(f"global_load_dwordx2 v[154:155], v3, s[{P_AI}:{P_AI+1}]")
    a(f"global_load_short_d16_hi v17, v4, s[{P_D}:{P_D+1}]")

def kgen_load(a):
    a(f"global_load_dword v10, v3, s[{P_CR}:{P_CR+1}]")
    a(f"global_load_dword v11, v3, s[{P_CI}:{P_CI+1}]")
    a(f"global_load_short_d16_hi v16, v4, s[{P_LDT}:{P_LDT+1}]")
    a(f"global_load_dword v8, v3, s[{P_LA}:{P_LA+1}]")
    a(f"global_load_dword v9, v3, s[{P_AI}:{P_AI+1}]")
    a(f"global_load_short_d16_hi v17, v4, s[{P_D}:{P_D+1}]")

def kgen_addr(a):
    a("v_lshlrev_b32 v3, 2, v2")
    a("s_lshl_b32 s14, s7, 9")
    a("s_bfe_u32 s15, s5, 0x10001")
    a("s_lshl_b32 s15, s15, 8")
    a("s_add_u32 s14, s14, s15")
    a("v_add_u32 v3, s14, v3")
    a("s_lshl_b32 s14, s7, 1")
    a("v_mov_b32 v4, s14")

def kgen_setup(a, younger, full=False):
    a(f"s_mov_b32 s66, {fhex(LOG2E)}")
    a(f"s_mov_b32 s67, {fhex(-LOG2E)}")
    a(f"s_mov_b32 s68, {fhex(C_HI)}")
    a(f"s_mov_b32 s69, {fhex(C_LO)}")
    a(f"s_mov_b32 s70, {fhex(8.0)}")
    a(f"s_mov_b32 s71, {fhex(256.0)}")
    a("v_and_b32 v24, 15, v2")
    a(f"v_mul_u32_u24 v20, {RS}, v24")
    a("v_lshrrev_b32 v21, 4, v2")
    a("v_lshl_add_u32 v20, v21, 4, v20")
    a("v_add_u32 v20, s72, v20")
    a(f"v_mul_u32_u24 v21, {RS}, v21")
    a("v_lshl_add_u32 v21, v24, 4, v21")
    a("v_mov_b32 v22, 0x00003c00")
    srd(a, 52, P_WS, 448 * KT_ROW, WS_KT)
    a("v_lshl_add_u32 v24, v24, 4, s13")
    for q in range(4):
        lo = (0xffff << (16 * q)) & 0xffffffff if q < 2 else 0
        hi_ = (0xffff << (16 * (q - 2))) & 0xffffffff if q >= 2 else 0
        a(f"s_mov_b32 exec_lo, 0x{lo:x}")
        a(f"s_mov_b32 exec_hi, 0x{hi_:x}")
        for mt in range(2):
            for r in range(4):
                a(f"v_add_u32 v{TA[4*mt+r]}, {2*kbase(mt,q,r)}, v24")
    a("s_mov_b64 exec, -1")
    a("s_mov_b32 m0, s72")
    a(f"s_waitcnt vmcnt({3 + younger})")
    if full:
        a("v_and_b32 v24, 0x7fff7fff, v148")
        a("v_and_b32 v25, 0x7fff7fff, v149")
        a("v_and_b32 v26, 0x7fff7fff, v150")
        a("v_and_b32 v27, 0x7fff7fff, v151")
        a("v_pk_max_u16 v24, v24, v26")
        a("v_pk_max_u16 v25, v25, v27")
    else:
        a("v_and_b32 v24, 0x7fff7fff, v10")
        a("v_and_b32 v25, 0x7fff7fff, v11")
    a("v_and_b32 v16, 0xffff0000, v16")
    a("v_pk_max_u16 v24, v24, v25")
    a("v_mul_f32 v16, s66, v16")
    a("v_exp_f32 v16, v16")
    a("v_lshrrev_b32 v25, 16, v24")
    a("v_and_b32 v24, 0xffff, v24")
    a("v_max_u32 v24, v24, v25")
    a("v_cvt_pk_bf16_f32 v16, v16, v16")
    a("v_and_b32 v16, 0xffff0000, v16")
    for ctl in ("row_shr:1 row_mask:0xf bank_mask:0xf", "row_shr:2 row_mask:0xf bank_mask:0xf",
                "row_shr:4 row_mask:0xf bank_mask:0xf", "row_shr:8 row_mask:0xf bank_mask:0xf",
                "row_bcast:15 row_mask:0xa bank_mask:0xf", "row_bcast:31 row_mask:0xc bank_mask:0xf"):
        a(f"v_max_u32_dpp v24, v24, v24 {ctl}")
        a("s_nop 1")
    a("v_readlane_b32 s74, v24, 63")
    a("v_readfirstlane_b32 s75, v16")
    a("s_nop 3")
    a("s_lshr_b32 s74, s74, 7")
    a("s_max_u32 s74, s74, 14")
    a("s_min_u32 s74, s74, 254")
    a("s_sub_u32 s76, 267, s74")
    a("s_lshl_b32 s76, s76, 23")
    a("s_sub_u32 s77, s74, 13")
    a("s_lshl_b32 s77, s77, 23")
    a(f"s_waitcnt vmcnt({younger})")
    if full: return
    Ls = a.newlabel("Lsh")
    a("s_bitcmp0_b32 s5, 0")
    a(f"s_cbranch_scc1 {Ls}")
    for r in range(8, 12):
        a(f"v_lshrrev_b32 v{r}, 16, v{r}")
    a.label(Ls)

def kgen_pass(a, hook, accum=False):
    FX = 80
    Z1, Z2, Z4, Z256 = 32, 34, 36, 38
    Q1, Q2, Q3, Q4, QT = 40, 42, 44, 46, 48
    P1, P2 = 50, 52
    XA, XB_, RA, RB, SA, SB = 54, 56, 58, 60, 62, 12
    QH = [22, 64, 65, 66, 67, 68, 69, 70]
    PH = [None, 71, 72, 73]
    H1, H2, H3 = [74, 75], [76, 77], [78, 79]
    def wr(row, v):
        return f"ds_write_addtid_b32 v{v} offset:{(row % 16) * RS}"
    a("v_lshlrev_b32 v24, 16, v8")
    a("v_lshlrev_b32 v25, 16, v9")
    a("v_mul_f32 v24, s66, v24")
    a("v_exp_f32 v24, v24")
    a("v_mul_f32 v25, s75, v25")
    a("v_mul_f32 v26, s68, v25")
    a("v_cvt_pk_bf16_f32 v24, v24, v24")
    a("v_fma_f32 v27, v25, s68, -v26")
    a("v_and_b32 v24, 0xffff0000, v24")
    a("v_fmac_f32 v27, s69, v25")
    a("v_mul_f32 v24, s75, v24")
    a("v_mul_f32 v24, s67, v24")
    a(f"v_lshlrev_b32 v{XA}, 16, v10")
    a(f"v_lshlrev_b32 v{XA+1}, 16, v11")
    a(f"v_mul_f32 v{XA}, s76, v{XA}")
    a(f"v_mul_f32 v{XA+1}, s76, v{XA+1}")
    st = []
    for (dst, sm, t, neg) in ((Z1, None, 28, False), (Q1, 70, 74, True), (Z256, 71, 77, False)):
        s_ = []
        if sm is None:
            s_ += [f"v_exp_f32 v{t}, v24", f"v_fract_f32 v{t+1}, v26", f"v_add_f32 v{t+1}, v{t+1}, v27"]
        else:
            s_ += [f"v_mul_f32 v{t}, s{sm}, v24", f"v_exp_f32 v{t}, v{t}", f"v_mul_f32 v{t+1}, s{sm}, v26",
                   f"v_fract_f32 v{t+1}, v{t+1}", f"v_fmac_f32 v{t+1}, s{sm}, v27"]
        s_ += [f"v_cos_f32 v{t+2}, v{t+1}", f"v_sin_f32 v{t+1}, v{t+1}", "s_nop 0", f"v_mul_f32 v{dst}, v{t}, v{t+2}"]
        s_ += [f"v_mul_f32_e64 v{dst+1}, v{t}, {'-' if neg else ''}v{t+1}"]
        st.append(s_)
    interleave(a, st)
    hook(0)
    for s_ in cmul_ops(RA, XA, Z256): a(s_)
    def cvh(stream, hs, k, src, row):
        h = hs[k % 2]
        stream.append(f"v_cvt_pk_f16_f32 v{h}, v{src}, v{src+1}")
        stream.append(wr(row, h))
    s1 = []
    cur, oth = XA, XB_
    cvh(s1, H1, 0, XA, 0)
    for f in range(1, 8):
        s1 += cmul_ops(oth, cur, Z1)
        cvh(s1, H1, f, oth, f)
        cur, oth = oth, cur
    s2 = cmul_ops(Z2, Z1, Z1) + cmul_ops(Z4, Z2, Z2)
    k = 0
    cvh(s2, H2, k, RA, 8); k += 1
    s2 += cmul_ops(RB, RA, Z256)
    s2 += cmul_ops(SA, RA, Z2); cvh(s2, H2, k, SA, 9); k += 1
    s2 += cmul_ops(SB, RA, Z4); cvh(s2, H2, k, SB, 10); k += 1
    s2 += cmul_ops(SA, SB, Z2); cvh(s2, H2, k, SA, 11); k += 1
    cvh(s2, H2, k, RB, 12); k += 1
    s2 += cmul_ops(RA, RB, Z256)
    s2 += cmul_ops(SA, RB, Z4); cvh(s2, H2, k, SA, 13); k += 1
    cvh(s2, H2, k, RA, 14); k += 1
    s2 += cmul_ops(RB, RA, Z256)
    s2 += cmul_ops(SA, RA, Z4); cvh(s2, H2, k, SA, 15); k += 1
    s3 = []
    def qcv(b, src):
        s3.append(f"v_cvt_pk_f16_f32 v{QH[b]}, v{src}, v{src+1}")
    qcv(1, Q1)
    s3 += cmul_ops(Q2, Q1, Q1); qcv(2, Q2)
    s3 += cmul_ops(Q4, Q2, Q2)
    s3 += cmul_ops(Q3, Q2, Q1); qcv(4, Q4); qcv(3, Q3)
    s3 += cmul_ops(P1, Q4, Q4)
    s3 += cmul_ops(QT, Q4, Q1); qcv(5, QT)
    s3 += cmul_ops(P2, P1, P1)
    s3 += cmul_ops(QT, Q4, Q2); qcv(6, QT)
    s3 += cmul_ops(QT, Q4, Q3); qcv(7, QT)
    s3 += cmul_ops(QT, P2, P1)
    s3.append(f"v_cvt_pk_f16_f32 v{PH[1]}, v{P1}, v{P1+1}")
    s3.append(f"v_cvt_pk_f16_f32 v{PH[2]}, v{P2}, v{P2+1}")
    s3.append(f"v_cvt_pk_f16_f32 v{PH[3]}, v{QT}, v{QT+1}")
    interleave(a, [s1[:16], s2[:16], s3[:16]])
    hook(1)
    interleave(a, [s1[16:], s2[16:], s3[16:]])
    def rdf(f0):
        for kk in range(4):
            f = f0 + 4 * kk
            a(f"ds_read_b128 v[{f}:{f+3}], v20 offset:{64*kk}")
    rdf(FX)
    hook(2)
    s4 = []
    c_, o_ = RB, RA
    for row in range(16, 21):
        cvh(s4, H2, row, c_, row)
        if row < 20:
            s4 += cmul_ops(o_, c_, Z256)
            c_, o_ = o_, c_
    s5 = []
    Y1 = [None, 32, 33, 34, 35, 36, 37, 40]
    for b in range(1, 8):
        s5 += hmul_ops(Y1[b], PH[1], QH[b])
    interleave(a, [s4, s5])
    rdf(FX + 16)
    hook(3)
    w0 = [wr(b, QH[b]) for b in range(8)] + [wr(8, PH[1])] + [wr(8 + b, Y1[b]) for b in range(1, 8)]
    Y2 = [None, 41, 42, 43, 44, 45, 46, 47]
    s6 = []
    for b in range(1, 8):
        s6 += hmul_ops(Y2[b], PH[2], QH[b])
    interleave(a, [w0, s6])
    rdf(48)
    w1 = [wr(0, PH[2])] + [wr(b, Y2[b]) for b in range(1, 8)] + [wr(8, PH[3])]
    s7 = []
    for b in range(1, 8):
        h = H1[b % 2]
        s7 += hmul_ops(h, PH[3], QH[b])
        s7.append(wr(8 + b, h))
    interleave(a, [w1, s7])
    rdf(32)
    def mm(nt, kk):
        for mt in range(2):
            fa = FX + 16 * mt + 4 * kk
            fb = (48 if nt == 0 else 32) + 4 * kk
            d = ACC + 8 * mt + 4 * nt
            cin = "0" if (kk == 0 and not accum) else f"v[{d}:{d+3}]"
            a(f"v_mfma_f32_16x16x32_f16 v[{d}:{d+3}], v[{fa}:{fa+3}], v[{fb}:{fb+3}], {cin}")
    a("s_waitcnt lgkmcnt(15)")
    for kk in range(4): mm(0, kk)
    for kk in range(4):
        a(f"s_waitcnt lgkmcnt({3-kk})")
        mm(1, kk)
    if accum: return
    kgen_scale(a, True)

def kgen_scale(a, publish):
    a("v_mov_b32 v25, s75")
    a("v_mul_f32 v25, s77, v25")
    a("v_add_f32 v25, v25, v25")
    a("v_add_u32 v30, s72, v21")
    a("v_lshlrev_b32 v26, 4, v2")
    a("v_and_b32 v17, 0xffff0000, v17")
    a(f"s_add_u32 s14, s13, {16*63}")
    a("v_sub_u32 v27, s14, v26")
    a("s_nop 1")
    for q in range(4):
        for r in range(4):
            a(f"v_mul_f32 v{ACC+4*q+r}, v25, v{ACC+4*q+r}")
        if publish:
            a(f"ds_write_b128 v30, v[{ACC+4*q}:{ACC+4*q+3}] offset:{4*q*RS}")

def kgen_solo(a):
    a("s_mov_b64 exec, 1")
    a(f"v_add_f32 v{ACC}, v{ACC}, v17")
    a("s_mov_b64 exec, -1")
    for mt in range(2):
        for r in range(4):
            a(f"v_cvt_pk_bf16_f32 v{40+4*mt+r}, v{ACC+8*mt+r}, v{ACC+8*mt+4+r}")
            a(f"ds_write_b16 v{TA[4*mt+r]}, v{40+4*mt+r}")
            a(f"ds_write_b16_d16_hi v{TA[4*mt+r]}, v{40+4*mt+r} offset:256")
    a("v_cmp_gt_u32 vcc, 32, v2")
    a("v_and_b32 v31, 1, v2")
    a("v_mul_u32_u24 v31, 0x0404, v31")
    a("v_cndmask_b32_e64 v28, 0, 2, vcc")
    a("v_add_u32 v29, v27, v28")
    a("v_sub_u32 v30, v27, v28")
    for m in range(2):
        o = (3 - m) * 1024
        a(f"ds_read_u16 v{80+2*m}, v27 offset:{o}")
        a(f"ds_read_u16 v{81+2*m}, v27 offset:{o+16}")
    a("ds_read_u16 v88, v27 offset:1024")
    a("ds_read_u16 v89, v27 offset:1032")
    a("ds_read_u16 v90, v27 offset:1040")
    for k_, (reg, idx) in enumerate(((29, 7), (27, 6), (30, 5), (27, 4), (29, 3), (27, 2), (30, 1), (27, 0))):
        a(f"ds_read_u16 v{92+k_}, v{reg} offset:{2*idx}")
    a("s_mov_b32 s60, 0x05040504")
    a("s_mov_b32 s61, 0x01000100")
    a("s_mov_b32 s62, 0x01000504")
    a(f"s_mul_i32 s15, s7, {KT_ROW}")
    a("v_mov_b32 v84, 0\nv_mov_b32 v85, 0\nv_mov_b32 v86, 0\nv_mov_b32 v87, 0")
    a("v_lshlrev_b32 v31, 16, v31")
    a("v_sub_u32 v31, 0x05040504, v31")
    E = 48
    a("s_waitcnt lgkmcnt(8)")
    for m in range(2):
        ra, rb = 80 + 2 * m, 81 + 2 * m
        e = E + 4 * m
        a(f"v_perm_b32 v{e}, v{rb}, v{ra}, s60")
        a(f"v_perm_b32 v{e+1}, v{rb}, v{ra}, v31")
        a(f"v_perm_b32 v{e+2}, v{rb}, v{ra}, s61")
        a(f"v_perm_b32 v{e+3}, v{rb}, v{ra}, s61")
        a(f"buffer_store_dwordx4 v[{e}:{e+3}], v26, s[52:55], s15 offen offset:{m*1024}{ST}")
    e = E + 8
    a(f"v_perm_b32 v{e}, v90, v90, s61")
    a(f"v_perm_b32 v{e+1}, v89, v88, s60")
    a(f"v_perm_b32 v{e+2}, v89, v88, s62")
    a(f"v_perm_b32 v{e+3}, v89, v88, s61")
    a(f"buffer_store_dwordx4 v[{e}:{e+3}], v26, s[52:55], s15 offen offset:2048{ST}")
    a("s_waitcnt lgkmcnt(0)")
    e = E + 12
    for k_ in range(4):
        a(f"v_lshl_or_b32 v{e+k_}, v{93+2*k_}, 16, v{92+2*k_}")
    a(f"buffer_store_dwordx4 v[{e}:{e+3}], v26, s[52:55], s15 offen offset:3072{ST}")
    a("s_add_u32 s15, s15, 4096")
    a("s_mov_b64 exec, 1")
    a(f"buffer_store_dwordx4 v[84:87], v26, s[52:55], s15 offen{ST}")
    a("s_mov_b64 exec, -1")

def kgen_table(a):
    a("s_and_b32 s14, s5, 3")
    a(f"s_mul_i32 s15, s14, {4*RS}")
    a("s_andn2_b32 s74, s72, 0x300")
    a("s_add_u32 s15, s15, s74")
    a("v_add_u32 v30, s15, v21")
    for i in range(4):
        a(f"ds_read_b128 v[{32+4*i}:{35+4*i}], v30 offset:{i*256}")
    L = a.newlabel("Lmt")
    a("s_bitcmp0_b32 s5, 1")
    a(f"s_cbranch_scc1 {L}")
    for r in range(4):
        a(f"v_mov_b32 v{TA[r]}, v{TA[4+r]}")
    a.label(L)
    a("s_and_b32 s15, s5, 1")
    a("s_lshl_b32 s15, s15, 8")
    for r in range(4):
        a(f"v_add_u32 v{TA[r]}, s15, v{TA[r]}")
    a("s_cmp_eq_u32 s14, 0")
    a("s_cselect_b32 s74, 1, 0")
    a("s_mov_b32 s75, 0")
    a("s_waitcnt lgkmcnt(0)")
    for r in range(4):
        a(f"v_add_f32 v{32+r}, v{32+r}, v{36+r}")
        a(f"v_add_f32 v{40+r}, v{40+r}, v{44+r}")
    for r in range(4):
        a(f"v_add_f32 v{32+r}, v{32+r}, v{40+r}")
    a("s_mov_b64 exec, s[74:75]")
    a("v_add_f32 v32, v32, v17")
    a("s_mov_b64 exec, -1")
    a("v_cvt_pk_bf16_f32 v36, v32, v33")
    a("v_cvt_pk_bf16_f32 v37, v34, v35")
    a(f"ds_write_b16 v{TA[0]}, v36")
    a(f"ds_write_b16_d16_hi v{TA[1]}, v36")
    a(f"ds_write_b16 v{TA[2]}, v37")
    a(f"ds_write_b16_d16_hi v{TA[3]}, v37")

def kgen_expand(a):
    L2, L3, Le = a.newlabel("Lm2"), a.newlabel("Lm3"), a.newlabel("Lme")
    a("s_and_b32 s14, s5, 3")
    a(f"s_mul_i32 s15, s7, {KT_ROW}")
    a("s_lshl_b32 s74, s14, 10")
    a("s_add_u32 s77, s15, 4096")
    a("s_add_u32 s15, s15, s74")
    a("s_mov_b32 s74, 0x05040504")
    a("s_mov_b32 s75, 0x01000100")
    a("s_mov_b32 s76, 0x01000504")
    a("v_mov_b32 v84, 0\nv_mov_b32 v85, 0\nv_mov_b32 v86, 0\nv_mov_b32 v87, 0")
    a("s_cmp_eq_u32 s14, 3")
    a(f"s_cbranch_scc1 {L3}")
    a("s_cmp_eq_u32 s14, 2")
    a(f"s_cbranch_scc1 {L2}")
    a("s_lshl_b32 s14, s14, 10")
    a("v_subrev_u32 v28, s14, v27")
    a("ds_read_u16 v80, v28 offset:3072")
    a("ds_read_u16 v81, v28 offset:3088")
    a("v_and_b32 v31, 1, v2")
    a("v_mul_u32_u24 v31, 0x0404, v31")
    a("v_lshlrev_b32 v31, 16, v31")
    a("v_sub_u32 v31, 0x05040504, v31")
    a("s_waitcnt lgkmcnt(0)")
    a("v_perm_b32 v48, v81, v80, s74")
    a("v_perm_b32 v49, v81, v80, v31")
    a("v_perm_b32 v50, v81, v80, s75")
    a("v_perm_b32 v51, v81, v80, s75")
    a(f"s_branch {Le}")
    a.label(L2)
    a("ds_read_u16 v88, v27 offset:1024")
    a("ds_read_u16 v89, v27 offset:1032")
    a("ds_read_u16 v90, v27 offset:1040")
    a("s_waitcnt lgkmcnt(0)")
    a("v_perm_b32 v48, v90, v90, s75")
    a("v_perm_b32 v49, v89, v88, s74")
    a("v_perm_b32 v50, v89, v88, s76")
    a("v_perm_b32 v51, v89, v88, s75")
    a(f"s_branch {Le}")
    a.label(L3)
    a("v_cmp_gt_u32 vcc, 32, v2")
    a("s_nop 1")
    a("v_cndmask_b32_e64 v28, 0, 2, vcc")
    a("v_add_u32 v29, v27, v28")
    a("v_sub_u32 v30, v27, v28")
    for k_, (reg, idx) in enumerate(((29, 7), (27, 6), (30, 5), (27, 4), (29, 3), (27, 2), (30, 1), (27, 0))):
        a(f"ds_read_u16 v{92+k_}, v{reg} offset:{2*idx}")
    a("s_waitcnt lgkmcnt(0)")
    for k_ in range(4):
        a(f"v_lshl_or_b32 v{48+k_}, v{93+2*k_}, 16, v{92+2*k_}")
    a.label(Le)
    a(f"buffer_store_dwordx4 v[48:51], v26, s[52:55], s15 offen{ST}")
    a("s_mov_b64 exec, 1")
    a(f"buffer_store_dwordx4 v[84:87], v26, s[52:55], s77 offen{ST}")
    a("s_mov_b64 exec, -1")

def set_flag(a, soff, nl=1):
    a("v_mov_b32 v139, 1")
    a(f"s_mov_b64 exec, {(1 << nl) - 1}")
    a(f"buffer_store_dword v139, v138, s[56:59], s{soff} offen sc1")
    a("s_mov_b64 exec, -1")

def phase1_gemm(a):
    a.comment("---- GEMM WGs: waves 0..3 run one K-gen pass first, waves 4..7 start the loads ----")
    a("s_mul_i32 s7, s3, 56")
    a("s_add_u32 s7, s7, s4")
    a("s_lshr_b32 s65, s5, 2")
    a("s_cmp_ge_u32 s5, 4")
    a("s_cbranch_scc1 L_g_dec")
    kgen_addr(a)
    a("s_lshl_b32 s72, s5, 8")
    a(f"s_movk_i32 s13, {TAB_L + 16}")
    a("s_waitcnt lgkmcnt(0)")
    stamp(a, 0)
    kgen_load(a)
    kgen_setup(a, 0)
    stamp(a, 1)
    kgen_pass(a, lambda k: None)
    stamp(a, 2)
    a.label("L_g_dec")
    a("s_lshr_b32 s6, s3, 1")
    a("s_lshl_b32 s6, s6, 2")
    a("s_and_b32 s60, s3, 1")
    a("s_lshr_b32 s8, s4, 2")
    a("s_add_u32 s8, s8, s6")
    a("s_and_b32 s9, s4, 3")
    a("s_lshl_b32 s10, s60, 2")
    a("s_add_u32 s9, s9, s10")
    a("s_mul_i32 s10, s9, 112")
    a("s_add_u32 s11, s10, 1792")
    a("s_add_u32 s10, s10, 896")
    a("s_sub_u32 s12, s4, 16")
    a("s_lshr_b32 s61, s12, 1")
    a("s_add_u32 s61, s61, s6")
    a("s_and_b32 s12, s12, 1")
    a("s_lshl_b32 s14, s60, 1")
    a("s_add_u32 s12, s12, s14")
    a("s_mul_i32 s14, s12, 224")
    a("s_add_u32 s15, s14, 112")
    a("s_cmp_lt_u32 s4, 16")
    a("s_cselect_b32 s8, s8, s61")
    a("s_cselect_b32 s9, s9, s12")
    a("s_cselect_b32 s10, s10, s14")
    a("s_cselect_b32 s11, s11, s15")
    a("s_and_b32 s60, s5, 3")
    a("v_lshrrev_b32 v8, 3, v2")
    a("v_lshrrev_b32 v9, 4, v2")
    a("v_and_b32 v10, 7, v2")
    a("s_lshl_b32 s12, s8, 7")
    a("s_lshl_b32 s61, s60, 5")
    a("s_add_u32 s12, s12, s61")
    a("v_add_u32 v11, s12, v8")
    a("v_mul_u32_u24 v11, 896, v11")
    a("v_xor_b32 v12, v10, v9")
    a("v_lshl_add_u32 v128, v12, 4, v11")
    a("v_xor_b32 v12, 4, v12")
    a("v_lshl_add_u32 v129, v12, 4, v11")
    a("v_add_u32 v129, 7168, v129")
    a("s_lshl_b32 s61, s60, 4")
    a("v_add_u32 v11, s61, v8")
    a("v_mul_u32_u24 v11, 2688, v11")
    a("v_and_b32 v12, 1, v9")
    a("v_lshlrev_b32 v12, 2, v12")
    a("v_xor_b32 v12, v12, v10")
    a("v_lshl_add_u32 v11, v12, 4, v11")
    a("v_add_u32 v130, s10, v11")
    a("v_add_u32 v131, s11, v11")
    a("s_lshl_b32 s10, s60, 12")
    a("s_lshl_b32 s11, s60, 11")
    a("s_add_u32 s11, s11, 16384")
    a("s_waitcnt lgkmcnt(0)")
    srd(a, 44, P_X, 2048 * 896)
    srd(a, 48, P_W, 448 * 2688)
    def dma(c, i):
        so = SLOT_OFF[c % 4]; h = i // 4; i = i % 4
        if i == 0:
            a(f"s_movk_i32 s6, {128*c + h*14336}")
            a(f"s_add_u32 m0, s10, {so + h*2048}")
            a(f"s_mov_b32 s12, {172032*c + h*21504}")
            a("buffer_load_dwordx4 v128, s[44:47], s6 offen lds")
        elif i == 1:
            a(f"s_add_u32 m0, s11, {so + h*1024}")
            a("s_nop 0")
            a("buffer_load_dwordx4 v130, s[48:51], s12 offen lds")
        elif i == 2:
            a(f"s_add_u32 m0, s10, {so + h*2048 + 1024}")
            a("s_nop 0")
            a("buffer_load_dwordx4 v129, s[44:47], s6 offen lds")
        else:
            a(f"s_add_u32 m0, s11, {so + h*1024 + 8192}")
            a("s_nop 0")
            a("buffer_load_dwordx4 v131, s[48:51], s12 offen lds")
    def only(lo, body):
        L = a.newlabel("Lo")
        a(f"s_cmp_{'ge' if lo else 'lt'}_u32 s5, 4")
        a(f"s_cbranch_scc1 {L}")
        body()
        a.label(L)
    UP = optint("up", 3)
    only(False, lambda: [stamp(a, 0)] + [dma(c, i) for c in range(UP) for i in range(8)] + [stamp(a, 1)])
    a("v_and_b32 v8, 31, v2")
    a("v_lshrrev_b32 v9, 5, v2")
    a("v_bfe_u32 v10, v2, 1, 3")
    a("v_xor_b32 v10, v10, v9")
    a("s_lshl_b32 s15, s60, 12")
    a("v_lshlrev_b32 v8, 7, v8")
    a("v_lshl_add_u32 v8, v10, 4, v8")
    a("v_add_u32 v132, s15, v8")
    a("v_xor_b32 v133, 32, v132")
    a("v_xor_b32 v134, 64, v132")
    a("v_xor_b32 v135, 0x60, v132")
    a("s_mul_i32 s15, s65, 56")
    a("v_bfe_u32 v8, v2, 4, 1")
    a("v_lshlrev_b32 v8, 5, v8")
    a("v_and_b32 v10, 3, v2")
    a("v_lshl_add_u32 v8, v10, 3, v8")
    a("v_add_u32 v8, s15, v8")
    a("v_bfe_u32 v10, v2, 3, 1")
    a("v_lshlrev_b32 v10, 6, v10")
    a("v_xor_b32 v8, v8, v10")
    a("v_bfe_u32 v10, v2, 2, 2")
    a("v_lshl_add_u32 v10, v9, 3, v10")
    a("v_lshl_add_u32 v8, v10, 7, v8")
    a("v_add_u32 v136, 16384, v8")
    for r in range(5):
        a(f"v_add_u32 v{140+r}, 0x10000, v{132+r}")
        a(f"v_add_u32 v{148+r}, 0x20000, v{132+r}")
    a("v_lshlrev_b32 v138, 2, v2")
    a("v_and_b32 v146, 28, v138")
    a(f"s_mov_b32 s66, {fhex(LOG2E)}")
    a(f"s_mov_b32 s67, {fhex(1e-6)}")
    srd(a, 52, P_WS, 448 * KT_ROW, WS_KT)
    a("v_lshlrev_b32 v26, 4, v2")
    srd(a, 56, P_WS, 4096, WS_FL)
    srd(a, 60, P_DBG, 256)
    a(f"s_waitcnt vmcnt({8*(UP-1)}) lgkmcnt(0)")
    a("s_barrier")
    stamp(a, 3)
    a("s_cmp_ge_u32 s4, 16")
    a("s_cbranch_scc1 L_q")

    FR = 160
    ACC0, ACC1 = 208, 224
    def main_loop(is_q):
        def adr(c, k):
            so = SLOT_OFF[c % 4]
            if so + SLOT > 65536:
                if so >= 65536: return 140 + k, so - 65536
            return 132 + k, so
        def reads(c, k):
            f = FR + 12 * k
            so = SLOT_OFF[c % 4]
            def pick(reg, off):
                return (reg + 8 * (off >> 16), off & 65535)
            r, o = pick(132 + k, so)
            a(f"ds_read_b128 v[{f}:{f+3}], v{r} offset:{o}")
            for seg in range(2):
                for jj in range(2):
                    d = f + 4 + 4 * seg + 2 * jj
                    r, o = pick(136, so + seg * 8192 + (16 * k + 4 * jj) * 128)
                    a(f"ds_read_b64_tr_b16 v[{d}:{d+1}], v{r} offset:{o}")
        def mfma(c, k):
            f = FR + 12 * k
            for seg, acc in ((0, ACC0), (1, ACC1)):
                wf = f + 4 + 4 * seg
                cin = "0" if (c == 0 and k == 0) else f"v[{acc}:{acc+15}]"
                if is_q:
                    a(f"v_mfma_f32_32x32x16_bf16 v[{acc}:{acc+15}], v[{wf}:{wf+3}], v[{f}:{f+3}], {cin}")
                else:
                    a(f"v_mfma_f32_32x32x16_bf16 v[{acc}:{acc+15}], v[{f}:{f+3}], v[{wf}:{wf+3}], {cin}")
        issued = [UP]
        pend = []
        def plan(b):
            n = issued[0]
            if n <= 6 and (n < 4 or b >= n - 2):
                pend.extend((n, i) for i in range(8))
                issued[0] += 1
        def drip(k):
            if pend:
                items = [pend.pop(0) for _ in range(min(k, len(pend)))]
                only(False, lambda: [dma(*it) for it in items])
        reads(0, 0); reads(0, 1)
        plan(0)
        for c in range(7):
            reads(c, 2)
            a("s_waitcnt lgkmcnt(10)")
            mfma(c, 0)
            drip(4 if c == 0 else 2)
            reads(c, 3)
            a("s_waitcnt lgkmcnt(10)")
            mfma(c, 1)
            drip(8)
            if c == 0:
                only(True, lambda: (kgen_table(a), a("s_waitcnt lgkmcnt(0)")))
            if c == 1:
                only(True, lambda: kgen_expand(a))
            if c < 6:
                a(f"s_waitcnt vmcnt({8*(issued[0]-2-c) if c < 5 else 0})")
                a("s_barrier")
                plan(c + 1)
                if c == 3:
                    only(True, lambda: a("buffer_load_dword v145, v146, s[60:63], 0 offen sc1"))
            a("s_waitcnt lgkmcnt(5)")
            mfma(c, 2)
            drip(2)
            if c < 6:
                reads(c + 1, 0)
                a("s_waitcnt lgkmcnt(5)")
            else:
                a("s_waitcnt lgkmcnt(0)")
            mfma(c, 3)
            drip(2)
            if c < 6:
                reads(c + 1, 1)
            if c == 5:
                L = a.newlabel("Lkf")
                a("s_cmp_lg_u32 s5, 0")
                a(f"s_cbranch_scc1 {L}")
                wait_init(a, 145, 60, True)
                a("s_lshl_b32 s14, s7, 2")
                a(f"s_add_u32 s14, s14, {FL_K}")
                set_flag(a, 14, 1)
                a.label(L)
        stamp(a, 4)

    main_loop(False)
    srd(a, 52, P_WS, 0x10000, WS_KV)
    PK, VV, TMP = 32, 40, 48
    XB = SLOT_OFF[0]
    a("v_lshlrev_b32 v10, 4, v2")
    a("s_lshl_b32 s14, s5, 12")
    a(f"s_add_u32 s14, s14, {XB}")
    a("v_add_u32 v11, s14, v10")
    a("s_and_b32 s14, s5, 3")
    a("s_lshl_b32 s14, s14, 10")
    a("s_lshl_b32 s15, s65, 14")
    a("s_add_u32 s14, s14, s15")
    a(f"s_add_u32 s14, s14, {XB}")
    a("v_add_u32 v12, s14, v138")
    a("s_nop 1")
    phi_pack(a, ACC0, PK, TMP, 66, 67)
    for p in range(8):
        a(f"v_cvt_pk_bf16_f32 v{VV+p}, v{ACC1+2*p}, v{ACC1+2*p+1}")
    a("s_mov_b32 exec_lo, 0x10000000")
    a("s_mov_b32 exec_hi, 0x10000000")
    for p in range(8):
        a(f"v_mov_b32 v{VV+p}, 0x3f803f80")
    a("s_mov_b64 exec, -1")
    a("s_nop 1")
    KV = 56
    a(f"v_mfma_f32_32x32x16_bf16 v[{KV}:{KV+15}], v[{PK}:{PK+3}], v[{VV}:{VV+3}], 0")
    a(f"v_mfma_f32_32x32x16_bf16 v[{KV}:{KV+15}], v[{PK+4}:{PK+7}], v[{VV+4}:{VV+7}], v[{KV}:{KV+15}]")
    a("s_lshl_b32 s14, s9, 1")
    a("s_add_u32 s14, s14, s65")
    a("s_lshl_b32 s14, s14, 12")
    a("s_and_b32 s15, s5, 3")
    a("s_lshl_b32 s15, s15, 10")
    a("s_add_u32 s14, s14, s15")
    a("s_nop 6")
    for q in range(4):
        a(f"ds_write_b128 v11, v[{KV+4*q}:{KV+4*q+3}] offset:{q*1024}")
    a("s_waitcnt lgkmcnt(0)")
    a("s_barrier")
    for i in range(4):
        a(f"ds_read2st64_b32 v[{32+4*i}:{33+4*i}], v12 offset0:{i} offset1:{16+i}")
        a(f"ds_read2st64_b32 v[{34+4*i}:{35+4*i}], v12 offset0:{32+i} offset1:{48+i}")
    for i in range(4):
        a(f"s_waitcnt lgkmcnt({6-2*i})")
        b = 32 + 4 * i
        a(f"v_add_f32 v{b}, v{b}, v{b+1}")
        a(f"v_add_f32 v{b+2}, v{b+2}, v{b+3}")
        a(f"v_add_f32 v{b}, v{b}, v{b+2}")
        a(f"buffer_atomic_add_f32 v{b}, v138, s[52:55], s14 offen offset:{i*256}")
    a("s_waitcnt vmcnt(0)")
    a("s_barrier")
    L = a.newlabel("Lvf")
    a("s_cmp_lg_u32 s5, 0")
    a(f"s_cbranch_scc1 {L}")
    a("s_lshl_b32 s14, s3, 4")
    a("s_add_u32 s14, s14, s4")
    a("s_lshl_b32 s14, s14, 2")
    a(f"s_add_u32 s14, s14, {FL_KV}")
    set_flag(a, 14)
    a.label(L)
    stamp(a, 5)
    a("s_cmp_lt_u32 s4, 14")
    a("s_cbranch_scc1 L_w4")
    stamp_flush(a, 0)
    a("s_endpgm")

    a.label("L_q")
    main_loop(True)
    srd(a, 52, P_WS, 0x200000, WS_PQ)
    a("s_lshl_b32 s14, s8, 2")
    a("s_and_b32 s15, s5, 3")
    a("s_add_u32 s14, s14, s15")
    a("s_lshl_b32 s14, s14, 4")
    a("s_lshl_b32 s15, s9, 2")
    a("s_add_u32 s14, s14, s15")
    a("s_add_u32 s14, s14, s65")
    a("s_lshl_b32 s14, s14, 11")
    a("s_add_u32 s15, s14, 4096")
    a("v_lshlrev_b32 v10, 4, v2")
    phi_pack(a, ACC0, 32, 48, 66, 67)
    a(f"buffer_store_dwordx4 v[32:35], v10, s[52:55], s14 offen{ST}")
    a(f"buffer_store_dwordx4 v[36:39], v10, s[52:55], s14 offen offset:1024{ST}")
    phi_pack(a, ACC1, 40, 48, 66, 67)
    a(f"buffer_store_dwordx4 v[40:43], v10, s[52:55], s15 offen{ST}")
    a(f"buffer_store_dwordx4 v[44:47], v10, s[52:55], s15 offen offset:1024{ST}")
    a("s_waitcnt vmcnt(0)")
    a("s_barrier")
    L = a.newlabel("Lqf")
    a("s_cmp_lg_u32 s5, 0")
    a(f"s_cbranch_scc1 {L}")
    a("s_lshl_b32 s14, s8, 2")
    a("s_add_u32 s14, s14, s9")
    a("s_lshl_b32 s14, s14, 2")
    a(f"s_add_u32 s14, s14, {FL_Q}")
    set_flag(a, 14)
    a.label(L)
    stamp(a, 5)
    a("s_sub_u32 s4, s4, 16")
    a("s_cmp_lt_u32 s4, 6")
    a("s_cbranch_scc1 L_conv")
    stamp_flush(a, 0)
    a("s_endpgm")

def phase1_a(a):
    a.comment("---- A WGs ----")
    a("s_sub_u32 s6, s4, 24")
    a("v_lshlrev_b32 v138, 2, v2")
    a("v_and_b32 v146, 28, v138")
    a("s_cmp_ge_u32 s5, 6")
    a("s_cbranch_scc1 L_ut")
    a("s_cmp_ge_u32 s5, 4")
    a("s_cbranch_scc1 L_touch")
    a("s_mul_i32 s7, s3, 56")
    a("s_lshl_b32 s14, s6, 2")
    a("s_add_u32 s7, s7, s14")
    a("s_add_u32 s7, s7, s5")
    a("s_add_u32 s7, s7, 24")
    a("v_lshlrev_b32 v3, 3, v2")
    a("s_lshl_b32 s14, s7, 9")
    a("v_add_u32 v3, s14, v3")
    a("s_lshl_b32 s14, s7, 1")
    a("v_mov_b32 v4, s14")
    a("s_lshl_b32 s72, s5, 8")
    a(f"s_mul_i32 s13, s5, {TSTR}")
    a(f"s_add_u32 s13, s13, {A_TAB + 16}")
    a("s_waitcnt lgkmcnt(0)")
    stamp(a, 0)
    kgen_load4(a)
    for i in range(16):
        a(f"v_mov_b32 v{ACC+i}, 0")
    kgen_setup(a, 0, True)
    stamp(a, 1)
    a("s_mov_b32 s73, 4")
    a.label("L_apass")
    a("v_mov_b32 v10, v148")
    a("v_mov_b32 v11, v150")
    a("v_mov_b32 v8, v152")
    a("v_mov_b32 v9, v154")
    for r in (148, 150, 152, 154):
        a(f"v_lshrrev_b64 v[{r}:{r+1}], 16, v[{r}:{r+1}]")
    kgen_pass(a, lambda k: None, True)
    a("s_sub_u32 s73, s73, 1")
    a("s_cmp_lg_u32 s73, 0")
    a("s_cbranch_scc1 L_apass")
    stamp(a, 2)
    kgen_scale(a, False)
    kgen_solo(a)
    stamp(a, 3)
    srd(a, 56, P_WS, 4096, WS_FL)
    srd(a, 60, P_DBG, 256)
    wait_init(a, 145, 60, False)
    a("s_lshl_b32 s14, s7, 2")
    a(f"s_add_u32 s14, s14, {FL_K}")
    set_flag(a, 14, 1)
    a("s_branch L_a_done")

    a.label("L_touch")
    a("s_setprio 3")
    a("s_lshl_b32 s8, s6, 1")
    a("s_add_u32 s8, s8, s5")
    a("s_sub_u32 s8, s8, 4")
    a("v_mul_u32_u24 v5, 43, v2")
    a("v_lshrrev_b32 v5, 9, v5")
    a("v_mul_u32_u24 v6, 12, v5")
    a("v_sub_u32 v6, v2, v6")
    a("s_lshl_b32 s9, s8, 2")
    a("v_add_u32 v5, s9, v5")
    a("v_mul_u32_u24 v5, 2688, v5")
    a("v_lshl_add_u32 v5, v6, 7, v5")
    a("v_lshrrev_b32 v6, 2, v6")
    a("v_mul_u32_u24 v6, 384, v6")
    a("v_add_u32 v5, v5, v6")
    T0 = optint("tfrom", 0); WIN = optint("win", 3)
    a("s_and_b32 s9, s3, 1")
    a("s_mul_i32 s9, s9, 384")
    a(f"s_add_u32 s9, s9, {T0*172032}")
    a("s_lshl_b32 s10, s8, 5")
    a("s_lshr_b32 s11, s3, 1")
    a("s_lshl_b32 s11, s11, 9")
    a("s_add_u32 s10, s10, s11")
    a("v_add_u32 v6, s10, v2")
    a("v_mul_u32_u24 v6, 896, v6")
    a(f"s_movk_i32 s10, {T0*128}")
    a("s_waitcnt lgkmcnt(0)")
    stamp(a, 0)
    srd(a, 44, P_X, 2048 * 896)
    srd(a, 48, P_W, 448 * 2688)
    NT = 7 - T0
    for c in range(NT):
        if c >= WIN:
            a(f"s_waitcnt vmcnt({2*(WIN-1)})")
        a("s_mov_b32 exec_hi, 0xffff")
        a("buffer_load_dword v13, v5, s[48:51], s9 offen")
        a("s_mov_b32 exec_hi, 0")
        a("buffer_load_dword v13, v6, s[44:47], s10 offen")
        a("s_add_u32 s9, s9, 172032")
        a("s_add_u32 s10, s10, 128")
    a("s_mov_b64 exec, -1")
    stamp(a, 3)
    srd(a, 48, P_WO, 448 * 896)
    a(f"s_mul_i32 s9, s8, {196*128}")
    a("v_lshlrev_b32 v5, 7, v2")
    a("s_waitcnt vmcnt(2)")
    for i in range(4):
        if i == 3: a("s_mov_b64 exec, 15")
        a("buffer_load_dword v13, v5, s[48:51], s9 offen")
        a("s_add_u32 s9, s9, 8192")
    a("s_mov_b64 exec, -1")
    a("s_setprio 0")
    a("s_branch L_a_done")

    a.label("L_ut")
    a("s_sub_u32 s7, s5, 6")
    Lp = a.newlabel("Lnopf")
    a("s_cmp_lg_u32 s6, 0")
    a(f"s_cbranch_scc1 {Lp}")
    a("s_cmp_lg_u32 s7, 1")
    a(f"s_cbranch_scc1 {Lp}")
    prefetch_code(a, 4, 120, 60)
    a.label(Lp)
    a("s_lshl_b32 s9, s3, 3")
    a("s_add_u32 s9, s9, s6")
    a("s_lshl_b32 s9, s9, 1")
    a("s_add_u32 s9, s9, s7")
    a("s_mul_i32 s10, s9, 14336")
    a("s_mul_i32 s11, s7, 14336")
    a(f"s_add_u32 s11, s11, {A_UT}")
    a("v_lshlrev_b32 v4, 4, v2")
    a("v_mov_b32 v8, 0\nv_mov_b32 v9, 0\nv_mov_b32 v10, 0\nv_mov_b32 v11, 0")
    a("s_waitcnt lgkmcnt(0)")
    stamp(a, 0)
    srd(a, 44, P_U, 2048 * 896)
    srd(a, 48, P_WS, UB_IMG, WS_UB)
    srd(a, 52, P_WS, 0x10000, WS_KV)
    srd(a, 56, P_WS, 4096, WS_FL)
    srd(a, 60, P_DBG, 256)
    Lz = a.newlabel("Lnz")
    a("s_cmp_lg_u32 s6, 1")
    a(f"s_cbranch_scc1 {Lz}")
    a("s_cmp_lg_u32 s7, 0")
    a(f"s_cbranch_scc1 {Lz}")
    a("s_lshl_b32 s12, s3, 13")
    for i in range(8):
        a(f"buffer_store_dwordx4 v[8:11], v4, s[52:55], s12 offen offset:{(i%4)*1024} sc1")
        if i == 3: a("s_add_u32 s12, s12, 4096")
    a("s_lshl_b32 s12, s3, 9")
    a("s_mov_b32 exec_hi, 0")
    a("buffer_store_dwordx4 v[8:11], v4, s[56:59], s12 offen sc1")
    a("s_waitcnt vmcnt(0)")
    a("v_mov_b32 v12, 1")
    a("s_lshl_b32 s12, s3, 2")
    a("s_mov_b64 exec, 1")
    a("buffer_store_dword v12, v8, s[60:63], s12 offen sc1")
    a("s_mov_b64 exec, -1")
    a.label(Lz)
    for i in range(14):
        a(f"s_add_u32 m0, s11, {i*1024}")
        a("s_nop 0")
        a("buffer_load_dwordx4 v4, s[44:47], s10 offen lds")
        a("s_add_u32 s10, s10, 1024")
    a("v_bfe_u32 v5, v2, 2, 2")
    a("v_and_b32 v6, 1, v2")
    a("v_lshl_add_u32 v5, v6, 3, v5")
    a("v_mul_u32_u24 v5, 896, v5")
    a("v_lshrrev_b32 v6, 4, v2")
    a("v_lshl_add_u32 v5, v6, 4, v5")
    a("v_bfe_u32 v6, v2, 1, 1")
    a("v_lshl_add_u32 v5, v6, 3, v5")
    a("v_add_u32 v5, s11, v5")
    a("v_lshrrev_b32 v7, 3, v2")
    a("v_lshlrev_b32 v7, 14, v7")
    a("v_and_b32 v6, 7, v2")
    a("v_lshl_add_u32 v7, v6, 4, v7")
    a("s_lshl_b32 s10, s9, 7")
    a("s_waitcnt vmcnt(0)")
    stamp(a, 2)
    UR = 32
    for cg in range(14):
        for jj in range(2):
            d = UR + 4 * cg + 2 * jj
            a(f"ds_read_b64_tr_b16 v[{d}:{d+1}], v5 offset:{cg*64 + jj*3584}")
        if cg == 6: a("s_waitcnt lgkmcnt(4)")
    for cg in range(14):
        if cg >= 7: a(f"s_waitcnt lgkmcnt({2*(13-cg)})")
        elif cg == 5: a("s_waitcnt lgkmcnt(14)")
        d = UR + 4 * cg
        a(f"buffer_store_dwordx4 v[{d}:{d+3}], v7, s[48:51], s10 offen{ST}")
        a(f"s_add_u32 s10, s10, {8*16384}")
    stamp(a, 3)
    wait_init(a, 145, 60, False)
    a("s_lshl_b32 s14, s9, 2")
    set_flag(a, 14, 1)
    a.label("L_a_done")
    stamp(a, 5)
    a("s_add_u32 s4, s6, 6")
    a("s_branch L_conv")

def build():
    from gen9_p2 import p2_w4, p2_conv
    a = Asm()
    hdr = open("cdna_kernels/" + NAME + ".s.ref").read().split("; Override launch")[0]
    a.raw(hdr.rstrip("\n"))
    a.raw(f"; @launch grid=(256,1,1) block=(512,1,1) lds=163840")
    a.raw('.amdgcn_target "amdgcn-amd-amdhsa--gfx950"')
    a.raw(".text")
    a.raw(f".globl {KN}\n.p2align 8\n.type {KN},@function")
    a.label(KN)
    a("s_cmp_ge_u32 s2, 256")
    a("s_cbranch_scc1 L_end")
    stamp_init(a)
    a("s_load_dwordx16 s[16:31], s[0:1], 0")
    a("s_load_dwordx8 s[32:39], s[0:1], 64")
    a("s_load_dwordx2 s[40:41], s[0:1], 96")
    a("v_lshrrev_b32 v1, 6, v0")
    a("v_and_b32 v2, 63, v0")
    a("s_and_b32 s3, s2, 7")
    a("s_lshr_b32 s4, s2, 3")
    a("v_readfirstlane_b32 s5, v1")
    a("s_cmp_ge_u32 s4, 24")
    a("s_cbranch_scc1 L_a")
    phase1_gemm(a)
    a.label("L_a")
    phase1_a(a)
    a.label("L_w4")
    p2_w4(a)
    a.label("L_conv")
    p2_conv(a)
    a.label("L_end")
    a("s_endpgm")
    a.raw("  .fill 2048, 4, 0xbf800000")
    a.raw('.section .rodata,"a"')
    a.raw(f""".p2align 6
.amdhsa_kernel {KN}
  .amdhsa_next_free_vgpr 256
  .amdhsa_next_free_sgpr 100
  .amdhsa_accum_offset 256
  .amdhsa_group_segment_fixed_size 0
  .amdhsa_kernarg_size 104
  .amdhsa_user_sgpr_count 2
  .amdhsa_user_sgpr_kernarg_segment_ptr 1
  .amdhsa_system_sgpr_workgroup_id_x 1
.end_amdhsa_kernel""")
    return a.text()

if __name__ == "__main__":
    if "stamps" in OPT: asmlib.STAMPS = True
    open(sys.argv[1], "w").write(build())
```

```python
import sys
from asmlib import *
import gen10 as G
from gen10 import srd, P_WS, P_WO, P_OUT, WS_KV, WS_PQ, WS_KT, WS_UB, UB_IMG, KT_ROW, WS_FL, FL_U, FL_KV, FL_Q, FL_K

def poll(a, loads):
    L, Ls = a.newlabel("Lpo"), a.newlabel("Lps")
    n = len(loads)
    a("s_cmp_lg_u32 s5, 0")
    a(f"s_cbranch_scc1 {Ls}")
    a("s_movk_i32 s64, 4000")
    def issue(b):
        for i, (v, so) in enumerate(loads):
            a(f"buffer_load_dword v{b+i}, v{v}, s[68:71], {so} offen sc1")
    def check(b):
        a(f"s_waitcnt vmcnt({n})")
        for i in range(1, n):
            a(f"v_and_b32 v{b}, v{b}, v{b+i}")
        a(f"v_cmp_ne_u32 vcc, 1, v{b}")
        a("s_sub_u32 s64, s64, 1")
        a(f"s_cbranch_scc1 {Ls}")
        a(f"s_cbranch_vccz {Ls}")
    issue(240)
    a("s_sleep 6")
    a.label(L)
    issue(244)
    check(240)
    issue(240)
    check(244)
    a(f"s_branch {L}")
    a.label(Ls)
    a("s_barrier")

def p2_w4(a):
    WO_L, KVF_L, PART_L = 0, 57344, 90112
    PSTR = 272
    PHALF = 128 * PSTR
    stamp_mid(a)
    a("s_mov_b32 s6, s4")
    a("s_cmp_ge_u32 s6, 7")
    a("s_cselect_b32 s7, 1, 0")
    a("s_lshl_b32 s8, s3, 1")
    a("s_add_u32 s8, s8, s7")
    a("s_mul_i32 s7, s7, 7")
    a("s_sub_u32 s9, s6, s7")
    a("s_and_b32 s10, s5, 3")
    a("s_lshr_b32 s11, s5, 2")
    srd(a, 44, P_WS, 0x10000, WS_KV)
    srd(a, 48, P_WS, 0x200000, WS_PQ)
    srd(a, 52, P_WO, 448 * 896)
    srd(a, 56, P_OUT, 2048 * 1792)
    srd(a, 68, P_WS, 4096, WS_FL)
    a("v_lshrrev_b32 v5, 3, v2")
    a("v_bfe_u32 v6, v2, 4, 1")
    a("v_lshlrev_b32 v6, 2, v6")
    a("v_and_b32 v7, 7, v2")
    a("v_xor_b32 v6, v6, v7")
    a("v_lshlrev_b32 v6, 4, v6")
    a("s_mul_i32 s60, s10, 112")
    a("s_mul_i32 s61, s11, 14")
    a("s_add_u32 s60, s60, s61")
    a("s_mul_i32 s60, s60, 896")
    a("s_lshl_b32 s61, s9, 7")
    a("s_add_u32 s60, s60, s61")
    a("s_mul_i32 s61, s5, 7168")
    for i in range(7):
        a(f"v_add_u32 v7, {8*i}, v5")
        a("v_mul_u32_u24 v15, 37, v7")
        a("v_lshrrev_b32 v15, 9, v15")
        a("v_mad_u32_u24 v7, v15, 14, v7")
        a("v_mul_u32_u24 v7, 896, v7")
        a("v_add_u32 v7, v7, v6")
        a(f"s_add_u32 m0, s61, {WO_L + i*1024}")
        a("s_nop 0")
        a("buffer_load_dwordx4 v7, s[52:55], s60 offen lds")
    a("v_and_b32 v4, 3, v2")
    a("v_lshlrev_b32 v8, 2, v4")
    a("v_bfe_u32 v5, v2, 3, 2")
    a("v_lshl_add_u32 v4, v5, 2, v4")
    a("v_bfe_u32 v5, v2, 2, 1")
    a("v_add_u32 v6, 2, v4")
    a("v_lshrrev_b32 v6, 4, v6")
    a("v_or_b32 v5, v5, v6")
    a("v_mad_u32_u24 v4, v5, 14, v4")
    a("v_and_b32 v5, 32, v2")
    a("v_add_lshl_u32 v3, v4, v5, 4")
    a("v_lshlrev_b32 v4, 4, v2")
    a("v_lshlrev_b32 v9, 2, v2")
    a("s_lshl_b32 s12, s5, 13")
    a("s_add_u32 s13, s12, 4096")
    a("s_lshl_b32 s14, s8, 2")
    a("s_add_u32 s14, s14, s10")
    a("s_lshl_b32 s14, s14, 4")
    a("s_lshl_b32 s15, s11, 3")
    a("s_add_u32 s14, s14, s15")
    a("s_lshl_b32 s14, s14, 11")
    a("s_lshl_b32 s15, s8, 4")
    a(f"s_add_u32 s15, s15, {FL_Q}")
    KVR = 64
    PQR = 96
    a(f"s_movk_i32 s62, {FL_KV}")
    a(f"s_movk_i32 s63, {FL_KV + 256}")
    a("s_lshl_b32 s60, s6, 3")
    a("s_add_u32 s60, s60, s5")
    a("s_mul_i32 s60, s60, 640")
    a("s_lshl_b32 s61, s9, 3")
    a("s_add_u32 s61, s61, s5")
    a("s_mul_i32 s61, s61, 2432")
    a("s_lshl_b32 s65, s8, 17")
    a("s_add_u32 s61, s61, s65")
    a("v_lshlrev_b32 v10, 7, v2")
    a("s_lshl_b32 s65, s5, 12")
    a(f"s_add_u32 s65, s65, {KVF_L}")
    a("v_add_u32 v11, s65, v4")
    a("s_lshl_b32 s65, s11, 14")
    a(f"s_add_u32 s65, s65, {KVF_L}")
    a("v_add_u32 v5, s65, v4")
    a("v_lshrrev_b32 v6, 5, v2")
    a("v_mul_u32_u24 v6, 224, v6")
    a("v_bfe_u32 v7, v2, 2, 2")
    a("v_add_u32 v6, v6, v7")
    a("s_mul_i32 s65, s11, 112")
    a("v_add_u32 v6, s65, v6")
    a("v_lshlrev_b32 v6, 7, v6")
    a("v_bfe_u32 v7, v2, 4, 1")
    a("v_lshlrev_b32 v7, 5, v7")
    a("v_and_b32 v12, 3, v2")
    a("v_lshl_add_u32 v7, v12, 3, v7")
    a("v_bfe_u32 v12, v2, 3, 1")
    a("v_lshl_add_u32 v7, v12, 6, v7")
    a("v_add_u32 v6, v6, v7")
    a("v_xor_b32 v7, 64, v6")
    poll(a, [(8, "s15"), (9, "s62"), (9, "s63")])
    stamp(a, 0)
    a("s_mov_b64 exec, 31")
    a("buffer_load_dword v12, v10, s[44:47], s60 offen")
    a("s_mov_b64 exec, 0x7ffff")
    a("buffer_load_dword v13, v10, s[48:51], s61 offen")
    a("s_mov_b64 exec, -1")
    a(f"s_mov_b32 s62, {fhex(1e-6)}")
    a("s_waitcnt vmcnt(0)")
    stamp(a, 1)
    for hh in range(2):
        for q in range(4):
            d = KVR + 16 * hh + 4 * q
            a(f"buffer_load_dwordx4 v[{d}:{d+3}], v3, s[44:47], s{12+hh} offen offset:{q*1024}")
    def pq(i0, i1):
        for i in range(i0, i1):
            a(f"buffer_load_dwordx4 v[{PQR+4*i}:{PQR+4*i+3}], v4, s[48:51], s14 offen offset:{(i%4)*1024}")
            if i % 4 == 3 and i != 15:
                a("s_add_u32 s14, s14, 4096")
    pq(0, 4)
    a("s_waitcnt vmcnt(4)")
    for i in range(16):
        a(f"v_cvt_pk_bf16_f32 v{32+i}, v{KVR+2*i}, v{KVR+2*i+1}")
    a("s_mov_b32 exec_lo, 0")
    for hh in range(2):
        a(f"v_mov_b32 v{32+8*hh+6}, 0")
        a(f"v_mov_b32 v{32+8*hh+7}, 0")
    a("s_mov_b64 exec, -1")
    for i in range(4):
        a(f"ds_write_b128 v11, v[{32+4*i}:{35+4*i}] offset:{i*1024}")
    pq(4, 8)
    a("s_waitcnt lgkmcnt(0)")
    a("s_barrier")
    KF = 160
    for i in range(16):
        a(f"ds_read_b128 v[{KF+4*i}:{KF+4*i+3}], v5 offset:{i*1024}")
        if i == 11: a("s_waitcnt lgkmcnt(8)")
    N0, N1 = 32, 48
    D0, D1 = 224, 240
    OFB = PQR - 8
    WF = 8
    def num(hI):
        D = N0 if hI % 2 == 0 else N1
        k = KF + 8 * hI; p = PQR + 8 * hI
        a(f"v_mfma_f32_32x32x16_bf16 v[{D}:{D+15}], v[{k}:{k+3}], v[{p}:{p+3}], 0")
        a(f"v_mfma_f32_32x32x16_bf16 v[{D}:{D+15}], v[{k+4}:{k+7}], v[{p+4}:{p+7}], v[{D}:{D+15}]")
    def fin_ops(hI):
        D = N0 if hI % 2 == 0 else N1
        o = [f"v_add_f32 v64, s62, v{D+14}", "v_rcp_f32 v64, v64", "s_nop 0"]
        for p in range(7):
            o.append(f"v_mul_f32 v{D+2*p}, v{D+2*p}, v64")
            o.append(f"v_mul_f32 v{D+2*p+1}, v{D+2*p+1}, v64")
        for p in range(7):
            o.append(f"v_cvt_pk_bf16_f32 v{OFB+7*hI+p}, v{D+2*p}, v{D+2*p+1}")
        return o
    def rd(k):
        f = WF + 8 * (k % 3)
        for nt in range(2):
            for jj in range(2):
                d = f + 4 * nt + 2 * jj
                a(f"ds_read_b64_tr_b16 v[{d}:{d+1}], v{6+nt} offset:{WO_L + k*1024 + jj*512}")
    def og(k):
        f = WF + 8 * (k % 3)
        o = OFB + 4 * k
        r = []
        for nt, D in ((0, D0), (1, D1)):
            cin = "0" if k == 0 else f"v[{D}:{D+15}]"
            r.append(f"v_mfma_f32_32x32x16_bf16 v[{D}:{D+15}], v[{f+4*nt}:{f+4*nt+3}], v[{o}:{o+3}], {cin}")
        return r
    a("s_waitcnt vmcnt(6) lgkmcnt(0)")
    stamp(a, 2)
    num(0)
    rd(0); rd(1)
    kdone = 0
    nrd = 2
    for hI in range(8):
        if hI < 4:
            pq(8 + 2 * hI, 10 + 2 * hI)
        if hI < 7:
            npq = min(16, 10 + 2 * hI)
            a(f"s_waitcnt vmcnt({npq - 2*(hI+2)})")
            num(hI + 1)
        avail = (14 * hI) // 8
        ms = []
        ks = list(range(kdone, avail))
        ops = fin_ops(hI)
        step = max(1, len(ops) // (len(ks) + 1)) if ks else len(ops)
        pos = 0
        for kk in ks:
            for o_ in ops[pos:pos + step]: a(o_)
            pos += step
            a(f"s_waitcnt lgkmcnt({4*(nrd-1-kk)})")
            for m_ in og(kk): a(m_)
            if nrd < 14:
                rd(nrd); nrd += 1
        for o_ in ops[pos:]: a(o_)
        kdone = avail
    stamp(a, 3)
    a("s_nop 1")
    for kk in range(kdone, 14):
        a(f"s_waitcnt lgkmcnt({4*(nrd-1-kk)})")
        for m_ in og(kk): a(m_)
        if nrd < 14:
            rd(nrd); nrd += 1
    stamp(a, 4)
    a("v_and_b32 v6, 31, v2")
    a("s_lshl_b32 s12, s10, 5")
    a("v_add_u32 v6, s12, v6")
    a(f"v_mul_u32_u24 v6, {PSTR}, v6")
    a("v_lshrrev_b32 v7, 5, v2")
    a("v_lshl_add_u32 v6, v7, 4, v6")
    a(f"s_mul_i32 s12, s11, {PHALF}")
    a(f"s_add_u32 s12, s12, {PART_L}")
    a("v_add_u32 v6, s12, v6")
    a("v_lshrrev_b32 v8, 3, v0")
    a("v_and_b32 v9, 7, v0")
    a(f"v_mul_u32_u24 v10, {PSTR}, v8")
    a("v_lshl_add_u32 v10, v9, 5, v10")
    a(f"v_add_u32 v10, {PART_L}, v10")
    a("v_mul_u32_u24 v11, 1792, v8")
    a("v_lshl_add_u32 v11, v9, 4, v11")
    a(f"s_mul_i32 s12, s8, {128*1792}")
    a("s_lshl_b32 s13, s9, 7")
    a("s_add_u32 s12, s12, s13")
    a("s_add_u32 s12, s12, 896")
    a(f"s_add_u32 s13, s12, {64*1792}")
    for nt, D in ((0, D0), (1, D1)):
        for q in range(4):
            a(f"ds_write_b128 v6, v[{D+4*q}:{D+4*q+3}] offset:{nt*128 + q*32}")
    a("s_waitcnt lgkmcnt(0)")
    a("s_barrier")
    for t in range(2):
        for h in range(2):
            for u in range(2):
                d = 64 + 16 * t + 8 * h + 4 * u
                a(f"ds_read_b128 v[{d}:{d+3}], v10 offset:{t*64*PSTR + h*PHALF + u*16}")
    for t in range(2):
        a(f"s_waitcnt lgkmcnt({4 - 4*t})")
        b = 64 + 16 * t
        for i in range(8):
            a(f"v_add_f32 v{b+i}, v{b+i}, v{b+8+i}")
        for i in range(4):
            a(f"v_cvt_pk_bf16_f32 v{96+4*t+i}, v{b+2*i}, v{b+2*i+1}")
        a(f"buffer_store_dwordx4 v[{96+4*t}:{99+4*t}], v11, s[56:59], s{12+t} offen")
    stamp(a, 5)
    stamp_flush(a, 1)
    a("s_endpgm")

U_L = 0
KS = 4288
KI_L = 288 * 64
EPA_L = KI_L + 16 * KS
EPB_L = EPA_L + 32768

def p2_conv(a):
    a.comment("---- conv role ----")
    stamp_mid(a)
    a("s_mul_i32 s6, s3, 56")
    a("s_lshl_b32 s7, s4, 2")
    a("s_add_u32 s6, s6, s7")
    a("s_and_b32 s7, s5, 3")
    a("s_lshr_b32 s8, s5, 2")
    a("v_lshrrev_b32 v3, 4, v2")
    a("v_sub_u32 v3, v2, v3")
    a("v_and_b32 v3, 3, v3")
    a("v_and_b32 v4, 60, v2")
    a("v_add_lshl_u32 v3, v3, v4, 4")
    a("s_lshl_b32 s9, s5, 10")
    a("s_lshl_b32 s10, s6, 12")
    a("s_add_u32 s9, s9, s10")
    a("s_lshl_b32 s10, s5, 10")
    a(f"s_add_u32 s10, s10, {U_L + 2048}")
    a("v_lshlrev_b32 v4, 4, v2")
    a("s_add_u32 s11, s6, s7")
    a(f"s_mul_i32 s11, s11, {KT_ROW}")
    a("s_lshl_b32 s12, s7, 2")
    a("s_add_u32 s12, s12, s8")
    a(f"s_mul_i32 s12, s12, {KS}")
    a(f"s_add_u32 s12, s12, {KI_L}")
    a("v_mov_b32 v8, 0\nv_mov_b32 v9, 0\nv_mov_b32 v10, 0\nv_mov_b32 v11, 0")
    srd(a, 44, P_WS, UB_IMG, WS_UB)
    srd(a, 48, P_WS, 448 * KT_ROW, WS_KT)
    srd(a, 52, P_OUT, 2048 * 1792)
    srd(a, 68, P_WS, 4096, WS_FL)
    a("v_lshlrev_b32 v5, 2, v2")
    a("v_and_b32 v6, 12, v5")
    a("s_lshl_b32 s13, s6, 2")
    a(f"s_add_u32 s13, s13, {FL_K}")
    a("s_movk_i32 s14, 256")
    a("s_waitcnt vmcnt(0) lgkmcnt(0)")
    poll(a, [(5, "0"), (5, "s14"), (6, "s13")])
    stamp(a, 0)
    def kdma(i, sh):
        a(f"s_add_u32 s13, s11, {i*1024 + 4*sh}")
        a(f"s_add_u32 m0, s12, {2*KS*sh + i*1024}")
        a("s_nop 0")
        a("buffer_load_dwordx4 v4, s[48:51], s13 offen lds")
    def udma(h):
        if h: a("s_add_u32 s9, s9, 8192")
        a(f"s_add_u32 m0, s10, {h*8192}")
        a("s_nop 0")
        a("buffer_load_dwordx4 v3, s[44:47], s9 offen lds")
    KR_ = 212
    def kreg(i):
        r = KR_ + 8 * i
        a(f"buffer_load_dwordx4 v[{r}:{r+3}], v4, s[48:51], s11 offen offset:{i*1024}")
        a(f"buffer_load_dwordx2 v[{r+4}:{r+5}], v4, s[48:51], s11 offen offset:{i*1024+16}")
    Lh, Lj = a.newlabel("Lch"), a.newlabel("Lcj")
    a("s_cmp_lg_u32 s8, 0")
    a(f"s_cbranch_scc1 {Lh}")
    udma(0); kdma(3, 0); kdma(3, 1); kdma(2, 0); kdma(2, 1)
    udma(1); kdma(1, 0); kdma(1, 1); kdma(0, 0); kdma(0, 1)
    a(f"s_branch {Lj}")
    a.label(Lh)
    udma(0); kreg(3); kreg(2)
    udma(1); kreg(1); kreg(0)
    a.label(Lj)
    a("v_add_u32 v20, s12, v4")
    def kbuild(i):
        r = KR_ + 8 * i; o = 244
        for k_ in range(5):
            a(f"v_alignbyte_b32 v{o+k_}, v{r+k_+1}, v{r+k_}, 2")
        for k_ in range(3):
            a(f"v_mov_b32 v{o+8+k_}, v{o+1+k_}")
        a(f"v_mov_b32 v{o+11}, v{o+4}")
        a(f"ds_write_b128 v20, v[{o}:{o+3}] offset:{i*1024}")
        a(f"ds_write_b128 v20, v[{o+8}:{o+11}] offset:{2*KS + i*1024}")
    a("s_lshl_b32 s13, s5, 10")
    a("v_add_u32 v5, s13, v4")
    a("s_cmp_lt_u32 s5, 2")
    a("s_cselect_b32 s14, -1, 0")
    a("s_cselect_b32 s15, -1, 0")
    a("s_mov_b64 exec, s[14:15]")
    a("ds_write_b128 v5, v[8:11]")
    a("s_mov_b64 exec, 15")
    a("v_add_u32 v5, s12, v4")
    a("ds_write_b128 v5, v[8:11] offset:4096")
    a(f"ds_write_b128 v5, v[8:11] offset:{4096 + 2*KS}")
    a("s_mov_b64 exec, -1")
    a("v_and_b32 v5, 15, v2")
    a("v_lshrrev_b32 v7, 4, v2")
    a("v_lshl_add_u32 v6, v5, 1, v7")
    a("s_lshl_b32 s13, s8, 4")
    a("s_sub_u32 s13, 30, s13")
    a("v_add_u32 v6, s13, v6")
    SAD = 12
    for it in range(4):
        a(f"v_subrev_u32 v8, {4*it}, v6")
        a("v_lshrrev_b32 v9, 2, v8")
        a("v_add_u32 v9, s7, v9")
        a("v_and_b32 v9, 3, v9")
        a("v_lshlrev_b32 v9, 4, v9")
        a(f"v_lshl_add_u32 v{SAD+it}, v8, 6, v9")
    a("v_sub_u32 v8, 3, v5")
    a("v_and_b32 v8, 3, v8")
    a(f"v_mul_u32_u24 v16, {KS}, v8")
    a("v_add_u32 v8, v8, v5")
    a("v_lshlrev_b32 v9, 3, v7")
    a("v_sub_u32 v9, v9, v8")
    a("v_lshl_add_u32 v16, v9, 1, v16")
    a(f"s_mul_i32 s13, s7, {4*KS}")
    a("s_lshl_b32 s14, s8, 8")
    a("s_sub_u32 s13, s13, s14")
    a(f"s_add_u32 s13, s13, {KI_L + 2*2031 - 512*7 - 64*3}")
    a("v_add_u32 v16, s13, v16")
    a("s_lshl_b32 s13, s5, 12")
    a(f"s_add_u32 s13, s13, {EPA_L}")
    a("v_add_u32 v17, s13, v4")
    a("v_lshlrev_b32 v18, 3, v0")
    a(f"v_add_u32 v18, {EPA_L}, v18")
    a("v_lshrrev_b32 v8, 5, v0")
    a("v_lshlrev_b32 v8, 6, v8")
    a("v_and_b32 v9, 1, v0")
    a("v_lshl_add_u32 v8, v9, 5, v8")
    a("v_bfe_u32 v9, v0, 1, 4")
    a("v_add_u32 v8, v8, v9")
    a("v_mul_u32_u24 v19, 1792, v8")
    a("s_lshl_b32 s60, s6, 1")
    a(f"s_add_u32 s61, s60, {16*1792}")
    a("s_waitcnt vmcnt(5)")
    Lb = a.newlabel("Lnb1")
    a("s_cmp_eq_u32 s8, 0")
    a(f"s_cbranch_scc1 {Lb}")
    kbuild(3); kbuild(2)
    a.label(Lb)
    a("s_waitcnt lgkmcnt(0)")
    a("s_barrier")
    stamp(a, 1)
    ACC = 32
    SB = [64, 128]
    def rd_list(it, nk):
        s = SB[it % 2]; f = s + 32
        ops = []
        for k in range(nk):
            ops.append(f"ds_read_b128 v[{s+4*k}:{s+4*k+3}], v{SAD+it} offset:{2048*k}")
            for jj in range(2):
                d = f + 4 * k + 2 * jj
                ops.append(f"ds_read_b64 v[{d}:{d+1}], v16 offset:{512*(7-k) + 8*jj + 64*(3-it)}")
        return ops
    first = set()
    def phase(nlo, nhi, nk, extra=None):
        for it in range(4):
            nxt = rd_list(it + 1, nk) if it < 3 else []
            fill = list(nxt)
            pairs = sorted([(v, w) for v in range(nk) for w in range(nk) if nlo <= v + w <= nhi], key=lambda p: (p[1], p[0]))
            ex = list(extra) if (extra and it == 0) else []
            per = -(-len(fill) // len(pairs))
            cnt = 0
            for i, (v, w) in enumerate(pairs):
                s = SB[it % 2]; f = s + 32
                d = ACC + 4 * (v + w)
                cin = f"v[{d}:{d+3}]" if d in first else "0"
                first.add(d)
                a(f"v_mfma_f32_16x16x32_bf16 v[{d}:{d+3}], v[{s+4*v}:{s+4*v+3}], v[{f+4*w}:{f+4*w+3}], {cin}")
                for _ in range(per):
                    if fill:
                        a(fill.pop(0)); cnt += 1
                        if cnt == 12: a("s_waitcnt lgkmcnt(8)")
                if ex:
                    a(ex.pop(0))
            for e_ in ex: a(e_)
            if nxt:
                a("s_waitcnt lgkmcnt(0)")
    def store_ops(R, soff):
        ops = []
        for c in range(4):
            for r in range(2):
                ops.append(f"v_add_f32 v{R+2*c+r}, v{R+2*c+r}, v{R+8+2*c+r}")
        for r in range(2):
            ops.append(f"v_cvt_pk_bf16_f32 v{R+16+2*r}, v{R+r}, v{R+2+r}")
            ops.append(f"v_cvt_pk_bf16_f32 v{R+17+2*r}, v{R+4+r}, v{R+6+r}")
            ops.append(f"buffer_store_dwordx2 v[{R+16+2*r}:{R+17+2*r}], v19, s[52:55], s{60+r} offen")
        return ops
    for o in rd_list(0, 4): a(o)
    a("s_waitcnt lgkmcnt(0)")
    phase(0, 3, 4)
    a("s_nop 7")
    for n in range(4):
        a(f"ds_write_b128 v17, v[{ACC+4*n}:{ACC+4*n+3}] offset:{n*1024}")
    a("s_waitcnt vmcnt(0)")
    Lb2 = a.newlabel("Lnb2")
    a("s_cmp_eq_u32 s8, 0")
    a(f"s_cbranch_scc1 {Lb2}")
    kbuild(1); kbuild(0)
    a.label(Lb2)
    a("s_waitcnt lgkmcnt(0)")
    a("s_barrier")
    stamp(a, 2)
    R = 192
    for w in range(8):
        a(f"ds_read_b64 v[{R+2*w}:{R+2*w+1}], v18 offset:{w*4096}")
    for i, o in enumerate(rd_list(0, 8)):
        a(o)
        if i == 6: a("s_waitcnt lgkmcnt(7)")
    a("s_waitcnt lgkmcnt(0)")
    phase(4, 7, 8, store_ops(R, 0))
    stamp(a, 4)
    a(f"s_add_u32 s60, s60, {1024*1792}")
    a(f"s_add_u32 s61, s61, {1024*1792}")
    a("s_nop 5")
    for n in range(4):
        a(f"ds_write_b128 v17, v[{ACC+16+4*n}:{ACC+16+4*n+3}] offset:{32768 + n*1024}")
    a("s_waitcnt lgkmcnt(0)")
    a("s_barrier")
    for w in range(8):
        a(f"ds_read_b64 v[{R+2*w}:{R+2*w+1}], v18 offset:{32768 + w*4096}")
    a("s_waitcnt lgkmcnt(0)")
    for o in store_ops(R, 0): a(o)
    stamp(a, 5)
    stamp_flush(a, 1)
    a("s_endpgm")
```

```python
import sys, math, struct
from asmlib import *
import asmlib

NAME = "concat_heads__ssm_conv_s4d__linear_attn_block__prompt"
KN = NAME + "_kernel"
OPT = set(sys.argv[2:])
def optint(prefix, default):
    v = [o for o in OPT if o.startswith(prefix) and o[len(prefix):].isdigit()]
    return int(v[0][len(prefix):]) if v else default

WS_KV = 0x0
WS_PQ = 0x10000
WS_KT = 0x210000
KT_ROW = 4224
WS_UB = 0x600000
UB_IMG = 256 * 448 * 16
WS_FL = 0x800000
FL_U, FL_KV, FL_Q, FL_K = 0, 512, 1024, 2048
LOG2E = 1.4426950408889634
INV2PI = 0.15915494309189535
C_HI = struct.unpack("<f", struct.pack("<f", INV2PI))[0]
C_LO = INV2PI - C_HI
ST = " sc1"
P_U, P_LA, P_AI, P_CR, P_CI, P_LDT, P_D, P_X, P_W, P_WO, P_OUT, P_DBG, P_WS = 16, 18, 20, 22, 24, 26, 28, 30, 32, 34, 36, 38, 40

def srd(a, d, p, nbytes, off=0):
    if off:
        a(f"s_add_u32 s{d}, s{p}, 0x{off:x}")
        a(f"s_addc_u32 s{d+1}, s{p+1}, 0")
    else:
        a(f"s_mov_b32 s{d}, s{p}")
        a(f"s_mov_b32 s{d+1}, s{p+1}")
    a(f"s_mov_b32 s{d+2}, 0x{nbytes:x}")
    a(f"s_mov_b32 s{d+3}, 0x20000")

def prefetch_code(a, n, vtmp, stmp):
    lab = a.newlabel("Lpc")
    a(f"s_getpc_b64 s[{stmp}:{stmp+1}]")
    a.label(lab)
    a(f"s_sub_u32 s{stmp}, s{stmp}, {lab}-{KN}")
    a(f"s_subb_u32 s{stmp+1}, s{stmp+1}, 0")
    a(f"v_lshlrev_b32 v{vtmp}, 7, v2")
    for i in range(n):
        a(f"global_load_dword v{vtmp+1}, v{vtmp}, s[{stmp}:{stmp+1}]")
        if i < n - 1:
            a(f"v_add_u32 v{vtmp}, 8192, v{vtmp}")

def phi_pack(a, acc, dst, tmp, s_log2e, s_eps):
    for p in range(0, 8, 2):
        t = tmp
        for q in range(2):
            r = 2 * (p + q)
            a(f"v_cvt_pk_bf16_f32 v{t+4*q}, v{acc+r}, v{acc+r+1}")
        for q in range(2):
            a(f"v_and_b32 v{t+4*q+1}, 0xffff0000, v{t+4*q}")
            a(f"v_lshlrev_b32 v{t+4*q}, 16, v{t+4*q}")
        for q in range(2):
            a(f"v_mul_f32 v{t+4*q+2}, s{s_log2e}, v{t+4*q}")
            a(f"v_mul_f32 v{t+4*q+3}, s{s_log2e}, v{t+4*q+1}")
        for q in range(2):
            a(f"v_exp_f32_e64 v{t+4*q+2}, v{t+4*q+2} clamp")
            a(f"v_exp_f32_e64 v{t+4*q+3}, v{t+4*q+3} clamp")
        for q in range(2):
            a(f"v_max_f32 v{t+4*q}, s{s_eps}, v{t+4*q}")
            a(f"v_max_f32 v{t+4*q+1}, s{s_eps}, v{t+4*q+1}")
        for q in range(2):
            a(f"v_add_f32 v{t+4*q}, v{t+4*q}, v{t+4*q+2}")
            a(f"v_add_f32 v{t+4*q+1}, v{t+4*q+1}, v{t+4*q+3}")
        for q in range(2):
            a(f"v_cvt_pk_bf16_f32 v{dst+p+q}, v{t+4*q}, v{t+4*q+1}")

def cmul_ops(d, x, y):
    return [f"v_pk_mul_f32 v[{d}:{d+1}], v[{x}:{x+1}], v[{y}:{y+1}] op_sel:[0,0] op_sel_hi:[1,0]",
            f"v_pk_fma_f32 v[{d}:{d+1}], v[{x}:{x+1}], v[{y}:{y+1}], v[{d}:{d+1}] op_sel:[1,1,0] op_sel_hi:[0,1,1] neg_lo:[1,0,0]"]
def hmul_ops(d, x, y):
    return [f"v_pk_mul_f16 v{d}, v{x}, v{y} op_sel:[0,0] op_sel_hi:[1,0]",
            f"v_pk_fma_f16 v{d}, v{x}, v{y}, v{d} op_sel:[1,1,0] op_sel_hi:[0,1,1] neg_lo:[1,0,0]"]
def interleave(a, streams):
    idx = [0] * len(streams)
    live = True
    while live:
        live = False
        for i, s in enumerate(streams):
            if idx[i] < len(s):
                a(s[idx[i]]); idx[i] += 1; live = True

def wait_init(a, v, sdbg, pre):
    L, Lk = a.newlabel("Lwi"), a.newlabel("Lwik")
    a("s_movk_i32 s64, 3000")
    if not pre:
        a(f"buffer_load_dword v{v}, v{v+1}, s[{sdbg}:{sdbg+3}], 0 offen sc1")
    a.label(L)
    a("s_waitcnt vmcnt(0)")
    a(f"v_cmp_ne_u32 vcc, 1, v{v}")
    a("s_sub_u32 s64, s64, 1")
    a(f"s_cbranch_scc1 {Lk}")
    a(f"s_cbranch_vccz {Lk}")
    a("s_sleep 2")
    a(f"buffer_load_dword v{v}, v{v+1}, s[{sdbg}:{sdbg+3}], 0 offen sc1")
    a(f"s_branch {L}")
    a.label(Lk)

RS = 4 * 256 + 32
SCRG = 16 * RS
TSTR = 4736
SLOT = 32768
SB0 = 21760
SLOT_OFF = [SB0 + i * SLOT for i in range(4)]
TAB_L = SCRG
A_TAB = SCRG
A_UT = 36864

ACC = 112
TA = [3, 4, 5, 6, 7, 14, 15, 18]
def kbase(mt, q, r):
    if mt == 0:
        return [r, 4 + r, 256 + 2 * r, 512 + 4 * (r & 1) + 256 * (r >> 1)][q]
    if q == 0: return 1024 + 256 * r
    if q == 1 and r == 0: return 2048
    return 2049

def kgen_load4(a):
    a(f"global_load_dwordx2 v[148:149], v3, s[{P_CR}:{P_CR+1}]")
    a(f"global_load_dwordx2 v[150:151], v3, s[{P_CI}:{P_CI+1}]")
    a(f"global_load_short_d16_hi v16, v4, s[{P_LDT}:{P_LDT+1}]")
    a(f"global_load_dwordx2 v[152:153], v3, s[{P_LA}:{P_LA+1}]")
    a(f"global_load_dwordx2 v[154:155], v3, s[{P_AI}:{P_AI+1}]")
    a(f"global_load_short_d16_hi v17, v4, s[{P_D}:{P_D+1}]")

def kgen_load(a):
    a(f"global_load_dword v10, v3, s[{P_CR}:{P_CR+1}]")
    a(f"global_load_dword v11, v3, s[{P_CI}:{P_CI+1}]")
    a(f"global_load_short_d16_hi v16, v4, s[{P_LDT}:{P_LDT+1}]")
    a(f"global_load_dword v8, v3, s[{P_LA}:{P_LA+1}]")
    a(f"global_load_dword v9, v3, s[{P_AI}:{P_AI+1}]")
    a(f"global_load_short_d16_hi v17, v4, s[{P_D}:{P_D+1}]")

def kgen_addr(a):
    a("v_lshlrev_b32 v3, 2, v2")
    a("s_lshl_b32 s14, s7, 9")
    a("s_bfe_u32 s15, s5, 0x10001")
    a("s_lshl_b32 s15, s15, 8")
    a("s_add_u32 s14, s14, s15")
    a("v_add_u32 v3, s14, v3")
    a("s_lshl_b32 s14, s7, 1")
    a("v_mov_b32 v4, s14")

def kgen_setup(a, younger, full=False):
    a(f"s_mov_b32 s66, {fhex(LOG2E)}")
    a(f"s_mov_b32 s67, {fhex(-LOG2E)}")
    a(f"s_mov_b32 s68, {fhex(C_HI)}")
    a(f"s_mov_b32 s69, {fhex(C_LO)}")
    a(f"s_mov_b32 s70, {fhex(8.0)}")
    a(f"s_mov_b32 s71, {fhex(256.0)}")
    a("v_and_b32 v24, 15, v2")
    a(f"v_mul_u32_u24 v20, {RS}, v24")
    a("v_lshrrev_b32 v21, 4, v2")
    a("v_lshl_add_u32 v20, v21, 4, v20")
    a("v_add_u32 v20, s72, v20")
    a(f"v_mul_u32_u24 v21, {RS}, v21")
    a("v_lshl_add_u32 v21, v24, 4, v21")
    a("v_mov_b32 v22, 0x00003c00")
    srd(a, 52, P_WS, 448 * KT_ROW, WS_KT)
    a("v_lshl_add_u32 v24, v24, 4, s13")
    for q in range(4):
        lo = (0xffff << (16 * q)) & 0xffffffff if q < 2 else 0
        hi_ = (0xffff << (16 * (q - 2))) & 0xffffffff if q >= 2 else 0
        a(f"s_mov_b32 exec_lo, 0x{lo:x}")
        a(f"s_mov_b32 exec_hi, 0x{hi_:x}")
        for mt in range(2):
            for r in range(4):
                a(f"v_add_u32 v{TA[4*mt+r]}, {2*kbase(mt,q,r)}, v24")
    a("s_mov_b64 exec, -1")
    a("s_mov_b32 m0, s72")
    a(f"s_waitcnt vmcnt({3 + younger})")
    if full:
        a("v_and_b32 v24, 0x7fff7fff, v148")
        a("v_and_b32 v25, 0x7fff7fff, v149")
        a("v_and_b32 v26, 0x7fff7fff, v150")
        a("v_and_b32 v27, 0x7fff7fff, v151")
        a("v_pk_max_u16 v24, v24, v26")
        a("v_pk_max_u16 v25, v25, v27")
    else:
        a("v_and_b32 v24, 0x7fff7fff, v10")
        a("v_and_b32 v25, 0x7fff7fff, v11")
    a("v_and_b32 v16, 0xffff0000, v16")
    a("v_pk_max_u16 v24, v24, v25")
    a("v_mul_f32 v16, s66, v16")
    a("v_exp_f32 v16, v16")
    a("v_lshrrev_b32 v25, 16, v24")
    a("v_and_b32 v24, 0xffff, v24")
    a("v_max_u32 v24, v24, v25")
    a("v_cvt_pk_bf16_f32 v16, v16, v16")
    a("v_and_b32 v16, 0xffff0000, v16")
    for ctl in ("row_shr:1 row_mask:0xf bank_mask:0xf", "row_shr:2 row_mask:0xf bank_mask:0xf",
                "row_shr:4 row_mask:0xf bank_mask:0xf", "row_shr:8 row_mask:0xf bank_mask:0xf",
                "row_bcast:15 row_mask:0xa bank_mask:0xf", "row_bcast:31 row_mask:0xc bank_mask:0xf"):
        a(f"v_max_u32_dpp v24, v24, v24 {ctl}")
        a("s_nop 1")
    a("v_readlane_b32 s74, v24, 63")
    a("v_readfirstlane_b32 s75, v16")
    a("s_nop 3")
    a("s_lshr_b32 s74, s74, 7")
    a("s_max_u32 s74, s74, 14")
    a("s_min_u32 s74, s74, 254")
    a("s_sub_u32 s76, 267, s74")
    a("s_lshl_b32 s76, s76, 23")
    a("s_sub_u32 s77, s74, 13")
    a("s_lshl_b32 s77, s77, 23")
    a(f"s_waitcnt vmcnt({younger})")
    if full: return
    Ls = a.newlabel("Lsh")
    a("s_bitcmp0_b32 s5, 0")
    a(f"s_cbranch_scc1 {Ls}")
    for r in range(8, 12):
        a(f"v_lshrrev_b32 v{r}, 16, v{r}")
    a.label(Ls)

def kgen_pass(a, hook, accum=False):
    FX = 80
    Z1, Z2, Z4, Z256 = 32, 34, 36, 38
    Q1, Q2, Q3, Q4, QT = 40, 42, 44, 46, 48
    P1, P2 = 50, 52
    XA, XB_, RA, RB, SA, SB = 54, 56, 58, 60, 62, 12
    QH = [22, 64, 65, 66, 67, 68, 69, 70]
    PH = [None, 71, 72, 73]
    H1, H2, H3 = [74, 75], [76, 77], [78, 79]
    def wr(row, v):
        return f"ds_write_addtid_b32 v{v} offset:{(row % 16) * RS}"
    a("v_lshlrev_b32 v24, 16, v8")
    a("v_lshlrev_b32 v25, 16, v9")
    a("v_mul_f32 v24, s66, v24")
    a("v_exp_f32 v24, v24")
    a("v_mul_f32 v25, s75, v25")
    a("v_mul_f32 v26, s68, v25")
    a("v_cvt_pk_bf16_f32 v24, v24, v24")
    a("v_fma_f32 v27, v25, s68, -v26")
    a("v_and_b32 v24, 0xffff0000, v24")
    a("v_fmac_f32 v27, s69, v25")
    a("v_mul_f32 v24, s75, v24")
    a("v_mul_f32 v24, s67, v24")
    a(f"v_lshlrev_b32 v{XA}, 16, v10")
    a(f"v_lshlrev_b32 v{XA+1}, 16, v11")
    a(f"v_mul_f32 v{XA}, s76, v{XA}")
    a(f"v_mul_f32 v{XA+1}, s76, v{XA+1}")
    st = []
    for (dst, sm, t, neg) in ((Z1, None, 28, False), (Q1, 70, 74, True), (Z256, 71, 77, False)):
        s_ = []
        if sm is None:
            s_ += [f"v_exp_f32 v{t}, v24", f"v_fract_f32 v{t+1}, v26", f"v_add_f32 v{t+1}, v{t+1}, v27"]
        else:
            s_ += [f"v_mul_f32 v{t}, s{sm}, v24", f"v_exp_f32 v{t}, v{t}", f"v_mul_f32 v{t+1}, s{sm}, v26",
                   f"v_fract_f32 v{t+1}, v{t+1}", f"v_fmac_f32 v{t+1}, s{sm}, v27"]
        s_ += [f"v_cos_f32 v{t+2}, v{t+1}", f"v_sin_f32 v{t+1}, v{t+1}", "s_nop 0", f"v_mul_f32 v{dst}, v{t}, v{t+2}"]
        s_ += [f"v_mul_f32_e64 v{dst+1}, v{t}, {'-' if neg else ''}v{t+1}"]
        st.append(s_)
    interleave(a, st)
    hook(0)
    for s_ in cmul_ops(RA, XA, Z256): a(s_)
    def cvh(stream, hs, k, src, row):
        h = hs[k % 2]
        stream.append(f"v_cvt_pk_f16_f32 v{h}, v{src}, v{src+1}")
        stream.append(wr(row, h))
    s1 = []
    cur, oth = XA, XB_
    cvh(s1, H1, 0, XA, 0)
    for f in range(1, 8):
        s1 += cmul_ops(oth, cur, Z1)
        cvh(s1, H1, f, oth, f)
        cur, oth = oth, cur
    s2 = cmul_ops(Z2, Z1, Z1) + cmul_ops(Z4, Z2, Z2)
    k = 0
    cvh(s2, H2, k, RA, 8); k += 1
    s2 += cmul_ops(RB, RA, Z256)
    s2 += cmul_ops(SA, RA, Z2); cvh(s2, H2, k, SA, 9); k += 1
    s2 += cmul_ops(SB, RA, Z4); cvh(s2, H2, k, SB, 10); k += 1
    s2 += cmul_ops(SA, SB, Z2); cvh(s2, H2, k, SA, 11); k += 1
    cvh(s2, H2, k, RB, 12); k += 1
    s2 += cmul_ops(RA, RB, Z256)
    s2 += cmul_ops(SA, RB, Z4); cvh(s2, H2, k, SA, 13); k += 1
    cvh(s2, H2, k, RA, 14); k += 1
    s2 += cmul_ops(RB, RA, Z256)
    s2 += cmul_ops(SA, RA, Z4); cvh(s2, H2, k, SA, 15); k += 1
    s3 = []
    def qcv(b, src):
        s3.append(f"v_cvt_pk_f16_f32 v{QH[b]}, v{src}, v{src+1}")
    qcv(1, Q1)
    s3 += cmul_ops(Q2, Q1, Q1); qcv(2, Q2)
    s3 += cmul_ops(Q4, Q2, Q2)
    s3 += cmul_ops(Q3, Q2, Q1); qcv(4, Q4); qcv(3, Q3)
    s3 += cmul_ops(P1, Q4, Q4)
    s3 += cmul_ops(QT, Q4, Q1); qcv(5, QT)
    s3 += cmul_ops(P2, P1, P1)
    s3 += cmul_ops(QT, Q4, Q2); qcv(6, QT)
    s3 += cmul_ops(QT, Q4, Q3); qcv(7, QT)
    s3 += cmul_ops(QT, P2, P1)
    s3.append(f"v_cvt_pk_f16_f32 v{PH[1]}, v{P1}, v{P1+1}")
    s3.append(f"v_cvt_pk_f16_f32 v{PH[2]}, v{P2}, v{P2+1}")
    s3.append(f"v_cvt_pk_f16_f32 v{PH[3]}, v{QT}, v{QT+1}")
    interleave(a, [s1[:16], s2[:16], s3[:16]])
    hook(1)
    interleave(a, [s1[16:], s2[16:], s3[16:]])
    def rdf(f0):
        for kk in range(4):
            f = f0 + 4 * kk
            a(f"ds_read_b128 v[{f}:{f+3}], v20 offset:{64*kk}")
    rdf(FX)
    hook(2)
    s4 = []
    c_, o_ = RB, RA
    for row in range(16, 21):
        cvh(s4, H2, row, c_, row)
        if row < 20:
            s4 += cmul_ops(o_, c_, Z256)
            c_, o_ = o_, c_
    s5 = []
    Y1 = [None, 32, 33, 34, 35, 36, 37, 40]
    for b in range(1, 8):
        s5 += hmul_ops(Y1[b], PH[1], QH[b])
    interleave(a, [s4, s5])
    rdf(FX + 16)
    hook(3)
    w0 = [wr(b, QH[b]) for b in range(8)] + [wr(8, PH[1])] + [wr(8 + b, Y1[b]) for b in range(1, 8)]
    Y2 = [None, 41, 42, 43, 44, 45, 46, 47]
    s6 = []
    for b in range(1, 8):
        s6 += hmul_ops(Y2[b], PH[2], QH[b])
    interleave(a, [w0, s6])
    rdf(48)
    w1 = [wr(0, PH[2])] + [wr(b, Y2[b]) for b in range(1, 8)] + [wr(8, PH[3])]
    s7 = []
    for b in range(1, 8):
        h = H1[b % 2]
        s7 += hmul_ops(h, PH[3], QH[b])
        s7.append(wr(8 + b, h))
    interleave(a, [w1, s7])
    rdf(32)
    def mm(nt, kk):
        for mt in range(2):
            fa = FX + 16 * mt + 4 * kk
            fb = (48 if nt == 0 else 32) + 4 * kk
            d = ACC + 8 * mt + 4 * nt
            cin = "0" if (kk == 0 and not accum) else f"v[{d}:{d+3}]"
            a(f"v_mfma_f32_16x16x32_f16 v[{d}:{d+3}], v[{fa}:{fa+3}], v[{fb}:{fb+3}], {cin}")
    a("s_waitcnt lgkmcnt(15)")
    for kk in range(4): mm(0, kk)
    for kk in range(4):
        a(f"s_waitcnt lgkmcnt({3-kk})")
        mm(1, kk)
    if accum: return
    kgen_scale(a, True)

def kgen_scale(a, publish):
    a("v_mov_b32 v25, s75")
    a("v_mul_f32 v25, s77, v25")
    a("v_add_f32 v25, v25, v25")
    a("v_add_u32 v30, s72, v21")
    a("v_lshlrev_b32 v26, 4, v2")
    a("v_and_b32 v17, 0xffff0000, v17")
    a(f"s_add_u32 s14, s13, {16*63}")
    a("v_sub_u32 v27, s14, v26")
    a("s_nop 1")
    for q in range(4):
        for r in range(4):
            a(f"v_mul_f32 v{ACC+4*q+r}, v25, v{ACC+4*q+r}")
        if publish:
            a(f"ds_write_b128 v30, v[{ACC+4*q}:{ACC+4*q+3}] offset:{4*q*RS}")

def kgen_solo(a):
    a("s_mov_b64 exec, 1")
    a(f"v_add_f32 v{ACC}, v{ACC}, v17")
    a("s_mov_b64 exec, -1")
    for mt in range(2):
        for r in range(4):
            a(f"v_cvt_pk_bf16_f32 v{40+4*mt+r}, v{ACC+8*mt+r}, v{ACC+8*mt+4+r}")
            a(f"ds_write_b16 v{TA[4*mt+r]}, v{40+4*mt+r}")
            a(f"ds_write_b16_d16_hi v{TA[4*mt+r]}, v{40+4*mt+r} offset:256")
    a("v_cmp_gt_u32 vcc, 32, v2")
    a("v_and_b32 v31, 1, v2")
    a("v_mul_u32_u24 v31, 0x0404, v31")
    a("v_cndmask_b32_e64 v28, 0, 2, vcc")
    a("v_add_u32 v29, v27, v28")
    a("v_sub_u32 v30, v27, v28")
    for m in range(2):
        o = (3 - m) * 1024
        a(f"ds_read_u16 v{80+2*m}, v27 offset:{o}")
        a(f"ds_read_u16 v{81+2*m}, v27 offset:{o+16}")
    a("ds_read_u16 v88, v27 offset:1024")
    a("ds_read_u16 v89, v27 offset:1032")
    a("ds_read_u16 v90, v27 offset:1040")
    for k_, (reg, idx) in enumerate(((29, 7), (27, 6), (30, 5), (27, 4), (29, 3), (27, 2), (30, 1), (27, 0))):
        a(f"ds_read_u16 v{92+k_}, v{reg} offset:{2*idx}")
    a("s_mov_b32 s60, 0x05040504")
    a("s_mov_b32 s61, 0x01000100")
    a("s_mov_b32 s62, 0x01000504")
    a(f"s_mul_i32 s15, s7, {KT_ROW}")
    a("v_mov_b32 v84, 0\nv_mov_b32 v85, 0\nv_mov_b32 v86, 0\nv_mov_b32 v87, 0")
    a("v_lshlrev_b32 v31, 16, v31")
    a("v_sub_u32 v31, 0x05040504, v31")
    E = 48
    a("s_waitcnt lgkmcnt(8)")
    for m in range(2):
        ra, rb = 80 + 2 * m, 81 + 2 * m
        e = E + 4 * m
        a(f"v_perm_b32 v{e}, v{rb}, v{ra}, s60")
        a(f"v_perm_b32 v{e+1}, v{rb}, v{ra}, v31")
        a(f"v_perm_b32 v{e+2}, v{rb}, v{ra}, s61")
        a(f"v_perm_b32 v{e+3}, v{rb}, v{ra}, s61")
        a(f"buffer_store_dwordx4 v[{e}:{e+3}], v26, s[52:55], s15 offen offset:{m*1024}{ST}")
    e = E + 8
    a(f"v_perm_b32 v{e}, v90, v90, s61")
    a(f"v_perm_b32 v{e+1}, v89, v88, s60")
    a(f"v_perm_b32 v{e+2}, v89, v88, s62")
    a(f"v_perm_b32 v{e+3}, v89, v88, s61")
    a(f"buffer_store_dwordx4 v[{e}:{e+3}], v26, s[52:55], s15 offen offset:2048{ST}")
    a("s_waitcnt lgkmcnt(0)")
    e = E + 12
    for k_ in range(4):
        a(f"v_lshl_or_b32 v{e+k_}, v{93+2*k_}, 16, v{92+2*k_}")
    a(f"buffer_store_dwordx4 v[{e}:{e+3}], v26, s[52:55], s15 offen offset:3072{ST}")
    a("s_add_u32 s15, s15, 4096")
    a("s_mov_b64 exec, 1")
    a(f"buffer_store_dwordx4 v[84:87], v26, s[52:55], s15 offen{ST}")
    a("s_mov_b64 exec, -1")

def kgen_table(a):
    a("s_and_b32 s14, s5, 3")
    a(f"s_mul_i32 s15, s14, {4*RS}")
    a("s_andn2_b32 s74, s72, 0x300")
    a("s_add_u32 s15, s15, s74")
    a("v_add_u32 v30, s15, v21")
    for i in range(4):
        a(f"ds_read_b128 v[{32+4*i}:{35+4*i}], v30 offset:{i*256}")
    L = a.newlabel("Lmt")
    a("s_bitcmp0_b32 s5, 1")
    a(f"s_cbranch_scc1 {L}")
    for r in range(4):
        a(f"v_mov_b32 v{TA[r]}, v{TA[4+r]}")
    a.label(L)
    a("s_and_b32 s15, s5, 1")
    a("s_lshl_b32 s15, s15, 8")
    for r in range(4):
        a(f"v_add_u32 v{TA[r]}, s15, v{TA[r]}")
    a("s_cmp_eq_u32 s14, 0")
    a("s_cselect_b32 s74, 1, 0")
    a("s_mov_b32 s75, 0")
    a("s_waitcnt lgkmcnt(0)")
    for r in range(4):
        a(f"v_add_f32 v{32+r}, v{32+r}, v{36+r}")
        a(f"v_add_f32 v{40+r}, v{40+r}, v{44+r}")
    for r in range(4):
        a(f"v_add_f32 v{32+r}, v{32+r}, v{40+r}")
    a("s_mov_b64 exec, s[74:75]")
    a("v_add_f32 v32, v32, v17")
    a("s_mov_b64 exec, -1")
    a("v_cvt_pk_bf16_f32 v36, v32, v33")
    a("v_cvt_pk_bf16_f32 v37, v34, v35")
    a(f"ds_write_b16 v{TA[0]}, v36")
    a(f"ds_write_b16_d16_hi v{TA[1]}, v36")
    a(f"ds_write_b16 v{TA[2]}, v37")
    a(f"ds_write_b16_d16_hi v{TA[3]}, v37")

def kgen_expand(a):
    L2, L3, Le = a.newlabel("Lm2"), a.newlabel("Lm3"), a.newlabel("Lme")
    a("s_and_b32 s14, s5, 3")
    a(f"s_mul_i32 s15, s7, {KT_ROW}")
    a("s_lshl_b32 s74, s14, 10")
    a("s_add_u32 s77, s15, 4096")
    a("s_add_u32 s15, s15, s74")
    a("s_mov_b32 s74, 0x05040504")
    a("s_mov_b32 s75, 0x01000100")
    a("s_mov_b32 s76, 0x01000504")
    a("v_mov_b32 v84, 0\nv_mov_b32 v85, 0\nv_mov_b32 v86, 0\nv_mov_b32 v87, 0")
    a("s_cmp_eq_u32 s14, 3")
    a(f"s_cbranch_scc1 {L3}")
    a("s_cmp_eq_u32 s14, 2")
    a(f"s_cbranch_scc1 {L2}")
    a("s_lshl_b32 s14, s14, 10")
    a("v_subrev_u32 v28, s14, v27")
    a("ds_read_u16 v80, v28 offset:3072")
    a("ds_read_u16 v81, v28 offset:3088")
    a("v_and_b32 v31, 1, v2")
    a("v_mul_u32_u24 v31, 0x0404, v31")
    a("v_lshlrev_b32 v31, 16, v31")
    a("v_sub_u32 v31, 0x05040504, v31")
    a("s_waitcnt lgkmcnt(0)")
    a("v_perm_b32 v48, v81, v80, s74")
    a("v_perm_b32 v49, v81, v80, v31")
    a("v_perm_b32 v50, v81, v80, s75")
    a("v_perm_b32 v51, v81, v80, s75")
    a(f"s_branch {Le}")
    a.label(L2)
    a("ds_read_u16 v88, v27 offset:1024")
    a("ds_read_u16 v89, v27 offset:1032")
    a("ds_read_u16 v90, v27 offset:1040")
    a("s_waitcnt lgkmcnt(0)")
    a("v_perm_b32 v48, v90, v90, s75")
    a("v_perm_b32 v49, v89, v88, s74")
    a("v_perm_b32 v50, v89, v88, s76")
    a("v_perm_b32 v51, v89, v88, s75")
    a(f"s_branch {Le}")
    a.label(L3)
    a("v_cmp_gt_u32 vcc, 32, v2")
    a("s_nop 1")
    a("v_cndmask_b32_e64 v28, 0, 2, vcc")
    a("v_add_u32 v29, v27, v28")
    a("v_sub_u32 v30, v27, v28")
    for k_, (reg, idx) in enumerate(((29, 7), (27, 6), (30, 5), (27, 4), (29, 3), (27, 2), (30, 1), (27, 0))):
        a(f"ds_read_u16 v{92+k_}, v{reg} offset:{2*idx}")
    a("s_waitcnt lgkmcnt(0)")
    for k_ in range(4):
        a(f"v_lshl_or_b32 v{48+k_}, v{93+2*k_}, 16, v{92+2*k_}")
    a.label(Le)
    a(f"buffer_store_dwordx4 v[48:51], v26, s[52:55], s15 offen{ST}")
    a("s_mov_b64 exec, 1")
    a(f"buffer_store_dwordx4 v[84:87], v26, s[52:55], s77 offen{ST}")
    a("s_mov_b64 exec, -1")

def set_flag(a, soff, nl=1):
    a("v_mov_b32 v139, 1")
    a(f"s_mov_b64 exec, {(1 << nl) - 1}")
    a(f"buffer_store_dword v139, v138, s[56:59], s{soff} offen sc1")
    a("s_mov_b64 exec, -1")

def phase1_gemm(a):
    a.comment("---- GEMM WGs: waves 0..3 run one K-gen pass first, waves 4..7 start the loads ----")
    a("s_mul_i32 s7, s3, 56")
    a("s_add_u32 s7, s7, s4")
    a("s_lshr_b32 s65, s5, 2")
    a("s_cmp_ge_u32 s5, 4")
    a("s_cbranch_scc1 L_g_dec")
    kgen_addr(a)
    a("s_lshl_b32 s72, s5, 8")
    a(f"s_movk_i32 s13, {TAB_L + 16}")
    a("s_waitcnt lgkmcnt(0)")
    stamp(a, 0)
    kgen_load(a)
    kgen_setup(a, 0)
    stamp(a, 1)
    kgen_pass(a, lambda k: None)
    stamp(a, 2)
    a.label("L_g_dec")
    a("s_lshr_b32 s6, s3, 1")
    a("s_lshl_b32 s6, s6, 2")
    a("s_and_b32 s60, s3, 1")
    a("s_lshr_b32 s8, s4, 2")
    a("s_add_u32 s8, s8, s6")
    a("s_and_b32 s9, s4, 3")
    a("s_lshl_b32 s10, s60, 2")
    a("s_add_u32 s9, s9, s10")
    a("s_mul_i32 s10, s9, 112")
    a("s_add_u32 s11, s10, 1792")
    a("s_add_u32 s10, s10, 896")
    a("s_sub_u32 s12, s4, 16")
    a("s_lshr_b32 s61, s12, 1")
    a("s_add_u32 s61, s61, s6")
    a("s_and_b32 s12, s12, 1")
    a("s_lshl_b32 s14, s60, 1")
    a("s_add_u32 s12, s12, s14")
    a("s_mul_i32 s14, s12, 224")
    a("s_add_u32 s15, s14, 112")
    a("s_cmp_lt_u32 s4, 16")
    a("s_cselect_b32 s8, s8, s61")
    a("s_cselect_b32 s9, s9, s12")
    a("s_cselect_b32 s10, s10, s14")
    a("s_cselect_b32 s11, s11, s15")
    a("s_and_b32 s60, s5, 3")
    a("v_lshrrev_b32 v8, 3, v2")
    a("v_lshrrev_b32 v9, 4, v2")
    a("v_and_b32 v10, 7, v2")
    a("s_lshl_b32 s12, s8, 7")
    a("s_lshl_b32 s61, s60, 5")
    a("s_add_u32 s12, s12, s61")
    a("v_add_u32 v11, s12, v8")
    a("v_mul_u32_u24 v11, 896, v11")
    a("v_xor_b32 v12, v10, v9")
    a("v_lshl_add_u32 v128, v12, 4, v11")
    a("v_xor_b32 v12, 4, v12")
    a("v_lshl_add_u32 v129, v12, 4, v11")
    a("v_add_u32 v129, 7168, v129")
    a("s_lshl_b32 s61, s60, 4")
    a("v_add_u32 v11, s61, v8")
    a("v_mul_u32_u24 v11, 2688, v11")
    a("v_and_b32 v12, 1, v9")
    a("v_lshlrev_b32 v12, 2, v12")
    a("v_xor_b32 v12, v12, v10")
    a("v_lshl_add_u32 v11, v12, 4, v11")
    a("v_add_u32 v130, s10, v11")
    a("v_add_u32 v131, s11, v11")
    a("s_lshl_b32 s10, s60, 12")
    a("s_lshl_b32 s11, s60, 11")
    a("s_add_u32 s11, s11, 16384")
    a("s_waitcnt lgkmcnt(0)")
    srd(a, 44, P_X, 2048 * 896)
    srd(a, 48, P_W, 448 * 2688)
    a("s_and_b32 s73, s8, 3")
    a("s_lshl_b32 s73, s73, 1")
    a("s_and_b32 s61, s9, 3")
    a("s_and_b32 s62, s9, 1")
    a("s_add_u32 s62, s62, 4")
    a("s_cmp_lt_u32 s4, 16")
    a("s_cselect_b32 s61, s61, s62")
    a("s_add_u32 s73, s73, s61")
    a("s_sub_u32 s61, s73, 7")
    a("s_cmp_ge_u32 s73, 7")
    a("s_cselect_b32 s73, s61, s73")
    if "norot" in OPT: a("s_mov_b32 s73, 0")
    def dma(c, i):
        so = SLOT_OFF[c % 4]; h = i // 4; i = i % 4
        if i == 0:
            if h == 0:
                a("s_lshl_b32 s6, s73, 7")
                a("s_mul_i32 s12, s73, 172032")
                a("s_add_u32 s73, s73, 1")
                a("s_cmp_eq_u32 s73, 7")
                a("s_cselect_b32 s73, 0, s73")
            else:
                a("s_add_u32 s6, s6, 14336")
                a("s_add_u32 s12, s12, 21504")
            a(f"s_add_u32 m0, s10, {so + h*2048}")
            a("s_nop 0")
            a("buffer_load_dwordx4 v128, s[44:47], s6 offen lds")
        elif i == 1:
            a(f"s_add_u32 m0, s11, {so + h*1024}")
            a("s_nop 0")
            a("buffer_load_dwordx4 v130, s[48:51], s12 offen lds")
        elif i == 2:
            a(f"s_add_u32 m0, s10, {so + h*2048 + 1024}")
            a("s_nop 0")
            a("buffer_load_dwordx4 v129, s[44:47], s6 offen lds")
        else:
            a(f"s_add_u32 m0, s11, {so + h*1024 + 8192}")
            a("s_nop 0")
            a("buffer_load_dwordx4 v131, s[48:51], s12 offen lds")
    def only(lo, body):
        L = a.newlabel("Lo")
        a(f"s_cmp_{'ge' if lo else 'lt'}_u32 s5, 4")
        a(f"s_cbranch_scc1 {L}")
        body()
        a.label(L)
    UP = optint("up", 3)
    only(False, lambda: [stamp(a, 0)] + [dma(c, i) for c in range(UP) for i in range(8)] + [stamp(a, 1)])
    a("v_and_b32 v8, 31, v2")
    a("v_lshrrev_b32 v9, 5, v2")
    a("v_bfe_u32 v10, v2, 1, 3")
    a("v_xor_b32 v10, v10, v9")
    a("s_lshl_b32 s15, s60, 12")
    a("v_lshlrev_b32 v8, 7, v8")
    a("v_lshl_add_u32 v8, v10, 4, v8")
    a("v_add_u32 v132, s15, v8")
    a("v_xor_b32 v133, 32, v132")
    a("v_xor_b32 v134, 64, v132")
    a("v_xor_b32 v135, 0x60, v132")
    a("s_mul_i32 s15, s65, 56")
    a("v_bfe_u32 v8, v2, 4, 1")
    a("v_lshlrev_b32 v8, 5, v8")
    a("v_and_b32 v10, 3, v2")
    a("v_lshl_add_u32 v8, v10, 3, v8")
    a("v_add_u32 v8, s15, v8")
    a("v_bfe_u32 v10, v2, 3, 1")
    a("v_lshlrev_b32 v10, 6, v10")
    a("v_xor_b32 v8, v8, v10")
    a("v_bfe_u32 v10, v2, 2, 2")
    a("v_lshl_add_u32 v10, v9, 3, v10")
    a("v_lshl_add_u32 v8, v10, 7, v8")
    a("v_add_u32 v136, 16384, v8")
    for r in range(5):
        a(f"v_add_u32 v{140+r}, 0x10000, v{132+r}")
        a(f"v_add_u32 v{148+r}, 0x20000, v{132+r}")
    a("v_lshlrev_b32 v138, 2, v2")
    a("v_and_b32 v146, 28, v138")
    a(f"s_mov_b32 s66, {fhex(LOG2E)}")
    a(f"s_mov_b32 s67, {fhex(1e-6)}")
    srd(a, 52, P_WS, 448 * KT_ROW, WS_KT)
    a("v_lshlrev_b32 v26, 4, v2")
    srd(a, 56, P_WS, 4096, WS_FL)
    srd(a, 60, P_DBG, 256)
    a(f"s_waitcnt vmcnt({8*(UP-1)}) lgkmcnt(0)")
    a("s_barrier")
    stamp(a, 3)
    a("s_cmp_ge_u32 s4, 16")
    a("s_cbranch_scc1 L_q")

    FR = 160
    ACC0, ACC1 = 208, 224
    def main_loop(is_q):
        def adr(c, k):
            so = SLOT_OFF[c % 4]
            if so + SLOT > 65536:
                if so >= 65536: return 140 + k, so - 65536
            return 132 + k, so
        def reads(c, k):
            f = FR + 12 * k
            so = SLOT_OFF[c % 4]
            def pick(reg, off):
                return (reg + 8 * (off >> 16), off & 65535)
            r, o = pick(132 + k, so)
            a(f"ds_read_b128 v[{f}:{f+3}], v{r} offset:{o}")
            for seg in range(2):
                for jj in range(2):
                    d = f + 4 + 4 * seg + 2 * jj
                    r, o = pick(136, so + seg * 8192 + (16 * k + 4 * jj) * 128)
                    a(f"ds_read_b64_tr_b16 v[{d}:{d+1}], v{r} offset:{o}")
        def mfma(c, k):
            f = FR + 12 * k
            for seg, acc in ((0, ACC0), (1, ACC1)):
                wf = f + 4 + 4 * seg
                cin = "0" if (c == 0 and k == 0) else f"v[{acc}:{acc+15}]"
                if is_q:
                    a(f"v_mfma_f32_32x32x16_bf16 v[{acc}:{acc+15}], v[{wf}:{wf+3}], v[{f}:{f+3}], {cin}")
                else:
                    a(f"v_mfma_f32_32x32x16_bf16 v[{acc}:{acc+15}], v[{f}:{f+3}], v[{wf}:{wf+3}], {cin}")
        issued = [UP]
        pend = []
        def plan(b):
            n = issued[0]
            if n <= 6 and (n < 4 or b >= n - 2):
                pend.extend((n, i) for i in range(8))
                issued[0] += 1
        def drip(k):
            if pend:
                items = [pend.pop(0) for _ in range(min(k, len(pend)))]
                only(False, lambda: [dma(*it) for it in items])
        reads(0, 0); reads(0, 1)
        plan(0)
        for c in range(7):
            reads(c, 2)
            a("s_waitcnt lgkmcnt(10)")
            mfma(c, 0)
            drip(4 if c == 0 else 2)
            reads(c, 3)
            a("s_waitcnt lgkmcnt(10)")
            mfma(c, 1)
            drip(8)
            if c == 0:
                only(True, lambda: (kgen_table(a), a("s_waitcnt lgkmcnt(0)")))
            if c == 1:
                only(True, lambda: kgen_expand(a))
            if c < 6:
                a(f"s_waitcnt vmcnt({8*(issued[0]-2-c) if c < 5 else 0})")
                a("s_barrier")
                plan(c + 1)
                if c == 3:
                    only(True, lambda: a("buffer_load_dword v145, v146, s[60:63], 0 offen sc1"))
            a("s_waitcnt lgkmcnt(5)")
            mfma(c, 2)
            drip(2)
            if c < 6:
                reads(c + 1, 0)
                a("s_waitcnt lgkmcnt(5)")
            else:
                a("s_waitcnt lgkmcnt(0)")
            mfma(c, 3)
            drip(2)
            if c < 6:
                reads(c + 1, 1)
            if c == 5:
                L = a.newlabel("Lkf")
                a("s_cmp_lg_u32 s5, 0")
                a(f"s_cbranch_scc1 {L}")
                wait_init(a, 145, 60, True)
                a("s_lshl_b32 s14, s7, 2")
                a(f"s_add_u32 s14, s14, {FL_K}")
                set_flag(a, 14, 1)
                a.label(L)
        stamp(a, 4)

    main_loop(False)
    srd(a, 52, P_WS, 0x10000, WS_KV)
    PK, VV, TMP = 32, 40, 48
    XB = SLOT_OFF[0]
    a("v_lshlrev_b32 v10, 4, v2")
    a("s_lshl_b32 s14, s5, 12")
    a(f"s_add_u32 s14, s14, {XB}")
    a("v_add_u32 v11, s14, v10")
    a("s_and_b32 s14, s5, 3")
    a("s_lshl_b32 s14, s14, 10")
    a("s_lshl_b32 s15, s65, 14")
    a("s_add_u32 s14, s14, s15")
    a(f"s_add_u32 s14, s14, {XB}")
    a("v_add_u32 v12, s14, v138")
    a("s_nop 1")
    phi_pack(a, ACC0, PK, TMP, 66, 67)
    for p in range(8):
        a(f"v_cvt_pk_bf16_f32 v{VV+p}, v{ACC1+2*p}, v{ACC1+2*p+1}")
    a("s_mov_b32 exec_lo, 0x10000000")
    a("s_mov_b32 exec_hi, 0x10000000")
    for p in range(8):
        a(f"v_mov_b32 v{VV+p}, 0x3f803f80")
    a("s_mov_b64 exec, -1")
    a("s_nop 1")
    KV = 56
    a(f"v_mfma_f32_32x32x16_bf16 v[{KV}:{KV+15}], v[{PK}:{PK+3}], v[{VV}:{VV+3}], 0")
    a(f"v_mfma_f32_32x32x16_bf16 v[{KV}:{KV+15}], v[{PK+4}:{PK+7}], v[{VV+4}:{VV+7}], v[{KV}:{KV+15}]")
    a("s_lshl_b32 s14, s9, 1")
    a("s_add_u32 s14, s14, s65")
    a("s_lshl_b32 s14, s14, 12")
    a("s_and_b32 s15, s5, 3")
    a("s_lshl_b32 s15, s15, 10")
    a("s_add_u32 s14, s14, s15")
    a("s_nop 6")
    for q in range(4):
        a(f"ds_write_b128 v11, v[{KV+4*q}:{KV+4*q+3}] offset:{q*1024}")
    a("s_waitcnt lgkmcnt(0)")
    a("s_barrier")
    for i in range(4):
        a(f"ds_read2st64_b32 v[{32+4*i}:{33+4*i}], v12 offset0:{i} offset1:{16+i}")
        a(f"ds_read2st64_b32 v[{34+4*i}:{35+4*i}], v12 offset0:{32+i} offset1:{48+i}")
    for i in range(4):
        a(f"s_waitcnt lgkmcnt({6-2*i})")
        b = 32 + 4 * i
        a(f"v_add_f32 v{b}, v{b}, v{b+1}")
        a(f"v_add_f32 v{b+2}, v{b+2}, v{b+3}")
        a(f"v_add_f32 v{b}, v{b}, v{b+2}")
        a(f"buffer_atomic_add_f32 v{b}, v138, s[52:55], s14 offen offset:{i*256}")
    a("s_waitcnt vmcnt(0)")
    a("s_barrier")
    L = a.newlabel("Lvf")
    a("s_cmp_lg_u32 s5, 0")
    a(f"s_cbranch_scc1 {L}")
    a("s_lshl_b32 s14, s3, 4")
    a("s_add_u32 s14, s14, s4")
    a("s_lshl_b32 s14, s14, 2")
    a(f"s_add_u32 s14, s14, {FL_KV}")
    set_flag(a, 14)
    a.label(L)
    stamp(a, 5)
    a("s_cmp_lt_u32 s4, 14")
    a("s_cbranch_scc1 L_w4")
    stamp_flush(a, 0)
    a("s_endpgm")

    a.label("L_q")
    main_loop(True)
    srd(a, 52, P_WS, 0x200000, WS_PQ)
    a("s_lshl_b32 s14, s8, 2")
    a("s_and_b32 s15, s5, 3")
    a("s_add_u32 s14, s14, s15")
    a("s_lshl_b32 s14, s14, 4")
    a("s_lshl_b32 s15, s9, 2")
    a("s_add_u32 s14, s14, s15")
    a("s_add_u32 s14, s14, s65")
    a("s_lshl_b32 s14, s14, 11")
    a("s_add_u32 s15, s14, 4096")
    a("v_lshlrev_b32 v10, 4, v2")
    phi_pack(a, ACC0, 32, 48, 66, 67)
    a(f"buffer_store_dwordx4 v[32:35], v10, s[52:55], s14 offen{ST}")
    a(f"buffer_store_dwordx4 v[36:39], v10, s[52:55], s14 offen offset:1024{ST}")
    phi_pack(a, ACC1, 40, 48, 66, 67)
    a(f"buffer_store_dwordx4 v[40:43], v10, s[52:55], s15 offen{ST}")
    a(f"buffer_store_dwordx4 v[44:47], v10, s[52:55], s15 offen offset:1024{ST}")
    a("s_waitcnt vmcnt(0)")
    a("s_barrier")
    L = a.newlabel("Lqf")
    a("s_cmp_lg_u32 s5, 0")
    a(f"s_cbranch_scc1 {L}")
    a("s_lshl_b32 s14, s8, 2")
    a("s_add_u32 s14, s14, s9")
    a("s_lshl_b32 s14, s14, 2")
    a(f"s_add_u32 s14, s14, {FL_Q}")
    set_flag(a, 14)
    a.label(L)
    stamp(a, 5)
    a("s_sub_u32 s4, s4, 16")
    a("s_cmp_lt_u32 s4, 6")
    a("s_cbranch_scc1 L_conv")
    stamp_flush(a, 0)
    a("s_endpgm")

def phase1_a(a):
    a.comment("---- A WGs ----")
    a("s_sub_u32 s6, s4, 24")
    a("v_lshlrev_b32 v138, 2, v2")
    a("v_and_b32 v146, 28, v138")
    a("s_cmp_ge_u32 s5, 6")
    a("s_cbranch_scc1 L_ut")
    a("s_cmp_ge_u32 s5, 4")
    a("s_cbranch_scc1 L_touch")
    a("s_mul_i32 s7, s3, 56")
    a("s_lshl_b32 s14, s6, 2")
    a("s_add_u32 s7, s7, s14")
    a("s_add_u32 s7, s7, s5")
    a("s_add_u32 s7, s7, 24")
    a("v_lshlrev_b32 v3, 3, v2")
    a("s_lshl_b32 s14, s7, 9")
    a("v_add_u32 v3, s14, v3")
    a("s_lshl_b32 s14, s7, 1")
    a("v_mov_b32 v4, s14")
    a("s_lshl_b32 s72, s5, 8")
    a(f"s_mul_i32 s13, s5, {TSTR}")
    a(f"s_add_u32 s13, s13, {A_TAB + 16}")
    a("s_waitcnt lgkmcnt(0)")
    stamp(a, 0)
    kgen_load4(a)
    for i in range(16):
        a(f"v_mov_b32 v{ACC+i}, 0")
    kgen_setup(a, 0, True)
    stamp(a, 1)
    a("s_mov_b32 s73, 4")
    a.label("L_apass")
    a("v_mov_b32 v10, v148")
    a("v_mov_b32 v11, v150")
    a("v_mov_b32 v8, v152")
    a("v_mov_b32 v9, v154")
    for r in (148, 150, 152, 154):
        a(f"v_lshrrev_b64 v[{r}:{r+1}], 16, v[{r}:{r+1}]")
    kgen_pass(a, lambda k: None, True)
    a("s_sub_u32 s73, s73, 1")
    a("s_cmp_lg_u32 s73, 0")
    a("s_cbranch_scc1 L_apass")
    stamp(a, 2)
    kgen_scale(a, False)
    kgen_solo(a)
    stamp(a, 3)
    srd(a, 56, P_WS, 4096, WS_FL)
    srd(a, 60, P_DBG, 256)
    wait_init(a, 145, 60, False)
    a("s_lshl_b32 s14, s7, 2")
    a(f"s_add_u32 s14, s14, {FL_K}")
    set_flag(a, 14, 1)
    a("s_branch L_a_done")

    a.label("L_touch")
    a("s_setprio 3")
    a("s_lshl_b32 s8, s6, 1")
    a("s_add_u32 s8, s8, s5")
    a("s_sub_u32 s8, s8, 4")
    a("v_mul_u32_u24 v5, 43, v2")
    a("v_lshrrev_b32 v5, 9, v5")
    a("v_mul_u32_u24 v6, 12, v5")
    a("v_sub_u32 v6, v2, v6")
    a("s_lshl_b32 s9, s8, 2")
    a("v_add_u32 v5, s9, v5")
    a("v_mul_u32_u24 v5, 2688, v5")
    a("v_lshl_add_u32 v5, v6, 7, v5")
    a("v_lshrrev_b32 v6, 2, v6")
    a("v_mul_u32_u24 v6, 384, v6")
    a("v_add_u32 v5, v5, v6")
    T0 = optint("tfrom", 0); WIN = optint("win", 3)
    a("s_and_b32 s9, s3, 1")
    a("s_mul_i32 s9, s9, 384")
    a(f"s_add_u32 s9, s9, {T0*172032}")
    a("s_lshl_b32 s10, s8, 5")
    a("s_lshr_b32 s11, s3, 1")
    a("s_lshl_b32 s11, s11, 9")
    a("s_add_u32 s10, s10, s11")
    a("v_add_u32 v6, s10, v2")
    a("v_mul_u32_u24 v6, 896, v6")
    a(f"s_movk_i32 s10, {T0*128}")
    a("s_waitcnt lgkmcnt(0)")
    stamp(a, 0)
    srd(a, 44, P_X, 2048 * 896)
    srd(a, 48, P_W, 448 * 2688)
    NT = 0 if 'notouch' in OPT else 7 - T0
    for c in range(NT):
        if c >= WIN:
            a(f"s_waitcnt vmcnt({2*(WIN-1)})")
        a("s_mov_b32 exec_hi, 0xffff")
        a("buffer_load_dword v13, v5, s[48:51], s9 offen")
        a("s_mov_b32 exec_hi, 0")
        a("buffer_load_dword v13, v6, s[44:47], s10 offen")
        a("s_add_u32 s9, s9, 172032")
        a("s_add_u32 s10, s10, 128")
    a("s_mov_b64 exec, -1")
    stamp(a, 3)
    srd(a, 48, P_WO, 448 * 896)
    a(f"s_mul_i32 s9, s8, {196*128}")
    a("v_lshlrev_b32 v5, 7, v2")
    a("s_waitcnt vmcnt(2)")
    for i in range(4):
        if i == 3: a("s_mov_b64 exec, 15")
        a("buffer_load_dword v13, v5, s[48:51], s9 offen")
        a("s_add_u32 s9, s9, 8192")
    a("s_mov_b64 exec, -1")
    a("s_setprio 0")
    a("s_branch L_a_done")

    a.label("L_ut")
    a("s_sub_u32 s7, s5, 6")
    a("s_lshl_b32 s9, s3, 3")
    a("s_add_u32 s9, s9, s6")
    a("s_lshl_b32 s9, s9, 1")
    a("s_add_u32 s9, s9, s7")
    a("s_mul_i32 s10, s9, 14336")
    a("s_mul_i32 s11, s7, 14336")
    a(f"s_add_u32 s11, s11, {A_UT}")
    a("v_lshlrev_b32 v4, 4, v2")
    a("v_mov_b32 v8, 0\nv_mov_b32 v9, 0\nv_mov_b32 v10, 0\nv_mov_b32 v11, 0")
    a("s_waitcnt lgkmcnt(0)")
    stamp(a, 0)
    srd(a, 44, P_U, 2048 * 896)
    srd(a, 48, P_WS, UB_IMG, WS_UB)
    srd(a, 52, P_WS, 0x10000, WS_KV)
    srd(a, 56, P_WS, 4096, WS_FL)
    srd(a, 60, P_DBG, 256)
    Lz = a.newlabel("Lnz")
    a("s_cmp_lg_u32 s6, 1")
    a(f"s_cbranch_scc1 {Lz}")
    a("s_cmp_lg_u32 s7, 0")
    a(f"s_cbranch_scc1 {Lz}")
    a("s_lshl_b32 s12, s3, 13")
    for i in range(8):
        a(f"buffer_store_dwordx4 v[8:11], v4, s[52:55], s12 offen offset:{(i%4)*1024} sc1")
        if i == 3: a("s_add_u32 s12, s12, 4096")
    a("s_lshl_b32 s12, s3, 9")
    a("s_mov_b32 exec_hi, 0")
    a("buffer_store_dwordx4 v[8:11], v4, s[56:59], s12 offen sc1")
    a("s_waitcnt vmcnt(0)")
    a("v_mov_b32 v12, 1")
    a("s_lshl_b32 s12, s3, 2")
    a("s_mov_b64 exec, 1")
    a("buffer_store_dword v12, v8, s[60:63], s12 offen sc1")
    a("s_mov_b64 exec, -1")
    a.label(Lz)
    for i in range(14):
        a(f"s_add_u32 m0, s11, {i*1024}")
        a("s_nop 0")
        a("buffer_load_dwordx4 v4, s[44:47], s10 offen lds")
        a("s_add_u32 s10, s10, 1024")
    a("v_bfe_u32 v5, v2, 2, 2")
    a("v_and_b32 v6, 1, v2")
    a("v_lshl_add_u32 v5, v6, 3, v5")
    a("v_mul_u32_u24 v5, 896, v5")
    a("v_lshrrev_b32 v6, 4, v2")
    a("v_lshl_add_u32 v5, v6, 4, v5")
    a("v_bfe_u32 v6, v2, 1, 1")
    a("v_lshl_add_u32 v5, v6, 3, v5")
    a("v_add_u32 v5, s11, v5")
    a("v_lshrrev_b32 v7, 3, v2")
    a("v_lshlrev_b32 v7, 14, v7")
    a("v_and_b32 v6, 7, v2")
    a("v_lshl_add_u32 v7, v6, 4, v7")
    a("s_lshl_b32 s10, s9, 7")
    a("s_waitcnt vmcnt(0)")
    stamp(a, 2)
    UR = 32
    for cg in range(14):
        for jj in range(2):
            d = UR + 4 * cg + 2 * jj
            a(f"ds_read_b64_tr_b16 v[{d}:{d+1}], v5 offset:{cg*64 + jj*3584}")
        if cg == 6: a("s_waitcnt lgkmcnt(4)")
    for cg in range(14):
        if cg >= 7: a(f"s_waitcnt lgkmcnt({2*(13-cg)})")
        elif cg == 5: a("s_waitcnt lgkmcnt(14)")
        d = UR + 4 * cg
        a(f"buffer_store_dwordx4 v[{d}:{d+3}], v7, s[48:51], s10 offen{ST}")
        a(f"s_add_u32 s10, s10, {8*16384}")
    stamp(a, 3)
    wait_init(a, 145, 60, False)
    a("s_lshl_b32 s14, s9, 2")
    set_flag(a, 14, 1)
    a.label("L_a_done")
    stamp(a, 5)
    a("s_add_u32 s4, s6, 6")
    a("s_branch L_conv")

def build():
    from gen10_p2 import p2_w4, p2_conv
    a = Asm()
    hdr = open("cdna_kernels/" + NAME + ".s.ref").read().split("; Override launch")[0]
    a.raw(hdr.rstrip("\n"))
    a.raw(f"; @launch grid=(256,1,1) block=(512,1,1) lds=163840")
    a.raw('.amdgcn_target "amdgcn-amd-amdhsa--gfx950"')
    a.raw(".text")
    a.raw(f".globl {KN}\n.p2align 8\n.type {KN},@function")
    a.label(KN)
    a("s_cmp_ge_u32 s2, 256")
    a("s_cbranch_scc1 L_end")
    stamp_init(a)
    a("s_load_dwordx16 s[16:31], s[0:1], 0")
    a("s_load_dwordx8 s[32:39], s[0:1], 64")
    a("s_load_dwordx2 s[40:41], s[0:1], 96")
    a("v_lshrrev_b32 v1, 6, v0")
    a("v_and_b32 v2, 63, v0")
    a("s_and_b32 s3, s2, 7")
    a("s_lshr_b32 s4, s2, 3")
    a("v_readfirstlane_b32 s5, v1")
    a("s_and_b32 s6, s4, 3")
    a("s_cmp_lg_u32 s6, 0")
    a("s_cbranch_scc1 L_nopf")
    a("s_cmp_ge_u32 s5, 4")
    a("s_cbranch_scc1 L_nopf")
    a("s_getpc_b64 s[60:61]")
    a.label("L_pc")
    a(f"s_sub_u32 s60, s60, L_pc-{KN}")
    a("s_subb_u32 s61, s61, 0")
    a("v_lshlrev_b32 v250, 7, v0")
    a("global_load_dword v251, v250, s[60:61]")
    a.label("L_nopf")
    a("s_cmp_ge_u32 s4, 24")
    a("s_cbranch_scc1 L_a")
    phase1_gemm(a)
    a.label("L_a")
    phase1_a(a)
    a.label("L_w4")
    p2_w4(a)
    a.label("L_conv")
    p2_conv(a)
    a.label("L_end")
    a("s_endpgm")
    a.raw("  .fill 2048, 4, 0xbf800000")
    a.raw('.section .rodata,"a"')
    a.raw(f""".p2align 6
.amdhsa_kernel {KN}
  .amdhsa_next_free_vgpr 256
  .amdhsa_next_free_sgpr 100
  .amdhsa_accum_offset 256
  .amdhsa_group_segment_fixed_size 0
  .amdhsa_kernarg_size 104
  .amdhsa_user_sgpr_count 2
  .amdhsa_user_sgpr_kernarg_segment_ptr 1
  .amdhsa_system_sgpr_workgroup_id_x 1
.end_amdhsa_kernel""")
    return a.text()

if __name__ == "__main__":
    if "stamps" in OPT: asmlib.STAMPS = True
    open(sys.argv[1], "w").write(build())
```

```python
import sys
from asmlib import *
import gen12 as G
from gen12 import srd, P_WS, P_WO, P_OUT, WS_KV, WS_PQ, WS_KT, WS_UB, UB_IMG, KT_ROW, WS_FL, FL_U, FL_KV, FL_Q, FL_K, FSH, FL_BYTES

def poll(a, loads, drain=False):
    L, Ls = a.newlabel("Lpo"), a.newlabel("Lps")
    n = len(loads)
    Lp_ = a.newlabel("Lpp")
    a("s_cmp_eq_u32 s5, 0")
    a(f"s_cbranch_scc1 {Lp_}")
    if drain: a("s_waitcnt vmcnt(0)")
    a(f"s_branch {Ls}")
    a.label(Lp_)
    a("s_movk_i32 s64, 4000")
    def issue(b):
        for i, (v, so) in enumerate(loads):
            a(f"buffer_load_dword v{b+i}, v{v}, s[68:71], {so} offen sc1")
    def check(b):
        a(f"s_waitcnt vmcnt({n})")
        for i in range(1, n):
            a(f"v_and_b32 v{b}, v{b}, v{b+i}")
        a(f"v_cmp_ne_u32 vcc, 1, v{b}")
        a("s_sub_u32 s64, s64, 1")
        a(f"s_cbranch_scc1 {Ls}")
        a(f"s_cbranch_vccz {Ls}")
    SL = G.optint("sl", 0)
    if SL:
        a.label(L)
        issue(240)
        a("s_waitcnt vmcnt(0)")
        check(240)
        a(f"s_sleep {SL}")
        a(f"s_branch {L}")
    else:
        issue(240)
        a("s_sleep 6")
        a.label(L)
        issue(244)
        check(240)
        issue(240)
        check(244)
        a(f"s_branch {L}")
    a.label(Ls)
    a("s_barrier")

def p2_w4(a):
    WO_L, KVF_L, PART_L = 0, 57344, 90112
    PSTR = 272
    PHALF = 128 * PSTR
    stamp_mid(a)
    a("s_mov_b32 s6, s4")
    a("s_cmp_ge_u32 s6, 7")
    a("s_cselect_b32 s7, 1, 0")
    a("s_lshl_b32 s8, s3, 1")
    a("s_add_u32 s8, s8, s7")
    a("s_mul_i32 s7, s7, 7")
    a("s_sub_u32 s9, s6, s7")
    a("s_and_b32 s10, s5, 3")
    a("s_lshr_b32 s11, s5, 2")
    srd(a, 44, P_WS, 0x10000, WS_KV)
    srd(a, 48, P_WS, 0x200000, WS_PQ)
    srd(a, 52, P_WO, 448 * 896)
    srd(a, 56, P_OUT, 2048 * 1792)
    srd(a, 68, P_WS, FL_BYTES, WS_FL)
    a("v_lshrrev_b32 v5, 3, v2")
    a("v_bfe_u32 v6, v2, 4, 1")
    a("v_lshlrev_b32 v6, 2, v6")
    a("v_and_b32 v7, 7, v2")
    a("v_xor_b32 v6, v6, v7")
    a("v_lshlrev_b32 v6, 4, v6")
    a("s_mul_i32 s60, s10, 112")
    a("s_mul_i32 s61, s11, 14")
    a("s_add_u32 s60, s60, s61")
    a("s_mul_i32 s60, s60, 896")
    a("s_lshl_b32 s61, s9, 7")
    a("s_add_u32 s60, s60, s61")
    a("s_mul_i32 s61, s5, 7168")
    for i in range(7):
        a(f"v_add_u32 v7, {8*i}, v5")
        a("v_mul_u32_u24 v15, 37, v7")
        a("v_lshrrev_b32 v15, 9, v15")
        a("v_mad_u32_u24 v7, v15, 14, v7")
        a("v_mul_u32_u24 v7, 896, v7")
        a("v_add_u32 v7, v7, v6")
        a(f"s_add_u32 m0, s61, {WO_L + i*1024}")
        a("s_nop 0")
        a("buffer_load_dwordx4 v7, s[52:55], s60 offen lds")
    a("v_and_b32 v4, 3, v2")
    a(f"v_lshlrev_b32 v8, {FSH}, v4")
    a("v_bfe_u32 v5, v2, 3, 2")
    a("v_lshl_add_u32 v4, v5, 2, v4")
    a("v_bfe_u32 v5, v2, 2, 1")
    a("v_add_u32 v6, 2, v4")
    a("v_lshrrev_b32 v6, 4, v6")
    a("v_or_b32 v5, v5, v6")
    a("v_mad_u32_u24 v4, v5, 14, v4")
    a("v_and_b32 v5, 32, v2")
    a("v_add_lshl_u32 v3, v4, v5, 4")
    a("v_lshlrev_b32 v4, 4, v2")
    a(f"v_lshlrev_b32 v9, {FSH}, v2")
    a("s_lshl_b32 s12, s5, 13")
    a("s_add_u32 s13, s12, 4096")
    a("s_lshl_b32 s14, s8, 2")
    a("s_add_u32 s14, s14, s10")
    a("s_lshl_b32 s14, s14, 4")
    a("s_lshl_b32 s15, s11, 3")
    a("s_add_u32 s14, s14, s15")
    a("s_lshl_b32 s14, s14, 11")
    a(f"s_lshl_b32 s15, s8, {2 + FSH}")
    a(f"s_add_u32 s15, s15, {FL_Q}")
    KVR = 64
    PQR = 96
    a(f"s_mov_b32 s62, {FL_KV}")
    a(f"s_mov_b32 s63, {FL_KV + (64 << FSH)}")
    a("s_lshl_b32 s60, s6, 3")
    a("s_add_u32 s60, s60, s5")
    a("s_mul_i32 s60, s60, 640")
    a("s_lshl_b32 s61, s9, 3")
    a("s_add_u32 s61, s61, s5")
    a("s_mul_i32 s61, s61, 2432")
    a("s_lshl_b32 s65, s8, 17")
    a("s_add_u32 s61, s61, s65")
    a("v_lshlrev_b32 v10, 7, v2")
    a("s_lshl_b32 s65, s5, 12")
    a(f"s_add_u32 s65, s65, {KVF_L}")
    a("v_add_u32 v11, s65, v4")
    a("s_lshl_b32 s65, s11, 14")
    a(f"s_add_u32 s65, s65, {KVF_L}")
    a("v_add_u32 v5, s65, v4")
    a("v_lshrrev_b32 v6, 5, v2")
    a("v_mul_u32_u24 v6, 224, v6")
    a("v_bfe_u32 v7, v2, 2, 2")
    a("v_add_u32 v6, v6, v7")
    a("s_mul_i32 s65, s11, 112")
    a("v_add_u32 v6, s65, v6")
    a("v_lshlrev_b32 v6, 7, v6")
    a("v_bfe_u32 v7, v2, 4, 1")
    a("v_lshlrev_b32 v7, 5, v7")
    a("v_and_b32 v12, 3, v2")
    a("v_lshl_add_u32 v7, v12, 3, v7")
    a("v_bfe_u32 v12, v2, 3, 1")
    a("v_lshl_add_u32 v7, v12, 6, v7")
    a("v_add_u32 v6, v6, v7")
    a("v_xor_b32 v7, 64, v6")
    poll(a, [(8, "s15"), (9, "s62"), (9, "s63")])
    stamp(a, 0)
    a("s_mov_b64 exec, 31")
    a("buffer_load_dword v12, v10, s[44:47], s60 offen")
    a("s_mov_b64 exec, 0x7ffff")
    a("buffer_load_dword v13, v10, s[48:51], s61 offen")
    a("s_mov_b64 exec, -1")
    a(f"s_mov_b32 s62, {fhex(1e-6)}")
    a("s_waitcnt vmcnt(0)")
    stamp(a, 1)
    for hh in range(2):
        for q in range(4):
            d = KVR + 16 * hh + 4 * q
            a(f"buffer_load_dwordx4 v[{d}:{d+3}], v3, s[44:47], s{12+hh} offen offset:{q*1024}")
    def pq(i0, i1):
        for i in range(i0, i1):
            a(f"buffer_load_dwordx4 v[{PQR+4*i}:{PQR+4*i+3}], v4, s[48:51], s14 offen offset:{(i%4)*1024}")
            if i % 4 == 3 and i != 15:
                a("s_add_u32 s14, s14, 4096")
    pq(0, 4)
    a("s_waitcnt vmcnt(4)")
    for i in range(16):
        a(f"v_cvt_pk_bf16_f32 v{32+i}, v{KVR+2*i}, v{KVR+2*i+1}")
    a("s_mov_b32 exec_lo, 0")
    for hh in range(2):
        a(f"v_mov_b32 v{32+8*hh+6}, 0")
        a(f"v_mov_b32 v{32+8*hh+7}, 0")
    a("s_mov_b64 exec, -1")
    for i in range(4):
        a(f"ds_write_b128 v11, v[{32+4*i}:{35+4*i}] offset:{i*1024}")
    pq(4, 8)
    a("s_waitcnt lgkmcnt(0)")
    a("s_barrier")
    KF = 160
    for i in range(16):
        a(f"ds_read_b128 v[{KF+4*i}:{KF+4*i+3}], v5 offset:{i*1024}")
        if i == 11: a("s_waitcnt lgkmcnt(8)")
    N0, N1 = 32, 48
    D0, D1 = 224, 240
    OFB = PQR - 8
    WF = 8
    def num(hI):
        D = N0 if hI % 2 == 0 else N1
        k = KF + 8 * hI; p = PQR + 8 * hI
        a(f"v_mfma_f32_32x32x16_bf16 v[{D}:{D+15}], v[{k}:{k+3}], v[{p}:{p+3}], 0")
        a(f"v_mfma_f32_32x32x16_bf16 v[{D}:{D+15}], v[{k+4}:{k+7}], v[{p+4}:{p+7}], v[{D}:{D+15}]")
    def fin_ops(hI):
        D = N0 if hI % 2 == 0 else N1
        o = [f"v_add_f32 v64, s62, v{D+14}", "v_rcp_f32 v64, v64", "s_nop 0"]
        for p in range(7):
            o.append(f"v_mul_f32 v{D+2*p}, v{D+2*p}, v64")
            o.append(f"v_mul_f32 v{D+2*p+1}, v{D+2*p+1}, v64")
        for p in range(7):
            o.append(f"v_cvt_pk_bf16_f32 v{OFB+7*hI+p}, v{D+2*p}, v{D+2*p+1}")
        return o
    def rd(k):
        f = WF + 8 * (k % 3)
        for nt in range(2):
            for jj in range(2):
                d = f + 4 * nt + 2 * jj
                a(f"ds_read_b64_tr_b16 v[{d}:{d+1}], v{6+nt} offset:{WO_L + k*1024 + jj*512}")
    def og(k):
        f = WF + 8 * (k % 3)
        o = OFB + 4 * k
        r = []
        for nt, D in ((0, D0), (1, D1)):
            cin = "0" if k == 0 else f"v[{D}:{D+15}]"
            r.append(f"v_mfma_f32_32x32x16_bf16 v[{D}:{D+15}], v[{f+4*nt}:{f+4*nt+3}], v[{o}:{o+3}], {cin}")
        return r
    a("s_waitcnt vmcnt(6) lgkmcnt(0)")
    stamp(a, 2)
    num(0)
    rd(0); rd(1)
    kdone = 0
    nrd = 2
    for hI in range(8):
        if hI < 4:
            pq(8 + 2 * hI, 10 + 2 * hI)
        if hI < 7:
            npq = min(16, 10 + 2 * hI)
            a(f"s_waitcnt vmcnt({npq - 2*(hI+2)})")
            num(hI + 1)
        avail = (14 * hI) // 8
        ms = []
        ks = list(range(kdone, avail))
        ops = fin_ops(hI)
        step = max(1, len(ops) // (len(ks) + 1)) if ks else len(ops)
        pos = 0
        for kk in ks:
            for o_ in ops[pos:pos + step]: a(o_)
            pos += step
            a(f"s_waitcnt lgkmcnt({4*(nrd-1-kk)})")
            for m_ in og(kk): a(m_)
            if nrd < 14:
                rd(nrd); nrd += 1
        for o_ in ops[pos:]: a(o_)
        kdone = avail
    stamp(a, 3)
    a("s_nop 1")
    for kk in range(kdone, 14):
        a(f"s_waitcnt lgkmcnt({4*(nrd-1-kk)})")
        for m_ in og(kk): a(m_)
        if nrd < 14:
            rd(nrd); nrd += 1
    stamp(a, 4)
    a("v_and_b32 v6, 31, v2")
    a("s_lshl_b32 s12, s10, 5")
    a("v_add_u32 v6, s12, v6")
    a(f"v_mul_u32_u24 v6, {PSTR}, v6")
    a("v_lshrrev_b32 v7, 5, v2")
    a("v_lshl_add_u32 v6, v7, 4, v6")
    a(f"s_mul_i32 s12, s11, {PHALF}")
    a(f"s_add_u32 s12, s12, {PART_L}")
    a("v_add_u32 v6, s12, v6")
    a("v_lshrrev_b32 v8, 3, v0")
    a("v_and_b32 v9, 7, v0")
    a(f"v_mul_u32_u24 v10, {PSTR}, v8")
    a("v_lshl_add_u32 v10, v9, 5, v10")
    a(f"v_add_u32 v10, {PART_L}, v10")
    a("v_mul_u32_u24 v11, 1792, v8")
    a("v_lshl_add_u32 v11, v9, 4, v11")
    a(f"s_mul_i32 s12, s8, {128*1792}")
    a("s_lshl_b32 s13, s9, 7")
    a("s_add_u32 s12, s12, s13")
    a("s_add_u32 s12, s12, 896")
    a(f"s_add_u32 s13, s12, {64*1792}")
    for nt, D in ((0, D0), (1, D1)):
        for q in range(4):
            a(f"ds_write_b128 v6, v[{D+4*q}:{D+4*q+3}] offset:{nt*128 + q*32}")
    a("s_waitcnt lgkmcnt(0)")
    a("s_barrier")
    for t in range(2):
        for h in range(2):
            for u in range(2):
                d = 64 + 16 * t + 8 * h + 4 * u
                a(f"ds_read_b128 v[{d}:{d+3}], v10 offset:{t*64*PSTR + h*PHALF + u*16}")
    for t in range(2):
        a(f"s_waitcnt lgkmcnt({4 - 4*t})")
        b = 64 + 16 * t
        for i in range(8):
            a(f"v_add_f32 v{b+i}, v{b+i}, v{b+8+i}")
        for i in range(4):
            a(f"v_cvt_pk_bf16_f32 v{96+4*t+i}, v{b+2*i}, v{b+2*i+1}")
        a(f"buffer_store_dwordx4 v[{96+4*t}:{99+4*t}], v11, s[56:59], s{12+t} offen" + (" sc1" if "osc" in G.OPT else ""))
    stamp(a, 5)
    stamp_flush(a, 1)
    a("s_endpgm")

U_L = 0
KS = 4288
KI_L = 288 * 64
EPA_L = KI_L + 16 * KS
EPB_L = EPA_L + 32768

def p2_conv(a):
    a.comment("---- conv role ----")
    stamp_mid(a)
    a("s_lshl_b32 s6, s3, 6")
    a("s_lshl_b32 s7, s4, 2")
    a("s_add_u32 s6, s6, s7")
    a("s_and_b32 s7, s5, 3")
    a("s_lshr_b32 s8, s5, 2")
    a("v_lshrrev_b32 v3, 4, v2")
    a("v_sub_u32 v3, v2, v3")
    a("v_and_b32 v3, 3, v3")
    a("v_and_b32 v4, 60, v2")
    a("v_add_lshl_u32 v3, v3, v4, 4")
    a("s_lshl_b32 s9, s5, 10")
    a("s_lshl_b32 s10, s6, 12")
    a("s_add_u32 s9, s9, s10")
    a("s_lshl_b32 s10, s5, 10")
    a(f"s_add_u32 s10, s10, {U_L + 2048}")
    a("v_lshlrev_b32 v4, 4, v2")
    a("s_add_u32 s11, s6, s7")
    a(f"s_mul_i32 s11, s11, {KT_ROW}")
    a("s_lshl_b32 s12, s7, 2")
    a("s_add_u32 s12, s12, s8")
    a(f"s_mul_i32 s12, s12, {KS}")
    a(f"s_add_u32 s12, s12, {KI_L}")
    a("v_mov_b32 v8, 0\nv_mov_b32 v9, 0\nv_mov_b32 v10, 0\nv_mov_b32 v11, 0")
    srd(a, 44, P_WS, UB_IMG, WS_UB)
    srd(a, 48, P_WS, 448 * KT_ROW, WS_KT)
    srd(a, 52, P_OUT, 2048 * 1792)
    srd(a, 68, P_WS, FL_BYTES, WS_FL)
    a(f"v_lshlrev_b32 v5, {FSH}, v2")
    a(f"v_and_b32 v6, {3 << FSH}, v5")
    a(f"s_lshl_b32 s13, s6, {FSH}")
    a(f"s_add_u32 s13, s13, {FL_K}")
    a(f"s_mov_b32 s14, {64 << FSH}")
    a("s_waitcnt lgkmcnt(0)")
    poll(a, [(5, "0"), (5, "s14"), (6, "s13")], True)
    Lq = a.newlabel("Lnq")
    a("s_cmp_lg_u32 s5, 1")
    a(f"s_cbranch_scc1 {Lq}")
    a("s_cmp_eq_u32 s66, 0")
    a(f"s_cbranch_scc1 {Lq}")
    a("v_mov_b32 v7, 1")
    a("s_mov_b64 exec, 1")
    a("buffer_store_dword v7, v5, s[68:71], s66 offen sc1")
    a("s_mov_b64 exec, -1")
    a.label(Lq)
    stamp(a, 0)
    def kdma(i, sh):
        a(f"s_add_u32 s13, s11, {i*1024 + 4*sh}")
        a(f"s_add_u32 m0, s12, {2*KS*sh + i*1024}")
        a("s_nop 0")
        a("buffer_load_dwordx4 v4, s[48:51], s13 offen lds")
    def udma(h):
        if h: a("s_add_u32 s9, s9, 8192")
        a(f"s_add_u32 m0, s10, {h*8192}")
        a("s_nop 0")
        a("buffer_load_dwordx4 v3, s[44:47], s9 offen lds")
    KR_ = 212
    def kreg(i):
        r = KR_ + 8 * i
        a(f"buffer_load_dwordx4 v[{r}:{r+3}], v4, s[48:51], s11 offen offset:{i*1024}")
        a(f"buffer_load_dwordx2 v[{r+4}:{r+5}], v4, s[48:51], s11 offen offset:{i*1024+16}")
    Lh, Lj = a.newlabel("Lch"), a.newlabel("Lcj")
    a("s_cmp_lg_u32 s8, 0")
    a(f"s_cbranch_scc1 {Lh}")
    udma(0); kdma(3, 0); kdma(3, 1); kdma(2, 0); kdma(2, 1)
    udma(1); kdma(1, 0); kdma(1, 1); kdma(0, 0); kdma(0, 1)
    a(f"s_branch {Lj}")
    a.label(Lh)
    udma(0); kreg(3); kreg(2)
    udma(1); kreg(1); kreg(0)
    a.label(Lj)
    a("v_add_u32 v20, s12, v4")
    def kbuild(i):
        r = KR_ + 8 * i; o = 244
        for k_ in range(5):
            a(f"v_alignbyte_b32 v{o+k_}, v{r+k_+1}, v{r+k_}, 2")
        for k_ in range(3):
            a(f"v_mov_b32 v{o+8+k_}, v{o+1+k_}")
        a(f"v_mov_b32 v{o+11}, v{o+4}")
        a(f"ds_write_b128 v20, v[{o}:{o+3}] offset:{i*1024}")
        a(f"ds_write_b128 v20, v[{o+8}:{o+11}] offset:{2*KS + i*1024}")
    a("s_lshl_b32 s13, s5, 10")
    a("v_add_u32 v5, s13, v4")
    a("s_cmp_lt_u32 s5, 2")
    a("s_cselect_b32 s14, -1, 0")
    a("s_cselect_b32 s15, -1, 0")
    a("s_mov_b64 exec, s[14:15]")
    a("ds_write_b128 v5, v[8:11]")
    a("s_mov_b64 exec, 15")
    a("v_add_u32 v5, s12, v4")
    a("ds_write_b128 v5, v[8:11] offset:4096")
    a(f"ds_write_b128 v5, v[8:11] offset:{4096 + 2*KS}")
    a("s_mov_b64 exec, -1")
    a("v_and_b32 v5, 15, v2")
    a("v_lshrrev_b32 v7, 4, v2")
    a("v_lshl_add_u32 v6, v5, 1, v7")
    a("s_lshl_b32 s13, s8, 4")
    a("s_sub_u32 s13, 30, s13")
    a("v_add_u32 v6, s13, v6")
    SAD = 12
    for it in range(4):
        a(f"v_subrev_u32 v8, {4*it}, v6")
        a("v_lshrrev_b32 v9, 2, v8")
        a("v_add_u32 v9, s7, v9")
        a("v_and_b32 v9, 3, v9")
        a("v_lshlrev_b32 v9, 4, v9")
        a(f"v_lshl_add_u32 v{SAD+it}, v8, 6, v9")
    a("v_sub_u32 v8, 3, v5")
    a("v_and_b32 v8, 3, v8")
    a(f"v_mul_u32_u24 v16, {KS}, v8")
    a("v_add_u32 v8, v8, v5")
    a("v_lshlrev_b32 v9, 3, v7")
    a("v_sub_u32 v9, v9, v8")
    a("v_lshl_add_u32 v16, v9, 1, v16")
    a(f"s_mul_i32 s13, s7, {4*KS}")
    a("s_lshl_b32 s14, s8, 8")
    a("s_sub_u32 s13, s13, s14")
    a(f"s_add_u32 s13, s13, {KI_L + 2*2031 - 512*7 - 64*3}")
    a("v_add_u32 v16, s13, v16")
    a("s_lshl_b32 s13, s5, 12")
    a(f"s_add_u32 s13, s13, {EPA_L}")
    a("v_add_u32 v17, s13, v4")
    a("v_lshlrev_b32 v18, 3, v0")
    a(f"v_add_u32 v18, {EPA_L}, v18")
    a("v_lshrrev_b32 v8, 5, v0")
    a("v_lshlrev_b32 v8, 6, v8")
    a("v_and_b32 v9, 1, v0")
    a("v_lshl_add_u32 v8, v9, 5, v8")
    a("v_bfe_u32 v9, v0, 1, 4")
    a("v_add_u32 v8, v8, v9")
    a("v_mul_u32_u24 v19, 1792, v8")
    a("s_lshl_b32 s60, s6, 1")
    a(f"s_add_u32 s61, s60, {16*1792}")
    a("s_waitcnt vmcnt(5)")
    Lb = a.newlabel("Lnb1")
    a("s_cmp_eq_u32 s8, 0")
    a(f"s_cbranch_scc1 {Lb}")
    kbuild(3); kbuild(2)
    a.label(Lb)
    a("s_waitcnt lgkmcnt(0)")
    a("s_barrier")
    stamp(a, 1)
    ACC = 32
    FA = 64
    FB = [192, 224]
    def sreg(it, k): return FA + 32 * it + 4 * k if k < 4 else FB[it % 2] + 4 * (k - 4)
    def freg(it, k): return sreg(it, k) + 16
    def rd_list(it, ks):
        ops = []
        for k_ in ks:
            s_ = sreg(it, k_); f = freg(it, k_)
            ops.append(f"ds_read_b128 v[{s_}:{s_+3}], v{SAD+it} offset:{2048*k_}")
            for jj in range(2):
                d = f + 2 * jj
                ops.append(f"ds_read_b64 v[{d}:{d+1}], v16 offset:{512*(7-k_) + 8*jj + 64*(3-it)}")
        return ops
    first = set()
    def mf(it, v, w):
        d = ACC + 4 * (v + w)
        cin = f"v[{d}:{d+3}]" if d in first else "0"
        first.add(d)
        s_ = sreg(it, v); f = freg(it, w)
        a(f"v_mfma_f32_16x16x32_bf16 v[{d}:{d+3}], v[{s_}:{s_+3}], v[{f}:{f+3}], {cin}")
    R = ACC
    def store_ops():
        ops = []
        for c in range(4):
            for r in range(2):
                ops.append(f"v_add_f32 v{R+2*c+r}, v{R+2*c+r}, v{R+8+2*c+r}")
        for r in range(2):
            ops.append(f"v_cvt_pk_bf16_f32 v{22+2*r}, v{R+r}, v{R+2+r}")
            ops.append(f"v_cvt_pk_bf16_f32 v{23+2*r}, v{R+4+r}, v{R+6+r}")
            ops.append(f"buffer_store_dwordx2 v[{22+2*r}:{23+2*r}], v19, s[52:55], s{60+r} offen" + (" sc1" if "csc" in G.OPT else (" nt" if "cnt" in G.OPT else "")))
        return ops
    pa = sorted([(v, w) for v in range(4) for w in range(4) if v + w <= 3], key=lambda p: (p[1], p[0]))
    for o in rd_list(0, range(4)): a(o)
    for it in range(4):
        nxt = rd_list(it + 1, range(4)) if it < 3 else []
        for o in nxt[:3]: a(o)
        a(f"s_waitcnt lgkmcnt({3 if nxt else 0})")
        nxt = nxt[3:]
        for i, (v, w) in enumerate(pa):
            mf(it, v, w)
            if nxt: a(nxt.pop(0))
    a("s_waitcnt vmcnt(0)")
    Lb2 = a.newlabel("Lnb2")
    a("s_cmp_eq_u32 s8, 0")
    a(f"s_cbranch_scc1 {Lb2}")
    kbuild(1); kbuild(0)
    a.label(Lb2)
    a("s_nop 4")
    for n in range(4):
        a(f"ds_write_b128 v17, v[{ACC+4*n}:{ACC+4*n+3}] offset:{n*1024}")
    a("s_waitcnt lgkmcnt(0)")
    a("s_barrier")
    stamp(a, 2)
    pb = [(v, w) for v in range(8) for w in range(8) if 4 <= v + w <= 7]
    pb_old = sorted([p for p in pb if p[0] < 4 and p[1] < 4], key=lambda p: (p[1], p[0]))
    pb_new = sorted([p for p in pb if not (p[0] < 4 and p[1] < 4)], key=lambda p: (max(p), p[1], p[0]))
    def spread(lst):
        out = []; lst = list(lst)
        while lst:
            for i, p in enumerate(lst):
                if not out or (p[0] + p[1]) != (out[-1][0] + out[-1][1]):
                    out.append(lst.pop(i)); break
            else:
                out.append(lst.pop(0))
        return out
    pb_old, pb_new = spread(pb_old), spread(pb_new)
    for o in rd_list(0, range(4, 8)): a(o)
    for it in range(4):
        pre = []
        if it == 0:
            pre = [f"ds_read_b64 v[{R+2*w}:{R+2*w+1}], v18 offset:{w*4096}" for w in range(8)]
        for (v, w) in pb_old:
            mf(it, v, w)
        a("s_waitcnt lgkmcnt(0)")
        fill = pre + (rd_list(it + 1, range(4, 8)) if it < 3 else [])
        ex = store_ops() if it == 1 else []
        cnt = 0
        for (v, w) in pb_new:
            mf(it, v, w)
            if fill:
                a(fill.pop(0)); cnt += 1
                if cnt == 12: a("s_waitcnt lgkmcnt(8)")
            if ex: a(ex.pop(0))
        for o in fill + ex: a(o)
    stamp(a, 4)
    a(f"s_add_u32 s60, s60, {1024*1792}")
    a(f"s_add_u32 s61, s61, {1024*1792}")
    a("s_nop 5")
    for n in range(4):
        a(f"ds_write_b128 v17, v[{ACC+16+4*n}:{ACC+16+4*n+3}] offset:{32768 + n*1024}")
    a("s_waitcnt lgkmcnt(0)")
    a("s_barrier")
    for w in range(8):
        a(f"ds_read_b64 v[{R+2*w}:{R+2*w+1}], v18 offset:{32768 + w*4096}")
    a("s_waitcnt lgkmcnt(0)")
    for o in store_ops(): a(o)
    stamp(a, 5)
    stamp_flush(a, 1)
    a("s_endpgm")
```

```python
import sys, math, struct
from asmlib import *
import asmlib

NAME = "concat_heads__ssm_conv_s4d__linear_attn_block__prompt"
KN = NAME + "_kernel"
OPT = set(sys.argv[2:])
def optint(prefix, default):
    v = [o for o in OPT if o.startswith(prefix) and o[len(prefix):].isdigit()]
    return int(v[0][len(prefix):]) if v else default

WS_KV = 0x0
WS_PQ = 0x10000
WS_KT = 0x210000
KT_ROW = 4224
WS_UB = 0x600000
UB_IMG = 256 * 448 * 16
WS_FL = 0x800000
FSH = optint("fsh", 2)
FL_U, FL_KV, FL_Q, FL_K = 0, 128 << FSH, 256 << FSH, 512 << FSH
FL_BYTES = 1024 << FSH
LOG2E = 1.4426950408889634
INV2PI = 0.15915494309189535
C_HI = struct.unpack("<f", struct.pack("<f", INV2PI))[0]
C_LO = INV2PI - C_HI
ST = " sc1"
P_U, P_LA, P_AI, P_CR, P_CI, P_LDT, P_D, P_X, P_W, P_WO, P_OUT, P_DBG, P_WS = 16, 18, 20, 22, 24, 26, 28, 30, 32, 34, 36, 38, 40

def srd(a, d, p, nbytes, off=0):
    if off:
        a(f"s_add_u32 s{d}, s{p}, 0x{off:x}")
        a(f"s_addc_u32 s{d+1}, s{p+1}, 0")
    else:
        a(f"s_mov_b32 s{d}, s{p}")
        a(f"s_mov_b32 s{d+1}, s{p+1}")
    a(f"s_mov_b32 s{d+2}, 0x{nbytes:x}")
    a(f"s_mov_b32 s{d+3}, 0x20000")

def prefetch_code(a, n, vtmp, stmp):
    lab = a.newlabel("Lpc")
    a(f"s_getpc_b64 s[{stmp}:{stmp+1}]")
    a.label(lab)
    a(f"s_sub_u32 s{stmp}, s{stmp}, {lab}-{KN}")
    a(f"s_subb_u32 s{stmp+1}, s{stmp+1}, 0")
    a(f"v_lshlrev_b32 v{vtmp}, 7, v2")
    for i in range(n):
        a(f"global_load_dword v{vtmp+1}, v{vtmp}, s[{stmp}:{stmp+1}]")
        if i < n - 1:
            a(f"v_add_u32 v{vtmp}, 8192, v{vtmp}")

def phi_pack(a, acc, dst, tmp, s_log2e, s_eps):
    for p in range(0, 8, 2):
        t = tmp
        for q in range(2):
            r = 2 * (p + q)
            a(f"v_cvt_pk_bf16_f32 v{t+4*q}, v{acc+r}, v{acc+r+1}")
        for q in range(2):
            a(f"v_and_b32 v{t+4*q+1}, 0xffff0000, v{t+4*q}")
            a(f"v_lshlrev_b32 v{t+4*q}, 16, v{t+4*q}")
        for q in range(2):
            a(f"v_mul_f32 v{t+4*q+2}, s{s_log2e}, v{t+4*q}")
            a(f"v_mul_f32 v{t+4*q+3}, s{s_log2e}, v{t+4*q+1}")
        for q in range(2):
            a(f"v_exp_f32_e64 v{t+4*q+2}, v{t+4*q+2} clamp")
            a(f"v_exp_f32_e64 v{t+4*q+3}, v{t+4*q+3} clamp")
        for q in range(2):
            a(f"v_max_f32 v{t+4*q}, s{s_eps}, v{t+4*q}")
            a(f"v_max_f32 v{t+4*q+1}, s{s_eps}, v{t+4*q+1}")
        for q in range(2):
            a(f"v_add_f32 v{t+4*q}, v{t+4*q}, v{t+4*q+2}")
            a(f"v_add_f32 v{t+4*q+1}, v{t+4*q+1}, v{t+4*q+3}")
        for q in range(2):
            a(f"v_cvt_pk_bf16_f32 v{dst+p+q}, v{t+4*q}, v{t+4*q+1}")

def cmul_ops(d, x, y):
    return [f"v_pk_mul_f32 v[{d}:{d+1}], v[{x}:{x+1}], v[{y}:{y+1}] op_sel:[0,0] op_sel_hi:[1,0]",
            f"v_pk_fma_f32 v[{d}:{d+1}], v[{x}:{x+1}], v[{y}:{y+1}], v[{d}:{d+1}] op_sel:[1,1,0] op_sel_hi:[0,1,1] neg_lo:[1,0,0]"]
def hmul_ops(d, x, y):
    return [f"v_pk_mul_f16 v{d}, v{x}, v{y} op_sel:[0,0] op_sel_hi:[1,0]",
            f"v_pk_fma_f16 v{d}, v{x}, v{y}, v{d} op_sel:[1,1,0] op_sel_hi:[0,1,1] neg_lo:[1,0,0]"]
def interleave(a, streams):
    idx = [0] * len(streams)
    live = True
    while live:
        live = False
        for i, s in enumerate(streams):
            if idx[i] < len(s):
                a(s[idx[i]]); idx[i] += 1; live = True

def wait_init(a, v, sdbg, pre):
    L, Lk = a.newlabel("Lwi"), a.newlabel("Lwik")
    a("s_movk_i32 s64, 3000")
    if not pre:
        a(f"buffer_load_dword v{v}, v{v+1}, s[{sdbg}:{sdbg+3}], 0 offen sc1")
    a.label(L)
    a("s_waitcnt vmcnt(0)")
    a(f"v_cmp_ne_u32 vcc, 1, v{v}")
    a("s_sub_u32 s64, s64, 1")
    a(f"s_cbranch_scc1 {Lk}")
    a(f"s_cbranch_vccz {Lk}")
    a("s_sleep 2")
    a(f"buffer_load_dword v{v}, v{v+1}, s[{sdbg}:{sdbg+3}], 0 offen sc1")
    a(f"s_branch {L}")
    a.label(Lk)

RS = 4 * 256 + 32
SCRG = 16 * RS
TSTR = 4736
SLOT = 32768
SB0 = 21760
SLOT_OFF = [SB0 + i * SLOT for i in range(4)]
TAB_L = SCRG
A_TAB = SCRG
A_UT = 36864

ACC = 112
TA = [3, 4, 5, 6, 7, 14, 15, 18]
def kbase(mt, q, r):
    if mt == 0:
        return [r, 4 + r, 256 + 2 * r, 512 + 4 * (r & 1) + 256 * (r >> 1)][q]
    if q == 0: return 1024 + 256 * r
    if q == 1 and r == 0: return 2048
    return 2049

def kgen_load4(a):
    a(f"global_load_dwordx2 v[148:149], v3, s[{P_CR}:{P_CR+1}]")
    a(f"global_load_dwordx2 v[150:151], v3, s[{P_CI}:{P_CI+1}]")
    a(f"global_load_short_d16_hi v16, v4, s[{P_LDT}:{P_LDT+1}]")
    a(f"global_load_dwordx2 v[152:153], v3, s[{P_LA}:{P_LA+1}]")
    a(f"global_load_dwordx2 v[154:155], v3, s[{P_AI}:{P_AI+1}]")
    a(f"global_load_short_d16_hi v17, v4, s[{P_D}:{P_D+1}]")

def kgen_load(a):
    a(f"global_load_dword v10, v3, s[{P_CR}:{P_CR+1}]")
    a(f"global_load_dword v11, v3, s[{P_CI}:{P_CI+1}]")
    a(f"global_load_short_d16_hi v16, v4, s[{P_LDT}:{P_LDT+1}]")
    a(f"global_load_dword v8, v3, s[{P_LA}:{P_LA+1}]")
    a(f"global_load_dword v9, v3, s[{P_AI}:{P_AI+1}]")
    a(f"global_load_short_d16_hi v17, v4, s[{P_D}:{P_D+1}]")

def kgen_addr(a):
    a("v_lshlrev_b32 v3, 2, v2")
    a("s_lshl_b32 s14, s7, 9")
    a("s_bfe_u32 s15, s5, 0x10001")
    a("s_lshl_b32 s15, s15, 8")
    a("s_add_u32 s14, s14, s15")
    a("v_add_u32 v3, s14, v3")
    a("s_lshl_b32 s14, s7, 1")
    a("v_mov_b32 v4, s14")

def kgen_setup(a, younger, full=False):
    a(f"s_mov_b32 s66, {fhex(LOG2E)}")
    a(f"s_mov_b32 s67, {fhex(-LOG2E)}")
    a(f"s_mov_b32 s68, {fhex(C_HI)}")
    a(f"s_mov_b32 s69, {fhex(C_LO)}")
    a(f"s_mov_b32 s70, {fhex(8.0)}")
    a(f"s_mov_b32 s71, {fhex(256.0)}")
    a("v_and_b32 v24, 15, v2")
    a(f"v_mul_u32_u24 v20, {RS}, v24")
    a("v_lshrrev_b32 v21, 4, v2")
    a("v_lshl_add_u32 v20, v21, 4, v20")
    a("v_add_u32 v20, s72, v20")
    a(f"v_mul_u32_u24 v21, {RS}, v21")
    a("v_lshl_add_u32 v21, v24, 4, v21")
    a("v_mov_b32 v22, 0x00003c00")
    srd(a, 52, P_WS, 448 * KT_ROW, WS_KT)
    a("v_lshl_add_u32 v24, v24, 4, s13")
    for q in range(4):
        lo = (0xffff << (16 * q)) & 0xffffffff if q < 2 else 0
        hi_ = (0xffff << (16 * (q - 2))) & 0xffffffff if q >= 2 else 0
        a(f"s_mov_b32 exec_lo, 0x{lo:x}")
        a(f"s_mov_b32 exec_hi, 0x{hi_:x}")
        for mt in range(2):
            for r in range(4):
                a(f"v_add_u32 v{TA[4*mt+r]}, {2*kbase(mt,q,r)}, v24")
    a("s_mov_b64 exec, -1")
    a("s_mov_b32 m0, s72")
    a(f"s_waitcnt vmcnt({3 + younger})")
    if full:
        a("v_and_b32 v24, 0x7fff7fff, v148")
        a("v_and_b32 v25, 0x7fff7fff, v149")
        a("v_and_b32 v26, 0x7fff7fff, v150")
        a("v_and_b32 v27, 0x7fff7fff, v151")
        a("v_pk_max_u16 v24, v24, v26")
        a("v_pk_max_u16 v25, v25, v27")
    else:
        a("v_and_b32 v24, 0x7fff7fff, v10")
        a("v_and_b32 v25, 0x7fff7fff, v11")
    a("v_and_b32 v16, 0xffff0000, v16")
    a("v_pk_max_u16 v24, v24, v25")
    a("v_mul_f32 v16, s66, v16")
    a("v_exp_f32 v16, v16")
    a("v_lshrrev_b32 v25, 16, v24")
    a("v_and_b32 v24, 0xffff, v24")
    a("v_max_u32 v24, v24, v25")
    a("v_cvt_pk_bf16_f32 v16, v16, v16")
    a("v_and_b32 v16, 0xffff0000, v16")
    for ctl in ("row_shr:1 row_mask:0xf bank_mask:0xf", "row_shr:2 row_mask:0xf bank_mask:0xf",
                "row_shr:4 row_mask:0xf bank_mask:0xf", "row_shr:8 row_mask:0xf bank_mask:0xf",
                "row_bcast:15 row_mask:0xa bank_mask:0xf", "row_bcast:31 row_mask:0xc bank_mask:0xf"):
        a(f"v_max_u32_dpp v24, v24, v24 {ctl}")
        a("s_nop 1")
    a("v_readlane_b32 s74, v24, 63")
    a("v_readfirstlane_b32 s75, v16")
    a("s_nop 3")
    a("s_lshr_b32 s74, s74, 7")
    a("s_max_u32 s74, s74, 14")
    a("s_min_u32 s74, s74, 254")
    a("s_sub_u32 s76, 267, s74")
    a("s_lshl_b32 s76, s76, 23")
    a("s_sub_u32 s77, s74, 13")
    a("s_lshl_b32 s77, s77, 23")
    a(f"s_waitcnt vmcnt({younger})")
    if full: return
    Ls = a.newlabel("Lsh")
    a("s_bitcmp0_b32 s5, 0")
    a(f"s_cbranch_scc1 {Ls}")
    for r in range(8, 12):
        a(f"v_lshrrev_b32 v{r}, 16, v{r}")
    a.label(Ls)

def kgen_pass(a, hook, accum=False):
    FX = 80
    Z1, Z2, Z4, Z256 = 32, 34, 36, 38
    Q1, Q2, Q3, Q4, QT = 40, 42, 44, 46, 48
    P1, P2 = 50, 52
    XA, XB_, RA, RB, SA, SB = 54, 56, 58, 60, 62, 12
    QH = [22, 64, 65, 66, 67, 68, 69, 70]
    PH = [None, 71, 72, 73]
    H1, H2, H3 = [74, 75], [76, 77], [78, 79]
    def wr(row, v):
        return f"ds_write_addtid_b32 v{v} offset:{(row % 16) * RS}"
    a("v_lshlrev_b32 v24, 16, v8")
    a("v_lshlrev_b32 v25, 16, v9")
    a("v_mul_f32 v24, s66, v24")
    a("v_exp_f32 v24, v24")
    a("v_mul_f32 v25, s75, v25")
    a("v_mul_f32 v26, s68, v25")
    a("v_cvt_pk_bf16_f32 v24, v24, v24")
    a("v_fma_f32 v27, v25, s68, -v26")
    a("v_and_b32 v24, 0xffff0000, v24")
    a("v_fmac_f32 v27, s69, v25")
    a("v_mul_f32 v24, s75, v24")
    a("v_mul_f32 v24, s67, v24")
    a(f"v_lshlrev_b32 v{XA}, 16, v10")
    a(f"v_lshlrev_b32 v{XA+1}, 16, v11")
    a(f"v_mul_f32 v{XA}, s76, v{XA}")
    a(f"v_mul_f32 v{XA+1}, s76, v{XA+1}")
    st = []
    for (dst, sm, t, neg) in ((Z1, None, 28, False), (Q1, 70, 74, True), (Z256, 71, 77, False)):
        s_ = []
        if sm is None:
            s_ += [f"v_exp_f32 v{t}, v24", f"v_fract_f32 v{t+1}, v26", f"v_add_f32 v{t+1}, v{t+1}, v27"]
        else:
            s_ += [f"v_mul_f32 v{t}, s{sm}, v24", f"v_exp_f32 v{t}, v{t}", f"v_mul_f32 v{t+1}, s{sm}, v26",
                   f"v_fract_f32 v{t+1}, v{t+1}", f"v_fmac_f32 v{t+1}, s{sm}, v27"]
        s_ += [f"v_cos_f32 v{t+2}, v{t+1}", f"v_sin_f32 v{t+1}, v{t+1}", "s_nop 0", f"v_mul_f32 v{dst}, v{t}, v{t+2}"]
        s_ += [f"v_mul_f32_e64 v{dst+1}, v{t}, {'-' if neg else ''}v{t+1}"]
        st.append(s_)
    interleave(a, st)
    hook(0)
    for s_ in cmul_ops(RA, XA, Z256): a(s_)
    def cvh(stream, hs, k, src, row):
        h = hs[k % 2]
        stream.append(f"v_cvt_pk_f16_f32 v{h}, v{src}, v{src+1}")
        stream.append(wr(row, h))
    s1 = []
    cur, oth = XA, XB_
    cvh(s1, H1, 0, XA, 0)
    for f in range(1, 8):
        s1 += cmul_ops(oth, cur, Z1)
        cvh(s1, H1, f, oth, f)
        cur, oth = oth, cur
    s2 = cmul_ops(Z2, Z1, Z1) + cmul_ops(Z4, Z2, Z2)
    k = 0
    cvh(s2, H2, k, RA, 8); k += 1
    s2 += cmul_ops(RB, RA, Z256)
    s2 += cmul_ops(SA, RA, Z2); cvh(s2, H2, k, SA, 9); k += 1
    s2 += cmul_ops(SB, RA, Z4); cvh(s2, H2, k, SB, 10); k += 1
    s2 += cmul_ops(SA, SB, Z2); cvh(s2, H2, k, SA, 11); k += 1
    cvh(s2, H2, k, RB, 12); k += 1
    s2 += cmul_ops(RA, RB, Z256)
    s2 += cmul_ops(SA, RB, Z4); cvh(s2, H2, k, SA, 13); k += 1
    cvh(s2, H2, k, RA, 14); k += 1
    s2 += cmul_ops(RB, RA, Z256)
    s2 += cmul_ops(SA, RA, Z4); cvh(s2, H2, k, SA, 15); k += 1
    s3 = []
    def qcv(b, src):
        s3.append(f"v_cvt_pk_f16_f32 v{QH[b]}, v{src}, v{src+1}")
    qcv(1, Q1)
    s3 += cmul_ops(Q2, Q1, Q1); qcv(2, Q2)
    s3 += cmul_ops(Q4, Q2, Q2)
    s3 += cmul_ops(Q3, Q2, Q1); qcv(4, Q4); qcv(3, Q3)
    s3 += cmul_ops(P1, Q4, Q4)
    s3 += cmul_ops(QT, Q4, Q1); qcv(5, QT)
    s3 += cmul_ops(P2, P1, P1)
    s3 += cmul_ops(QT, Q4, Q2); qcv(6, QT)
    s3 += cmul_ops(QT, Q4, Q3); qcv(7, QT)
    s3 += cmul_ops(QT, P2, P1)
    s3.append(f"v_cvt_pk_f16_f32 v{PH[1]}, v{P1}, v{P1+1}")
    s3.append(f"v_cvt_pk_f16_f32 v{PH[2]}, v{P2}, v{P2+1}")
    s3.append(f"v_cvt_pk_f16_f32 v{PH[3]}, v{QT}, v{QT+1}")
    interleave(a, [s1[:16], s2[:16], s3[:16]])
    hook(1)
    interleave(a, [s1[16:], s2[16:], s3[16:]])
    def rdf(f0):
        for kk in range(4):
            f = f0 + 4 * kk
            a(f"ds_read_b128 v[{f}:{f+3}], v20 offset:{64*kk}")
    rdf(FX)
    hook(2)
    s4 = []
    c_, o_ = RB, RA
    for row in range(16, 21):
        cvh(s4, H2, row, c_, row)
        if row < 20:
            s4 += cmul_ops(o_, c_, Z256)
            c_, o_ = o_, c_
    s5 = []
    Y1 = [None, 32, 33, 34, 35, 36, 37, 40]
    for b in range(1, 8):
        s5 += hmul_ops(Y1[b], PH[1], QH[b])
    interleave(a, [s4, s5])
    rdf(FX + 16)
    hook(3)
    w0 = [wr(b, QH[b]) for b in range(8)] + [wr(8, PH[1])] + [wr(8 + b, Y1[b]) for b in range(1, 8)]
    Y2 = [None, 41, 42, 43, 44, 45, 46, 47]
    s6 = []
    for b in range(1, 8):
        s6 += hmul_ops(Y2[b], PH[2], QH[b])
    interleave(a, [w0, s6])
    rdf(48)
    w1 = [wr(0, PH[2])] + [wr(b, Y2[b]) for b in range(1, 8)] + [wr(8, PH[3])]
    s7 = []
    for b in range(1, 8):
        h = H1[b % 2]
        s7 += hmul_ops(h, PH[3], QH[b])
        s7.append(wr(8 + b, h))
    interleave(a, [w1, s7])
    rdf(32)
    def mm(nt, kk):
        for mt in range(2):
            fa = FX + 16 * mt + 4 * kk
            fb = (48 if nt == 0 else 32) + 4 * kk
            d = ACC + 8 * mt + 4 * nt
            cin = "0" if (kk == 0 and not accum) else f"v[{d}:{d+3}]"
            a(f"v_mfma_f32_16x16x32_f16 v[{d}:{d+3}], v[{fa}:{fa+3}], v[{fb}:{fb+3}], {cin}")
    a("s_waitcnt lgkmcnt(15)")
    for kk in range(4): mm(0, kk)
    for kk in range(4):
        a(f"s_waitcnt lgkmcnt({3-kk})")
        mm(1, kk)
    if accum: return
    kgen_scale(a, True)

def kgen_scale(a, publish):
    a("v_mov_b32 v25, s75")
    a("v_mul_f32 v25, s77, v25")
    a("v_add_f32 v25, v25, v25")
    a("v_add_u32 v30, s72, v21")
    a("v_lshlrev_b32 v26, 4, v2")
    a("v_and_b32 v17, 0xffff0000, v17")
    a(f"s_add_u32 s14, s13, {16*63}")
    a("v_sub_u32 v27, s14, v26")
    a("s_nop 1")
    for q in range(4):
        for r in range(4):
            a(f"v_mul_f32 v{ACC+4*q+r}, v25, v{ACC+4*q+r}")
        if publish:
            a(f"ds_write_b128 v30, v[{ACC+4*q}:{ACC+4*q+3}] offset:{4*q*RS}")

def kgen_solo(a):
    a("s_mov_b64 exec, 1")
    a(f"v_add_f32 v{ACC}, v{ACC}, v17")
    a("s_mov_b64 exec, -1")
    for mt in range(2):
        for r in range(4):
            a(f"v_cvt_pk_bf16_f32 v{40+4*mt+r}, v{ACC+8*mt+r}, v{ACC+8*mt+4+r}")
            a(f"ds_write_b16 v{TA[4*mt+r]}, v{40+4*mt+r}")
            a(f"ds_write_b16_d16_hi v{TA[4*mt+r]}, v{40+4*mt+r} offset:256")
    a("v_cmp_gt_u32 vcc, 32, v2")
    a("v_and_b32 v31, 1, v2")
    a("v_mul_u32_u24 v31, 0x0404, v31")
    a("v_cndmask_b32_e64 v28, 0, 2, vcc")
    a("v_add_u32 v29, v27, v28")
    a("v_sub_u32 v30, v27, v28")
    for m in range(2):
        o = (3 - m) * 1024
        a(f"ds_read_u16 v{80+2*m}, v27 offset:{o}")
        a(f"ds_read_u16 v{81+2*m}, v27 offset:{o+16}")
    a("ds_read_u16 v88, v27 offset:1024")
    a("ds_read_u16 v89, v27 offset:1032")
    a("ds_read_u16 v90, v27 offset:1040")
    for k_, (reg, idx) in enumerate(((29, 7), (27, 6), (30, 5), (27, 4), (29, 3), (27, 2), (30, 1), (27, 0))):
        a(f"ds_read_u16 v{92+k_}, v{reg} offset:{2*idx}")
    a("s_mov_b32 s60, 0x05040504")
    a("s_mov_b32 s61, 0x01000100")
    a("s_mov_b32 s62, 0x01000504")
    a(f"s_mul_i32 s15, s7, {KT_ROW}")
    a("v_mov_b32 v84, 0\nv_mov_b32 v85, 0\nv_mov_b32 v86, 0\nv_mov_b32 v87, 0")
    a("v_lshlrev_b32 v31, 16, v31")
    a("v_sub_u32 v31, 0x05040504, v31")
    E = 48
    a("s_waitcnt lgkmcnt(8)")
    for m in range(2):
        ra, rb = 80 + 2 * m, 81 + 2 * m
        e = E + 4 * m
        a(f"v_perm_b32 v{e}, v{rb}, v{ra}, s60")
        a(f"v_perm_b32 v{e+1}, v{rb}, v{ra}, v31")
        a(f"v_perm_b32 v{e+2}, v{rb}, v{ra}, s61")
        a(f"v_perm_b32 v{e+3}, v{rb}, v{ra}, s61")
        a(f"buffer_store_dwordx4 v[{e}:{e+3}], v26, s[52:55], s15 offen offset:{m*1024}{ST}")
    e = E + 8
    a(f"v_perm_b32 v{e}, v90, v90, s61")
    a(f"v_perm_b32 v{e+1}, v89, v88, s60")
    a(f"v_perm_b32 v{e+2}, v89, v88, s62")
    a(f"v_perm_b32 v{e+3}, v89, v88, s61")
    a(f"buffer_store_dwordx4 v[{e}:{e+3}], v26, s[52:55], s15 offen offset:2048{ST}")
    a("s_waitcnt lgkmcnt(0)")
    e = E + 12
    for k_ in range(4):
        a(f"v_lshl_or_b32 v{e+k_}, v{93+2*k_}, 16, v{92+2*k_}")
    a(f"buffer_store_dwordx4 v[{e}:{e+3}], v26, s[52:55], s15 offen offset:3072{ST}")
    a("s_add_u32 s15, s15, 4096")
    a("s_mov_b64 exec, 1")
    a(f"buffer_store_dwordx4 v[84:87], v26, s[52:55], s15 offen{ST}")
    a("s_mov_b64 exec, -1")

def kgen_table(a):
    a("s_and_b32 s14, s5, 3")
    a(f"s_mul_i32 s15, s14, {4*RS}")
    a("s_andn2_b32 s74, s72, 0x300")
    a("s_add_u32 s15, s15, s74")
    a("v_add_u32 v30, s15, v21")
    for i in range(4):
        a(f"ds_read_b128 v[{32+4*i}:{35+4*i}], v30 offset:{i*256}")
    L = a.newlabel("Lmt")
    a("s_bitcmp0_b32 s5, 1")
    a(f"s_cbranch_scc1 {L}")
    for r in range(4):
        a(f"v_mov_b32 v{TA[r]}, v{TA[4+r]}")
    a.label(L)
    a("s_and_b32 s15, s5, 1")
    a("s_lshl_b32 s15, s15, 8")
    for r in range(4):
        a(f"v_add_u32 v{TA[r]}, s15, v{TA[r]}")
    a("s_cmp_eq_u32 s14, 0")
    a("s_cselect_b32 s74, 1, 0")
    a("s_mov_b32 s75, 0")
    a("s_waitcnt lgkmcnt(0)")
    for r in range(4):
        a(f"v_add_f32 v{32+r}, v{32+r}, v{36+r}")
        a(f"v_add_f32 v{40+r}, v{40+r}, v{44+r}")
    for r in range(4):
        a(f"v_add_f32 v{32+r}, v{32+r}, v{40+r}")
    a("s_mov_b64 exec, s[74:75]")
    a("v_add_f32 v32, v32, v17")
    a("s_mov_b64 exec, -1")
    a("v_cvt_pk_bf16_f32 v36, v32, v33")
    a("v_cvt_pk_bf16_f32 v37, v34, v35")
    a(f"ds_write_b16 v{TA[0]}, v36")
    a(f"ds_write_b16_d16_hi v{TA[1]}, v36")
    a(f"ds_write_b16 v{TA[2]}, v37")
    a(f"ds_write_b16_d16_hi v{TA[3]}, v37")

def kgen_expand(a):
    L2, L3, Le = a.newlabel("Lm2"), a.newlabel("Lm3"), a.newlabel("Lme")
    a("s_and_b32 s14, s5, 3")
    a(f"s_mul_i32 s15, s7, {KT_ROW}")
    a("s_lshl_b32 s74, s14, 10")
    a("s_add_u32 s77, s15, 4096")
    a("s_add_u32 s15, s15, s74")
    a("s_mov_b32 s74, 0x05040504")
    a("s_mov_b32 s75, 0x01000100")
    a("s_mov_b32 s76, 0x01000504")
    a("v_mov_b32 v84, 0\nv_mov_b32 v85, 0\nv_mov_b32 v86, 0\nv_mov_b32 v87, 0")
    a("s_cmp_eq_u32 s14, 3")
    a(f"s_cbranch_scc1 {L3}")
    a("s_cmp_eq_u32 s14, 2")
    a(f"s_cbranch_scc1 {L2}")
    a("s_lshl_b32 s14, s14, 10")
    a("v_subrev_u32 v28, s14, v27")
    a("ds_read_u16 v80, v28 offset:3072")
    a("ds_read_u16 v81, v28 offset:3088")
    a("v_and_b32 v31, 1, v2")
    a("v_mul_u32_u24 v31, 0x0404, v31")
    a("v_lshlrev_b32 v31, 16, v31")
    a("v_sub_u32 v31, 0x05040504, v31")
    a("s_waitcnt lgkmcnt(0)")
    a("v_perm_b32 v48, v81, v80, s74")
    a("v_perm_b32 v49, v81, v80, v31")
    a("v_perm_b32 v50, v81, v80, s75")
    a("v_perm_b32 v51, v81, v80, s75")
    a(f"s_branch {Le}")
    a.label(L2)
    a("ds_read_u16 v88, v27 offset:1024")
    a("ds_read_u16 v89, v27 offset:1032")
    a("ds_read_u16 v90, v27 offset:1040")
    a("s_waitcnt lgkmcnt(0)")
    a("v_perm_b32 v48, v90, v90, s75")
    a("v_perm_b32 v49, v89, v88, s74")
    a("v_perm_b32 v50, v89, v88, s76")
    a("v_perm_b32 v51, v89, v88, s75")
    a(f"s_branch {Le}")
    a.label(L3)
    a("v_cmp_gt_u32 vcc, 32, v2")
    a("s_nop 1")
    a("v_cndmask_b32_e64 v28, 0, 2, vcc")
    a("v_add_u32 v29, v27, v28")
    a("v_sub_u32 v30, v27, v28")
    for k_, (reg, idx) in enumerate(((29, 7), (27, 6), (30, 5), (27, 4), (29, 3), (27, 2), (30, 1), (27, 0))):
        a(f"ds_read_u16 v{92+k_}, v{reg} offset:{2*idx}")
    a("s_waitcnt lgkmcnt(0)")
    for k_ in range(4):
        a(f"v_lshl_or_b32 v{48+k_}, v{93+2*k_}, 16, v{92+2*k_}")
    a.label(Le)
    a(f"buffer_store_dwordx4 v[48:51], v26, s[52:55], s15 offen{ST}")
    a("s_mov_b64 exec, 1")
    a(f"buffer_store_dwordx4 v[84:87], v26, s[52:55], s77 offen{ST}")
    a("s_mov_b64 exec, -1")

def set_flag(a, soff, nl=1):
    a("v_mov_b32 v139, 1")
    a(f"s_mov_b64 exec, {(1 << nl) - 1}")
    a(f"buffer_store_dword v139, v138, s[56:59], s{soff} offen sc1")
    a("s_mov_b64 exec, -1")

def phase1_gemm(a):
    a.comment("---- GEMM WGs: waves 0..3 run one K-gen pass first, waves 4..7 start the loads ----")
    a("s_mul_i32 s7, s3, 56")
    a("s_add_u32 s7, s7, s4")
    a("s_lshr_b32 s65, s5, 2")
    a("s_cmp_ge_u32 s5, 4")
    a("s_cbranch_scc1 L_g_dec")
    kgen_addr(a)
    a("s_lshl_b32 s72, s5, 8")
    a("s_waitcnt lgkmcnt(0)")
    stamp(a, 0)
    kgen_load(a)
    a.label("L_g_dec")
    a("s_lshr_b32 s6, s3, 1")
    a("s_lshl_b32 s6, s6, 2")
    a("s_and_b32 s60, s3, 1")
    a("s_lshr_b32 s8, s4, 2")
    a("s_add_u32 s8, s8, s6")
    a("s_and_b32 s9, s4, 3")
    a("s_lshl_b32 s10, s60, 2")
    a("s_add_u32 s9, s9, s10")
    a("s_mul_i32 s10, s9, 112")
    a("s_add_u32 s11, s10, 1792")
    a("s_add_u32 s10, s10, 896")
    a("s_sub_u32 s12, s4, 16")
    a("s_lshr_b32 s61, s12, 1")
    a("s_add_u32 s61, s61, s6")
    a("s_and_b32 s12, s12, 1")
    a("s_lshl_b32 s14, s60, 1")
    a("s_add_u32 s12, s12, s14")
    a("s_mul_i32 s14, s12, 224")
    a("s_add_u32 s15, s14, 112")
    a("s_cmp_lt_u32 s4, 16")
    a("s_cselect_b32 s8, s8, s61")
    a("s_cselect_b32 s9, s9, s12")
    a("s_cselect_b32 s10, s10, s14")
    a("s_cselect_b32 s11, s11, s15")
    a("s_and_b32 s60, s5, 3")
    a("v_lshrrev_b32 v164, 3, v2")
    a("v_lshrrev_b32 v165, 4, v2")
    a("v_and_b32 v166, 7, v2")
    a("s_lshl_b32 s12, s8, 7")
    a("s_lshl_b32 s61, s60, 5")
    a("s_add_u32 s12, s12, s61")
    a("v_add_u32 v167, s12, v164")
    a("v_mul_u32_u24 v167, 896, v167")
    a("v_xor_b32 v168, v166, v165")
    a("v_lshl_add_u32 v128, v168, 4, v167")
    a("v_xor_b32 v168, 4, v168")
    a("v_lshl_add_u32 v129, v168, 4, v167")
    a("v_add_u32 v129, 7168, v129")
    a("s_lshl_b32 s61, s60, 4")
    a("v_add_u32 v167, s61, v164")
    a("v_mul_u32_u24 v167, 2688, v167")
    a("v_and_b32 v168, 1, v165")
    a("v_lshlrev_b32 v168, 2, v168")
    a("v_xor_b32 v168, v168, v166")
    a("v_lshl_add_u32 v167, v168, 4, v167")
    a("v_add_u32 v130, s10, v167")
    a("v_add_u32 v131, s11, v167")
    a("s_lshl_b32 s10, s60, 12")
    a("s_lshl_b32 s11, s60, 11")
    a("s_add_u32 s11, s11, 16384")
    a("s_waitcnt lgkmcnt(0)")
    srd(a, 44, P_X, 2048 * 896)
    srd(a, 48, P_W, 448 * 2688)
    a("s_and_b32 s73, s8, 3")
    a("s_lshl_b32 s73, s73, 1")
    a("s_and_b32 s61, s9, 3")
    a("s_and_b32 s62, s9, 1")
    a("s_add_u32 s62, s62, 4")
    a("s_cmp_lt_u32 s4, 16")
    a("s_cselect_b32 s61, s61, s62")
    a("s_add_u32 s73, s73, s61")
    a("s_sub_u32 s61, s73, 7")
    a("s_cmp_ge_u32 s73, 7")
    a("s_cselect_b32 s73, s61, s73")
    if "norot" in OPT: a("s_mov_b32 s73, 0")
    def dma(c, i):
        so = SLOT_OFF[c % 4]; h = i // 4; i = i % 4
        if i == 0:
            if h == 0:
                a("s_lshl_b32 s6, s73, 7")
                a("s_mul_i32 s12, s73, 172032")
                a("s_add_u32 s73, s73, 1")
                a("s_cmp_eq_u32 s73, 7")
                a("s_cselect_b32 s73, 0, s73")
            else:
                a("s_add_u32 s6, s6, 14336")
                a("s_add_u32 s12, s12, 21504")
            a(f"s_add_u32 m0, s10, {so + h*2048}")
            a("s_nop 0")
            a("buffer_load_dwordx4 v128, s[44:47], s6 offen lds")
        elif i == 1:
            a(f"s_add_u32 m0, s11, {so + h*1024}")
            a("s_nop 0")
            a("buffer_load_dwordx4 v130, s[48:51], s12 offen lds")
        elif i == 2:
            a(f"s_add_u32 m0, s10, {so + h*2048 + 1024}")
            a("s_nop 0")
            a("buffer_load_dwordx4 v129, s[44:47], s6 offen lds")
        else:
            a(f"s_add_u32 m0, s11, {so + h*1024 + 8192}")
            a("s_nop 0")
            a("buffer_load_dwordx4 v131, s[48:51], s12 offen lds")
    def only(lo, body):
        L = a.newlabel("Lo")
        a(f"s_cmp_{'ge' if lo else 'lt'}_u32 s5, 4")
        a(f"s_cbranch_scc1 {L}")
        body()
        a.label(L)
    UP = optint("up", 3)
    only(False, lambda: [stamp(a, 0)] + [dma(c, i) for c in range(UP) for i in range(8)] + [stamp(a, 1)])
    a("v_and_b32 v164, 31, v2")
    a("v_lshrrev_b32 v165, 5, v2")
    a("v_bfe_u32 v166, v2, 1, 3")
    a("v_xor_b32 v166, v166, v165")
    a("s_lshl_b32 s15, s60, 12")
    a("v_lshlrev_b32 v164, 7, v164")
    a("v_lshl_add_u32 v164, v166, 4, v164")
    a("v_add_u32 v132, s15, v164")
    a("v_xor_b32 v133, 32, v132")
    a("v_xor_b32 v134, 64, v132")
    a("v_xor_b32 v135, 0x60, v132")
    a("s_mul_i32 s15, s65, 56")
    a("v_bfe_u32 v164, v2, 4, 1")
    a("v_lshlrev_b32 v164, 5, v164")
    a("v_and_b32 v166, 3, v2")
    a("v_lshl_add_u32 v164, v166, 3, v164")
    a("v_add_u32 v164, s15, v164")
    a("v_bfe_u32 v166, v2, 3, 1")
    a("v_lshlrev_b32 v166, 6, v166")
    a("v_xor_b32 v164, v164, v166")
    a("v_bfe_u32 v166, v2, 2, 2")
    a("v_lshl_add_u32 v166, v165, 3, v166")
    a("v_lshl_add_u32 v164, v166, 7, v164")
    a("v_add_u32 v136, 16384, v164")
    for r in range(5):
        a(f"v_add_u32 v{140+r}, 0x10000, v{132+r}")
        a(f"v_add_u32 v{148+r}, 0x20000, v{132+r}")
    a("v_lshlrev_b32 v138, 2, v2")
    a("v_and_b32 v146, 28, v138")
    srd(a, 52, P_WS, 448 * KT_ROW, WS_KT)
    a("v_lshlrev_b32 v26, 4, v2")
    srd(a, 56, P_WS, FL_BYTES, WS_FL)
    srd(a, 60, P_DBG, 256)
    def kg():
        a(f"s_movk_i32 s13, {TAB_L + 16}")
        kgen_setup(a, 0)
        stamp(a, 1)
        kgen_pass(a, lambda k: None)
        stamp(a, 2)
    only(True, kg)
    a(f"s_mov_b32 s66, {fhex(LOG2E)}")
    a(f"s_mov_b32 s67, {fhex(1e-6)}")
    a(f"s_waitcnt vmcnt({8*(UP-1)}) lgkmcnt(0)")
    a("s_barrier")
    stamp(a, 3)
    a("s_cmp_ge_u32 s4, 16")
    a("s_cbranch_scc1 L_q")

    FR = 160
    ACC0, ACC1 = 208, 224
    def main_loop(is_q):
        def adr(c, k):
            so = SLOT_OFF[c % 4]
            if so + SLOT > 65536:
                if so >= 65536: return 140 + k, so - 65536
            return 132 + k, so
        def reads(c, k):
            f = FR + 12 * k
            so = SLOT_OFF[c % 4]
            def pick(reg, off):
                return (reg + 8 * (off >> 16), off & 65535)
            r, o = pick(132 + k, so)
            a(f"ds_read_b128 v[{f}:{f+3}], v{r} offset:{o}")
            for seg in range(2):
                for jj in range(2):
                    d = f + 4 + 4 * seg + 2 * jj
                    r, o = pick(136, so + seg * 8192 + (16 * k + 4 * jj) * 128)
                    a(f"ds_read_b64_tr_b16 v[{d}:{d+1}], v{r} offset:{o}")
        def mfma(c, k):
            f = FR + 12 * k
            for seg, acc in ((0, ACC0), (1, ACC1)):
                wf = f + 4 + 4 * seg
                cin = "0" if (c == 0 and k == 0) else f"v[{acc}:{acc+15}]"
                if is_q:
                    a(f"v_mfma_f32_32x32x16_bf16 v[{acc}:{acc+15}], v[{wf}:{wf+3}], v[{f}:{f+3}], {cin}")
                else:
                    a(f"v_mfma_f32_32x32x16_bf16 v[{acc}:{acc+15}], v[{f}:{f+3}], v[{wf}:{wf+3}], {cin}")
        issued = [UP]
        pend = []
        def plan(b):
            n = issued[0]
            if n <= 6 and (n < 4 or b >= n - 2):
                pend.extend((n, i) for i in range(8))
                issued[0] += 1
        def drip(k):
            if pend:
                items = [pend.pop(0) for _ in range(min(k, len(pend)))]
                only(False, lambda: [dma(*it) for it in items])
        reads(0, 0); reads(0, 1)
        plan(0)
        for c in range(7):
            reads(c, 2)
            a("s_waitcnt lgkmcnt(10)")
            mfma(c, 0)
            drip(4 if c == 0 else 2)
            reads(c, 3)
            a("s_waitcnt lgkmcnt(10)")
            mfma(c, 1)
            drip(8)
            if c == 0:
                only(True, lambda: (kgen_table(a), a("s_waitcnt lgkmcnt(0)")))
            if c == 1:
                only(True, lambda: kgen_expand(a))
            if c < 6:
                a(f"s_waitcnt vmcnt({8*(issued[0]-2-c) if c < 5 else 0})")
                a("s_barrier")
                plan(c + 1)
                if c == 3:
                    only(True, lambda: a("buffer_load_dword v145, v146, s[60:63], 0 offen sc1"))
            a("s_waitcnt lgkmcnt(5)")
            mfma(c, 2)
            drip(2)
            if c < 6:
                reads(c + 1, 0)
                a("s_waitcnt lgkmcnt(5)")
            else:
                a("s_waitcnt lgkmcnt(0)")
            mfma(c, 3)
            drip(2)
            if c < 6:
                reads(c + 1, 1)
            if c == 5:
                L = a.newlabel("Lkf")
                a("s_cmp_lg_u32 s5, 0")
                a(f"s_cbranch_scc1 {L}")
                wait_init(a, 145, 60, True)
                a(f"s_lshl_b32 s14, s7, {FSH}")
                a(f"s_add_u32 s14, s14, {FL_K}")
                set_flag(a, 14, 1)
                a.label(L)
        stamp(a, 4)

    main_loop(False)
    srd(a, 52, P_WS, 0x10000, WS_KV)
    PK, VV, TMP = 32, 40, 48
    XB = SLOT_OFF[0]
    a("v_lshlrev_b32 v10, 4, v2")
    a("s_lshl_b32 s14, s5, 12")
    a(f"s_add_u32 s14, s14, {XB}")
    a("v_add_u32 v11, s14, v10")
    a("s_and_b32 s14, s5, 3")
    a("s_lshl_b32 s14, s14, 10")
    a("s_lshl_b32 s15, s65, 14")
    a("s_add_u32 s14, s14, s15")
    a(f"s_add_u32 s14, s14, {XB}")
    a("v_add_u32 v12, s14, v138")
    a("s_nop 1")
    phi_pack(a, ACC0, PK, TMP, 66, 67)
    for p in range(8):
        a(f"v_cvt_pk_bf16_f32 v{VV+p}, v{ACC1+2*p}, v{ACC1+2*p+1}")
    a("s_mov_b32 exec_lo, 0x10000000")
    a("s_mov_b32 exec_hi, 0x10000000")
    for p in range(8):
        a(f"v_mov_b32 v{VV+p}, 0x3f803f80")
    a("s_mov_b64 exec, -1")
    a("s_nop 1")
    KV = 56
    a(f"v_mfma_f32_32x32x16_bf16 v[{KV}:{KV+15}], v[{PK}:{PK+3}], v[{VV}:{VV+3}], 0")
    a(f"v_mfma_f32_32x32x16_bf16 v[{KV}:{KV+15}], v[{PK+4}:{PK+7}], v[{VV+4}:{VV+7}], v[{KV}:{KV+15}]")
    a("s_lshl_b32 s14, s9, 1")
    a("s_add_u32 s14, s14, s65")
    a("s_lshl_b32 s14, s14, 12")
    a("s_and_b32 s15, s5, 3")
    a("s_lshl_b32 s15, s15, 10")
    a("s_add_u32 s14, s14, s15")
    a("s_nop 6")
    for q in range(4):
        a(f"ds_write_b128 v11, v[{KV+4*q}:{KV+4*q+3}] offset:{q*1024}")
    a("s_waitcnt lgkmcnt(0)")
    a("s_barrier")
    for i in range(4):
        a(f"ds_read2st64_b32 v[{32+4*i}:{33+4*i}], v12 offset0:{i} offset1:{16+i}")
        a(f"ds_read2st64_b32 v[{34+4*i}:{35+4*i}], v12 offset0:{32+i} offset1:{48+i}")
    for i in range(4):
        a(f"s_waitcnt lgkmcnt({6-2*i})")
        b = 32 + 4 * i
        a(f"v_add_f32 v{b}, v{b}, v{b+1}")
        a(f"v_add_f32 v{b+2}, v{b+2}, v{b+3}")
        a(f"v_add_f32 v{b}, v{b}, v{b+2}")
        a(f"buffer_atomic_add_f32 v{b}, v138, s[52:55], s14 offen offset:{i*256}")
    a("s_waitcnt vmcnt(0)")
    a("s_barrier")
    L = a.newlabel("Lvf")
    a("s_cmp_lg_u32 s5, 0")
    a(f"s_cbranch_scc1 {L}")
    a("s_lshl_b32 s14, s3, 4")
    a("s_add_u32 s14, s14, s4")
    a(f"s_lshl_b32 s14, s14, {FSH}")
    a(f"s_add_u32 s14, s14, {FL_KV}")
    set_flag(a, 14)
    a.label(L)
    stamp(a, 5)
    a("s_cmp_lt_u32 s4, 14")
    a("s_cbranch_scc1 L_w4")
    stamp_flush(a, 0)
    a("s_endpgm")

    a.label("L_q")
    main_loop(True)
    srd(a, 52, P_WS, 0x200000, WS_PQ)
    a("s_lshl_b32 s14, s8, 2")
    a("s_and_b32 s15, s5, 3")
    a("s_add_u32 s14, s14, s15")
    a("s_lshl_b32 s14, s14, 4")
    a("s_lshl_b32 s15, s9, 2")
    a("s_add_u32 s14, s14, s15")
    a("s_add_u32 s14, s14, s65")
    a("s_lshl_b32 s14, s14, 11")
    a("s_add_u32 s15, s14, 4096")
    a("v_lshlrev_b32 v10, 4, v2")
    phi_pack(a, ACC0, 32, 48, 66, 67)
    a(f"buffer_store_dwordx4 v[32:35], v10, s[52:55], s14 offen{ST}")
    a(f"buffer_store_dwordx4 v[36:39], v10, s[52:55], s14 offen offset:1024{ST}")
    phi_pack(a, ACC1, 40, 48, 66, 67)
    a(f"buffer_store_dwordx4 v[40:43], v10, s[52:55], s15 offen{ST}")
    a(f"buffer_store_dwordx4 v[44:47], v10, s[52:55], s15 offen offset:1024{ST}")
    a("s_lshl_b32 s14, s8, 2")
    a("s_add_u32 s14, s14, s9")
    a(f"s_lshl_b32 s14, s14, {FSH}")
    a(f"s_add_u32 s66, s14, {FL_Q}")
    stamp(a, 5)
    a("s_sub_u32 s4, s4, 16")
    a("s_cmp_lt_u32 s4, 6")
    a("s_cbranch_scc1 L_conv")
    a("s_waitcnt vmcnt(0)")
    a("s_barrier")
    L = a.newlabel("Lqf")
    a("s_cmp_lg_u32 s5, 0")
    a(f"s_cbranch_scc1 {L}")
    set_flag(a, 66)
    a.label(L)
    stamp_flush(a, 0)
    a("s_endpgm")

def phase1_a(a):
    a.comment("---- A WGs ----")
    a("s_sub_u32 s6, s4, 24")
    a("v_lshlrev_b32 v138, 2, v2")
    a("v_and_b32 v146, 28, v138")
    a("s_cmp_ge_u32 s5, 6")
    a("s_cbranch_scc1 L_ut")
    a("s_cmp_ge_u32 s5, 4")
    a("s_cbranch_scc1 L_touch")
    a("s_mul_i32 s7, s3, 56")
    a("s_lshl_b32 s14, s6, 2")
    a("s_add_u32 s7, s7, s14")
    a("s_add_u32 s7, s7, s5")
    a("s_add_u32 s7, s7, 24")
    a("v_lshlrev_b32 v3, 3, v2")
    a("s_lshl_b32 s14, s7, 9")
    a("v_add_u32 v3, s14, v3")
    a("s_lshl_b32 s14, s7, 1")
    a("v_mov_b32 v4, s14")
    a("s_lshl_b32 s72, s5, 8")
    a(f"s_mul_i32 s13, s5, {TSTR}")
    a(f"s_add_u32 s13, s13, {A_TAB + 16}")
    a("s_waitcnt lgkmcnt(0)")
    stamp(a, 0)
    kgen_load4(a)
    for i in range(16):
        a(f"v_mov_b32 v{ACC+i}, 0")
    kgen_setup(a, 0, True)
    stamp(a, 1)
    a("s_mov_b32 s73, 4")
    a.label("L_apass")
    a("v_mov_b32 v10, v148")
    a("v_mov_b32 v11, v150")
    a("v_mov_b32 v8, v152")
    a("v_mov_b32 v9, v154")
    for r in (148, 150, 152, 154):
        a(f"v_lshrrev_b64 v[{r}:{r+1}], 16, v[{r}:{r+1}]")
    kgen_pass(a, lambda k: None, True)
    a("s_sub_u32 s73, s73, 1")
    a("s_cmp_lg_u32 s73, 0")
    a("s_cbranch_scc1 L_apass")
    stamp(a, 2)
    kgen_scale(a, False)
    kgen_solo(a)
    stamp(a, 3)
    srd(a, 56, P_WS, FL_BYTES, WS_FL)
    srd(a, 60, P_DBG, 256)
    wait_init(a, 145, 60, False)
    a(f"s_lshl_b32 s14, s7, {FSH}")
    a(f"s_add_u32 s14, s14, {FL_K}")
    set_flag(a, 14, 1)
    a("s_branch L_a_done")

    a.label("L_touch")
    a("s_setprio 3")
    a("s_lshl_b32 s8, s6, 1")
    a("s_add_u32 s8, s8, s5")
    a("s_sub_u32 s8, s8, 4")
    a("v_mul_u32_u24 v5, 43, v2")
    a("v_lshrrev_b32 v5, 9, v5")
    a("v_mul_u32_u24 v6, 12, v5")
    a("v_sub_u32 v6, v2, v6")
    a("s_lshl_b32 s9, s8, 2")
    a("v_add_u32 v5, s9, v5")
    a("v_mul_u32_u24 v5, 2688, v5")
    a("v_lshl_add_u32 v5, v6, 7, v5")
    a("v_lshrrev_b32 v6, 2, v6")
    a("v_mul_u32_u24 v6, 384, v6")
    a("v_add_u32 v5, v5, v6")
    T0 = optint("tfrom", 0); WIN = optint("win", 3)
    a("s_and_b32 s9, s3, 1")
    a("s_mul_i32 s9, s9, 384")
    a(f"s_add_u32 s9, s9, {T0*172032}")
    a("s_lshl_b32 s10, s8, 5")
    a("s_lshr_b32 s11, s3, 1")
    a("s_lshl_b32 s11, s11, 9")
    a("s_add_u32 s10, s10, s11")
    a("v_add_u32 v6, s10, v2")
    a("v_mul_u32_u24 v6, 896, v6")
    a(f"s_movk_i32 s10, {T0*128}")
    a("s_waitcnt lgkmcnt(0)")
    stamp(a, 0)
    srd(a, 44, P_X, 2048 * 896)
    srd(a, 48, P_W, 448 * 2688)
    NT = 0 if 'notouch' in OPT else 7 - T0
    for c in range(NT):
        if c >= WIN:
            a(f"s_waitcnt vmcnt({2*(WIN-1)})")
        a("s_mov_b32 exec_hi, 0xffff")
        a("buffer_load_dword v13, v5, s[48:51], s9 offen")
        a("s_mov_b32 exec_hi, 0")
        a("buffer_load_dword v13, v6, s[44:47], s10 offen")
        a("s_add_u32 s9, s9, 172032")
        a("s_add_u32 s10, s10, 128")
    a("s_mov_b64 exec, -1")
    stamp(a, 3)
    srd(a, 48, P_WO, 448 * 896)
    a(f"s_mul_i32 s9, s8, {196*128}")
    a("v_lshlrev_b32 v5, 7, v2")
    a("s_waitcnt vmcnt(2)")
    for i in range(4):
        if i == 3: a("s_mov_b64 exec, 15")
        a("buffer_load_dword v13, v5, s[48:51], s9 offen")
        a("s_add_u32 s9, s9, 8192")
    a("s_mov_b64 exec, -1")
    a("s_setprio 0")
    a("s_branch L_a_done")

    a.label("L_ut")
    a("s_sub_u32 s7, s5, 6")
    a("s_lshl_b32 s9, s3, 3")
    a("s_add_u32 s9, s9, s6")
    a("s_lshl_b32 s9, s9, 1")
    a("s_add_u32 s9, s9, s7")
    a("s_mul_i32 s10, s9, 14336")
    a("s_mul_i32 s11, s7, 14336")
    a(f"s_add_u32 s11, s11, {A_UT}")
    a("v_lshlrev_b32 v4, 4, v2")
    a("v_mov_b32 v8, 0\nv_mov_b32 v9, 0\nv_mov_b32 v10, 0\nv_mov_b32 v11, 0")
    a("s_waitcnt lgkmcnt(0)")
    stamp(a, 0)
    srd(a, 44, P_U, 2048 * 896)
    srd(a, 48, P_WS, UB_IMG, WS_UB)
    srd(a, 52, P_WS, 0x10000, WS_KV)
    srd(a, 56, P_WS, FL_BYTES, WS_FL)
    srd(a, 60, P_DBG, 256)
    Lz = a.newlabel("Lnz")
    a("s_cmp_lg_u32 s6, 1")
    a(f"s_cbranch_scc1 {Lz}")
    a("s_cmp_lg_u32 s7, 0")
    a(f"s_cbranch_scc1 {Lz}")
    a("s_lshl_b32 s12, s3, 13")
    for i in range(8):
        a(f"buffer_store_dwordx4 v[8:11], v4, s[52:55], s12 offen offset:{(i%4)*1024} sc1")
        if i == 3: a("s_add_u32 s12, s12, 4096")
    a(f"s_lshl_b32 s12, s3, {7 + FSH}")
    a(f"v_lshlrev_b32 v12, {FSH}, v2")
    a("buffer_store_dword v8, v12, s[56:59], s12 offen sc1")
    a(f"s_add_u32 s12, s12, {64 << FSH}")
    a("buffer_store_dword v8, v12, s[56:59], s12 offen sc1")
    a("s_waitcnt vmcnt(0)")
    a("v_mov_b32 v12, 1")
    a("s_lshl_b32 s12, s3, 2")
    a("s_mov_b64 exec, 1")
    a("buffer_store_dword v12, v8, s[60:63], s12 offen sc1")
    a("s_mov_b64 exec, -1")
    a.label(Lz)
    for i in range(14):
        a(f"s_add_u32 m0, s11, {i*1024}")
        a("s_nop 0")
        a("buffer_load_dwordx4 v4, s[44:47], s10 offen lds")
        a("s_add_u32 s10, s10, 1024")
    a("v_bfe_u32 v5, v2, 2, 2")
    a("v_and_b32 v6, 1, v2")
    a("v_lshl_add_u32 v5, v6, 3, v5")
    a("v_mul_u32_u24 v5, 896, v5")
    a("v_lshrrev_b32 v6, 4, v2")
    a("v_lshl_add_u32 v5, v6, 4, v5")
    a("v_bfe_u32 v6, v2, 1, 1")
    a("v_lshl_add_u32 v5, v6, 3, v5")
    a("v_add_u32 v5, s11, v5")
    a("v_lshrrev_b32 v7, 3, v2")
    a("v_lshlrev_b32 v7, 14, v7")
    a("v_and_b32 v6, 7, v2")
    a("v_lshl_add_u32 v7, v6, 4, v7")
    a("s_lshl_b32 s10, s9, 7")
    a("s_waitcnt vmcnt(0)")
    stamp(a, 2)
    UR = 32
    for cg in range(14):
        for jj in range(2):
            d = UR + 4 * cg + 2 * jj
            a(f"ds_read_b64_tr_b16 v[{d}:{d+1}], v5 offset:{cg*64 + jj*3584}")
        if cg == 6: a("s_waitcnt lgkmcnt(4)")
    for cg in range(14):
        if cg >= 7: a(f"s_waitcnt lgkmcnt({2*(13-cg)})")
        elif cg == 5: a("s_waitcnt lgkmcnt(14)")
        d = UR + 4 * cg
        a(f"buffer_store_dwordx4 v[{d}:{d+3}], v7, s[48:51], s10 offen{ST}")
        a(f"s_add_u32 s10, s10, {8*16384}")
    stamp(a, 3)
    wait_init(a, 145, 60, False)
    a(f"s_lshl_b32 s14, s9, {FSH}")
    set_flag(a, 14, 1)
    a.label("L_a_done")
    stamp(a, 5)
    a("s_add_u32 s4, s6, 6")
    a("s_mov_b32 s66, 0")
    a("s_branch L_conv")

def build():
    from gen12_p2 import p2_w4, p2_conv
    a = Asm()
    hdr = open("cdna_kernels/" + NAME + ".s.ref").read().split("; Override launch")[0]
    a.raw(hdr.rstrip("\n"))
    a.raw(f"; @launch grid=(256,1,1) block=(512,1,1) lds=163840")
    a.raw('.amdgcn_target "amdgcn-amd-amdhsa--gfx950"')
    a.raw(".text")
    a.raw(f".globl {KN}\n.p2align 8\n.type {KN},@function")
    a.label(KN)
    a("s_cmp_ge_u32 s2, 256")
    a("s_cbranch_scc1 L_end")
    stamp_init(a)
    a("s_load_dwordx16 s[16:31], s[0:1], 0")
    a("s_load_dwordx8 s[32:39], s[0:1], 64")
    a("s_load_dwordx2 s[40:41], s[0:1], 96")
    a("v_lshrrev_b32 v1, 6, v0")
    a("v_and_b32 v2, 63, v0")
    a("s_and_b32 s3, s2, 7")
    a("s_lshr_b32 s4, s2, 3")
    a("v_readfirstlane_b32 s5, v1")
    a("s_and_b32 s6, s4, 3")
    a("s_cmp_lg_u32 s6, 0")
    a("s_cbranch_scc1 L_nopf")
    a("s_cmp_ge_u32 s5, 4")
    a("s_cbranch_scc1 L_nopf")
    a("s_getpc_b64 s[60:61]")
    a.label("L_pc")
    a(f"s_sub_u32 s60, s60, L_pc-{KN}")
    a("s_subb_u32 s61, s61, 0")
    a("v_lshlrev_b32 v250, 7, v0")
    a("global_load_dword v251, v250, s[60:61]")
    a.label("L_nopf")
    if "pretouch" in OPT:
        a("s_cmp_lg_u32 s5, 7")
        a("s_cbranch_scc1 L_npt")
        a("v_lshlrev_b32 v252, 17, v2")
        a("v_add_u32 v252, 0x1f000, v252")
        a("v_lshlrev_b32 v253, 16, v2")
        a("s_waitcnt lgkmcnt(0)")
        srd(a, 44, P_WS, 0x880000)
        srd(a, 48, P_OUT, 2048 * 1792)
        srd(a, 52, P_WO, 448 * 896)
        a("buffer_load_dword v254, v252, s[44:47], 0 offen sc0 sc1")
        a("buffer_load_dword v254, v253, s[48:51], 0 offen sc0 sc1")
        a("buffer_load_dword v254, v253, s[52:55], 0 offen sc0 sc1")
        a("s_mov_b32 s6, 0x801000")
        a("s_mov_b64 exec, 1")
        a("buffer_load_dword v254, v253, s[44:47], s6 offen sc0 sc1")
        a("s_mov_b64 exec, -1")
        a.label("L_npt")
    a("s_cmp_ge_u32 s4, 24")
    a("s_cbranch_scc1 L_a")
    phase1_gemm(a)
    a.label("L_a")
    phase1_a(a)
    a.label("L_w4")
    p2_w4(a)
    a.label("L_conv")
    p2_conv(a)
    a.label("L_end")
    a("s_endpgm")
    a.raw("  .fill 2048, 4, 0xbf800000")
    a.raw('.section .rodata,"a"')
    a.raw(f""".p2align 6
.amdhsa_kernel {KN}
  .amdhsa_next_free_vgpr 256
  .amdhsa_next_free_sgpr 100
  .amdhsa_accum_offset 256
  .amdhsa_group_segment_fixed_size 0
  .amdhsa_kernarg_size 104
  .amdhsa_user_sgpr_count 2
  .amdhsa_user_sgpr_kernarg_segment_ptr 1
  .amdhsa_system_sgpr_workgroup_id_x 1
.end_amdhsa_kernel""")
    return a.text()

if __name__ == "__main__":
    if "stamps" in OPT: asmlib.STAMPS = True
    open(sys.argv[1], "w").write(build())
```

```python
import sys, math, struct
from asmlib import *
import asmlib

NAME = "concat_heads__ssm_conv_s4d__linear_attn_block__prompt"
KN = NAME + "_kernel"
OPT = set(sys.argv[2:])
def optint(prefix, default):
    v = [o for o in OPT if o.startswith(prefix) and o[len(prefix):].isdigit()]
    return int(v[0][len(prefix):]) if v else default

WS_KV = 0x0
WS_PQ = 0x10000
WS_KT = 0x210000
KT_ROW = 4224
WS_UB = 0x600000
UB_IMG = 256 * 448 * 16
WS_FL = 0x800000
FSH = optint("fsh", 2)
FL_U, FL_KV, FL_Q, FL_K = 0, 128 << FSH, 256 << FSH, 512 << FSH
FL_BYTES = 1024 << FSH
LOG2E = 1.4426950408889634
INV2PI = 0.15915494309189535
C_HI = struct.unpack("<f", struct.pack("<f", INV2PI))[0]
C_LO = INV2PI - C_HI
ST = " sc1"
P_U, P_LA, P_AI, P_CR, P_CI, P_LDT, P_D, P_X, P_W, P_WO, P_OUT, P_DBG, P_WS = 16, 18, 20, 22, 24, 26, 28, 30, 32, 34, 36, 38, 40

def srd(a, d, p, nbytes, off=0):
    if off:
        a(f"s_add_u32 s{d}, s{p}, 0x{off:x}")
        a(f"s_addc_u32 s{d+1}, s{p+1}, 0")
    else:
        a(f"s_mov_b32 s{d}, s{p}")
        a(f"s_mov_b32 s{d+1}, s{p+1}")
    a(f"s_mov_b32 s{d+2}, 0x{nbytes:x}")
    a(f"s_mov_b32 s{d+3}, 0x20000")

def prefetch_code(a, n, vtmp, stmp):
    lab = a.newlabel("Lpc")
    a(f"s_getpc_b64 s[{stmp}:{stmp+1}]")
    a.label(lab)
    a(f"s_sub_u32 s{stmp}, s{stmp}, {lab}-{KN}")
    a(f"s_subb_u32 s{stmp+1}, s{stmp+1}, 0")
    a(f"v_lshlrev_b32 v{vtmp}, 7, v2")
    for i in range(n):
        a(f"global_load_dword v{vtmp+1}, v{vtmp}, s[{stmp}:{stmp+1}]")
        if i < n - 1:
            a(f"v_add_u32 v{vtmp}, 8192, v{vtmp}")

def phi_pack(a, acc, dst, tmp, s_log2e, s_eps):
    for p in range(0, 8, 2):
        t = tmp
        for q in range(2):
            r = 2 * (p + q)
            a(f"v_cvt_pk_bf16_f32 v{t+4*q}, v{acc+r}, v{acc+r+1}")
        for q in range(2):
            a(f"v_and_b32 v{t+4*q+1}, 0xffff0000, v{t+4*q}")
            a(f"v_lshlrev_b32 v{t+4*q}, 16, v{t+4*q}")
        for q in range(2):
            a(f"v_mul_f32 v{t+4*q+2}, s{s_log2e}, v{t+4*q}")
            a(f"v_mul_f32 v{t+4*q+3}, s{s_log2e}, v{t+4*q+1}")
        for q in range(2):
            a(f"v_exp_f32_e64 v{t+4*q+2}, v{t+4*q+2} clamp")
            a(f"v_exp_f32_e64 v{t+4*q+3}, v{t+4*q+3} clamp")
        for q in range(2):
            a(f"v_max_f32 v{t+4*q}, s{s_eps}, v{t+4*q}")
            a(f"v_max_f32 v{t+4*q+1}, s{s_eps}, v{t+4*q+1}")
        for q in range(2):
            a(f"v_add_f32 v{t+4*q}, v{t+4*q}, v{t+4*q+2}")
            a(f"v_add_f32 v{t+4*q+1}, v{t+4*q+1}, v{t+4*q+3}")
        for q in range(2):
            a(f"v_cvt_pk_bf16_f32 v{dst+p+q}, v{t+4*q}, v{t+4*q+1}")

def cmul_ops(d, x, y):
    return [f"v_pk_mul_f32 v[{d}:{d+1}], v[{x}:{x+1}], v[{y}:{y+1}] op_sel:[0,0] op_sel_hi:[1,0]",
            f"v_pk_fma_f32 v[{d}:{d+1}], v[{x}:{x+1}], v[{y}:{y+1}], v[{d}:{d+1}] op_sel:[1,1,0] op_sel_hi:[0,1,1] neg_lo:[1,0,0]"]
def hmul_ops(d, x, y):
    return [f"v_pk_mul_f16 v{d}, v{x}, v{y} op_sel:[0,0] op_sel_hi:[1,0]",
            f"v_pk_fma_f16 v{d}, v{x}, v{y}, v{d} op_sel:[1,1,0] op_sel_hi:[0,1,1] neg_lo:[1,0,0]"]
def interleave(a, streams):
    idx = [0] * len(streams)
    live = True
    while live:
        live = False
        for i, s in enumerate(streams):
            if idx[i] < len(s):
                a(s[idx[i]]); idx[i] += 1; live = True

def wait_init(a, v, sdbg, pre):
    L, Lk = a.newlabel("Lwi"), a.newlabel("Lwik")
    a("s_movk_i32 s64, 3000")
    if not pre:
        a(f"buffer_load_dword v{v}, v{v+1}, s[{sdbg}:{sdbg+3}], 0 offen sc1")
    a.label(L)
    a("s_waitcnt vmcnt(0)")
    a(f"v_cmp_ne_u32 vcc, 1, v{v}")
    a("s_sub_u32 s64, s64, 1")
    a(f"s_cbranch_scc1 {Lk}")
    a(f"s_cbranch_vccz {Lk}")
    a("s_sleep 2")
    a(f"buffer_load_dword v{v}, v{v+1}, s[{sdbg}:{sdbg+3}], 0 offen sc1")
    a(f"s_branch {L}")
    a.label(Lk)

RS = 4 * 256 + 32
SCRG = 16 * RS
TSTR = 4736
SLOT = 32768
SB0 = 21760
SLOT_OFF = [SB0 + i * SLOT for i in range(4)]
TAB_L = SCRG
A_TAB = SCRG
A_UT = 36864

ACC = 112
TA = [3, 4, 5, 6, 7, 14, 15, 18]
def kbase(mt, q, r):
    if mt == 0:
        return [r, 4 + r, 256 + 2 * r, 512 + 4 * (r & 1) + 256 * (r >> 1)][q]
    if q == 0: return 1024 + 256 * r
    if q == 1 and r == 0: return 2048
    return 2049

def kgen_load4(a):
    a(f"global_load_dwordx2 v[148:149], v3, s[{P_CR}:{P_CR+1}]")
    a(f"global_load_dwordx2 v[150:151], v3, s[{P_CI}:{P_CI+1}]")
    a(f"global_load_short_d16_hi v16, v4, s[{P_LDT}:{P_LDT+1}]")
    a(f"global_load_dwordx2 v[152:153], v3, s[{P_LA}:{P_LA+1}]")
    a(f"global_load_dwordx2 v[154:155], v3, s[{P_AI}:{P_AI+1}]")
    a(f"global_load_short_d16_hi v17, v4, s[{P_D}:{P_D+1}]")

def kgen_load(a):
    a(f"global_load_dword v10, v3, s[{P_CR}:{P_CR+1}]")
    a(f"global_load_dword v11, v3, s[{P_CI}:{P_CI+1}]")
    a(f"global_load_short_d16_hi v16, v4, s[{P_LDT}:{P_LDT+1}]")
    a(f"global_load_dword v8, v3, s[{P_LA}:{P_LA+1}]")
    a(f"global_load_dword v9, v3, s[{P_AI}:{P_AI+1}]")
    a(f"global_load_short_d16_hi v17, v4, s[{P_D}:{P_D+1}]")

def kgen_addr(a):
    a("v_lshlrev_b32 v3, 2, v2")
    a("s_lshl_b32 s14, s7, 9")
    a("s_bfe_u32 s15, s5, 0x10001")
    a("s_lshl_b32 s15, s15, 8")
    a("s_add_u32 s14, s14, s15")
    a("v_add_u32 v3, s14, v3")
    a("s_lshl_b32 s14, s7, 1")
    a("v_mov_b32 v4, s14")

def kgen_setup(a, younger, full=False):
    a(f"s_mov_b32 s66, {fhex(LOG2E)}")
    a(f"s_mov_b32 s67, {fhex(-LOG2E)}")
    a(f"s_mov_b32 s68, {fhex(C_HI)}")
    a(f"s_mov_b32 s69, {fhex(C_LO)}")
    a(f"s_mov_b32 s70, {fhex(8.0)}")
    a(f"s_mov_b32 s71, {fhex(256.0)}")
    a("v_and_b32 v24, 15, v2")
    a(f"v_mul_u32_u24 v20, {RS}, v24")
    a("v_lshrrev_b32 v21, 4, v2")
    a("v_lshl_add_u32 v20, v21, 4, v20")
    a("v_add_u32 v20, s72, v20")
    a(f"v_mul_u32_u24 v21, {RS}, v21")
    a("v_lshl_add_u32 v21, v24, 4, v21")
    a("v_mov_b32 v22, 0x00003c00")
    srd(a, 52, P_WS, 448 * KT_ROW, WS_KT)
    a("v_lshl_add_u32 v24, v24, 4, s13")
    for q in range(4):
        lo = (0xffff << (16 * q)) & 0xffffffff if q < 2 else 0
        hi_ = (0xffff << (16 * (q - 2))) & 0xffffffff if q >= 2 else 0
        a(f"s_mov_b32 exec_lo, 0x{lo:x}")
        a(f"s_mov_b32 exec_hi, 0x{hi_:x}")
        for mt in range(2):
            for r in range(4):
                a(f"v_add_u32 v{TA[4*mt+r]}, {2*kbase(mt,q,r)}, v24")
    a("s_mov_b64 exec, -1")
    a("s_mov_b32 m0, s72")
    a(f"s_waitcnt vmcnt({3 + younger})")
    if full:
        a("v_and_b32 v24, 0x7fff7fff, v148")
        a("v_and_b32 v25, 0x7fff7fff, v149")
        a("v_and_b32 v26, 0x7fff7fff, v150")
        a("v_and_b32 v27, 0x7fff7fff, v151")
        a("v_pk_max_u16 v24, v24, v26")
        a("v_pk_max_u16 v25, v25, v27")
    else:
        a("v_and_b32 v24, 0x7fff7fff, v10")
        a("v_and_b32 v25, 0x7fff7fff, v11")
    a("v_and_b32 v16, 0xffff0000, v16")
    a("v_pk_max_u16 v24, v24, v25")
    a("v_mul_f32 v16, s66, v16")
    a("v_exp_f32 v16, v16")
    a("v_lshrrev_b32 v25, 16, v24")
    a("v_and_b32 v24, 0xffff, v24")
    a("v_max_u32 v24, v24, v25")
    a("v_cvt_pk_bf16_f32 v16, v16, v16")
    a("v_and_b32 v16, 0xffff0000, v16")
    for ctl in ("row_shr:1 row_mask:0xf bank_mask:0xf", "row_shr:2 row_mask:0xf bank_mask:0xf",
                "row_shr:4 row_mask:0xf bank_mask:0xf", "row_shr:8 row_mask:0xf bank_mask:0xf",
                "row_bcast:15 row_mask:0xa bank_mask:0xf", "row_bcast:31 row_mask:0xc bank_mask:0xf"):
        a(f"v_max_u32_dpp v24, v24, v24 {ctl}")
        a("s_nop 1")
    a("v_readlane_b32 s74, v24, 63")
    a("v_readfirstlane_b32 s75, v16")
    a("s_nop 3")
    a("s_lshr_b32 s74, s74, 7")
    a("s_max_u32 s74, s74, 14")
    a("s_min_u32 s74, s74, 254")
    a("s_sub_u32 s76, 267, s74")
    a("s_lshl_b32 s76, s76, 23")
    a("s_sub_u32 s77, s74, 13")
    a("s_lshl_b32 s77, s77, 23")
    a(f"s_waitcnt vmcnt({younger})")
    if full: return
    Ls = a.newlabel("Lsh")
    a("s_bitcmp0_b32 s5, 0")
    a(f"s_cbranch_scc1 {Ls}")
    for r in range(8, 12):
        a(f"v_lshrrev_b32 v{r}, 16, v{r}")
    a.label(Ls)

def kgen_pass(a, hook, accum=False):
    FX = 80
    Z1, Z2, Z4, Z256 = 32, 34, 36, 38
    Q1, Q2, Q3, Q4, QT = 40, 42, 44, 46, 48
    P1, P2 = 50, 52
    XA, XB_, RA, RB, SA, SB = 54, 56, 58, 60, 62, 12
    QH = [22, 64, 65, 66, 67, 68, 69, 70]
    PH = [None, 71, 72, 73]
    H1, H2, H3 = [74, 75], [76, 77], [78, 79]
    def wr(row, v):
        return f"ds_write_addtid_b32 v{v} offset:{(row % 16) * RS}"
    a("v_lshlrev_b32 v24, 16, v8")
    a("v_lshlrev_b32 v25, 16, v9")
    a("v_mul_f32 v24, s66, v24")
    a("v_exp_f32 v24, v24")
    a("v_mul_f32 v25, s75, v25")
    a("v_mul_f32 v26, s68, v25")
    a("v_cvt_pk_bf16_f32 v24, v24, v24")
    a("v_fma_f32 v27, v25, s68, -v26")
    a("v_and_b32 v24, 0xffff0000, v24")
    a("v_fmac_f32 v27, s69, v25")
    a("v_mul_f32 v24, s75, v24")
    a("v_mul_f32 v24, s67, v24")
    a(f"v_lshlrev_b32 v{XA}, 16, v10")
    a(f"v_lshlrev_b32 v{XA+1}, 16, v11")
    a(f"v_mul_f32 v{XA}, s76, v{XA}")
    a(f"v_mul_f32 v{XA+1}, s76, v{XA+1}")
    st = []
    for (dst, sm, t, neg) in ((Z1, None, 28, False), (Q1, 70, 74, True), (Z256, 71, 77, False)):
        s_ = []
        if sm is None:
            s_ += [f"v_exp_f32 v{t}, v24", f"v_fract_f32 v{t+1}, v26", f"v_add_f32 v{t+1}, v{t+1}, v27"]
        else:
            s_ += [f"v_mul_f32 v{t}, s{sm}, v24", f"v_exp_f32 v{t}, v{t}", f"v_mul_f32 v{t+1}, s{sm}, v26",
                   f"v_fract_f32 v{t+1}, v{t+1}", f"v_fmac_f32 v{t+1}, s{sm}, v27"]
        s_ += [f"v_cos_f32 v{t+2}, v{t+1}", f"v_sin_f32 v{t+1}, v{t+1}", "s_nop 0", f"v_mul_f32 v{dst}, v{t}, v{t+2}"]
        s_ += [f"v_mul_f32_e64 v{dst+1}, v{t}, {'-' if neg else ''}v{t+1}"]
        st.append(s_)
    interleave(a, st)
    hook(0)
    for s_ in cmul_ops(RA, XA, Z256): a(s_)
    def cvh(stream, hs, k, src, row):
        h = hs[k % 2]
        stream.append(f"v_cvt_pk_f16_f32 v{h}, v{src}, v{src+1}")
        stream.append(wr(row, h))
    s1 = []
    cur, oth = XA, XB_
    cvh(s1, H1, 0, XA, 0)
    for f in range(1, 8):
        s1 += cmul_ops(oth, cur, Z1)
        cvh(s1, H1, f, oth, f)
        cur, oth = oth, cur
    s2 = cmul_ops(Z2, Z1, Z1) + cmul_ops(Z4, Z2, Z2)
    k = 0
    cvh(s2, H2, k, RA, 8); k += 1
    s2 += cmul_ops(RB, RA, Z256)
    s2 += cmul_ops(SA, RA, Z2); cvh(s2, H2, k, SA, 9); k += 1
    s2 += cmul_ops(SB, RA, Z4); cvh(s2, H2, k, SB, 10); k += 1
    s2 += cmul_ops(SA, SB, Z2); cvh(s2, H2, k, SA, 11); k += 1
    cvh(s2, H2, k, RB, 12); k += 1
    s2 += cmul_ops(RA, RB, Z256)
    s2 += cmul_ops(SA, RB, Z4); cvh(s2, H2, k, SA, 13); k += 1
    cvh(s2, H2, k, RA, 14); k += 1
    s2 += cmul_ops(RB, RA, Z256)
    s2 += cmul_ops(SA, RA, Z4); cvh(s2, H2, k, SA, 15); k += 1
    s3 = []
    def qcv(b, src):
        s3.append(f"v_cvt_pk_f16_f32 v{QH[b]}, v{src}, v{src+1}")
    qcv(1, Q1)
    s3 += cmul_ops(Q2, Q1, Q1); qcv(2, Q2)
    s3 += cmul_ops(Q4, Q2, Q2)
    s3 += cmul_ops(Q3, Q2, Q1); qcv(4, Q4); qcv(3, Q3)
    s3 += cmul_ops(P1, Q4, Q4)
    s3 += cmul_ops(QT, Q4, Q1); qcv(5, QT)
    s3 += cmul_ops(P2, P1, P1)
    s3 += cmul_ops(QT, Q4, Q2); qcv(6, QT)
    s3 += cmul_ops(QT, Q4, Q3); qcv(7, QT)
    s3 += cmul_ops(QT, P2, P1)
    s3.append(f"v_cvt_pk_f16_f32 v{PH[1]}, v{P1}, v{P1+1}")
    s3.append(f"v_cvt_pk_f16_f32 v{PH[2]}, v{P2}, v{P2+1}")
    s3.append(f"v_cvt_pk_f16_f32 v{PH[3]}, v{QT}, v{QT+1}")
    interleave(a, [s1[:16], s2[:16], s3[:16]])
    hook(1)
    interleave(a, [s1[16:], s2[16:], s3[16:]])
    def rdf(f0):
        for kk in range(4):
            f = f0 + 4 * kk
            a(f"ds_read_b128 v[{f}:{f+3}], v20 offset:{64*kk}")
    rdf(FX)
    hook(2)
    s4 = []
    c_, o_ = RB, RA
    for row in range(16, 21):
        cvh(s4, H2, row, c_, row)
        if row < 20:
            s4 += cmul_ops(o_, c_, Z256)
            c_, o_ = o_, c_
    s5 = []
    Y1 = [None, 32, 33, 34, 35, 36, 37, 40]
    for b in range(1, 8):
        s5 += hmul_ops(Y1[b], PH[1], QH[b])
    interleave(a, [s4, s5])
    rdf(FX + 16)
    hook(3)
    w0 = [wr(b, QH[b]) for b in range(8)] + [wr(8, PH[1])] + [wr(8 + b, Y1[b]) for b in range(1, 8)]
    Y2 = [None, 41, 42, 43, 44, 45, 46, 47]
    s6 = []
    for b in range(1, 8):
        s6 += hmul_ops(Y2[b], PH[2], QH[b])
    interleave(a, [w0, s6])
    rdf(48)
    w1 = [wr(0, PH[2])] + [wr(b, Y2[b]) for b in range(1, 8)] + [wr(8, PH[3])]
    s7 = []
    for b in range(1, 8):
        h = H1[b % 2]
        s7 += hmul_ops(h, PH[3], QH[b])
        s7.append(wr(8 + b, h))
    interleave(a, [w1, s7])
    rdf(32)
    def mm(nt, kk):
        for mt in range(2):
            fa = FX + 16 * mt + 4 * kk
            fb = (48 if nt == 0 else 32) + 4 * kk
            d = ACC + 8 * mt + 4 * nt
            cin = "0" if (kk == 0 and not accum) else f"v[{d}:{d+3}]"
            a(f"v_mfma_f32_16x16x32_f16 v[{d}:{d+3}], v[{fa}:{fa+3}], v[{fb}:{fb+3}], {cin}")
    a("s_waitcnt lgkmcnt(15)")
    for kk in range(4): mm(0, kk)
    for kk in range(4):
        a(f"s_waitcnt lgkmcnt({3-kk})")
        mm(1, kk)
    if accum: return
    kgen_scale(a, True)

def kgen_scale(a, publish):
    a("v_mov_b32 v25, s75")
    a("v_mul_f32 v25, s77, v25")
    a("v_add_f32 v25, v25, v25")
    a("v_add_u32 v30, s72, v21")
    a("v_lshlrev_b32 v26, 4, v2")
    a("v_and_b32 v17, 0xffff0000, v17")
    a(f"s_add_u32 s14, s13, {16*63}")
    a("v_sub_u32 v27, s14, v26")
    a("s_nop 1")
    for q in range(4):
        for r in range(4):
            a(f"v_mul_f32 v{ACC+4*q+r}, v25, v{ACC+4*q+r}")
        if publish:
            a(f"ds_write_b128 v30, v[{ACC+4*q}:{ACC+4*q+3}] offset:{4*q*RS}")

def kgen_solo(a):
    a("s_mov_b64 exec, 1")
    a(f"v_add_f32 v{ACC}, v{ACC}, v17")
    a("s_mov_b64 exec, -1")
    for mt in range(2):
        for r in range(4):
            a(f"v_cvt_pk_bf16_f32 v{40+4*mt+r}, v{ACC+8*mt+r}, v{ACC+8*mt+4+r}")
            a(f"ds_write_b16 v{TA[4*mt+r]}, v{40+4*mt+r}")
            a(f"ds_write_b16_d16_hi v{TA[4*mt+r]}, v{40+4*mt+r} offset:256")
    a("v_cmp_gt_u32 vcc, 32, v2")
    a("v_and_b32 v31, 1, v2")
    a("v_mul_u32_u24 v31, 0x0404, v31")
    a("v_cndmask_b32_e64 v28, 0, 2, vcc")
    a("v_add_u32 v29, v27, v28")
    a("v_sub_u32 v30, v27, v28")
    for m in range(2):
        o = (3 - m) * 1024
        a(f"ds_read_u16 v{80+2*m}, v27 offset:{o}")
        a(f"ds_read_u16 v{81+2*m}, v27 offset:{o+16}")
    a("ds_read_u16 v88, v27 offset:1024")
    a("ds_read_u16 v89, v27 offset:1032")
    a("ds_read_u16 v90, v27 offset:1040")
    for k_, (reg, idx) in enumerate(((29, 7), (27, 6), (30, 5), (27, 4), (29, 3), (27, 2), (30, 1), (27, 0))):
        a(f"ds_read_u16 v{92+k_}, v{reg} offset:{2*idx}")
    a("s_mov_b32 s60, 0x05040504")
    a("s_mov_b32 s61, 0x01000100")
    a("s_mov_b32 s62, 0x01000504")
    a(f"s_mul_i32 s15, s7, {KT_ROW}")
    a("v_mov_b32 v84, 0\nv_mov_b32 v85, 0\nv_mov_b32 v86, 0\nv_mov_b32 v87, 0")
    a("v_lshlrev_b32 v31, 16, v31")
    a("v_sub_u32 v31, 0x05040504, v31")
    E = 48
    a("s_waitcnt lgkmcnt(8)")
    for m in range(2):
        ra, rb = 80 + 2 * m, 81 + 2 * m
        e = E + 4 * m
        a(f"v_perm_b32 v{e}, v{rb}, v{ra}, s60")
        a(f"v_perm_b32 v{e+1}, v{rb}, v{ra}, v31")
        a(f"v_perm_b32 v{e+2}, v{rb}, v{ra}, s61")
        a(f"v_perm_b32 v{e+3}, v{rb}, v{ra}, s61")
        a(f"buffer_store_dwordx4 v[{e}:{e+3}], v26, s[52:55], s15 offen offset:{m*1024}{ST}")
    e = E + 8
    a(f"v_perm_b32 v{e}, v90, v90, s61")
    a(f"v_perm_b32 v{e+1}, v89, v88, s60")
    a(f"v_perm_b32 v{e+2}, v89, v88, s62")
    a(f"v_perm_b32 v{e+3}, v89, v88, s61")
    a(f"buffer_store_dwordx4 v[{e}:{e+3}], v26, s[52:55], s15 offen offset:2048{ST}")
    a("s_waitcnt lgkmcnt(0)")
    e = E + 12
    for k_ in range(4):
        a(f"v_lshl_or_b32 v{e+k_}, v{93+2*k_}, 16, v{92+2*k_}")
    a(f"buffer_store_dwordx4 v[{e}:{e+3}], v26, s[52:55], s15 offen offset:3072{ST}")
    a("s_add_u32 s15, s15, 4096")
    a("s_mov_b64 exec, 1")
    a(f"buffer_store_dwordx4 v[84:87], v26, s[52:55], s15 offen{ST}")
    a("s_mov_b64 exec, -1")

def kgen_table(a):
    a("s_and_b32 s14, s5, 3")
    a(f"s_mul_i32 s15, s14, {4*RS}")
    a("s_andn2_b32 s74, s72, 0x300")
    a("s_add_u32 s15, s15, s74")
    a("v_add_u32 v30, s15, v21")
    for i in range(4):
        a(f"ds_read_b128 v[{32+4*i}:{35+4*i}], v30 offset:{i*256}")
    L = a.newlabel("Lmt")
    a("s_bitcmp0_b32 s5, 1")
    a(f"s_cbranch_scc1 {L}")
    for r in range(4):
        a(f"v_mov_b32 v{TA[r]}, v{TA[4+r]}")
    a.label(L)
    a("s_and_b32 s15, s5, 1")
    a("s_lshl_b32 s15, s15, 8")
    for r in range(4):
        a(f"v_add_u32 v{TA[r]}, s15, v{TA[r]}")
    a("s_cmp_eq_u32 s14, 0")
    a("s_cselect_b32 s74, 1, 0")
    a("s_mov_b32 s75, 0")
    a("s_waitcnt lgkmcnt(0)")
    for r in range(4):
        a(f"v_add_f32 v{32+r}, v{32+r}, v{36+r}")
        a(f"v_add_f32 v{40+r}, v{40+r}, v{44+r}")
    for r in range(4):
        a(f"v_add_f32 v{32+r}, v{32+r}, v{40+r}")
    a("s_mov_b64 exec, s[74:75]")
    a("v_add_f32 v32, v32, v17")
    a("s_mov_b64 exec, -1")
    a("v_cvt_pk_bf16_f32 v36, v32, v33")
    a("v_cvt_pk_bf16_f32 v37, v34, v35")
    a(f"ds_write_b16 v{TA[0]}, v36")
    a(f"ds_write_b16_d16_hi v{TA[1]}, v36")
    a(f"ds_write_b16 v{TA[2]}, v37")
    a(f"ds_write_b16_d16_hi v{TA[3]}, v37")

def kgen_expand(a):
    L2, L3, Le = a.newlabel("Lm2"), a.newlabel("Lm3"), a.newlabel("Lme")
    a("s_and_b32 s14, s5, 3")
    a(f"s_mul_i32 s15, s7, {KT_ROW}")
    a("s_lshl_b32 s74, s14, 10")
    a("s_add_u32 s77, s15, 4096")
    a("s_add_u32 s15, s15, s74")
    a("s_mov_b32 s74, 0x05040504")
    a("s_mov_b32 s75, 0x01000100")
    a("s_mov_b32 s76, 0x01000504")
    a("v_mov_b32 v84, 0\nv_mov_b32 v85, 0\nv_mov_b32 v86, 0\nv_mov_b32 v87, 0")
    a("s_cmp_eq_u32 s14, 3")
    a(f"s_cbranch_scc1 {L3}")
    a("s_cmp_eq_u32 s14, 2")
    a(f"s_cbranch_scc1 {L2}")
    a("s_lshl_b32 s14, s14, 10")
    a("v_subrev_u32 v28, s14, v27")
    a("ds_read_u16 v80, v28 offset:3072")
    a("ds_read_u16 v81, v28 offset:3088")
    a("v_and_b32 v31, 1, v2")
    a("v_mul_u32_u24 v31, 0x0404, v31")
    a("v_lshlrev_b32 v31, 16, v31")
    a("v_sub_u32 v31, 0x05040504, v31")
    a("s_waitcnt lgkmcnt(0)")
    a("v_perm_b32 v48, v81, v80, s74")
    a("v_perm_b32 v49, v81, v80, v31")
    a("v_perm_b32 v50, v81, v80, s75")
    a("v_perm_b32 v51, v81, v80, s75")
    a(f"s_branch {Le}")
    a.label(L2)
    a("ds_read_u16 v88, v27 offset:1024")
    a("ds_read_u16 v89, v27 offset:1032")
    a("ds_read_u16 v90, v27 offset:1040")
    a("s_waitcnt lgkmcnt(0)")
    a("v_perm_b32 v48, v90, v90, s75")
    a("v_perm_b32 v49, v89, v88, s74")
    a("v_perm_b32 v50, v89, v88, s76")
    a("v_perm_b32 v51, v89, v88, s75")
    a(f"s_branch {Le}")
    a.label(L3)
    a("v_cmp_gt_u32 vcc, 32, v2")
    a("s_nop 1")
    a("v_cndmask_b32_e64 v28, 0, 2, vcc")
    a("v_add_u32 v29, v27, v28")
    a("v_sub_u32 v30, v27, v28")
    for k_, (reg, idx) in enumerate(((29, 7), (27, 6), (30, 5), (27, 4), (29, 3), (27, 2), (30, 1), (27, 0))):
        a(f"ds_read_u16 v{92+k_}, v{reg} offset:{2*idx}")
    a("s_waitcnt lgkmcnt(0)")
    for k_ in range(4):
        a(f"v_lshl_or_b32 v{48+k_}, v{93+2*k_}, 16, v{92+2*k_}")
    a.label(Le)
    a(f"buffer_store_dwordx4 v[48:51], v26, s[52:55], s15 offen{ST}")
    a("s_mov_b64 exec, 1")
    a(f"buffer_store_dwordx4 v[84:87], v26, s[52:55], s77 offen{ST}")
    a("s_mov_b64 exec, -1")

def set_flag(a, soff, nl=1):
    a("v_mov_b32 v139, 1")
    a(f"s_mov_b64 exec, {(1 << nl) - 1}")
    a(f"buffer_store_dword v139, v138, s[56:59], s{soff} offen sc1")
    a("s_mov_b64 exec, -1")

def phase1_gemm(a):
    a.comment("---- GEMM WGs: waves 0..3 run one K-gen pass first, waves 4..7 start the loads ----")
    a("s_mul_i32 s7, s3, 24")
    a("s_add_u32 s7, s7, s4")
    a("s_and_b32 s6, s7, 0xe0")
    a("s_add_u32 s7, s7, s6")
    a("s_lshr_b32 s65, s5, 2")
    a("s_cmp_ge_u32 s5, 4")
    a("s_cbranch_scc1 L_g_dec")
    kgen_addr(a)
    a("s_lshl_b32 s72, s5, 8")
    a("s_waitcnt lgkmcnt(0)")
    stamp(a, 0)
    kgen_load(a)
    a.label("L_g_dec")
    a("s_lshr_b32 s6, s3, 1")
    a("s_lshl_b32 s6, s6, 2")
    a("s_and_b32 s60, s3, 1")
    a("s_lshr_b32 s8, s4, 2")
    a("s_add_u32 s8, s8, s6")
    a("s_and_b32 s9, s4, 3")
    a("s_lshl_b32 s10, s60, 2")
    a("s_add_u32 s9, s9, s10")
    a("s_mul_i32 s10, s9, 112")
    a("s_add_u32 s11, s10, 1792")
    a("s_add_u32 s10, s10, 896")
    a("s_sub_u32 s12, s4, 16")
    a("s_lshr_b32 s61, s12, 1")
    a("s_add_u32 s61, s61, s6")
    a("s_and_b32 s12, s12, 1")
    a("s_lshl_b32 s14, s60, 1")
    a("s_add_u32 s12, s12, s14")
    a("s_mul_i32 s14, s12, 224")
    a("s_add_u32 s15, s14, 112")
    a("s_cmp_lt_u32 s4, 16")
    a("s_cselect_b32 s8, s8, s61")
    a("s_cselect_b32 s9, s9, s12")
    a("s_cselect_b32 s10, s10, s14")
    a("s_cselect_b32 s11, s11, s15")
    a("s_and_b32 s60, s5, 3")
    a("v_lshrrev_b32 v164, 3, v2")
    a("v_lshrrev_b32 v165, 4, v2")
    a("v_and_b32 v166, 7, v2")
    a("s_lshl_b32 s12, s8, 7")
    a("s_lshl_b32 s61, s60, 5")
    a("s_add_u32 s12, s12, s61")
    a("v_add_u32 v167, s12, v164")
    a("v_mul_u32_u24 v167, 896, v167")
    a("v_xor_b32 v168, v166, v165")
    a("v_lshl_add_u32 v128, v168, 4, v167")
    a("v_xor_b32 v168, 4, v168")
    a("v_lshl_add_u32 v129, v168, 4, v167")
    a("v_add_u32 v129, 7168, v129")
    a("s_lshl_b32 s61, s60, 4")
    a("v_add_u32 v167, s61, v164")
    a("v_mul_u32_u24 v167, 2688, v167")
    a("v_and_b32 v168, 1, v165")
    a("v_lshlrev_b32 v168, 2, v168")
    a("v_xor_b32 v168, v168, v166")
    a("v_lshl_add_u32 v167, v168, 4, v167")
    a("v_add_u32 v130, s10, v167")
    a("v_add_u32 v131, s11, v167")
    a("s_lshl_b32 s10, s60, 12")
    a("s_lshl_b32 s11, s60, 11")
    a("s_add_u32 s11, s11, 16384")
    a("s_waitcnt lgkmcnt(0)")
    srd(a, 44, P_X, 2048 * 896)
    srd(a, 48, P_W, 448 * 2688)
    a("s_and_b32 s73, s8, 3")
    a("s_lshl_b32 s73, s73, 1")
    a("s_and_b32 s61, s9, 3")
    a("s_and_b32 s62, s9, 1")
    a("s_add_u32 s62, s62, 4")
    a("s_cmp_lt_u32 s4, 16")
    a("s_cselect_b32 s61, s61, s62")
    a("s_add_u32 s73, s73, s61")
    a("s_sub_u32 s61, s73, 7")
    a("s_cmp_ge_u32 s73, 7")
    a("s_cselect_b32 s73, s61, s73")
    if "norot" in OPT: a("s_mov_b32 s73, 0")
    def dma(c, i):
        so = SLOT_OFF[c % 4]; h = i // 4; i = i % 4
        if i == 0:
            if h == 0:
                a("s_lshl_b32 s6, s73, 7")
                a("s_mul_i32 s12, s73, 172032")
                a("s_add_u32 s73, s73, 1")
                a("s_cmp_eq_u32 s73, 7")
                a("s_cselect_b32 s73, 0, s73")
            else:
                a("s_add_u32 s6, s6, 14336")
                a("s_add_u32 s12, s12, 21504")
            a(f"s_add_u32 m0, s10, {so + h*2048}")
            a("s_nop 0")
            a("buffer_load_dwordx4 v128, s[44:47], s6 offen lds")
        elif i == 1:
            a(f"s_add_u32 m0, s11, {so + h*1024}")
            a("s_nop 0")
            a("buffer_load_dwordx4 v130, s[48:51], s12 offen lds")
        elif i == 2:
            a(f"s_add_u32 m0, s10, {so + h*2048 + 1024}")
            a("s_nop 0")
            a("buffer_load_dwordx4 v129, s[44:47], s6 offen lds")
        else:
            a(f"s_add_u32 m0, s11, {so + h*1024 + 8192}")
            a("s_nop 0")
            a("buffer_load_dwordx4 v131, s[48:51], s12 offen lds")
    def only(lo, body):
        L = a.newlabel("Lo")
        a(f"s_cmp_{'ge' if lo else 'lt'}_u32 s5, 4")
        a(f"s_cbranch_scc1 {L}")
        body()
        a.label(L)
    UP = optint("up", 3)
    only(False, lambda: [stamp(a, 0)] + [dma(c, i) for c in range(UP) for i in range(8)] + [stamp(a, 1)])
    a("v_and_b32 v164, 31, v2")
    a("v_lshrrev_b32 v165, 5, v2")
    a("v_bfe_u32 v166, v2, 1, 3")
    a("v_xor_b32 v166, v166, v165")
    a("s_lshl_b32 s15, s60, 12")
    a("v_lshlrev_b32 v164, 7, v164")
    a("v_lshl_add_u32 v164, v166, 4, v164")
    a("v_add_u32 v132, s15, v164")
    a("v_xor_b32 v133, 32, v132")
    a("v_xor_b32 v134, 64, v132")
    a("v_xor_b32 v135, 0x60, v132")
    a("s_mul_i32 s15, s65, 56")
    a("v_bfe_u32 v164, v2, 4, 1")
    a("v_lshlrev_b32 v164, 5, v164")
    a("v_and_b32 v166, 3, v2")
    a("v_lshl_add_u32 v164, v166, 3, v164")
    a("v_add_u32 v164, s15, v164")
    a("v_bfe_u32 v166, v2, 3, 1")
    a("v_lshlrev_b32 v166, 6, v166")
    a("v_xor_b32 v164, v164, v166")
    a("v_bfe_u32 v166, v2, 2, 2")
    a("v_lshl_add_u32 v166, v165, 3, v166")
    a("v_lshl_add_u32 v164, v166, 7, v164")
    a("v_add_u32 v136, 16384, v164")
    for r in range(5):
        a(f"v_add_u32 v{140+r}, 0x10000, v{132+r}")
        a(f"v_add_u32 v{148+r}, 0x20000, v{132+r}")
    a("v_lshlrev_b32 v138, 2, v2")
    a("v_and_b32 v146, 28, v138")
    srd(a, 52, P_WS, 448 * KT_ROW, WS_KT)
    a("v_lshlrev_b32 v26, 4, v2")
    srd(a, 56, P_WS, FL_BYTES, WS_FL)
    srd(a, 60, P_DBG, 256)
    def kg():
        a(f"s_movk_i32 s13, {TAB_L + 16}")
        kgen_setup(a, 0)
        stamp(a, 1)
        kgen_pass(a, lambda k: None)
        stamp(a, 2)
    only(True, kg)
    a(f"s_mov_b32 s66, {fhex(LOG2E)}")
    a(f"s_mov_b32 s67, {fhex(1e-6)}")
    a(f"s_waitcnt vmcnt({8*(UP-1)}) lgkmcnt(0)")
    a("s_barrier")
    stamp(a, 3)
    a("s_cmp_ge_u32 s4, 16")
    a("s_cbranch_scc1 L_q")

    FR = 160
    ACC0, ACC1 = 208, 224
    def main_loop(is_q):
        def adr(c, k):
            so = SLOT_OFF[c % 4]
            if so + SLOT > 65536:
                if so >= 65536: return 140 + k, so - 65536
            return 132 + k, so
        def reads(c, k):
            f = FR + 12 * k
            so = SLOT_OFF[c % 4]
            def pick(reg, off):
                return (reg + 8 * (off >> 16), off & 65535)
            r, o = pick(132 + k, so)
            a(f"ds_read_b128 v[{f}:{f+3}], v{r} offset:{o}")
            for seg in range(2):
                for jj in range(2):
                    d = f + 4 + 4 * seg + 2 * jj
                    r, o = pick(136, so + seg * 8192 + (16 * k + 4 * jj) * 128)
                    a(f"ds_read_b64_tr_b16 v[{d}:{d+1}], v{r} offset:{o}")
        def mfma(c, k):
            f = FR + 12 * k
            for seg, acc in ((0, ACC0), (1, ACC1)):
                wf = f + 4 + 4 * seg
                cin = "0" if (c == 0 and k == 0) else f"v[{acc}:{acc+15}]"
                if is_q:
                    a(f"v_mfma_f32_32x32x16_bf16 v[{acc}:{acc+15}], v[{wf}:{wf+3}], v[{f}:{f+3}], {cin}")
                else:
                    a(f"v_mfma_f32_32x32x16_bf16 v[{acc}:{acc+15}], v[{f}:{f+3}], v[{wf}:{wf+3}], {cin}")
        issued = [UP]
        pend = []
        def plan(b):
            n = issued[0]
            if n <= 6 and (n < 4 or b >= n - 2):
                pend.extend((n, i) for i in range(8))
                issued[0] += 1
        def drip(k):
            if pend:
                items = [pend.pop(0) for _ in range(min(k, len(pend)))]
                only(False, lambda: [dma(*it) for it in items])
        reads(0, 0); reads(0, 1)
        plan(0)
        for c in range(7):
            reads(c, 2)
            a("s_waitcnt lgkmcnt(10)")
            mfma(c, 0)
            drip(4 if c == 0 else 2)
            reads(c, 3)
            a("s_waitcnt lgkmcnt(10)")
            mfma(c, 1)
            drip(8)
            if c == 0:
                only(True, lambda: (kgen_table(a), a("s_waitcnt lgkmcnt(0)")))
            if c == 1:
                only(True, lambda: kgen_expand(a))
            if c < 6:
                a(f"s_waitcnt vmcnt({8*(issued[0]-2-c) if c < 5 else 0})")
                a("s_barrier")
                plan(c + 1)
                if c == 3:
                    only(True, lambda: a("buffer_load_dword v145, v146, s[60:63], 0 offen sc1"))
            a("s_waitcnt lgkmcnt(5)")
            mfma(c, 2)
            drip(2)
            if c < 6:
                reads(c + 1, 0)
                a("s_waitcnt lgkmcnt(5)")
            else:
                a("s_waitcnt lgkmcnt(0)")
            mfma(c, 3)
            drip(2)
            if c < 6:
                reads(c + 1, 1)
            if c == 5:
                L = a.newlabel("Lkf")
                a("s_cmp_lg_u32 s5, 0")
                a(f"s_cbranch_scc1 {L}")
                wait_init(a, 145, 60, True)
                a(f"s_lshl_b32 s14, s7, {FSH}")
                a(f"s_add_u32 s14, s14, {FL_K}")
                set_flag(a, 14, 1)
                a.label(L)
        stamp(a, 4)

    main_loop(False)
    srd(a, 52, P_WS, 0x10000, WS_KV)
    PK, VV, TMP = 32, 40, 48
    XB = SLOT_OFF[0]
    a("v_lshlrev_b32 v10, 4, v2")
    a("s_lshl_b32 s14, s5, 12")
    a(f"s_add_u32 s14, s14, {XB}")
    a("v_add_u32 v11, s14, v10")
    a("s_and_b32 s14, s5, 3")
    a("s_lshl_b32 s14, s14, 10")
    a("s_lshl_b32 s15, s65, 14")
    a("s_add_u32 s14, s14, s15")
    a(f"s_add_u32 s14, s14, {XB}")
    a("v_add_u32 v12, s14, v138")
    a("s_nop 1")
    phi_pack(a, ACC0, PK, TMP, 66, 67)
    for p in range(8):
        a(f"v_cvt_pk_bf16_f32 v{VV+p}, v{ACC1+2*p}, v{ACC1+2*p+1}")
    a("s_mov_b32 exec_lo, 0x10000000")
    a("s_mov_b32 exec_hi, 0x10000000")
    for p in range(8):
        a(f"v_mov_b32 v{VV+p}, 0x3f803f80")
    a("s_mov_b64 exec, -1")
    a("s_nop 1")
    KV = 56
    a(f"v_mfma_f32_32x32x16_bf16 v[{KV}:{KV+15}], v[{PK}:{PK+3}], v[{VV}:{VV+3}], 0")
    a(f"v_mfma_f32_32x32x16_bf16 v[{KV}:{KV+15}], v[{PK+4}:{PK+7}], v[{VV+4}:{VV+7}], v[{KV}:{KV+15}]")
    a("s_lshl_b32 s14, s9, 1")
    a("s_add_u32 s14, s14, s65")
    a("s_lshl_b32 s14, s14, 12")
    a("s_and_b32 s15, s5, 3")
    a("s_lshl_b32 s15, s15, 10")
    a("s_add_u32 s14, s14, s15")
    a("s_nop 6")
    for q in range(4):
        a(f"ds_write_b128 v11, v[{KV+4*q}:{KV+4*q+3}] offset:{q*1024}")
    a("s_waitcnt lgkmcnt(0)")
    a("s_barrier")
    for i in range(4):
        a(f"ds_read2st64_b32 v[{32+4*i}:{33+4*i}], v12 offset0:{i} offset1:{16+i}")
        a(f"ds_read2st64_b32 v[{34+4*i}:{35+4*i}], v12 offset0:{32+i} offset1:{48+i}")
    for i in range(4):
        a(f"s_waitcnt lgkmcnt({6-2*i})")
        b = 32 + 4 * i
        a(f"v_add_f32 v{b}, v{b}, v{b+1}")
        a(f"v_add_f32 v{b+2}, v{b+2}, v{b+3}")
        a(f"v_add_f32 v{b}, v{b}, v{b+2}")
        a(f"buffer_atomic_add_f32 v{b}, v138, s[52:55], s14 offen offset:{i*256}")
    a("s_waitcnt vmcnt(0)")
    a("s_barrier")
    L = a.newlabel("Lvf")
    a("s_cmp_lg_u32 s5, 0")
    a(f"s_cbranch_scc1 {L}")
    a("s_lshl_b32 s14, s3, 4")
    a("s_add_u32 s14, s14, s4")
    a(f"s_lshl_b32 s14, s14, {FSH}")
    a(f"s_add_u32 s14, s14, {FL_KV}")
    set_flag(a, 14)
    a.label(L)
    stamp(a, 5)
    a("s_cmp_lt_u32 s4, 14")
    a("s_cbranch_scc1 L_w4")
    stamp_flush(a, 0)
    a("s_endpgm")

    a.label("L_q")
    main_loop(True)
    srd(a, 52, P_WS, 0x200000, WS_PQ)
    a("s_lshl_b32 s14, s8, 2")
    a("s_and_b32 s15, s5, 3")
    a("s_add_u32 s14, s14, s15")
    a("s_lshl_b32 s14, s14, 4")
    a("s_lshl_b32 s15, s9, 2")
    a("s_add_u32 s14, s14, s15")
    a("s_add_u32 s14, s14, s65")
    a("s_lshl_b32 s14, s14, 11")
    a("s_add_u32 s15, s14, 4096")
    a("v_lshlrev_b32 v10, 4, v2")
    phi_pack(a, ACC0, 32, 48, 66, 67)
    a(f"buffer_store_dwordx4 v[32:35], v10, s[52:55], s14 offen{ST}")
    a(f"buffer_store_dwordx4 v[36:39], v10, s[52:55], s14 offen offset:1024{ST}")
    phi_pack(a, ACC1, 40, 48, 66, 67)
    a(f"buffer_store_dwordx4 v[40:43], v10, s[52:55], s15 offen{ST}")
    a(f"buffer_store_dwordx4 v[44:47], v10, s[52:55], s15 offen offset:1024{ST}")
    a("s_lshl_b32 s14, s8, 2")
    a("s_add_u32 s14, s14, s9")
    a(f"s_lshl_b32 s14, s14, {FSH}")
    a(f"s_add_u32 s66, s14, {FL_Q}")
    stamp(a, 5)
    a("s_sub_u32 s4, s4, 16")
    a("s_cmp_lt_u32 s3, 7")
    a("s_cbranch_scc1 L_conv")
    a("s_waitcnt vmcnt(0)")
    a("s_barrier")
    L = a.newlabel("Lqf")
    a("s_cmp_lg_u32 s5, 0")
    a(f"s_cbranch_scc1 {L}")
    set_flag(a, 66)
    a.label(L)
    stamp_flush(a, 0)
    a("s_endpgm")

def phase1_a(a):
    a.comment("---- A WGs ----")
    a("s_sub_u32 s6, s4, 24")
    a("v_lshlrev_b32 v138, 2, v2")
    a("v_and_b32 v146, 28, v138")
    a("s_cmp_ge_u32 s5, 6")
    a("s_cbranch_scc1 L_ut")
    a("s_cmp_ge_u32 s5, 4")
    a("s_cbranch_scc1 L_touch")
    a("s_lshl_b32 s7, s3, 6")
    a("s_add_u32 s7, s7, 32")
    a("s_cmp_eq_u32 s3, 7")
    a("s_cselect_b32 s7, 384, s7")
    a("s_lshl_b32 s14, s6, 2")
    a("s_add_u32 s7, s7, s14")
    a("s_add_u32 s7, s7, s5")
    a("v_lshlrev_b32 v3, 3, v2")
    a("s_lshl_b32 s14, s7, 9")
    a("v_add_u32 v3, s14, v3")
    a("s_lshl_b32 s14, s7, 1")
    a("v_mov_b32 v4, s14")
    a("s_lshl_b32 s72, s5, 8")
    a(f"s_mul_i32 s13, s5, {TSTR}")
    a(f"s_add_u32 s13, s13, {A_TAB + 16}")
    a("s_waitcnt lgkmcnt(0)")
    stamp(a, 0)
    kgen_load4(a)
    for i in range(16):
        a(f"v_mov_b32 v{ACC+i}, 0")
    kgen_setup(a, 0, True)
    stamp(a, 1)
    a("s_mov_b32 s73, 4")
    a.label("L_apass")
    a("v_mov_b32 v10, v148")
    a("v_mov_b32 v11, v150")
    a("v_mov_b32 v8, v152")
    a("v_mov_b32 v9, v154")
    for r in (148, 150, 152, 154):
        a(f"v_lshrrev_b64 v[{r}:{r+1}], 16, v[{r}:{r+1}]")
    kgen_pass(a, lambda k: None, True)
    a("s_sub_u32 s73, s73, 1")
    a("s_cmp_lg_u32 s73, 0")
    a("s_cbranch_scc1 L_apass")
    stamp(a, 2)
    kgen_scale(a, False)
    kgen_solo(a)
    stamp(a, 3)
    srd(a, 56, P_WS, FL_BYTES, WS_FL)
    srd(a, 60, P_DBG, 256)
    wait_init(a, 145, 60, False)
    a(f"s_lshl_b32 s14, s7, {FSH}")
    a(f"s_add_u32 s14, s14, {FL_K}")
    set_flag(a, 14, 1)
    a("s_branch L_a_done")

    a.label("L_touch")
    a("s_setprio 3")
    a("s_lshl_b32 s8, s6, 1")
    a("s_add_u32 s8, s8, s5")
    a("s_sub_u32 s8, s8, 4")
    a("v_mul_u32_u24 v5, 43, v2")
    a("v_lshrrev_b32 v5, 9, v5")
    a("v_mul_u32_u24 v6, 12, v5")
    a("v_sub_u32 v6, v2, v6")
    a("s_lshl_b32 s9, s8, 2")
    a("v_add_u32 v5, s9, v5")
    a("v_mul_u32_u24 v5, 2688, v5")
    a("v_lshl_add_u32 v5, v6, 7, v5")
    a("v_lshrrev_b32 v6, 2, v6")
    a("v_mul_u32_u24 v6, 384, v6")
    a("v_add_u32 v5, v5, v6")
    T0 = optint("tfrom", 0); WIN = optint("win", 3)
    a("s_and_b32 s9, s3, 1")
    a("s_mul_i32 s9, s9, 384")
    a(f"s_add_u32 s9, s9, {T0*172032}")
    a("s_lshl_b32 s10, s8, 5")
    a("s_lshr_b32 s11, s3, 1")
    a("s_lshl_b32 s11, s11, 9")
    a("s_add_u32 s10, s10, s11")
    a("v_add_u32 v6, s10, v2")
    a("v_mul_u32_u24 v6, 896, v6")
    a(f"s_movk_i32 s10, {T0*128}")
    a("s_waitcnt lgkmcnt(0)")
    stamp(a, 0)
    srd(a, 44, P_X, 2048 * 896)
    srd(a, 48, P_W, 448 * 2688)
    NT = 0 if 'notouch' in OPT else 7 - T0
    for c in range(NT):
        if c >= WIN:
            a(f"s_waitcnt vmcnt({2*(WIN-1)})")
        a("s_mov_b32 exec_hi, 0xffff")
        a("buffer_load_dword v13, v5, s[48:51], s9 offen")
        a("s_mov_b32 exec_hi, 0")
        a("buffer_load_dword v13, v6, s[44:47], s10 offen")
        a("s_add_u32 s9, s9, 172032")
        a("s_add_u32 s10, s10, 128")
    a("s_mov_b64 exec, -1")
    stamp(a, 3)
    srd(a, 48, P_WO, 448 * 896)
    a(f"s_mul_i32 s9, s8, {196*128}")
    a("v_lshlrev_b32 v5, 7, v2")
    a("s_waitcnt vmcnt(2)")
    for i in range(4):
        if i == 3: a("s_mov_b64 exec, 15")
        a("buffer_load_dword v13, v5, s[48:51], s9 offen")
        a("s_add_u32 s9, s9, 8192")
    a("s_mov_b64 exec, -1")
    a("s_setprio 0")
    a("s_branch L_a_done")

    a.label("L_ut")
    a("s_sub_u32 s7, s5, 6")
    a("s_lshl_b32 s9, s3, 3")
    a("s_add_u32 s9, s9, s6")
    a("s_lshl_b32 s9, s9, 1")
    a("s_add_u32 s9, s9, s7")
    a("s_mul_i32 s10, s9, 14336")
    a("s_mul_i32 s11, s7, 14336")
    a(f"s_add_u32 s11, s11, {A_UT}")
    a("v_lshlrev_b32 v4, 4, v2")
    a("v_mov_b32 v8, 0\nv_mov_b32 v9, 0\nv_mov_b32 v10, 0\nv_mov_b32 v11, 0")
    a("s_waitcnt lgkmcnt(0)")
    stamp(a, 0)
    srd(a, 44, P_U, 2048 * 896)
    srd(a, 48, P_WS, UB_IMG, WS_UB)
    srd(a, 52, P_WS, 0x10000, WS_KV)
    srd(a, 56, P_WS, FL_BYTES, WS_FL)
    srd(a, 60, P_DBG, 256)
    Lz = a.newlabel("Lnz")
    a("s_cmp_lg_u32 s6, 1")
    a(f"s_cbranch_scc1 {Lz}")
    a("s_cmp_lg_u32 s7, 0")
    a(f"s_cbranch_scc1 {Lz}")
    a("s_lshl_b32 s12, s3, 13")
    for i in range(8):
        a(f"buffer_store_dwordx4 v[8:11], v4, s[52:55], s12 offen offset:{(i%4)*1024} sc1")
        if i == 3: a("s_add_u32 s12, s12, 4096")
    a(f"s_lshl_b32 s12, s3, {7 + FSH}")
    a(f"v_lshlrev_b32 v12, {FSH}, v2")
    a("buffer_store_dword v8, v12, s[56:59], s12 offen sc1")
    a(f"s_add_u32 s12, s12, {64 << FSH}")
    a("buffer_store_dword v8, v12, s[56:59], s12 offen sc1")
    a("s_waitcnt vmcnt(0)")
    a("v_mov_b32 v12, 1")
    a("s_lshl_b32 s12, s3, 2")
    a("s_mov_b64 exec, 1")
    a("buffer_store_dword v12, v8, s[60:63], s12 offen sc1")
    a("s_mov_b64 exec, -1")
    a.label(Lz)
    for i in range(14):
        a(f"s_add_u32 m0, s11, {i*1024}")
        a("s_nop 0")
        a("buffer_load_dwordx4 v4, s[44:47], s10 offen lds")
        a("s_add_u32 s10, s10, 1024")
    a("v_bfe_u32 v5, v2, 2, 2")
    a("v_and_b32 v6, 1, v2")
    a("v_lshl_add_u32 v5, v6, 3, v5")
    a("v_mul_u32_u24 v5, 896, v5")
    a("v_lshrrev_b32 v6, 4, v2")
    a("v_lshl_add_u32 v5, v6, 4, v5")
    a("v_bfe_u32 v6, v2, 1, 1")
    a("v_lshl_add_u32 v5, v6, 3, v5")
    a("v_add_u32 v5, s11, v5")
    a("v_lshrrev_b32 v7, 3, v2")
    a("v_lshlrev_b32 v7, 14, v7")
    a("v_and_b32 v6, 7, v2")
    a("v_lshl_add_u32 v7, v6, 4, v7")
    a("s_lshl_b32 s10, s9, 7")
    a("s_waitcnt vmcnt(0)")
    stamp(a, 2)
    UR = 32
    for cg in range(14):
        for jj in range(2):
            d = UR + 4 * cg + 2 * jj
            a(f"ds_read_b64_tr_b16 v[{d}:{d+1}], v5 offset:{cg*64 + jj*3584}")
        if cg == 6: a("s_waitcnt lgkmcnt(4)")
    for cg in range(14):
        if cg >= 7: a(f"s_waitcnt lgkmcnt({2*(13-cg)})")
        elif cg == 5: a("s_waitcnt lgkmcnt(14)")
        d = UR + 4 * cg
        a(f"buffer_store_dwordx4 v[{d}:{d+3}], v7, s[48:51], s10 offen{ST}")
        a(f"s_add_u32 s10, s10, {8*16384}")
    stamp(a, 3)
    wait_init(a, 145, 60, False)
    a(f"s_lshl_b32 s14, s9, {FSH}")
    set_flag(a, 14, 1)
    a.label("L_a_done")
    stamp(a, 5)
    a("s_add_u32 s4, s6, 8")
    a("s_mov_b32 s66, 0")
    a("s_cmp_lt_u32 s3, 7")
    a("s_cbranch_scc1 L_conv")
    stamp_flush(a, 0)
    a("s_endpgm")

def build():
    from gen12_p2 import p2_w4, p2_conv
    a = Asm()
    hdr = open("cdna_kernels/" + NAME + ".s.ref").read().split("; Override launch")[0]
    a.raw(hdr.rstrip("\n"))
    a.raw(f"; @launch grid=(256,1,1) block=(512,1,1) lds=163840")
    a.raw('.amdgcn_target "amdgcn-amd-amdhsa--gfx950"')
    a.raw(".text")
    a.raw(f".globl {KN}\n.p2align 8\n.type {KN},@function")
    a.label(KN)
    a("s_cmp_ge_u32 s2, 256")
    a("s_cbranch_scc1 L_end")
    stamp_init(a)
    a("s_load_dwordx16 s[16:31], s[0:1], 0")
    a("s_load_dwordx8 s[32:39], s[0:1], 64")
    a("s_load_dwordx2 s[40:41], s[0:1], 96")
    a("v_lshrrev_b32 v1, 6, v0")
    a("v_and_b32 v2, 63, v0")
    a("s_and_b32 s3, s2, 7")
    a("s_lshr_b32 s4, s2, 3")
    a("v_readfirstlane_b32 s5, v1")
    a("s_and_b32 s6, s4, 3")
    a("s_cmp_lg_u32 s6, 0")
    a("s_cbranch_scc1 L_nopf")
    a("s_cmp_ge_u32 s5, 4")
    a("s_cbranch_scc1 L_nopf")
    a("s_getpc_b64 s[60:61]")
    a.label("L_pc")
    a(f"s_sub_u32 s60, s60, L_pc-{KN}")
    a("s_subb_u32 s61, s61, 0")
    a("v_lshlrev_b32 v250, 7, v0")
    a("global_load_dword v251, v250, s[60:61]")
    a.label("L_nopf")
    if "pretouch" in OPT:
        a("s_cmp_lg_u32 s5, 7")
        a("s_cbranch_scc1 L_npt")
        a("v_lshlrev_b32 v252, 17, v2")
        a("v_add_u32 v252, 0x1f000, v252")
        a("v_lshlrev_b32 v253, 16, v2")
        a("s_waitcnt lgkmcnt(0)")
        srd(a, 44, P_WS, 0x880000)
        srd(a, 48, P_OUT, 2048 * 1792)
        srd(a, 52, P_WO, 448 * 896)
        a("buffer_load_dword v254, v252, s[44:47], 0 offen sc0 sc1")
        a("buffer_load_dword v254, v253, s[48:51], 0 offen sc0 sc1")
        a("buffer_load_dword v254, v253, s[52:55], 0 offen sc0 sc1")
        a("s_mov_b32 s6, 0x801000")
        a("s_mov_b64 exec, 1")
        a("buffer_load_dword v254, v253, s[44:47], s6 offen sc0 sc1")
        a("s_mov_b64 exec, -1")
        a.label("L_npt")
    a("s_cmp_ge_u32 s4, 24")
    a("s_cbranch_scc1 L_a")
    phase1_gemm(a)
    a.label("L_a")
    phase1_a(a)
    a.label("L_w4")
    p2_w4(a)
    a.label("L_conv")
    p2_conv(a)
    a.label("L_end")
    a("s_endpgm")
    a.raw("  .fill 2048, 4, 0xbf800000")
    a.raw('.section .rodata,"a"')
    a.raw(f""".p2align 6
.amdhsa_kernel {KN}
  .amdhsa_next_free_vgpr 256
  .amdhsa_next_free_sgpr 100
  .amdhsa_accum_offset 256
  .amdhsa_group_segment_fixed_size 0
  .amdhsa_kernarg_size 104
  .amdhsa_user_sgpr_count 2
  .amdhsa_user_sgpr_kernarg_segment_ptr 1
  .amdhsa_system_sgpr_workgroup_id_x 1
.end_amdhsa_kernel""")
    return a.text()

if __name__ == "__main__":
    if "stamps" in OPT: asmlib.STAMPS = True
    open(sys.argv[1], "w").write(build())
```

```python
import sys
from asmlib import *
import gen13 as G
from gen13 import srd, P_WS, P_WO, P_OUT, WS_KV, WS_PQ, WS_KT, WS_UB, UB_IMG, KT_ROW, WS_FL, FL_U, FL_KV, FL_Q, FL_K, FSH, FL_BYTES

def poll(a, loads, drain=False):
    L, Ls = a.newlabel("Lpo"), a.newlabel("Lps")
    n = len(loads)
    Lp_ = a.newlabel("Lpp")
    a("s_cmp_eq_u32 s5, 0")
    a(f"s_cbranch_scc1 {Lp_}")
    if drain: a("s_waitcnt vmcnt(0)")
    a(f"s_branch {Ls}")
    a.label(Lp_)
    a("s_movk_i32 s64, 4000")
    def issue(b):
        for i, (v, so) in enumerate(loads):
            a(f"buffer_load_dword v{b+i}, v{v}, s[68:71], {so} offen sc1")
    def check(b):
        a(f"s_waitcnt vmcnt({n})")
        for i in range(1, n):
            a(f"v_and_b32 v{b}, v{b}, v{b+i}")
        a(f"v_cmp_ne_u32 vcc, 1, v{b}")
        a("s_sub_u32 s64, s64, 1")
        a(f"s_cbranch_scc1 {Ls}")
        a(f"s_cbranch_vccz {Ls}")
    SL = G.optint("sl", 0)
    if SL:
        a.label(L)
        issue(240)
        a("s_waitcnt vmcnt(0)")
        check(240)
        a(f"s_sleep {SL}")
        a(f"s_branch {L}")
    else:
        issue(240)
        a("s_sleep 6")
        a.label(L)
        issue(244)
        check(240)
        issue(240)
        check(244)
        a(f"s_branch {L}")
    a.label(Ls)
    a("s_barrier")

def p2_w4(a):
    WO_L, KVF_L, PART_L = 0, 57344, 90112
    PSTR = 272
    PHALF = 128 * PSTR
    stamp_mid(a)
    a("s_mov_b32 s6, s4")
    a("s_cmp_ge_u32 s6, 7")
    a("s_cselect_b32 s7, 1, 0")
    a("s_lshl_b32 s8, s3, 1")
    a("s_add_u32 s8, s8, s7")
    a("s_mul_i32 s7, s7, 7")
    a("s_sub_u32 s9, s6, s7")
    a("s_and_b32 s10, s5, 3")
    a("s_lshr_b32 s11, s5, 2")
    srd(a, 44, P_WS, 0x10000, WS_KV)
    srd(a, 48, P_WS, 0x200000, WS_PQ)
    srd(a, 52, P_WO, 448 * 896)
    srd(a, 56, P_OUT, 2048 * 1792)
    srd(a, 68, P_WS, FL_BYTES, WS_FL)
    a("v_lshrrev_b32 v5, 3, v2")
    a("v_bfe_u32 v6, v2, 4, 1")
    a("v_lshlrev_b32 v6, 2, v6")
    a("v_and_b32 v7, 7, v2")
    a("v_xor_b32 v6, v6, v7")
    a("v_lshlrev_b32 v6, 4, v6")
    a("s_mul_i32 s60, s10, 112")
    a("s_mul_i32 s61, s11, 14")
    a("s_add_u32 s60, s60, s61")
    a("s_mul_i32 s60, s60, 896")
    a("s_lshl_b32 s61, s9, 7")
    a("s_add_u32 s60, s60, s61")
    a("s_mul_i32 s61, s5, 7168")
    for i in range(7):
        a(f"v_add_u32 v7, {8*i}, v5")
        a("v_mul_u32_u24 v15, 37, v7")
        a("v_lshrrev_b32 v15, 9, v15")
        a("v_mad_u32_u24 v7, v15, 14, v7")
        a("v_mul_u32_u24 v7, 896, v7")
        a("v_add_u32 v7, v7, v6")
        a(f"s_add_u32 m0, s61, {WO_L + i*1024}")
        a("s_nop 0")
        a("buffer_load_dwordx4 v7, s[52:55], s60 offen lds")
    a("v_and_b32 v4, 3, v2")
    a(f"v_lshlrev_b32 v8, {FSH}, v4")
    a("v_bfe_u32 v5, v2, 3, 2")
    a("v_lshl_add_u32 v4, v5, 2, v4")
    a("v_bfe_u32 v5, v2, 2, 1")
    a("v_add_u32 v6, 2, v4")
    a("v_lshrrev_b32 v6, 4, v6")
    a("v_or_b32 v5, v5, v6")
    a("v_mad_u32_u24 v4, v5, 14, v4")
    a("v_and_b32 v5, 32, v2")
    a("v_add_lshl_u32 v3, v4, v5, 4")
    a("v_lshlrev_b32 v4, 4, v2")
    a(f"v_lshlrev_b32 v9, {FSH}, v2")
    a("s_lshl_b32 s12, s5, 13")
    a("s_add_u32 s13, s12, 4096")
    a("s_lshl_b32 s14, s8, 2")
    a("s_add_u32 s14, s14, s10")
    a("s_lshl_b32 s14, s14, 4")
    a("s_lshl_b32 s15, s11, 3")
    a("s_add_u32 s14, s14, s15")
    a("s_lshl_b32 s14, s14, 11")
    a(f"s_lshl_b32 s15, s8, {2 + FSH}")
    a(f"s_add_u32 s15, s15, {FL_Q}")
    KVR = 64
    PQR = 96
    a(f"s_mov_b32 s62, {FL_KV}")
    a(f"s_mov_b32 s63, {FL_KV + (64 << FSH)}")
    a("s_lshl_b32 s60, s6, 3")
    a("s_add_u32 s60, s60, s5")
    a("s_mul_i32 s60, s60, 640")
    a("s_lshl_b32 s61, s9, 3")
    a("s_add_u32 s61, s61, s5")
    a("s_mul_i32 s61, s61, 2432")
    a("s_lshl_b32 s65, s8, 17")
    a("s_add_u32 s61, s61, s65")
    a("v_lshlrev_b32 v10, 7, v2")
    a("s_lshl_b32 s65, s5, 12")
    a(f"s_add_u32 s65, s65, {KVF_L}")
    a("v_add_u32 v11, s65, v4")
    a("s_lshl_b32 s65, s11, 14")
    a(f"s_add_u32 s65, s65, {KVF_L}")
    a("v_add_u32 v5, s65, v4")
    a("v_lshrrev_b32 v6, 5, v2")
    a("v_mul_u32_u24 v6, 224, v6")
    a("v_bfe_u32 v7, v2, 2, 2")
    a("v_add_u32 v6, v6, v7")
    a("s_mul_i32 s65, s11, 112")
    a("v_add_u32 v6, s65, v6")
    a("v_lshlrev_b32 v6, 7, v6")
    a("v_bfe_u32 v7, v2, 4, 1")
    a("v_lshlrev_b32 v7, 5, v7")
    a("v_and_b32 v12, 3, v2")
    a("v_lshl_add_u32 v7, v12, 3, v7")
    a("v_bfe_u32 v12, v2, 3, 1")
    a("v_lshl_add_u32 v7, v12, 6, v7")
    a("v_add_u32 v6, v6, v7")
    a("v_xor_b32 v7, 64, v6")
    poll(a, [(8, "s15"), (9, "s62"), (9, "s63")])
    stamp(a, 0)
    a("s_mov_b64 exec, 31")
    a("buffer_load_dword v12, v10, s[44:47], s60 offen")
    a("s_mov_b64 exec, 0x7ffff")
    a("buffer_load_dword v13, v10, s[48:51], s61 offen")
    a("s_mov_b64 exec, -1")
    a(f"s_mov_b32 s62, {fhex(1e-6)}")
    a("s_waitcnt vmcnt(0)")
    stamp(a, 1)
    for hh in range(2):
        for q in range(4):
            d = KVR + 16 * hh + 4 * q
            a(f"buffer_load_dwordx4 v[{d}:{d+3}], v3, s[44:47], s{12+hh} offen offset:{q*1024}")
    def pq(i0, i1):
        for i in range(i0, i1):
            a(f"buffer_load_dwordx4 v[{PQR+4*i}:{PQR+4*i+3}], v4, s[48:51], s14 offen offset:{(i%4)*1024}")
            if i % 4 == 3 and i != 15:
                a("s_add_u32 s14, s14, 4096")
    NP0 = G.optint("np", 2)
    pq(0, NP0)
    a(f"s_waitcnt vmcnt({NP0})")
    for i in range(16):
        a(f"v_cvt_pk_bf16_f32 v{32+i}, v{KVR+2*i}, v{KVR+2*i+1}")
    a("s_mov_b32 exec_lo, 0")
    for hh in range(2):
        a(f"v_mov_b32 v{32+8*hh+6}, 0")
        a(f"v_mov_b32 v{32+8*hh+7}, 0")
    a("s_mov_b64 exec, -1")
    for i in range(4):
        a(f"ds_write_b128 v11, v[{32+4*i}:{35+4*i}] offset:{i*1024}")
    pq(NP0, 6)
    a("s_waitcnt lgkmcnt(0)")
    a("s_barrier")
    pq(6, 8)
    KF = 160
    for i in range(16):
        a(f"ds_read_b128 v[{KF+4*i}:{KF+4*i+3}], v5 offset:{i*1024}")
        if i == 11: a("s_waitcnt lgkmcnt(8)")
    N0, N1 = 32, 48
    D0, D1 = 224, 240
    OFB = PQR - 8
    WF = 8
    def num(hI):
        D = N0 if hI % 2 == 0 else N1
        k = KF + 8 * hI; p = PQR + 8 * hI
        a(f"v_mfma_f32_32x32x16_bf16 v[{D}:{D+15}], v[{k}:{k+3}], v[{p}:{p+3}], 0")
        a(f"v_mfma_f32_32x32x16_bf16 v[{D}:{D+15}], v[{k+4}:{k+7}], v[{p+4}:{p+7}], v[{D}:{D+15}]")
    def fin_ops(hI):
        D = N0 if hI % 2 == 0 else N1
        o = [f"v_add_f32 v64, s62, v{D+14}", "v_rcp_f32 v64, v64", "s_nop 0"]
        for p in range(7):
            o.append(f"v_mul_f32 v{D+2*p}, v{D+2*p}, v64")
            o.append(f"v_mul_f32 v{D+2*p+1}, v{D+2*p+1}, v64")
        for p in range(7):
            o.append(f"v_cvt_pk_bf16_f32 v{OFB+7*hI+p}, v{D+2*p}, v{D+2*p+1}")
        return o
    def rd(k):
        f = WF + 8 * (k % 3)
        for nt in range(2):
            for jj in range(2):
                d = f + 4 * nt + 2 * jj
                a(f"ds_read_b64_tr_b16 v[{d}:{d+1}], v{6+nt} offset:{WO_L + k*1024 + jj*512}")
    def og(k):
        f = WF + 8 * (k % 3)
        o = OFB + 4 * k
        r = []
        for nt, D in ((0, D0), (1, D1)):
            cin = "0" if k == 0 else f"v[{D}:{D+15}]"
            r.append(f"v_mfma_f32_32x32x16_bf16 v[{D}:{D+15}], v[{f+4*nt}:{f+4*nt+3}], v[{o}:{o+3}], {cin}")
        return r
    a("s_waitcnt vmcnt(6) lgkmcnt(0)")
    stamp(a, 2)
    num(0)
    rd(0); rd(1)
    kdone = 0
    nrd = 2
    for hI in range(8):
        if hI < 4:
            pq(8 + 2 * hI, 10 + 2 * hI)
        if hI < 7:
            npq = min(16, 10 + 2 * hI)
            a(f"s_waitcnt vmcnt({npq - 2*(hI+2)})")
            num(hI + 1)
        avail = (14 * hI) // 8
        ms = []
        ks = list(range(kdone, avail))
        ops = fin_ops(hI)
        step = max(1, len(ops) // (len(ks) + 1)) if ks else len(ops)
        pos = 0
        for kk in ks:
            for o_ in ops[pos:pos + step]: a(o_)
            pos += step
            a(f"s_waitcnt lgkmcnt({4*(nrd-1-kk)})")
            for m_ in og(kk): a(m_)
            if nrd < 14:
                rd(nrd); nrd += 1
        for o_ in ops[pos:]: a(o_)
        kdone = avail
    stamp(a, 3)
    a("s_nop 1")
    for kk in range(kdone, 14):
        a(f"s_waitcnt lgkmcnt({4*(nrd-1-kk)})")
        for m_ in og(kk): a(m_)
        if nrd < 14:
            rd(nrd); nrd += 1
    stamp(a, 4)
    BST = 144
    a("s_lshl_b32 s12, s5, 12")
    a(f"s_add_u32 s12, s12, {PART_L}")
    a("v_add_u32 v6, s12, v4")
    a("s_xor_b32 s13, s5, 4")
    a("s_lshl_b32 s13, s13, 12")
    a(f"s_add_u32 s13, s13, {PART_L}")
    a("v_add_u32 v7, s13, v4")
    a("v_and_b32 v8, 31, v2")
    a("s_lshl_b32 s12, s10, 5")
    a("v_add_u32 v8, s12, v8")
    a(f"v_mul_u32_u24 v8, {BST}, v8")
    a("v_lshrrev_b32 v9, 5, v2")
    a("v_lshl_add_u32 v8, v9, 3, v8")
    a("s_lshl_b32 s12, s11, 6")
    a(f"s_add_u32 s12, s12, {PART_L + 32768}")
    a("v_add_u32 v8, s12, v8")
    Lh, Lj = a.newlabel("Leh"), a.newlabel("Lej")
    a("s_cmp_lg_u32 s11, 0")
    a(f"s_cbranch_scc1 {Lh}")
    for q in range(4):
        a(f"ds_write_b128 v6, v[{D1+4*q}:{D1+4*q+3}] offset:{q*1024}")
    a(f"s_branch {Lj}")
    a.label(Lh)
    for q in range(4):
        a(f"ds_write_b128 v6, v[{D0+4*q}:{D0+4*q+3}] offset:{q*1024}")
    for i in range(16):
        a(f"v_mov_b32 v{D0+i}, v{D1+i}")
    a.label(Lj)
    a("v_lshrrev_b32 v9, 3, v0")
    a("v_and_b32 v10, 7, v0")
    a(f"v_mul_u32_u24 v12, {BST}, v9")
    a("v_lshl_add_u32 v12, v10, 4, v12")
    a(f"v_add_u32 v12, {PART_L + 32768}, v12")
    a("v_mul_u32_u24 v11, 1792, v9")
    a("v_lshl_add_u32 v11, v10, 4, v11")
    a(f"s_mul_i32 s12, s8, {128*1792}")
    a("s_lshl_b32 s13, s9, 7")
    a("s_add_u32 s12, s12, s13")
    a("s_add_u32 s12, s12, 896")
    a(f"s_add_u32 s13, s12, {64*1792}")
    a("s_waitcnt lgkmcnt(0)")
    a("s_barrier")
    for q in range(4):
        a(f"ds_read_b128 v[{64+4*q}:{67+4*q}], v7 offset:{q*1024}")
    for q in range(4):
        a(f"s_waitcnt lgkmcnt({3-q+q*0 if q==0 else 3})" if False else f"s_waitcnt lgkmcnt({3})" if q == 0 else f"s_waitcnt lgkmcnt(3)")
        for r in range(4):
            a(f"v_add_f32 v{64+4*q+r}, v{64+4*q+r}, v{D0+4*q+r}")
        a(f"v_cvt_pk_bf16_f32 v{80+2*q}, v{64+4*q}, v{65+4*q}")
        a(f"v_cvt_pk_bf16_f32 v{81+2*q}, v{66+4*q}, v{67+4*q}")
        a(f"ds_write_b64 v8, v[{80+2*q}:{81+2*q}] offset:{q*16}")
    a("s_waitcnt lgkmcnt(0)")
    a("s_barrier")
    for t in range(2):
        a(f"ds_read_b128 v[{96+4*t}:{99+4*t}], v12 offset:{t*64*BST}")
    for t in range(2):
        a(f"s_waitcnt lgkmcnt({1-t})")
        a(f"buffer_store_dwordx4 v[{96+4*t}:{99+4*t}], v11, s[56:59], s{12+t} offen" + (" sc1" if "osc" in G.OPT else ""))
    stamp(a, 5)
    stamp_flush(a, 1)
    a("s_endpgm")

U_L = 0
KS = 4288
KI_L = 288 * 64
EPA_L = KI_L + 16 * KS
EPB_L = EPA_L + 32768

def p2_conv(a):
    a.comment("---- conv role ----")
    stamp_mid(a)
    a("s_lshl_b32 s6, s3, 6")
    a("s_lshl_b32 s7, s4, 2")
    a("s_add_u32 s6, s6, s7")
    a("s_and_b32 s7, s5, 3")
    a("s_lshr_b32 s8, s5, 2")
    a("v_lshrrev_b32 v3, 4, v2")
    a("v_sub_u32 v3, v2, v3")
    a("v_and_b32 v3, 3, v3")
    a("v_and_b32 v4, 60, v2")
    a("v_add_lshl_u32 v3, v3, v4, 4")
    a("s_lshl_b32 s9, s5, 10")
    a("s_lshl_b32 s10, s6, 12")
    a("s_add_u32 s9, s9, s10")
    a("s_lshl_b32 s10, s5, 10")
    a(f"s_add_u32 s10, s10, {U_L + 2048}")
    a("v_lshlrev_b32 v4, 4, v2")
    a("s_add_u32 s11, s6, s7")
    a(f"s_mul_i32 s11, s11, {KT_ROW}")
    a("s_lshl_b32 s12, s7, 2")
    a("s_add_u32 s12, s12, s8")
    a(f"s_mul_i32 s12, s12, {KS}")
    a(f"s_add_u32 s12, s12, {KI_L}")
    a("v_mov_b32 v8, 0\nv_mov_b32 v9, 0\nv_mov_b32 v10, 0\nv_mov_b32 v11, 0")
    srd(a, 44, P_WS, UB_IMG, WS_UB)
    srd(a, 48, P_WS, 448 * KT_ROW, WS_KT)
    srd(a, 52, P_OUT, 2048 * 1792)
    srd(a, 68, P_WS, FL_BYTES, WS_FL)
    a(f"v_lshlrev_b32 v5, {FSH}, v2")
    a(f"v_and_b32 v6, {3 << FSH}, v5")
    a(f"s_lshl_b32 s13, s6, {FSH}")
    a(f"s_add_u32 s13, s13, {FL_K}")
    a(f"s_mov_b32 s14, {64 << FSH}")
    a("s_waitcnt lgkmcnt(0)")
    poll(a, [(5, "0"), (5, "s14"), (6, "s13")], True)
    Lq = a.newlabel("Lnq")
    a("s_cmp_lg_u32 s5, 1")
    a(f"s_cbranch_scc1 {Lq}")
    a("s_cmp_eq_u32 s66, 0")
    a(f"s_cbranch_scc1 {Lq}")
    a("v_mov_b32 v7, 1")
    a("s_mov_b64 exec, 1")
    a("buffer_store_dword v7, v5, s[68:71], s66 offen sc1")
    a("s_mov_b64 exec, -1")
    a.label(Lq)
    stamp(a, 0)
    def kdma(i, sh):
        a(f"s_add_u32 s13, s11, {i*1024 + 4*sh}")
        a(f"s_add_u32 m0, s12, {2*KS*sh + i*1024}")
        a("s_nop 0")
        a("buffer_load_dwordx4 v4, s[48:51], s13 offen lds")
    def udma(h):
        if h: a("s_add_u32 s9, s9, 8192")
        a(f"s_add_u32 m0, s10, {h*8192}")
        a("s_nop 0")
        a("buffer_load_dwordx4 v3, s[44:47], s9 offen lds")
    KR_ = 212
    def kreg(i):
        r = KR_ + 8 * i
        a(f"buffer_load_dwordx4 v[{r}:{r+3}], v4, s[48:51], s11 offen offset:{i*1024}")
        a(f"buffer_load_dwordx2 v[{r+4}:{r+5}], v4, s[48:51], s11 offen offset:{i*1024+16}")
    Lh, Lj = a.newlabel("Lch"), a.newlabel("Lcj")
    a("s_cmp_lg_u32 s8, 0")
    a(f"s_cbranch_scc1 {Lh}")
    udma(0); kdma(3, 0); kdma(3, 1); kdma(2, 0); kdma(2, 1)
    udma(1); kdma(1, 0); kdma(1, 1); kdma(0, 0); kdma(0, 1)
    a(f"s_branch {Lj}")
    a.label(Lh)
    udma(0); kreg(3); kreg(2)
    udma(1); kreg(1); kreg(0)
    a.label(Lj)
    a("v_add_u32 v20, s12, v4")
    def kbuild(i):
        r = KR_ + 8 * i; o = 244
        for k_ in range(5):
            a(f"v_alignbyte_b32 v{o+k_}, v{r+k_+1}, v{r+k_}, 2")
        for k_ in range(3):
            a(f"v_mov_b32 v{o+8+k_}, v{o+1+k_}")
        a(f"v_mov_b32 v{o+11}, v{o+4}")
        a(f"ds_write_b128 v20, v[{o}:{o+3}] offset:{i*1024}")
        a(f"ds_write_b128 v20, v[{o+8}:{o+11}] offset:{2*KS + i*1024}")
    a("s_lshl_b32 s13, s5, 10")
    a("v_add_u32 v5, s13, v4")
    a("s_cmp_lt_u32 s5, 2")
    a("s_cselect_b32 s14, -1, 0")
    a("s_cselect_b32 s15, -1, 0")
    a("s_mov_b64 exec, s[14:15]")
    a("ds_write_b128 v5, v[8:11]")
    a("s_mov_b64 exec, 15")
    a("v_add_u32 v5, s12, v4")
    a("ds_write_b128 v5, v[8:11] offset:4096")
    a(f"ds_write_b128 v5, v[8:11] offset:{4096 + 2*KS}")
    a("s_mov_b64 exec, -1")
    a("v_and_b32 v5, 15, v2")
    a("v_lshrrev_b32 v7, 4, v2")
    a("v_lshl_add_u32 v6, v5, 1, v7")
    a("s_lshl_b32 s13, s8, 4")
    a("s_sub_u32 s13, 30, s13")
    a("v_add_u32 v6, s13, v6")
    SAD = 12
    for it in range(4):
        a(f"v_subrev_u32 v8, {4*it}, v6")
        a("v_lshrrev_b32 v9, 2, v8")
        a("v_add_u32 v9, s7, v9")
        a("v_and_b32 v9, 3, v9")
        a("v_lshlrev_b32 v9, 4, v9")
        a(f"v_lshl_add_u32 v{SAD+it}, v8, 6, v9")
    a("v_sub_u32 v8, 3, v5")
    a("v_and_b32 v8, 3, v8")
    a(f"v_mul_u32_u24 v16, {KS}, v8")
    a("v_add_u32 v8, v8, v5")
    a("v_lshlrev_b32 v9, 3, v7")
    a("v_sub_u32 v9, v9, v8")
    a("v_lshl_add_u32 v16, v9, 1, v16")
    a(f"s_mul_i32 s13, s7, {4*KS}")
    a("s_lshl_b32 s14, s8, 8")
    a("s_sub_u32 s13, s13, s14")
    a(f"s_add_u32 s13, s13, {KI_L + 2*2031 - 512*7 - 64*3}")
    a("v_add_u32 v16, s13, v16")
    a("s_lshl_b32 s13, s5, 12")
    a(f"s_add_u32 s13, s13, {EPA_L}")
    a("v_add_u32 v17, s13, v4")
    a("v_lshlrev_b32 v18, 3, v0")
    a(f"v_add_u32 v18, {EPA_L}, v18")
    a("v_lshrrev_b32 v8, 5, v0")
    a("v_lshlrev_b32 v8, 6, v8")
    a("v_and_b32 v9, 1, v0")
    a("v_lshl_add_u32 v8, v9, 5, v8")
    a("v_bfe_u32 v9, v0, 1, 4")
    a("v_add_u32 v8, v8, v9")
    a("v_mul_u32_u24 v19, 1792, v8")
    a("s_lshl_b32 s60, s6, 1")
    a(f"s_add_u32 s61, s60, {16*1792}")
    a("s_waitcnt vmcnt(5)")
    Lb = a.newlabel("Lnb1")
    a("s_cmp_eq_u32 s8, 0")
    a(f"s_cbranch_scc1 {Lb}")
    kbuild(3); kbuild(2)
    a.label(Lb)
    a("s_waitcnt lgkmcnt(0)")
    a("s_barrier")
    stamp(a, 1)
    ACC = 32
    FA = 64
    FB = [192, 224]
    def sreg(it, k): return FA + 32 * it + 4 * k if k < 4 else FB[it % 2] + 4 * (k - 4)
    def freg(it, k): return sreg(it, k) + 16
    def rd_list(it, ks):
        ops = []
        for k_ in ks:
            s_ = sreg(it, k_); f = freg(it, k_)
            ops.append(f"ds_read_b128 v[{s_}:{s_+3}], v{SAD+it} offset:{2048*k_}")
            for jj in range(2):
                d = f + 2 * jj
                ops.append(f"ds_read_b64 v[{d}:{d+1}], v16 offset:{512*(7-k_) + 8*jj + 64*(3-it)}")
        return ops
    first = set()
    def mf(it, v, w):
        d = ACC + 4 * (v + w)
        cin = f"v[{d}:{d+3}]" if d in first else "0"
        first.add(d)
        s_ = sreg(it, v); f = freg(it, w)
        a(f"v_mfma_f32_16x16x32_bf16 v[{d}:{d+3}], v[{s_}:{s_+3}], v[{f}:{f+3}], {cin}")
    R = ACC
    def store_ops():
        ops = []
        for c in range(4):
            for r in range(2):
                ops.append(f"v_add_f32 v{R+2*c+r}, v{R+2*c+r}, v{R+8+2*c+r}")
        for r in range(2):
            ops.append(f"v_cvt_pk_bf16_f32 v{22+2*r}, v{R+r}, v{R+2+r}")
            ops.append(f"v_cvt_pk_bf16_f32 v{23+2*r}, v{R+4+r}, v{R+6+r}")
            ops.append(f"buffer_store_dwordx2 v[{22+2*r}:{23+2*r}], v19, s[52:55], s{60+r} offen" + (" sc1" if "csc" in G.OPT else (" nt" if "cnt" in G.OPT else "")))
        return ops
    pa = sorted([(v, w) for v in range(4) for w in range(4) if v + w <= 3], key=lambda p: (p[1], p[0]))
    for o in rd_list(0, range(4)): a(o)
    for it in range(4):
        nxt = rd_list(it + 1, range(4)) if it < 3 else []
        for o in nxt[:3]: a(o)
        a(f"s_waitcnt lgkmcnt({3 if nxt else 0})")
        nxt = nxt[3:]
        for i, (v, w) in enumerate(pa):
            mf(it, v, w)
            if nxt: a(nxt.pop(0))
    a("s_waitcnt vmcnt(0)")
    Lb2 = a.newlabel("Lnb2")
    a("s_cmp_eq_u32 s8, 0")
    a(f"s_cbranch_scc1 {Lb2}")
    kbuild(1); kbuild(0)
    a.label(Lb2)
    a("s_nop 4")
    for n in range(4):
        a(f"ds_write_b128 v17, v[{ACC+4*n}:{ACC+4*n+3}] offset:{n*1024}")
    a("s_waitcnt lgkmcnt(0)")
    a("s_barrier")
    stamp(a, 2)
    pb = [(v, w) for v in range(8) for w in range(8) if 4 <= v + w <= 7]
    pb_old = sorted([p for p in pb if p[0] < 4 and p[1] < 4], key=lambda p: (p[1], p[0]))
    pb_new = sorted([p for p in pb if not (p[0] < 4 and p[1] < 4)], key=lambda p: (max(p), p[1], p[0]))
    def spread(lst):
        out = []; lst = list(lst)
        while lst:
            for i, p in enumerate(lst):
                if not out or (p[0] + p[1]) != (out[-1][0] + out[-1][1]):
                    out.append(lst.pop(i)); break
            else:
                out.append(lst.pop(0))
        return out
    pb_old, pb_new = spread(pb_old), spread(pb_new)
    for o in rd_list(0, range(4, 8)): a(o)
    for it in range(4):
        pre = []
        if it == 0:
            pre = [f"ds_read_b64 v[{R+2*w}:{R+2*w+1}], v18 offset:{w*4096}" for w in range(8)]
        for (v, w) in pb_old:
            mf(it, v, w)
        a("s_waitcnt lgkmcnt(0)")
        fill = pre + (rd_list(it + 1, range(4, 8)) if it < 3 else [])
        ex = store_ops() if it == 1 else []
        cnt = 0
        for (v, w) in pb_new:
            mf(it, v, w)
            if fill:
                a(fill.pop(0)); cnt += 1
                if cnt == 12: a("s_waitcnt lgkmcnt(8)")
            if ex: a(ex.pop(0))
        for o in fill + ex: a(o)
    stamp(a, 4)
    a(f"s_add_u32 s60, s60, {1024*1792}")
    a(f"s_add_u32 s61, s61, {1024*1792}")
    a("s_nop 5")
    for n in range(4):
        a(f"ds_write_b128 v17, v[{ACC+16+4*n}:{ACC+16+4*n+3}] offset:{32768 + n*1024}")
    a("s_waitcnt lgkmcnt(0)")
    a("s_barrier")
    for w in range(8):
        a(f"ds_read_b64 v[{R+2*w}:{R+2*w+1}], v18 offset:{32768 + w*4096}")
    a("s_waitcnt lgkmcnt(0)")
    for o in store_ops(): a(o)
    stamp(a, 5)
    stamp_flush(a, 1)
    a("s_endpgm")
```

```python
import sys, math, struct
from asmlib import *
import asmlib

NAME = "concat_heads__ssm_conv_s4d__linear_attn_block__prompt"
KN = NAME + "_kernel"
OPT = set(sys.argv[2:])
def optint(prefix, default):
    v = [o for o in OPT if o.startswith(prefix) and o[len(prefix):].isdigit()]
    return int(v[0][len(prefix):]) if v else default

WS_KV = 0x0
WS_PQ = 0x10000
WS_KT = 0x210000
KT_ROW = 4224
WS_UB = 0x600000
UB_IMG = 256 * 448 * 16
WS_FL = 0x800000
FSH = optint("fsh", 2)
FL_U, FL_KV, FL_Q, FL_K = 0, 128 << FSH, 256 << FSH, 512 << FSH
FL_BYTES = 1024 << FSH
LOG2E = 1.4426950408889634
INV2PI = 0.15915494309189535
C_HI = struct.unpack("<f", struct.pack("<f", INV2PI))[0]
C_LO = INV2PI - C_HI
ST = " sc1"
P_U, P_LA, P_AI, P_CR, P_CI, P_LDT, P_D, P_X, P_W, P_WO, P_OUT, P_DBG, P_WS = 16, 18, 20, 22, 24, 26, 28, 30, 32, 34, 36, 38, 40

def srd(a, d, p, nbytes, off=0):
    if off:
        a(f"s_add_u32 s{d}, s{p}, 0x{off:x}")
        a(f"s_addc_u32 s{d+1}, s{p+1}, 0")
    else:
        a(f"s_mov_b32 s{d}, s{p}")
        a(f"s_mov_b32 s{d+1}, s{p+1}")
    a(f"s_mov_b32 s{d+2}, 0x{nbytes:x}")
    a(f"s_mov_b32 s{d+3}, 0x20000")

def prefetch_code(a, n, vtmp, stmp):
    lab = a.newlabel("Lpc")
    a(f"s_getpc_b64 s[{stmp}:{stmp+1}]")
    a.label(lab)
    a(f"s_sub_u32 s{stmp}, s{stmp}, {lab}-{KN}")
    a(f"s_subb_u32 s{stmp+1}, s{stmp+1}, 0")
    a(f"v_lshlrev_b32 v{vtmp}, 7, v2")
    for i in range(n):
        a(f"global_load_dword v{vtmp+1}, v{vtmp}, s[{stmp}:{stmp+1}]")
        if i < n - 1:
            a(f"v_add_u32 v{vtmp}, 8192, v{vtmp}")

def phi_pack(a, acc, dst, tmp, s_log2e, s_eps):
    for p in range(0, 8, 2):
        t = tmp
        for q in range(2):
            r = 2 * (p + q)
            a(f"v_cvt_pk_bf16_f32 v{t+4*q}, v{acc+r}, v{acc+r+1}")
        for q in range(2):
            a(f"v_and_b32 v{t+4*q+1}, 0xffff0000, v{t+4*q}")
            a(f"v_lshlrev_b32 v{t+4*q}, 16, v{t+4*q}")
        for q in range(2):
            a(f"v_mul_f32 v{t+4*q+2}, s{s_log2e}, v{t+4*q}")
            a(f"v_mul_f32 v{t+4*q+3}, s{s_log2e}, v{t+4*q+1}")
        for q in range(2):
            a(f"v_exp_f32_e64 v{t+4*q+2}, v{t+4*q+2} clamp")
            a(f"v_exp_f32_e64 v{t+4*q+3}, v{t+4*q+3} clamp")
        for q in range(2):
            a(f"v_max_f32 v{t+4*q}, s{s_eps}, v{t+4*q}")
            a(f"v_max_f32 v{t+4*q+1}, s{s_eps}, v{t+4*q+1}")
        for q in range(2):
            a(f"v_add_f32 v{t+4*q}, v{t+4*q}, v{t+4*q+2}")
            a(f"v_add_f32 v{t+4*q+1}, v{t+4*q+1}, v{t+4*q+3}")
        for q in range(2):
            a(f"v_cvt_pk_bf16_f32 v{dst+p+q}, v{t+4*q}, v{t+4*q+1}")

def cmul_ops(d, x, y):
    return [f"v_pk_mul_f32 v[{d}:{d+1}], v[{x}:{x+1}], v[{y}:{y+1}] op_sel:[0,0] op_sel_hi:[1,0]",
            f"v_pk_fma_f32 v[{d}:{d+1}], v[{x}:{x+1}], v[{y}:{y+1}], v[{d}:{d+1}] op_sel:[1,1,0] op_sel_hi:[0,1,1] neg_lo:[1,0,0]"]
def hmul_ops(d, x, y):
    return [f"v_pk_mul_f16 v{d}, v{x}, v{y} op_sel:[0,0] op_sel_hi:[1,0]",
            f"v_pk_fma_f16 v{d}, v{x}, v{y}, v{d} op_sel:[1,1,0] op_sel_hi:[0,1,1] neg_lo:[1,0,0]"]
def interleave(a, streams):
    idx = [0] * len(streams)
    live = True
    while live:
        live = False
        for i, s in enumerate(streams):
            if idx[i] < len(s):
                a(s[idx[i]]); idx[i] += 1; live = True

def wait_init(a, v, sdbg, pre):
    L, Lk = a.newlabel("Lwi"), a.newlabel("Lwik")
    a("s_movk_i32 s64, 3000")
    if not pre:
        a(f"buffer_load_dword v{v}, v{v+1}, s[{sdbg}:{sdbg+3}], 0 offen sc1")
    a.label(L)
    a("s_waitcnt vmcnt(0)")
    a(f"v_cmp_ne_u32 vcc, 1, v{v}")
    a("s_sub_u32 s64, s64, 1")
    a(f"s_cbranch_scc1 {Lk}")
    a(f"s_cbranch_vccz {Lk}")
    a("s_sleep 2")
    a(f"buffer_load_dword v{v}, v{v+1}, s[{sdbg}:{sdbg+3}], 0 offen sc1")
    a(f"s_branch {L}")
    a.label(Lk)

RS = 4 * 256 + 32
SCRG = 16 * RS
TSTR = 4736
SLOT = 32768
SB0 = 21760
SLOT_OFF = [SB0 + i * SLOT for i in range(4)]
TAB_L = SCRG
A_TAB = SCRG
A_UT = 36864

ACC = 112
TA = [3, 4, 5, 6, 7, 14, 15, 18]
def kbase(mt, q, r):
    if mt == 0:
        return [r, 4 + r, 256 + 2 * r, 512 + 4 * (r & 1) + 256 * (r >> 1)][q]
    if q == 0: return 1024 + 256 * r
    if q == 1 and r == 0: return 2048
    return 2049

def kgen_load4(a):
    a(f"global_load_dwordx2 v[148:149], v3, s[{P_CR}:{P_CR+1}]")
    a(f"global_load_dwordx2 v[150:151], v3, s[{P_CI}:{P_CI+1}]")
    a(f"global_load_short_d16_hi v16, v4, s[{P_LDT}:{P_LDT+1}]")
    a(f"global_load_dwordx2 v[152:153], v3, s[{P_LA}:{P_LA+1}]")
    a(f"global_load_dwordx2 v[154:155], v3, s[{P_AI}:{P_AI+1}]")
    a(f"global_load_short_d16_hi v17, v4, s[{P_D}:{P_D+1}]")

def kgen_load(a):
    a(f"global_load_dword v10, v3, s[{P_CR}:{P_CR+1}]")
    a(f"global_load_dword v11, v3, s[{P_CI}:{P_CI+1}]")
    a(f"global_load_short_d16_hi v16, v4, s[{P_LDT}:{P_LDT+1}]")
    a(f"global_load_dword v8, v3, s[{P_LA}:{P_LA+1}]")
    a(f"global_load_dword v9, v3, s[{P_AI}:{P_AI+1}]")
    a(f"global_load_short_d16_hi v17, v4, s[{P_D}:{P_D+1}]")

def kgen_addr(a):
    a("v_lshlrev_b32 v3, 2, v2")
    a("s_lshl_b32 s14, s7, 9")
    a("s_bfe_u32 s15, s5, 0x10001")
    a("s_lshl_b32 s15, s15, 8")
    a("s_add_u32 s14, s14, s15")
    a("v_add_u32 v3, s14, v3")
    a("s_lshl_b32 s14, s7, 1")
    a("v_mov_b32 v4, s14")

def kgen_setup(a, younger, full=False):
    a(f"s_mov_b32 s66, {fhex(LOG2E)}")
    a(f"s_mov_b32 s67, {fhex(-LOG2E)}")
    a(f"s_mov_b32 s68, {fhex(C_HI)}")
    a(f"s_mov_b32 s69, {fhex(C_LO)}")
    a(f"s_mov_b32 s70, {fhex(8.0)}")
    a(f"s_mov_b32 s71, {fhex(256.0)}")
    a("v_and_b32 v24, 15, v2")
    a(f"v_mul_u32_u24 v20, {RS}, v24")
    a("v_lshrrev_b32 v21, 4, v2")
    a("v_lshl_add_u32 v20, v21, 4, v20")
    a("v_add_u32 v20, s72, v20")
    a(f"v_mul_u32_u24 v21, {RS}, v21")
    a("v_lshl_add_u32 v21, v24, 4, v21")
    a("v_mov_b32 v22, 0x00003c00")
    srd(a, 52, P_WS, 448 * KT_ROW, WS_KT)
    a("v_lshl_add_u32 v24, v24, 4, s13")
    for q in range(4):
        lo = (0xffff << (16 * q)) & 0xffffffff if q < 2 else 0
        hi_ = (0xffff << (16 * (q - 2))) & 0xffffffff if q >= 2 else 0
        a(f"s_mov_b32 exec_lo, 0x{lo:x}")
        a(f"s_mov_b32 exec_hi, 0x{hi_:x}")
        for mt in range(2):
            for r in range(4):
                a(f"v_add_u32 v{TA[4*mt+r]}, {2*kbase(mt,q,r)}, v24")
    a("s_mov_b64 exec, -1")
    a("s_mov_b32 m0, s72")
    a(f"s_waitcnt vmcnt({3 + younger})")
    if full:
        a("v_and_b32 v24, 0x7fff7fff, v148")
        a("v_and_b32 v25, 0x7fff7fff, v149")
        a("v_and_b32 v26, 0x7fff7fff, v150")
        a("v_and_b32 v27, 0x7fff7fff, v151")
        a("v_pk_max_u16 v24, v24, v26")
        a("v_pk_max_u16 v25, v25, v27")
    else:
        a("v_and_b32 v24, 0x7fff7fff, v10")
        a("v_and_b32 v25, 0x7fff7fff, v11")
    a("v_and_b32 v16, 0xffff0000, v16")
    a("v_pk_max_u16 v24, v24, v25")
    a("v_mul_f32 v16, s66, v16")
    a("v_exp_f32 v16, v16")
    a("v_lshrrev_b32 v25, 16, v24")
    a("v_and_b32 v24, 0xffff, v24")
    a("v_max_u32 v24, v24, v25")
    a("v_cvt_pk_bf16_f32 v16, v16, v16")
    a("v_and_b32 v16, 0xffff0000, v16")
    for ctl in ("row_shr:1 row_mask:0xf bank_mask:0xf", "row_shr:2 row_mask:0xf bank_mask:0xf",
                "row_shr:4 row_mask:0xf bank_mask:0xf", "row_shr:8 row_mask:0xf bank_mask:0xf",
                "row_bcast:15 row_mask:0xa bank_mask:0xf", "row_bcast:31 row_mask:0xc bank_mask:0xf"):
        a(f"v_max_u32_dpp v24, v24, v24 {ctl}")
        a("s_nop 1")
    a("v_readlane_b32 s74, v24, 63")
    a("v_readfirstlane_b32 s75, v16")
    a("s_nop 3")
    a("s_lshr_b32 s74, s74, 7")
    a("s_max_u32 s74, s74, 14")
    a("s_min_u32 s74, s74, 254")
    a("s_sub_u32 s76, 267, s74")
    a("s_lshl_b32 s76, s76, 23")
    a("s_sub_u32 s77, s74, 13")
    a("s_lshl_b32 s77, s77, 23")
    a(f"s_waitcnt vmcnt({younger})")
    if full: return
    Ls = a.newlabel("Lsh")
    a("s_bitcmp0_b32 s5, 0")
    a(f"s_cbranch_scc1 {Ls}")
    for r in range(8, 12):
        a(f"v_lshrrev_b32 v{r}, 16, v{r}")
    a.label(Ls)

def kgen_pass(a, hook, accum=False):
    FX = 80
    Z1, Z2, Z4, Z256 = 32, 34, 36, 38
    Q1, Q2, Q3, Q4, QT = 40, 42, 44, 46, 48
    P1, P2 = 50, 52
    XA, XB_, RA, RB, SA, SB = 54, 56, 58, 60, 62, 12
    QH = [22, 64, 65, 66, 67, 68, 69, 70]
    PH = [None, 71, 72, 73]
    H1, H2, H3 = [74, 75], [76, 77], [78, 79]
    def wr(row, v):
        return f"ds_write_addtid_b32 v{v} offset:{(row % 16) * RS}"
    a("v_lshlrev_b32 v24, 16, v8")
    a("v_lshlrev_b32 v25, 16, v9")
    a("v_mul_f32 v24, s66, v24")
    a("v_exp_f32 v24, v24")
    a("v_mul_f32 v25, s75, v25")
    a("v_mul_f32 v26, s68, v25")
    a("v_cvt_pk_bf16_f32 v24, v24, v24")
    a("v_fma_f32 v27, v25, s68, -v26")
    a("v_and_b32 v24, 0xffff0000, v24")
    a("v_fmac_f32 v27, s69, v25")
    a("v_mul_f32 v24, s75, v24")
    a("v_mul_f32 v24, s67, v24")
    a(f"v_lshlrev_b32 v{XA}, 16, v10")
    a(f"v_lshlrev_b32 v{XA+1}, 16, v11")
    a(f"v_mul_f32 v{XA}, s76, v{XA}")
    a(f"v_mul_f32 v{XA+1}, s76, v{XA+1}")
    st = []
    for (dst, sm, t, neg) in ((Z1, None, 28, False), (Q1, 70, 74, True), (Z256, 71, 77, False)):
        s_ = []
        if sm is None:
            s_ += [f"v_exp_f32 v{t}, v24", f"v_fract_f32 v{t+1}, v26", f"v_add_f32 v{t+1}, v{t+1}, v27"]
        else:
            s_ += [f"v_mul_f32 v{t}, s{sm}, v24", f"v_exp_f32 v{t}, v{t}", f"v_mul_f32 v{t+1}, s{sm}, v26",
                   f"v_fract_f32 v{t+1}, v{t+1}", f"v_fmac_f32 v{t+1}, s{sm}, v27"]
        s_ += [f"v_cos_f32 v{t+2}, v{t+1}", f"v_sin_f32 v{t+1}, v{t+1}", "s_nop 0", f"v_mul_f32 v{dst}, v{t}, v{t+2}"]
        s_ += [f"v_mul_f32_e64 v{dst+1}, v{t}, {'-' if neg else ''}v{t+1}"]
        st.append(s_)
    interleave(a, st)
    hook(0)
    for s_ in cmul_ops(RA, XA, Z256): a(s_)
    def cvh(stream, hs, k, src, row):
        h = hs[k % 2]
        stream.append(f"v_cvt_pk_f16_f32 v{h}, v{src}, v{src+1}")
        stream.append(wr(row, h))
    s1 = []
    cur, oth = XA, XB_
    cvh(s1, H1, 0, XA, 0)
    for f in range(1, 8):
        s1 += cmul_ops(oth, cur, Z1)
        cvh(s1, H1, f, oth, f)
        cur, oth = oth, cur
    s2 = cmul_ops(Z2, Z1, Z1) + cmul_ops(Z4, Z2, Z2)
    k = 0
    cvh(s2, H2, k, RA, 8); k += 1
    s2 += cmul_ops(RB, RA, Z256)
    s2 += cmul_ops(SA, RA, Z2); cvh(s2, H2, k, SA, 9); k += 1
    s2 += cmul_ops(SB, RA, Z4); cvh(s2, H2, k, SB, 10); k += 1
    s2 += cmul_ops(SA, SB, Z2); cvh(s2, H2, k, SA, 11); k += 1
    cvh(s2, H2, k, RB, 12); k += 1
    s2 += cmul_ops(RA, RB, Z256)
    s2 += cmul_ops(SA, RB, Z4); cvh(s2, H2, k, SA, 13); k += 1
    cvh(s2, H2, k, RA, 14); k += 1
    s2 += cmul_ops(RB, RA, Z256)
    s2 += cmul_ops(SA, RA, Z4); cvh(s2, H2, k, SA, 15); k += 1
    s3 = []
    def qcv(b, src):
        s3.append(f"v_cvt_pk_f16_f32 v{QH[b]}, v{src}, v{src+1}")
    qcv(1, Q1)
    s3 += cmul_ops(Q2, Q1, Q1); qcv(2, Q2)
    s3 += cmul_ops(Q4, Q2, Q2)
    s3 += cmul_ops(Q3, Q2, Q1); qcv(4, Q4); qcv(3, Q3)
    s3 += cmul_ops(P1, Q4, Q4)
    s3 += cmul_ops(QT, Q4, Q1); qcv(5, QT)
    s3 += cmul_ops(P2, P1, P1)
    s3 += cmul_ops(QT, Q4, Q2); qcv(6, QT)
    s3 += cmul_ops(QT, Q4, Q3); qcv(7, QT)
    s3 += cmul_ops(QT, P2, P1)
    s3.append(f"v_cvt_pk_f16_f32 v{PH[1]}, v{P1}, v{P1+1}")
    s3.append(f"v_cvt_pk_f16_f32 v{PH[2]}, v{P2}, v{P2+1}")
    s3.append(f"v_cvt_pk_f16_f32 v{PH[3]}, v{QT}, v{QT+1}")
    interleave(a, [s1[:16], s2[:16], s3[:16]])
    hook(1)
    interleave(a, [s1[16:], s2[16:], s3[16:]])
    def rdf(f0):
        for kk in range(4):
            f = f0 + 4 * kk
            a(f"ds_read_b128 v[{f}:{f+3}], v20 offset:{64*kk}")
    rdf(FX)
    hook(2)
    s4 = []
    c_, o_ = RB, RA
    for row in range(16, 21):
        cvh(s4, H2, row, c_, row)
        if row < 20:
            s4 += cmul_ops(o_, c_, Z256)
            c_, o_ = o_, c_
    s5 = []
    Y1 = [None, 32, 33, 34, 35, 36, 37, 40]
    for b in range(1, 8):
        s5 += hmul_ops(Y1[b], PH[1], QH[b])
    interleave(a, [s4, s5])
    rdf(FX + 16)
    hook(3)
    w0 = [wr(b, QH[b]) for b in range(8)] + [wr(8, PH[1])] + [wr(8 + b, Y1[b]) for b in range(1, 8)]
    Y2 = [None, 41, 42, 43, 44, 45, 46, 47]
    s6 = []
    for b in range(1, 8):
        s6 += hmul_ops(Y2[b], PH[2], QH[b])
    interleave(a, [w0, s6])
    rdf(48)
    w1 = [wr(0, PH[2])] + [wr(b, Y2[b]) for b in range(1, 8)] + [wr(8, PH[3])]
    s7 = []
    for b in range(1, 8):
        h = H1[b % 2]
        s7 += hmul_ops(h, PH[3], QH[b])
        s7.append(wr(8 + b, h))
    interleave(a, [w1, s7])
    rdf(32)
    def mm(nt, kk):
        for mt in range(2):
            fa = FX + 16 * mt + 4 * kk
            fb = (48 if nt == 0 else 32) + 4 * kk
            d = ACC + 8 * mt + 4 * nt
            cin = "0" if (kk == 0 and not accum) else f"v[{d}:{d+3}]"
            a(f"v_mfma_f32_16x16x32_f16 v[{d}:{d+3}], v[{fa}:{fa+3}], v[{fb}:{fb+3}], {cin}")
    a("s_waitcnt lgkmcnt(15)")
    for kk in range(4): mm(0, kk)
    for kk in range(4):
        a(f"s_waitcnt lgkmcnt({3-kk})")
        mm(1, kk)
    if accum: return
    kgen_scale(a, True)

def kgen_scale(a, publish):
    a("v_mov_b32 v25, s75")
    a("v_mul_f32 v25, s77, v25")
    a("v_add_f32 v25, v25, v25")
    a("v_add_u32 v30, s72, v21")
    a("v_lshlrev_b32 v26, 4, v2")
    a("v_and_b32 v17, 0xffff0000, v17")
    a(f"s_add_u32 s14, s13, {16*63}")
    a("v_sub_u32 v27, s14, v26")
    a("s_nop 1")
    for q in range(4):
        for r in range(4):
            a(f"v_mul_f32 v{ACC+4*q+r}, v25, v{ACC+4*q+r}")
        if publish:
            a(f"ds_write_b128 v30, v[{ACC+4*q}:{ACC+4*q+3}] offset:{4*q*RS}")

def kgen_solo(a):
    a("s_mov_b64 exec, 1")
    a(f"v_add_f32 v{ACC}, v{ACC}, v17")
    a("s_mov_b64 exec, -1")
    for mt in range(2):
        for r in range(4):
            a(f"v_cvt_pk_bf16_f32 v{40+4*mt+r}, v{ACC+8*mt+r}, v{ACC+8*mt+4+r}")
            a(f"ds_write_b16 v{TA[4*mt+r]}, v{40+4*mt+r}")
            a(f"ds_write_b16_d16_hi v{TA[4*mt+r]}, v{40+4*mt+r} offset:256")
    a("v_cmp_gt_u32 vcc, 32, v2")
    a("v_and_b32 v31, 1, v2")
    a("v_mul_u32_u24 v31, 0x0404, v31")
    a("v_cndmask_b32_e64 v28, 0, 2, vcc")
    a("v_add_u32 v29, v27, v28")
    a("v_sub_u32 v30, v27, v28")
    for m in range(2):
        o = (3 - m) * 1024
        a(f"ds_read_u16 v{80+2*m}, v27 offset:{o}")
        a(f"ds_read_u16 v{81+2*m}, v27 offset:{o+16}")
    a("ds_read_u16 v88, v27 offset:1024")
    a("ds_read_u16 v89, v27 offset:1032")
    a("ds_read_u16 v90, v27 offset:1040")
    for k_, (reg, idx) in enumerate(((29, 7), (27, 6), (30, 5), (27, 4), (29, 3), (27, 2), (30, 1), (27, 0))):
        a(f"ds_read_u16 v{92+k_}, v{reg} offset:{2*idx}")
    a("s_mov_b32 s60, 0x05040504")
    a("s_mov_b32 s61, 0x01000100")
    a("s_mov_b32 s62, 0x01000504")
    a(f"s_mul_i32 s15, s7, {KT_ROW}")
    a("v_mov_b32 v84, 0\nv_mov_b32 v85, 0\nv_mov_b32 v86, 0\nv_mov_b32 v87, 0")
    a("v_lshlrev_b32 v31, 16, v31")
    a("v_sub_u32 v31, 0x05040504, v31")
    E = 48
    a("s_waitcnt lgkmcnt(8)")
    for m in range(2):
        ra, rb = 80 + 2 * m, 81 + 2 * m
        e = E + 4 * m
        a(f"v_perm_b32 v{e}, v{rb}, v{ra}, s60")
        a(f"v_perm_b32 v{e+1}, v{rb}, v{ra}, v31")
        a(f"v_perm_b32 v{e+2}, v{rb}, v{ra}, s61")
        a(f"v_perm_b32 v{e+3}, v{rb}, v{ra}, s61")
        a(f"buffer_store_dwordx4 v[{e}:{e+3}], v26, s[52:55], s15 offen offset:{m*1024}{ST}")
    e = E + 8
    a(f"v_perm_b32 v{e}, v90, v90, s61")
    a(f"v_perm_b32 v{e+1}, v89, v88, s60")
    a(f"v_perm_b32 v{e+2}, v89, v88, s62")
    a(f"v_perm_b32 v{e+3}, v89, v88, s61")
    a(f"buffer_store_dwordx4 v[{e}:{e+3}], v26, s[52:55], s15 offen offset:2048{ST}")
    a("s_waitcnt lgkmcnt(0)")
    e = E + 12
    for k_ in range(4):
        a(f"v_lshl_or_b32 v{e+k_}, v{93+2*k_}, 16, v{92+2*k_}")
    a(f"buffer_store_dwordx4 v[{e}:{e+3}], v26, s[52:55], s15 offen offset:3072{ST}")
    a("s_add_u32 s15, s15, 4096")
    a("s_mov_b64 exec, 1")
    a(f"buffer_store_dwordx4 v[84:87], v26, s[52:55], s15 offen{ST}")
    a("s_mov_b64 exec, -1")

def kgen_table(a):
    a("s_and_b32 s14, s5, 3")
    a(f"s_mul_i32 s15, s14, {4*RS}")
    a("s_andn2_b32 s74, s72, 0x300")
    a("s_add_u32 s15, s15, s74")
    a("v_add_u32 v30, s15, v21")
    for i in range(4):
        a(f"ds_read_b128 v[{32+4*i}:{35+4*i}], v30 offset:{i*256}")
    L = a.newlabel("Lmt")
    a("s_bitcmp0_b32 s5, 1")
    a(f"s_cbranch_scc1 {L}")
    for r in range(4):
        a(f"v_mov_b32 v{TA[r]}, v{TA[4+r]}")
    a.label(L)
    a("s_and_b32 s15, s5, 1")
    a("s_lshl_b32 s15, s15, 8")
    for r in range(4):
        a(f"v_add_u32 v{TA[r]}, s15, v{TA[r]}")
    a("s_cmp_eq_u32 s14, 0")
    a("s_cselect_b32 s74, 1, 0")
    a("s_mov_b32 s75, 0")
    a("s_waitcnt lgkmcnt(0)")
    for r in range(4):
        a(f"v_add_f32 v{32+r}, v{32+r}, v{36+r}")
        a(f"v_add_f32 v{40+r}, v{40+r}, v{44+r}")
    for r in range(4):
        a(f"v_add_f32 v{32+r}, v{32+r}, v{40+r}")
    a("s_mov_b64 exec, s[74:75]")
    a("v_add_f32 v32, v32, v17")
    a("s_mov_b64 exec, -1")
    a("v_cvt_pk_bf16_f32 v36, v32, v33")
    a("v_cvt_pk_bf16_f32 v37, v34, v35")
    a(f"ds_write_b16 v{TA[0]}, v36")
    a(f"ds_write_b16_d16_hi v{TA[1]}, v36")
    a(f"ds_write_b16 v{TA[2]}, v37")
    a(f"ds_write_b16_d16_hi v{TA[3]}, v37")

def kgen_expand(a):
    L2, L3, Le = a.newlabel("Lm2"), a.newlabel("Lm3"), a.newlabel("Lme")
    a("s_and_b32 s14, s5, 3")
    a(f"s_mul_i32 s15, s7, {KT_ROW}")
    a("s_lshl_b32 s74, s14, 10")
    a("s_add_u32 s77, s15, 4096")
    a("s_add_u32 s15, s15, s74")
    a("s_mov_b32 s74, 0x05040504")
    a("s_mov_b32 s75, 0x01000100")
    a("s_mov_b32 s76, 0x01000504")
    a("v_mov_b32 v84, 0\nv_mov_b32 v85, 0\nv_mov_b32 v86, 0\nv_mov_b32 v87, 0")
    a("s_cmp_eq_u32 s14, 3")
    a(f"s_cbranch_scc1 {L3}")
    a("s_cmp_eq_u32 s14, 2")
    a(f"s_cbranch_scc1 {L2}")
    a("s_lshl_b32 s14, s14, 10")
    a("v_subrev_u32 v28, s14, v27")
    a("ds_read_u16 v80, v28 offset:3072")
    a("ds_read_u16 v81, v28 offset:3088")
    a("v_and_b32 v31, 1, v2")
    a("v_mul_u32_u24 v31, 0x0404, v31")
    a("v_lshlrev_b32 v31, 16, v31")
    a("v_sub_u32 v31, 0x05040504, v31")
    a("s_waitcnt lgkmcnt(0)")
    a("v_perm_b32 v48, v81, v80, s74")
    a("v_perm_b32 v49, v81, v80, v31")
    a("v_perm_b32 v50, v81, v80, s75")
    a("v_perm_b32 v51, v81, v80, s75")
    a(f"s_branch {Le}")
    a.label(L2)
    a("ds_read_u16 v88, v27 offset:1024")
    a("ds_read_u16 v89, v27 offset:1032")
    a("ds_read_u16 v90, v27 offset:1040")
    a("s_waitcnt lgkmcnt(0)")
    a("v_perm_b32 v48, v90, v90, s75")
    a("v_perm_b32 v49, v89, v88, s74")
    a("v_perm_b32 v50, v89, v88, s76")
    a("v_perm_b32 v51, v89, v88, s75")
    a(f"s_branch {Le}")
    a.label(L3)
    a("v_cmp_gt_u32 vcc, 32, v2")
    a("s_nop 1")
    a("v_cndmask_b32_e64 v28, 0, 2, vcc")
    a("v_add_u32 v29, v27, v28")
    a("v_sub_u32 v30, v27, v28")
    for k_, (reg, idx) in enumerate(((29, 7), (27, 6), (30, 5), (27, 4), (29, 3), (27, 2), (30, 1), (27, 0))):
        a(f"ds_read_u16 v{92+k_}, v{reg} offset:{2*idx}")
    a("s_waitcnt lgkmcnt(0)")
    for k_ in range(4):
        a(f"v_lshl_or_b32 v{48+k_}, v{93+2*k_}, 16, v{92+2*k_}")
    a.label(Le)
    a(f"buffer_store_dwordx4 v[48:51], v26, s[52:55], s15 offen{ST}")
    a("s_mov_b64 exec, 1")
    a(f"buffer_store_dwordx4 v[84:87], v26, s[52:55], s77 offen{ST}")
    a("s_mov_b64 exec, -1")

def set_flag(a, soff, nl=1):
    a("v_mov_b32 v139, 1")
    a(f"s_mov_b64 exec, {(1 << nl) - 1}")
    a(f"buffer_store_dword v139, v138, s[56:59], s{soff} offen sc1")
    a("s_mov_b64 exec, -1")

def phase1_gemm(a):
    a.comment("---- GEMM WGs: waves 0..3 run one K-gen pass first, waves 4..7 start the loads ----")
    a("s_mul_i32 s7, s3, 24")
    a("s_add_u32 s7, s7, s4")
    a("s_and_b32 s6, s7, 0xe0")
    a("s_add_u32 s7, s7, s6")
    a("s_lshr_b32 s65, s5, 2")
    a("s_cmp_ge_u32 s5, 4")
    a("s_cbranch_scc1 L_g_dec")
    kgen_addr(a)
    a("s_lshl_b32 s72, s5, 8")
    a("s_waitcnt lgkmcnt(0)")
    stamp(a, 0)
    kgen_load(a)
    a.label("L_g_dec")
    a("s_lshr_b32 s6, s3, 1")
    a("s_lshl_b32 s6, s6, 2")
    a("s_and_b32 s60, s3, 1")
    a("s_lshr_b32 s8, s4, 2")
    a("s_add_u32 s8, s8, s6")
    a("s_and_b32 s9, s4, 3")
    a("s_lshl_b32 s10, s60, 2")
    a("s_add_u32 s9, s9, s10")
    a("s_mul_i32 s10, s9, 112")
    a("s_add_u32 s11, s10, 1792")
    a("s_add_u32 s10, s10, 896")
    a("s_sub_u32 s12, s4, 16")
    a("s_lshr_b32 s61, s12, 1")
    a("s_add_u32 s61, s61, s6")
    a("s_and_b32 s12, s12, 1")
    a("s_lshl_b32 s14, s60, 1")
    a("s_add_u32 s12, s12, s14")
    a("s_mul_i32 s14, s12, 224")
    a("s_add_u32 s15, s14, 112")
    a("s_cmp_lt_u32 s4, 16")
    a("s_cselect_b32 s8, s8, s61")
    a("s_cselect_b32 s9, s9, s12")
    a("s_cselect_b32 s10, s10, s14")
    a("s_cselect_b32 s11, s11, s15")
    a("s_and_b32 s60, s5, 3")
    a("v_lshrrev_b32 v164, 3, v2")
    a("v_lshrrev_b32 v165, 4, v2")
    a("v_and_b32 v166, 7, v2")
    a("s_lshl_b32 s12, s8, 7")
    a("s_lshl_b32 s61, s60, 5")
    a("s_add_u32 s12, s12, s61")
    a("v_add_u32 v167, s12, v164")
    a("v_mul_u32_u24 v167, 896, v167")
    a("v_xor_b32 v168, v166, v165")
    a("v_lshl_add_u32 v128, v168, 4, v167")
    a("v_xor_b32 v168, 4, v168")
    a("v_lshl_add_u32 v129, v168, 4, v167")
    a("v_add_u32 v129, 7168, v129")
    a("s_lshl_b32 s61, s60, 4")
    a("v_add_u32 v167, s61, v164")
    a("v_mul_u32_u24 v167, 2688, v167")
    a("v_and_b32 v168, 1, v165")
    a("v_lshlrev_b32 v168, 2, v168")
    a("v_xor_b32 v168, v168, v166")
    a("v_lshl_add_u32 v167, v168, 4, v167")
    a("v_add_u32 v130, s10, v167")
    a("v_add_u32 v131, s11, v167")
    a("s_lshl_b32 s10, s60, 12")
    a("s_lshl_b32 s11, s60, 11")
    a("s_add_u32 s11, s11, 16384")
    a("s_waitcnt lgkmcnt(0)")
    srd(a, 44, P_X, 2048 * 896)
    srd(a, 48, P_W, 448 * 2688)
    a("s_and_b32 s73, s8, 3")
    a("s_lshl_b32 s73, s73, 1")
    a("s_and_b32 s61, s9, 3")
    a("s_and_b32 s62, s9, 1")
    a("s_add_u32 s62, s62, 4")
    a("s_cmp_lt_u32 s4, 16")
    a("s_cselect_b32 s61, s61, s62")
    a("s_add_u32 s73, s73, s61")
    a("s_sub_u32 s61, s73, 7")
    a("s_cmp_ge_u32 s73, 7")
    a("s_cselect_b32 s73, s61, s73")
    if "norot" in OPT: a("s_mov_b32 s73, 0")
    def dma(c, i):
        so = SLOT_OFF[c % 4]; h = i // 4; i = i % 4
        if i == 0:
            if h == 0:
                a("s_lshl_b32 s6, s73, 7")
                a("s_mul_i32 s12, s73, 172032")
                a("s_add_u32 s73, s73, 1")
                a("s_cmp_eq_u32 s73, 7")
                a("s_cselect_b32 s73, 0, s73")
            else:
                a("s_add_u32 s6, s6, 14336")
                a("s_add_u32 s12, s12, 21504")
            a(f"s_add_u32 m0, s10, {so + h*2048}")
            a("s_nop 0")
            a("buffer_load_dwordx4 v128, s[44:47], s6 offen lds")
        elif i == 1:
            a(f"s_add_u32 m0, s11, {so + h*1024}")
            a("s_nop 0")
            a("buffer_load_dwordx4 v130, s[48:51], s12 offen lds")
        elif i == 2:
            a(f"s_add_u32 m0, s10, {so + h*2048 + 1024}")
            a("s_nop 0")
            a("buffer_load_dwordx4 v129, s[44:47], s6 offen lds")
        else:
            a(f"s_add_u32 m0, s11, {so + h*1024 + 8192}")
            a("s_nop 0")
            a("buffer_load_dwordx4 v131, s[48:51], s12 offen lds")
    def only(lo, body):
        L = a.newlabel("Lo")
        a(f"s_cmp_{'ge' if lo else 'lt'}_u32 s5, 4")
        a(f"s_cbranch_scc1 {L}")
        body()
        a.label(L)
    UP = 4
    U1 = optint("up", 2)
    def upfront():
        stamp(a, 0)
        for c in range(U1):
            for i in range(8): dma(c, i)
        if U1 < 4:
            a(f"s_waitcnt vmcnt({8*(U1-1)})")
        stamp(a, 1)
        for c in range(U1, 4):
            for i in range(8): dma(c, i)
    only(False, upfront)
    def adv4():
        a("s_add_u32 s73, s73, 4")
        a("s_sub_u32 s61, s73, 7")
        a("s_cmp_ge_u32 s73, 7")
        a("s_cselect_b32 s73, s61, s73")
    only(True, adv4)
    a("s_mul_i32 s42, s65, 14336")
    a("s_mul_i32 s43, s65, 21504")
    a("s_lshl_b32 s61, s65, 11")
    a("s_add_u32 s10, s10, s61")
    a("s_lshl_b32 s61, s65, 10")
    a("s_add_u32 s11, s11, s61")
    def dma2(c, i):
        so = SLOT_OFF[c % 4]
        if i == 0:
            a("s_lshl_b32 s6, s73, 7")
            a("s_mul_i32 s12, s73, 172032")
            a("s_add_u32 s73, s73, 1")
            a("s_cmp_eq_u32 s73, 7")
            a("s_cselect_b32 s73, 0, s73")
            a("s_add_u32 s6, s6, s42")
            a(f"s_add_u32 m0, s10, {so}")
            a("s_add_u32 s12, s12, s43")
            a("buffer_load_dwordx4 v128, s[44:47], s6 offen lds")
        elif i == 1:
            a(f"s_add_u32 m0, s11, {so}")
            a("s_nop 0")
            a("buffer_load_dwordx4 v130, s[48:51], s12 offen lds")
        elif i == 2:
            a(f"s_add_u32 m0, s10, {so + 1024}")
            a("s_nop 0")
            a("buffer_load_dwordx4 v129, s[44:47], s6 offen lds")
        else:
            a(f"s_add_u32 m0, s11, {so + 8192}")
            a("s_nop 0")
            a("buffer_load_dwordx4 v131, s[48:51], s12 offen lds")
    a("v_and_b32 v164, 31, v2")
    a("v_lshrrev_b32 v165, 5, v2")
    a("v_bfe_u32 v166, v2, 1, 3")
    a("v_xor_b32 v166, v166, v165")
    a("s_lshl_b32 s15, s60, 12")
    a("v_lshlrev_b32 v164, 7, v164")
    a("v_lshl_add_u32 v164, v166, 4, v164")
    a("v_add_u32 v132, s15, v164")
    a("v_xor_b32 v133, 32, v132")
    a("v_xor_b32 v134, 64, v132")
    a("v_xor_b32 v135, 0x60, v132")
    a("s_mul_i32 s15, s65, 56")
    a("v_bfe_u32 v164, v2, 4, 1")
    a("v_lshlrev_b32 v164, 5, v164")
    a("v_and_b32 v166, 3, v2")
    a("v_lshl_add_u32 v164, v166, 3, v164")
    a("v_add_u32 v164, s15, v164")
    a("v_bfe_u32 v166, v2, 3, 1")
    a("v_lshlrev_b32 v166, 6, v166")
    a("v_xor_b32 v164, v164, v166")
    a("v_bfe_u32 v166, v2, 2, 2")
    a("v_lshl_add_u32 v166, v165, 3, v166")
    a("v_lshl_add_u32 v164, v166, 7, v164")
    a("v_add_u32 v136, 16384, v164")
    for r in range(5):
        a(f"v_add_u32 v{140+r}, 0x10000, v{132+r}")
        a(f"v_add_u32 v{148+r}, 0x20000, v{132+r}")
    a("v_lshlrev_b32 v138, 2, v2")
    a("v_and_b32 v146, 28, v138")
    srd(a, 52, P_WS, 448 * KT_ROW, WS_KT)
    a("v_lshlrev_b32 v26, 4, v2")
    srd(a, 56, P_WS, FL_BYTES, WS_FL)
    srd(a, 60, P_DBG, 256)
    def kg():
        a(f"s_movk_i32 s13, {TAB_L + 16}")
        kgen_setup(a, 0)
        stamp(a, 1)
        kgen_pass(a, lambda k: None)
        stamp(a, 2)
    only(True, kg)
    a(f"s_mov_b32 s66, {fhex(LOG2E)}")
    a(f"s_mov_b32 s67, {fhex(1e-6)}")
    a(f"s_waitcnt vmcnt({8*(UP-1)}) lgkmcnt(0)")
    a("s_barrier")
    stamp(a, 3)
    a("s_cmp_ge_u32 s4, 16")
    a("s_cbranch_scc1 L_q")

    FR = 160
    ACC0, ACC1 = 208, 224
    def main_loop(is_q):
        def adr(c, k):
            so = SLOT_OFF[c % 4]
            if so + SLOT > 65536:
                if so >= 65536: return 140 + k, so - 65536
            return 132 + k, so
        def reads(c, k):
            f = FR + 12 * k
            so = SLOT_OFF[c % 4]
            def pick(reg, off):
                return (reg + 8 * (off >> 16), off & 65535)
            r, o = pick(132 + k, so)
            a(f"ds_read_b128 v[{f}:{f+3}], v{r} offset:{o}")
            for seg in range(2):
                for jj in range(2):
                    d = f + 4 + 4 * seg + 2 * jj
                    r, o = pick(136, so + seg * 8192 + (16 * k + 4 * jj) * 128)
                    a(f"ds_read_b64_tr_b16 v[{d}:{d+1}], v{r} offset:{o}")
        def mfma(c, k):
            f = FR + 12 * k
            for seg, acc in ((0, ACC0), (1, ACC1)):
                wf = f + 4 + 4 * seg
                cin = "0" if (c == 0 and k == 0) else f"v[{acc}:{acc+15}]"
                if is_q:
                    a(f"v_mfma_f32_32x32x16_bf16 v[{acc}:{acc+15}], v[{wf}:{wf+3}], v[{f}:{f+3}], {cin}")
                else:
                    a(f"v_mfma_f32_32x32x16_bf16 v[{acc}:{acc+15}], v[{f}:{f+3}], v[{wf}:{wf+3}], {cin}")
        issued = [UP]
        pend = []
        def plan(b):
            n = issued[0]
            if n <= 6 and b >= n - 2:
                pend.extend((n, i) for i in range(4))
                issued[0] += 1
        def drip(k):
            k = (k + 1) // 2
            for _ in range(min(k, len(pend))):
                dma2(*pend.pop(0))
        reads(0, 0); reads(0, 1)
        plan(0)
        for c in range(7):
            reads(c, 2)
            a("s_waitcnt lgkmcnt(10)")
            mfma(c, 0)
            drip(4 if c == 0 else 2)
            reads(c, 3)
            a("s_waitcnt lgkmcnt(10)")
            mfma(c, 1)
            drip(8)
            if c == 0:
                only(True, lambda: (kgen_table(a), a("s_waitcnt lgkmcnt(0)")))
            if c == 1:
                only(True, lambda: kgen_expand(a))
            if c < 6:
                a(f"s_waitcnt vmcnt({[16, 8, 4, 4, 4, 0][c]})")
                a("s_barrier")
                plan(c + 1)
                if c == 3:
                    only(True, lambda: a("buffer_load_dword v145, v146, s[60:63], 0 offen sc1"))
            a("s_waitcnt lgkmcnt(5)")
            mfma(c, 2)
            drip(2)
            if c < 6:
                reads(c + 1, 0)
                a("s_waitcnt lgkmcnt(5)")
            else:
                a("s_waitcnt lgkmcnt(0)")
            mfma(c, 3)
            drip(2)
            if c < 6:
                reads(c + 1, 1)
            if c == 5:
                L = a.newlabel("Lkf")
                a("s_cmp_lg_u32 s5, 0")
                a(f"s_cbranch_scc1 {L}")
                wait_init(a, 145, 60, True)
                a(f"s_lshl_b32 s14, s7, {FSH}")
                a(f"s_add_u32 s14, s14, {FL_K}")
                set_flag(a, 14, 1)
                a.label(L)
        stamp(a, 4)

    main_loop(False)
    srd(a, 52, P_WS, 0x10000, WS_KV)
    PK, VV, TMP = 32, 40, 48
    XB = SLOT_OFF[0]
    a("v_lshlrev_b32 v10, 4, v2")
    a("s_lshl_b32 s14, s5, 12")
    a(f"s_add_u32 s14, s14, {XB}")
    a("v_add_u32 v11, s14, v10")
    a("s_and_b32 s14, s5, 3")
    a("s_lshl_b32 s14, s14, 10")
    a("s_lshl_b32 s15, s65, 14")
    a("s_add_u32 s14, s14, s15")
    a(f"s_add_u32 s14, s14, {XB}")
    a("v_add_u32 v12, s14, v138")
    a("s_nop 1")
    phi_pack(a, ACC0, PK, TMP, 66, 67)
    for p in range(8):
        a(f"v_cvt_pk_bf16_f32 v{VV+p}, v{ACC1+2*p}, v{ACC1+2*p+1}")
    if "epi" in OPT: stamp(a, 0)
    a("s_mov_b32 exec_lo, 0x10000000")
    a("s_mov_b32 exec_hi, 0x10000000")
    for p in range(8):
        a(f"v_mov_b32 v{VV+p}, 0x3f803f80")
    a("s_mov_b64 exec, -1")
    a("s_nop 1")
    KV = 56
    a(f"v_mfma_f32_32x32x16_bf16 v[{KV}:{KV+15}], v[{PK}:{PK+3}], v[{VV}:{VV+3}], 0")
    a(f"v_mfma_f32_32x32x16_bf16 v[{KV}:{KV+15}], v[{PK+4}:{PK+7}], v[{VV+4}:{VV+7}], v[{KV}:{KV+15}]")
    a("s_lshl_b32 s14, s9, 1")
    a("s_add_u32 s14, s14, s65")
    a("s_lshl_b32 s14, s14, 12")
    a("s_and_b32 s15, s5, 3")
    a("s_lshl_b32 s15, s15, 10")
    a("s_add_u32 s14, s14, s15")
    a("s_nop 6")
    for q in range(4):
        a(f"ds_write_b128 v11, v[{KV+4*q}:{KV+4*q+3}] offset:{q*1024}")
    a("s_waitcnt lgkmcnt(0)")
    a("s_barrier")
    if "epi" in OPT: stamp(a, 1)
    for i in range(4):
        a(f"ds_read2st64_b32 v[{32+4*i}:{33+4*i}], v12 offset0:{i} offset1:{16+i}")
        a(f"ds_read2st64_b32 v[{34+4*i}:{35+4*i}], v12 offset0:{32+i} offset1:{48+i}")
    for i in range(4):
        a(f"s_waitcnt lgkmcnt({6-2*i})")
        b = 32 + 4 * i
        a(f"v_add_f32 v{b}, v{b}, v{b+1}")
        a(f"v_add_f32 v{b+2}, v{b+2}, v{b+3}")
        a(f"v_add_f32 v{b}, v{b}, v{b+2}")
        a(f"buffer_atomic_add_f32 v{b}, v138, s[52:55], s14 offen offset:{i*256}")
    if "epi" in OPT: stamp(a, 2)
    a("s_waitcnt vmcnt(0)")
    if "epi" in OPT: stamp(a, 3)
    a("s_barrier")
    L = a.newlabel("Lvf")
    a("s_cmp_lg_u32 s5, 0")
    a(f"s_cbranch_scc1 {L}")
    a("s_lshl_b32 s14, s3, 4")
    a("s_add_u32 s14, s14, s4")
    a(f"s_lshl_b32 s14, s14, {FSH}")
    a(f"s_add_u32 s14, s14, {FL_KV}")
    set_flag(a, 14)
    a.label(L)
    stamp(a, 5)
    a("s_cmp_lt_u32 s4, 14")
    a("s_cbranch_scc1 L_w4")
    stamp_flush(a, 0)
    a("s_endpgm")

    a.label("L_q")
    main_loop(True)
    srd(a, 52, P_WS, 0x200000, WS_PQ)
    a("s_lshl_b32 s14, s8, 2")
    a("s_and_b32 s15, s5, 3")
    a("s_add_u32 s14, s14, s15")
    a("s_lshl_b32 s14, s14, 4")
    a("s_lshl_b32 s15, s9, 2")
    a("s_add_u32 s14, s14, s15")
    a("s_add_u32 s14, s14, s65")
    a("s_lshl_b32 s14, s14, 11")
    a("s_add_u32 s15, s14, 4096")
    a("v_lshlrev_b32 v10, 4, v2")
    phi_pack(a, ACC0, 32, 48, 66, 67)
    a(f"buffer_store_dwordx4 v[32:35], v10, s[52:55], s14 offen{ST}")
    a(f"buffer_store_dwordx4 v[36:39], v10, s[52:55], s14 offen offset:1024{ST}")
    phi_pack(a, ACC1, 40, 48, 66, 67)
    a(f"buffer_store_dwordx4 v[40:43], v10, s[52:55], s15 offen{ST}")
    a(f"buffer_store_dwordx4 v[44:47], v10, s[52:55], s15 offen offset:1024{ST}")
    a("s_lshl_b32 s14, s8, 2")
    a("s_add_u32 s14, s14, s9")
    a(f"s_lshl_b32 s14, s14, {FSH}")
    a(f"s_add_u32 s66, s14, {FL_Q}")
    stamp(a, 5)
    a("s_sub_u32 s4, s4, 16")
    a("s_cmp_lt_u32 s3, 7")
    a("s_cbranch_scc1 L_conv")
    a("s_waitcnt vmcnt(0)")
    a("s_barrier")
    L = a.newlabel("Lqf")
    a("s_cmp_lg_u32 s5, 0")
    a(f"s_cbranch_scc1 {L}")
    set_flag(a, 66)
    a.label(L)
    stamp_flush(a, 0)
    a("s_endpgm")

def phase1_a(a):
    a.comment("---- A WGs ----")
    a("s_sub_u32 s6, s4, 24")
    a("v_lshlrev_b32 v138, 2, v2")
    a("v_and_b32 v146, 28, v138")
    a("s_cmp_ge_u32 s5, 6")
    a("s_cbranch_scc1 L_ut")
    a("s_cmp_ge_u32 s5, 4")
    a("s_cbranch_scc1 L_touch")
    a("s_lshl_b32 s7, s3, 6")
    a("s_add_u32 s7, s7, 32")
    a("s_cmp_eq_u32 s3, 7")
    a("s_cselect_b32 s7, 384, s7")
    a("s_lshl_b32 s14, s6, 2")
    a("s_add_u32 s7, s7, s14")
    a("s_add_u32 s7, s7, s5")
    a("v_lshlrev_b32 v3, 3, v2")
    a("s_lshl_b32 s14, s7, 9")
    a("v_add_u32 v3, s14, v3")
    a("s_lshl_b32 s14, s7, 1")
    a("v_mov_b32 v4, s14")
    a("s_lshl_b32 s72, s5, 8")
    a(f"s_mul_i32 s13, s5, {TSTR}")
    a(f"s_add_u32 s13, s13, {A_TAB + 16}")
    a("s_waitcnt lgkmcnt(0)")
    stamp(a, 0)
    kgen_load4(a)
    for i in range(16):
        a(f"v_mov_b32 v{ACC+i}, 0")
    kgen_setup(a, 0, True)
    stamp(a, 1)
    a("s_mov_b32 s73, 4")
    a.label("L_apass")
    a("v_mov_b32 v10, v148")
    a("v_mov_b32 v11, v150")
    a("v_mov_b32 v8, v152")
    a("v_mov_b32 v9, v154")
    for r in (148, 150, 152, 154):
        a(f"v_lshrrev_b64 v[{r}:{r+1}], 16, v[{r}:{r+1}]")
    kgen_pass(a, lambda k: None, True)
    a("s_sub_u32 s73, s73, 1")
    a("s_cmp_lg_u32 s73, 0")
    a("s_cbranch_scc1 L_apass")
    stamp(a, 2)
    kgen_scale(a, False)
    kgen_solo(a)
    stamp(a, 3)
    srd(a, 56, P_WS, FL_BYTES, WS_FL)
    srd(a, 60, P_DBG, 256)
    wait_init(a, 145, 60, False)
    a(f"s_lshl_b32 s14, s7, {FSH}")
    a(f"s_add_u32 s14, s14, {FL_K}")
    set_flag(a, 14, 1)
    a("s_branch L_a_done")

    a.label("L_touch")
    a("s_setprio 3")
    a("s_lshl_b32 s8, s6, 1")
    a("s_add_u32 s8, s8, s5")
    a("s_sub_u32 s8, s8, 4")
    a("v_mul_u32_u24 v5, 43, v2")
    a("v_lshrrev_b32 v5, 9, v5")
    a("v_mul_u32_u24 v6, 12, v5")
    a("v_sub_u32 v6, v2, v6")
    a("s_lshl_b32 s9, s8, 2")
    a("v_add_u32 v5, s9, v5")
    a("v_mul_u32_u24 v5, 2688, v5")
    a("v_lshl_add_u32 v5, v6, 7, v5")
    a("v_lshrrev_b32 v6, 2, v6")
    a("v_mul_u32_u24 v6, 384, v6")
    a("v_add_u32 v5, v5, v6")
    T0 = optint("tfrom", 0); WIN = optint("win", 3)
    a("s_and_b32 s9, s3, 1")
    a("s_mul_i32 s9, s9, 384")
    a(f"s_add_u32 s9, s9, {T0*172032}")
    a("s_lshl_b32 s10, s8, 5")
    a("s_lshr_b32 s11, s3, 1")
    a("s_lshl_b32 s11, s11, 9")
    a("s_add_u32 s10, s10, s11")
    a("v_add_u32 v6, s10, v2")
    a("v_mul_u32_u24 v6, 896, v6")
    a(f"s_movk_i32 s10, {T0*128}")
    a("s_waitcnt lgkmcnt(0)")
    stamp(a, 0)
    srd(a, 44, P_X, 2048 * 896)
    srd(a, 48, P_W, 448 * 2688)
    NT = 0 if 'notouch' in OPT else 7 - T0
    for c in range(NT):
        if c >= WIN:
            a(f"s_waitcnt vmcnt({2*(WIN-1)})")
        a("s_mov_b32 exec_hi, 0xffff")
        a("buffer_load_dword v13, v5, s[48:51], s9 offen")
        a("s_mov_b32 exec_hi, 0")
        a("buffer_load_dword v13, v6, s[44:47], s10 offen")
        a("s_add_u32 s9, s9, 172032")
        a("s_add_u32 s10, s10, 128")
    a("s_mov_b64 exec, -1")
    stamp(a, 3)
    srd(a, 48, P_WO, 448 * 896)
    a(f"s_mul_i32 s9, s8, {196*128}")
    a("v_lshlrev_b32 v5, 7, v2")
    a("s_waitcnt vmcnt(2)")
    for i in range(4):
        if i == 3: a("s_mov_b64 exec, 15")
        a("buffer_load_dword v13, v5, s[48:51], s9 offen")
        a("s_add_u32 s9, s9, 8192")
    a("s_mov_b64 exec, -1")
    a("s_setprio 0")
    a("s_branch L_a_done")

    a.label("L_ut")
    a("s_sub_u32 s7, s5, 6")
    a("s_lshl_b32 s9, s3, 3")
    a("s_add_u32 s9, s9, s6")
    a("s_lshl_b32 s9, s9, 1")
    a("s_add_u32 s9, s9, s7")
    a("s_mul_i32 s10, s9, 14336")
    a("s_mul_i32 s11, s7, 14336")
    a(f"s_add_u32 s11, s11, {A_UT}")
    a("v_lshlrev_b32 v4, 4, v2")
    a("v_mov_b32 v8, 0\nv_mov_b32 v9, 0\nv_mov_b32 v10, 0\nv_mov_b32 v11, 0")
    a("s_waitcnt lgkmcnt(0)")
    stamp(a, 0)
    srd(a, 44, P_U, 2048 * 896)
    srd(a, 48, P_WS, UB_IMG, WS_UB)
    srd(a, 52, P_WS, 0x10000, WS_KV)
    srd(a, 56, P_WS, FL_BYTES, WS_FL)
    srd(a, 60, P_DBG, 256)
    Lz = a.newlabel("Lnz")
    a("s_cmp_lg_u32 s6, 1")
    a(f"s_cbranch_scc1 {Lz}")
    a("s_cmp_lg_u32 s7, 0")
    a(f"s_cbranch_scc1 {Lz}")
    a("s_lshl_b32 s12, s3, 13")
    for i in range(8):
        a(f"buffer_store_dwordx4 v[8:11], v4, s[52:55], s12 offen offset:{(i%4)*1024} sc1")
        if i == 3: a("s_add_u32 s12, s12, 4096")
    a(f"s_lshl_b32 s12, s3, {7 + FSH}")
    a(f"v_lshlrev_b32 v12, {FSH}, v2")
    a("buffer_store_dword v8, v12, s[56:59], s12 offen sc1")
    a(f"s_add_u32 s12, s12, {64 << FSH}")
    a("buffer_store_dword v8, v12, s[56:59], s12 offen sc1")
    a("s_waitcnt vmcnt(0)")
    a("v_mov_b32 v12, 1")
    a("s_lshl_b32 s12, s3, 2")
    a("s_mov_b64 exec, 1")
    a("buffer_store_dword v12, v8, s[60:63], s12 offen sc1")
    a("s_mov_b64 exec, -1")
    a.label(Lz)
    for i in range(14):
        a(f"s_add_u32 m0, s11, {i*1024}")
        a("s_nop 0")
        a("buffer_load_dwordx4 v4, s[44:47], s10 offen lds")
        a("s_add_u32 s10, s10, 1024")
    a("v_bfe_u32 v5, v2, 2, 2")
    a("v_and_b32 v6, 1, v2")
    a("v_lshl_add_u32 v5, v6, 3, v5")
    a("v_mul_u32_u24 v5, 896, v5")
    a("v_lshrrev_b32 v6, 4, v2")
    a("v_lshl_add_u32 v5, v6, 4, v5")
    a("v_bfe_u32 v6, v2, 1, 1")
    a("v_lshl_add_u32 v5, v6, 3, v5")
    a("v_add_u32 v5, s11, v5")
    a("v_lshrrev_b32 v7, 3, v2")
    a("v_lshlrev_b32 v7, 14, v7")
    a("v_and_b32 v6, 7, v2")
    a("v_lshl_add_u32 v7, v6, 4, v7")
    a("s_lshl_b32 s10, s9, 7")
    a("s_waitcnt vmcnt(0)")
    stamp(a, 2)
    UR = 32
    for cg in range(14):
        for jj in range(2):
            d = UR + 4 * cg + 2 * jj
            a(f"ds_read_b64_tr_b16 v[{d}:{d+1}], v5 offset:{cg*64 + jj*3584}")
        if cg == 6: a("s_waitcnt lgkmcnt(4)")
    for cg in range(14):
        if cg >= 7: a(f"s_waitcnt lgkmcnt({2*(13-cg)})")
        elif cg == 5: a("s_waitcnt lgkmcnt(14)")
        d = UR + 4 * cg
        a(f"buffer_store_dwordx4 v[{d}:{d+3}], v7, s[48:51], s10 offen{ST}")
        a(f"s_add_u32 s10, s10, {8*16384}")
    stamp(a, 3)
    wait_init(a, 145, 60, False)
    a(f"s_lshl_b32 s14, s9, {FSH}")
    set_flag(a, 14, 1)
    a.label("L_a_done")
    stamp(a, 5)
    a("s_add_u32 s4, s6, 8")
    a("s_mov_b32 s66, 0")
    a("s_cmp_lt_u32 s3, 7")
    a("s_cbranch_scc1 L_conv")
    stamp_flush(a, 0)
    a("s_endpgm")

def build():
    from gen13_p2 import p2_w4, p2_conv
    a = Asm()
    hdr = open("cdna_kernels/" + NAME + ".s.ref").read().split("; Override launch")[0]
    a.raw(hdr.rstrip("\n"))
    a.raw(f"; @launch grid=(256,1,1) block=(512,1,1) lds=163840")
    a.raw('.amdgcn_target "amdgcn-amd-amdhsa--gfx950"')
    a.raw(".text")
    a.raw(f".globl {KN}\n.p2align 8\n.type {KN},@function")
    a.label(KN)
    a("s_cmp_ge_u32 s2, 256")
    a("s_cbranch_scc1 L_end")
    stamp_init(a)
    a("s_load_dwordx16 s[16:31], s[0:1], 0")
    a("s_load_dwordx8 s[32:39], s[0:1], 64")
    a("s_load_dwordx2 s[40:41], s[0:1], 96")
    a("v_lshrrev_b32 v1, 6, v0")
    a("v_and_b32 v2, 63, v0")
    a("s_and_b32 s3, s2, 7")
    a("s_lshr_b32 s4, s2, 3")
    a("v_readfirstlane_b32 s5, v1")
    a("s_and_b32 s6, s4, 3")
    a("s_cmp_lg_u32 s6, 0")
    a("s_cbranch_scc1 L_nopf")
    a("s_cmp_ge_u32 s5, 4")
    a("s_cbranch_scc1 L_nopf")
    a("s_getpc_b64 s[60:61]")
    a.label("L_pc")
    a(f"s_sub_u32 s60, s60, L_pc-{KN}")
    a("s_subb_u32 s61, s61, 0")
    a("v_lshlrev_b32 v250, 7, v0")
    a("global_load_dword v251, v250, s[60:61]")
    a.label("L_nopf")
    if "pretouch" in OPT:
        a("s_cmp_lg_u32 s5, 7")
        a("s_cbranch_scc1 L_npt")
        a("v_lshlrev_b32 v252, 17, v2")
        a("v_add_u32 v252, 0x1f000, v252")
        a("v_lshlrev_b32 v253, 16, v2")
        a("s_waitcnt lgkmcnt(0)")
        srd(a, 44, P_WS, 0x880000)
        srd(a, 48, P_OUT, 2048 * 1792)
        srd(a, 52, P_WO, 448 * 896)
        a("buffer_load_dword v254, v252, s[44:47], 0 offen sc0 sc1")
        a("buffer_load_dword v254, v253, s[48:51], 0 offen sc0 sc1")
        a("buffer_load_dword v254, v253, s[52:55], 0 offen sc0 sc1")
        a("s_mov_b32 s6, 0x801000")
        a("s_mov_b64 exec, 1")
        a("buffer_load_dword v254, v253, s[44:47], s6 offen sc0 sc1")
        a("s_mov_b64 exec, -1")
        a.label("L_npt")
    a("s_cmp_ge_u32 s4, 24")
    a("s_cbranch_scc1 L_a")
    phase1_gemm(a)
    a.label("L_a")
    phase1_a(a)
    a.label("L_w4")
    p2_w4(a)
    a.label("L_conv")
    p2_conv(a)
    a.label("L_end")
    a("s_endpgm")
    a.raw("  .fill 2048, 4, 0xbf800000")
    a.raw('.section .rodata,"a"')
    a.raw(f""".p2align 6
.amdhsa_kernel {KN}
  .amdhsa_next_free_vgpr 256
  .amdhsa_next_free_sgpr 100
  .amdhsa_accum_offset 256
  .amdhsa_group_segment_fixed_size 0
  .amdhsa_kernarg_size 104
  .amdhsa_user_sgpr_count 2
  .amdhsa_user_sgpr_kernarg_segment_ptr 1
  .amdhsa_system_sgpr_workgroup_id_x 1
.end_amdhsa_kernel""")
    return a.text()

if __name__ == "__main__":
    if "stamps" in OPT: asmlib.STAMPS = True
    open(sys.argv[1], "w").write(build())
```

```python
import sys, math, struct
from asmlib import *
import asmlib

NAME = "concat_heads__ssm_conv_s4d__linear_attn_block__prompt"
KN = NAME + "_kernel"
OPT = set(sys.argv[2:])
def optint(prefix, default):
    v = [o for o in OPT if o.startswith(prefix) and o[len(prefix):].isdigit()]
    return int(v[0][len(prefix):]) if v else default

WS_KV = 0x0
WS_PQ = 0x10000
WS_KT = 0x210000
KT_ROW = 4224
WS_UB = 0x600000
UB_IMG = 256 * 448 * 16
WS_FL = 0x800000
FSH = optint("fsh", 2)
FL_U, FL_KV, FL_Q, FL_K = 0, 128 << FSH, 256 << FSH, 512 << FSH
FL_BYTES = 1024 << FSH
LOG2E = 1.4426950408889634
INV2PI = 0.15915494309189535
C_HI = struct.unpack("<f", struct.pack("<f", INV2PI))[0]
C_LO = INV2PI - C_HI
ST = " sc1"
P_U, P_LA, P_AI, P_CR, P_CI, P_LDT, P_D, P_X, P_W, P_WO, P_OUT, P_DBG, P_WS = 16, 18, 20, 22, 24, 26, 28, 30, 32, 34, 36, 38, 40

def srd(a, d, p, nbytes, off=0):
    if off:
        a(f"s_add_u32 s{d}, s{p}, 0x{off:x}")
        a(f"s_addc_u32 s{d+1}, s{p+1}, 0")
    else:
        a(f"s_mov_b32 s{d}, s{p}")
        a(f"s_mov_b32 s{d+1}, s{p+1}")
    a(f"s_mov_b32 s{d+2}, 0x{nbytes:x}")
    a(f"s_mov_b32 s{d+3}, 0x20000")

def prefetch_code(a, n, vtmp, stmp):
    lab = a.newlabel("Lpc")
    a(f"s_getpc_b64 s[{stmp}:{stmp+1}]")
    a.label(lab)
    a(f"s_sub_u32 s{stmp}, s{stmp}, {lab}-{KN}")
    a(f"s_subb_u32 s{stmp+1}, s{stmp+1}, 0")
    a(f"v_lshlrev_b32 v{vtmp}, 7, v2")
    for i in range(n):
        a(f"global_load_dword v{vtmp+1}, v{vtmp}, s[{stmp}:{stmp+1}]")
        if i < n - 1:
            a(f"v_add_u32 v{vtmp}, 8192, v{vtmp}")

def phi_pack(a, acc, dst, tmp, s_log2e, s_eps):
    for p in range(0, 8, 2):
        t = tmp
        for q in range(2):
            r = 2 * (p + q)
            a(f"v_cvt_pk_bf16_f32 v{t+4*q}, v{acc+r}, v{acc+r+1}")
        for q in range(2):
            a(f"v_and_b32 v{t+4*q+1}, 0xffff0000, v{t+4*q}")
            a(f"v_lshlrev_b32 v{t+4*q}, 16, v{t+4*q}")
        for q in range(2):
            a(f"v_mul_f32 v{t+4*q+2}, s{s_log2e}, v{t+4*q}")
            a(f"v_mul_f32 v{t+4*q+3}, s{s_log2e}, v{t+4*q+1}")
        for q in range(2):
            a(f"v_exp_f32_e64 v{t+4*q+2}, v{t+4*q+2} clamp")
            a(f"v_exp_f32_e64 v{t+4*q+3}, v{t+4*q+3} clamp")
        for q in range(2):
            a(f"v_max_f32 v{t+4*q}, s{s_eps}, v{t+4*q}")
            a(f"v_max_f32 v{t+4*q+1}, s{s_eps}, v{t+4*q+1}")
        for q in range(2):
            a(f"v_add_f32 v{t+4*q}, v{t+4*q}, v{t+4*q+2}")
            a(f"v_add_f32 v{t+4*q+1}, v{t+4*q+1}, v{t+4*q+3}")
        for q in range(2):
            a(f"v_cvt_pk_bf16_f32 v{dst+p+q}, v{t+4*q}, v{t+4*q+1}")

def cmul_ops(d, x, y):
    return [f"v_pk_mul_f32 v[{d}:{d+1}], v[{x}:{x+1}], v[{y}:{y+1}] op_sel:[0,0] op_sel_hi:[1,0]",
            f"v_pk_fma_f32 v[{d}:{d+1}], v[{x}:{x+1}], v[{y}:{y+1}], v[{d}:{d+1}] op_sel:[1,1,0] op_sel_hi:[0,1,1] neg_lo:[1,0,0]"]
def hmul_ops(d, x, y):
    return [f"v_pk_mul_f16 v{d}, v{x}, v{y} op_sel:[0,0] op_sel_hi:[1,0]",
            f"v_pk_fma_f16 v{d}, v{x}, v{y}, v{d} op_sel:[1,1,0] op_sel_hi:[0,1,1] neg_lo:[1,0,0]"]
def interleave(a, streams):
    idx = [0] * len(streams)
    live = True
    while live:
        live = False
        for i, s in enumerate(streams):
            if idx[i] < len(s):
                a(s[idx[i]]); idx[i] += 1; live = True


import re as _re
def _regs(tok):
    out = []
    for m in _re.finditer(r"v\[(\d+):(\d+)\]|v(\d+)", tok):
        if m.group(1): out += list(range(int(m.group(1)), int(m.group(2)) + 1))
        else: out.append(int(m.group(3)))
    return out
def _rw(ins):
    op, rest = ins.split(None, 1)
    ops = rest.split(" op_sel")[0].split(" offset")[0].split(",")
    if op.startswith("ds_write"):
        return [], _regs(rest.split(" offset")[0]), "ds"
    w = _regs(ops[0]); r = [x for o in ops[1:] for x in _regs(o)]
    if op in ("v_fmac_f32",): r += w
    kind = "ds" if op.startswith("ds_") else ("tr" if op.split("_")[1] in ("exp", "sin", "cos", "rcp") else "v")
    return w, r, kind
def schedule(a, instrs, lat=3, dslat=4):
    n = len(instrs); info = [_rw(i) for i in instrs]
    preds = [dict() for _ in range(n)]
    lastw = {}; readers = {}; lastds = None
    for i, (w, r, k) in enumerate(info):
        for x in r:
            if x in lastw:
                j = lastw[x]
                d = dslat if k == "ds" else (lat + 1 if info[j][2] == "tr" else lat)
                preds[i][j] = max(preds[i].get(j, 0), d)
        for x in w:
            if x in lastw: preds[i][lastw[x]] = max(preds[i].get(lastw[x], 0), 1)
            for j in readers.get(x, []):
                if j != i: preds[i][j] = max(preds[i].get(j, 0), 1)
        if k == "ds":
            if lastds is not None: preds[i][lastds] = max(preds[i].get(lastds, 0), 1)
            lastds = i
        for x in r: readers.setdefault(x, []).append(i)
        for x in w:
            lastw[x] = i; readers[x] = []
    succ = [[] for _ in range(n)]
    for i in range(n):
        for j, d in preds[i].items(): succ[j].append((i, d))
    prio = [0] * n
    for i in range(n - 1, -1, -1):
        prio[i] = max([d + prio[k] for k, d in succ[i]], default=0)
    done = {}; t = 0; left = set(range(n))
    while left:
        ready = [i for i in left if all(j in done for j in preds[i])]
        ok = [i for i in ready if all(done[j] + d <= t for j, d in preds[i].items())]
        if ok:
            i = max(ok, key=lambda i: (prio[i], -i))
        else:
            i = min(ready, key=lambda i: (max(done[j] + d for j, d in preds[i].items()), -prio[i]))
            if any(info[j][2] == "tr" and done[j] == t - 1 and set(info[j][0]) & set(info[i][1]) for j in preds[i]):
                a("s_nop 0"); t += 1
        a(instrs[i]); done[i] = t; t += 1; left.discard(i)

class Collect:
    def __init__(self): self.l = []
    def __call__(self, s):
        if not s.startswith("s_nop"): self.l.append(s)

def wait_init(a, v, sdbg, pre):
    L, Lk = a.newlabel("Lwi"), a.newlabel("Lwik")
    a("s_movk_i32 s64, 3000")
    if not pre:
        a(f"buffer_load_dword v{v}, v{v+1}, s[{sdbg}:{sdbg+3}], 0 offen sc1")
    a.label(L)
    a("s_waitcnt vmcnt(0)")
    a(f"v_cmp_ne_u32 vcc, 1, v{v}")
    a("s_sub_u32 s64, s64, 1")
    a(f"s_cbranch_scc1 {Lk}")
    a(f"s_cbranch_vccz {Lk}")
    a("s_sleep 2")
    a(f"buffer_load_dword v{v}, v{v+1}, s[{sdbg}:{sdbg+3}], 0 offen sc1")
    a(f"s_branch {L}")
    a.label(Lk)

RS = 4 * 256 + 32
SCRG = 16 * RS
TSTR = 4736
SLOT = 32768
SB0 = 21760
SLOT_OFF = [SB0 + i * SLOT for i in range(4)]
TAB_L = SCRG
A_TAB = SCRG
A_UT = 36864

ACC = 112
TA = [3, 4, 5, 6, 7, 14, 15, 18]
def kbase(mt, q, r):
    if mt == 0:
        return [r, 4 + r, 256 + 2 * r, 512 + 4 * (r & 1) + 256 * (r >> 1)][q]
    if q == 0: return 1024 + 256 * r
    if q == 1 and r == 0: return 2048
    return 2049

def kgen_load4(a):
    a(f"global_load_dwordx2 v[148:149], v3, s[{P_CR}:{P_CR+1}]")
    a(f"global_load_dwordx2 v[150:151], v3, s[{P_CI}:{P_CI+1}]")
    a(f"global_load_short_d16_hi v16, v4, s[{P_LDT}:{P_LDT+1}]")
    a(f"global_load_dwordx2 v[152:153], v3, s[{P_LA}:{P_LA+1}]")
    a(f"global_load_dwordx2 v[154:155], v3, s[{P_AI}:{P_AI+1}]")
    a(f"global_load_short_d16_hi v17, v4, s[{P_D}:{P_D+1}]")

def kgen_load(a):
    a(f"global_load_dword v10, v3, s[{P_CR}:{P_CR+1}]")
    a(f"global_load_dword v11, v3, s[{P_CI}:{P_CI+1}]")
    a(f"global_load_short_d16_hi v16, v4, s[{P_LDT}:{P_LDT+1}]")
    a(f"global_load_dword v8, v3, s[{P_LA}:{P_LA+1}]")
    a(f"global_load_dword v9, v3, s[{P_AI}:{P_AI+1}]")
    a(f"global_load_short_d16_hi v17, v4, s[{P_D}:{P_D+1}]")

def kgen_addr(a):
    a("v_lshlrev_b32 v3, 2, v2")
    a("s_lshl_b32 s14, s7, 9")
    a("s_bfe_u32 s15, s5, 0x10001")
    a("s_lshl_b32 s15, s15, 8")
    a("s_add_u32 s14, s14, s15")
    a("v_add_u32 v3, s14, v3")
    a("s_lshl_b32 s14, s7, 1")
    a("v_mov_b32 v4, s14")

def kgen_setup(a, younger, full=False):
    a(f"s_mov_b32 s66, {fhex(LOG2E)}")
    a(f"s_mov_b32 s67, {fhex(-LOG2E)}")
    a(f"s_mov_b32 s68, {fhex(C_HI)}")
    a(f"s_mov_b32 s69, {fhex(C_LO)}")
    a(f"s_mov_b32 s70, {fhex(8.0)}")
    a(f"s_mov_b32 s71, {fhex(256.0)}")
    a("v_and_b32 v24, 15, v2")
    a(f"v_mul_u32_u24 v20, {RS}, v24")
    a("v_lshrrev_b32 v21, 4, v2")
    a("v_lshl_add_u32 v20, v21, 4, v20")
    a("v_add_u32 v20, s72, v20")
    a(f"v_mul_u32_u24 v21, {RS}, v21")
    a("v_lshl_add_u32 v21, v24, 4, v21")
    a("v_mov_b32 v22, 0x00003c00")
    srd(a, 52, P_WS, 448 * KT_ROW, WS_KT)
    a("v_lshl_add_u32 v24, v24, 4, s13")
    for q in range(4):
        lo = (0xffff << (16 * q)) & 0xffffffff if q < 2 else 0
        hi_ = (0xffff << (16 * (q - 2))) & 0xffffffff if q >= 2 else 0
        a(f"s_mov_b32 exec_lo, 0x{lo:x}")
        a(f"s_mov_b32 exec_hi, 0x{hi_:x}")
        for mt in range(2):
            for r in range(4):
                a(f"v_add_u32 v{TA[4*mt+r]}, {2*kbase(mt,q,r)}, v24")
    a("s_mov_b64 exec, -1")
    a("s_mov_b32 m0, s72")
    a(f"s_waitcnt vmcnt({3 + younger})")
    if full:
        a("v_and_b32 v24, 0x7fff7fff, v148")
        a("v_and_b32 v25, 0x7fff7fff, v149")
        a("v_and_b32 v26, 0x7fff7fff, v150")
        a("v_and_b32 v27, 0x7fff7fff, v151")
        a("v_pk_max_u16 v24, v24, v26")
        a("v_pk_max_u16 v25, v25, v27")
    else:
        a("v_and_b32 v24, 0x7fff7fff, v10")
        a("v_and_b32 v25, 0x7fff7fff, v11")
    a("v_and_b32 v16, 0xffff0000, v16")
    a("v_pk_max_u16 v24, v24, v25")
    a("v_mul_f32 v16, s66, v16")
    a("v_exp_f32 v16, v16")
    a("v_lshrrev_b32 v25, 16, v24")
    a("v_and_b32 v24, 0xffff, v24")
    a("v_max_u32 v24, v24, v25")
    a("v_cvt_pk_bf16_f32 v16, v16, v16")
    a("v_and_b32 v16, 0xffff0000, v16")
    for ctl in ("row_shr:1 row_mask:0xf bank_mask:0xf", "row_shr:2 row_mask:0xf bank_mask:0xf",
                "row_shr:4 row_mask:0xf bank_mask:0xf", "row_shr:8 row_mask:0xf bank_mask:0xf",
                "row_bcast:15 row_mask:0xa bank_mask:0xf", "row_bcast:31 row_mask:0xc bank_mask:0xf"):
        a(f"v_max_u32_dpp v24, v24, v24 {ctl}")
        a("s_nop 1")
    a("v_readlane_b32 s74, v24, 63")
    a("v_readfirstlane_b32 s75, v16")
    a("s_nop 3")
    a("s_lshr_b32 s74, s74, 7")
    a("s_max_u32 s74, s74, 14")
    a("s_min_u32 s74, s74, 254")
    a("s_sub_u32 s76, 267, s74")
    a("s_lshl_b32 s76, s76, 23")
    a("s_sub_u32 s77, s74, 13")
    a("s_lshl_b32 s77, s77, 23")
    a(f"s_waitcnt vmcnt({younger})")
    if full: return
    Ls = a.newlabel("Lsh")
    a("s_bitcmp0_b32 s5, 0")
    a(f"s_cbranch_scc1 {Ls}")
    for r in range(8, 12):
        a(f"v_lshrrev_b32 v{r}, 16, v{r}")
    a.label(Ls)

def kgen_pass(a, hook, accum=False):
    real = a
    if "nosched" not in OPT: a = Collect()
    FX = 80
    Z1, Z2, Z4, Z256 = 32, 34, 36, 38
    Q1, Q2, Q3, Q4, QT = 40, 42, 44, 46, 48
    P1, P2 = 50, 52
    XA, XB_, RA, RB, SA, SB = 54, 56, 58, 60, 62, 12
    QH = [22, 64, 65, 66, 67, 68, 69, 70]
    PH = [None, 71, 72, 73]
    H1, H2, H3 = [74, 75, 156, 157], [76, 77, 158, 159], [78, 79]
    def wr(row, v):
        return f"ds_write_addtid_b32 v{v} offset:{(row % 16) * RS}"
    a("v_lshlrev_b32 v24, 16, v8")
    a("v_lshlrev_b32 v25, 16, v9")
    a("v_mul_f32 v24, s66, v24")
    a("v_exp_f32 v24, v24")
    a("v_mul_f32 v25, s75, v25")
    a("v_mul_f32 v26, s68, v25")
    a("v_cvt_pk_bf16_f32 v24, v24, v24")
    a("v_fma_f32 v27, v25, s68, -v26")
    a("v_and_b32 v24, 0xffff0000, v24")
    a("v_fmac_f32 v27, s69, v25")
    a("v_mul_f32 v24, s75, v24")
    a("v_mul_f32 v24, s67, v24")
    a(f"v_lshlrev_b32 v{XA}, 16, v10")
    a(f"v_lshlrev_b32 v{XA+1}, 16, v11")
    a(f"v_mul_f32 v{XA}, s76, v{XA}")
    a(f"v_mul_f32 v{XA+1}, s76, v{XA+1}")
    st = []
    for (dst, sm, t, neg) in ((Z1, None, 28, False), (Q1, 70, 74, True), (Z256, 71, 77, False)):
        s_ = []
        if sm is None:
            s_ += [f"v_exp_f32 v{t}, v24", f"v_fract_f32 v{t+1}, v26", f"v_add_f32 v{t+1}, v{t+1}, v27"]
        else:
            s_ += [f"v_mul_f32 v{t}, s{sm}, v24", f"v_exp_f32 v{t}, v{t}", f"v_mul_f32 v{t+1}, s{sm}, v26",
                   f"v_fract_f32 v{t+1}, v{t+1}", f"v_fmac_f32 v{t+1}, s{sm}, v27"]
        s_ += [f"v_cos_f32 v{t+2}, v{t+1}", f"v_sin_f32 v{t+1}, v{t+1}", "s_nop 0", f"v_mul_f32 v{dst}, v{t}, v{t+2}"]
        s_ += [f"v_mul_f32_e64 v{dst+1}, v{t}, {'-' if neg else ''}v{t+1}"]
        st.append(s_)
    interleave(a, st)
    hook(0)
    for s_ in cmul_ops(RA, XA, Z256): a(s_)
    def cvh(stream, hs, k, src, row):
        h = hs[k % len(hs)]
        stream.append(f"v_cvt_pk_f16_f32 v{h}, v{src}, v{src+1}")
        stream.append(wr(row, h))
    s1 = []
    cur, oth = XA, XB_
    cvh(s1, H1, 0, XA, 0)
    for f in range(1, 8):
        s1 += cmul_ops(oth, cur, Z1)
        cvh(s1, H1, f, oth, f)
        cur, oth = oth, cur
    s2 = cmul_ops(Z2, Z1, Z1) + cmul_ops(Z4, Z2, Z2)
    k = 0
    cvh(s2, H2, k, RA, 8); k += 1
    s2 += cmul_ops(RB, RA, Z256)
    s2 += cmul_ops(SA, RA, Z2); cvh(s2, H2, k, SA, 9); k += 1
    s2 += cmul_ops(SB, RA, Z4); cvh(s2, H2, k, SB, 10); k += 1
    s2 += cmul_ops(SA, SB, Z2); cvh(s2, H2, k, SA, 11); k += 1
    cvh(s2, H2, k, RB, 12); k += 1
    s2 += cmul_ops(RA, RB, Z256)
    s2 += cmul_ops(SA, RB, Z4); cvh(s2, H2, k, SA, 13); k += 1
    cvh(s2, H2, k, RA, 14); k += 1
    s2 += cmul_ops(RB, RA, Z256)
    s2 += cmul_ops(SA, RA, Z4); cvh(s2, H2, k, SA, 15); k += 1
    s3 = []
    def qcv(b, src):
        s3.append(f"v_cvt_pk_f16_f32 v{QH[b]}, v{src}, v{src+1}")
    qcv(1, Q1)
    s3 += cmul_ops(Q2, Q1, Q1); qcv(2, Q2)
    s3 += cmul_ops(Q4, Q2, Q2)
    s3 += cmul_ops(Q3, Q2, Q1); qcv(4, Q4); qcv(3, Q3)
    s3 += cmul_ops(P1, Q4, Q4)
    s3 += cmul_ops(QT, Q4, Q1); qcv(5, QT)
    s3 += cmul_ops(P2, P1, P1)
    s3 += cmul_ops(QT, Q4, Q2); qcv(6, QT)
    s3 += cmul_ops(QT, Q4, Q3); qcv(7, QT)
    s3 += cmul_ops(QT, P2, P1)
    s3.append(f"v_cvt_pk_f16_f32 v{PH[1]}, v{P1}, v{P1+1}")
    s3.append(f"v_cvt_pk_f16_f32 v{PH[2]}, v{P2}, v{P2+1}")
    s3.append(f"v_cvt_pk_f16_f32 v{PH[3]}, v{QT}, v{QT+1}")
    interleave(a, [s1[:16], s2[:16], s3[:16]])
    hook(1)
    interleave(a, [s1[16:], s2[16:], s3[16:]])
    def rdf(f0):
        for kk in range(4):
            f = f0 + 4 * kk
            a(f"ds_read_b128 v[{f}:{f+3}], v20 offset:{64*kk}")
    rdf(FX)
    hook(2)
    s4 = []
    c_, o_ = RB, RA
    for row in range(16, 21):
        cvh(s4, H2, row, c_, row)
        if row < 20:
            s4 += cmul_ops(o_, c_, Z256)
            c_, o_ = o_, c_
    s5 = []
    Y1 = [None, 32, 33, 34, 35, 36, 37, 40]
    for b in range(1, 8):
        s5 += hmul_ops(Y1[b], PH[1], QH[b])
    interleave(a, [s4, s5])
    rdf(FX + 16)
    hook(3)
    w0 = [wr(b, QH[b]) for b in range(8)] + [wr(8, PH[1])] + [wr(8 + b, Y1[b]) for b in range(1, 8)]
    Y2 = [None, 41, 42, 43, 44, 45, 46, 47]
    s6 = []
    for b in range(1, 8):
        s6 += hmul_ops(Y2[b], PH[2], QH[b])
    interleave(a, [w0, s6])
    rdf(48)
    w1 = [wr(0, PH[2])] + [wr(b, Y2[b]) for b in range(1, 8)] + [wr(8, PH[3])]
    s7 = []
    for b in range(1, 8):
        h = H1[b % 4]
        s7 += hmul_ops(h, PH[3], QH[b])
        s7.append(wr(8 + b, h))
    interleave(a, [w1, s7])
    rdf(32)
    if a is not real:
        schedule(real, a.l, optint("lat", 3), optint("dsl", 4))
        a = real
    def mm(nt, kk):
        for mt in range(2):
            fa = FX + 16 * mt + 4 * kk
            fb = (48 if nt == 0 else 32) + 4 * kk
            d = ACC + 8 * mt + 4 * nt
            cin = "0" if (kk == 0 and not accum) else f"v[{d}:{d+3}]"
            a(f"v_mfma_f32_16x16x32_f16 v[{d}:{d+3}], v[{fa}:{fa+3}], v[{fb}:{fb+3}], {cin}")
    a("s_waitcnt lgkmcnt(15)")
    for kk in range(4): mm(0, kk)
    for kk in range(4):
        a(f"s_waitcnt lgkmcnt({3-kk})")
        mm(1, kk)
    if accum: return
    kgen_scale(a, True)

def kgen_scale(a, publish):
    a("v_mov_b32 v25, s75")
    a("v_mul_f32 v25, s77, v25")
    a("v_add_f32 v25, v25, v25")
    a("v_add_u32 v30, s72, v21")
    a("v_lshlrev_b32 v26, 4, v2")
    a("v_and_b32 v17, 0xffff0000, v17")
    a(f"s_add_u32 s14, s13, {16*63}")
    a("v_sub_u32 v27, s14, v26")
    a("s_nop 1")
    for q in range(4):
        for r in range(4):
            a(f"v_mul_f32 v{ACC+4*q+r}, v25, v{ACC+4*q+r}")
        if publish:
            a(f"ds_write_b128 v30, v[{ACC+4*q}:{ACC+4*q+3}] offset:{4*q*RS}")

def kgen_solo(a):
    a("s_mov_b64 exec, 1")
    a(f"v_add_f32 v{ACC}, v{ACC}, v17")
    a("s_mov_b64 exec, -1")
    for mt in range(2):
        for r in range(4):
            a(f"v_cvt_pk_bf16_f32 v{40+4*mt+r}, v{ACC+8*mt+r}, v{ACC+8*mt+4+r}")
            a(f"ds_write_b16 v{TA[4*mt+r]}, v{40+4*mt+r}")
            a(f"ds_write_b16_d16_hi v{TA[4*mt+r]}, v{40+4*mt+r} offset:256")
    a("v_cmp_gt_u32 vcc, 32, v2")
    a("v_and_b32 v31, 1, v2")
    a("v_mul_u32_u24 v31, 0x0404, v31")
    a("v_cndmask_b32_e64 v28, 0, 2, vcc")
    a("v_add_u32 v29, v27, v28")
    a("v_sub_u32 v30, v27, v28")
    for m in range(2):
        o = (3 - m) * 1024
        a(f"ds_read_u16 v{80+2*m}, v27 offset:{o}")
        a(f"ds_read_u16 v{81+2*m}, v27 offset:{o+16}")
    a("ds_read_u16 v88, v27 offset:1024")
    a("ds_read_u16 v89, v27 offset:1032")
    a("ds_read_u16 v90, v27 offset:1040")
    for k_, (reg, idx) in enumerate(((29, 7), (27, 6), (30, 5), (27, 4), (29, 3), (27, 2), (30, 1), (27, 0))):
        a(f"ds_read_u16 v{92+k_}, v{reg} offset:{2*idx}")
    a("s_mov_b32 s60, 0x05040504")
    a("s_mov_b32 s61, 0x01000100")
    a("s_mov_b32 s62, 0x01000504")
    a(f"s_mul_i32 s15, s7, {KT_ROW}")
    a("v_mov_b32 v84, 0\nv_mov_b32 v85, 0\nv_mov_b32 v86, 0\nv_mov_b32 v87, 0")
    a("v_lshlrev_b32 v31, 16, v31")
    a("v_sub_u32 v31, 0x05040504, v31")
    E = 48
    a("s_waitcnt lgkmcnt(8)")
    for m in range(2):
        ra, rb = 80 + 2 * m, 81 + 2 * m
        e = E + 4 * m
        a(f"v_perm_b32 v{e}, v{rb}, v{ra}, s60")
        a(f"v_perm_b32 v{e+1}, v{rb}, v{ra}, v31")
        a(f"v_perm_b32 v{e+2}, v{rb}, v{ra}, s61")
        a(f"v_perm_b32 v{e+3}, v{rb}, v{ra}, s61")
        a(f"buffer_store_dwordx4 v[{e}:{e+3}], v26, s[52:55], s15 offen offset:{m*1024}{ST}")
    e = E + 8
    a(f"v_perm_b32 v{e}, v90, v90, s61")
    a(f"v_perm_b32 v{e+1}, v89, v88, s60")
    a(f"v_perm_b32 v{e+2}, v89, v88, s62")
    a(f"v_perm_b32 v{e+3}, v89, v88, s61")
    a(f"buffer_store_dwordx4 v[{e}:{e+3}], v26, s[52:55], s15 offen offset:2048{ST}")
    a("s_waitcnt lgkmcnt(0)")
    e = E + 12
    for k_ in range(4):
        a(f"v_lshl_or_b32 v{e+k_}, v{93+2*k_}, 16, v{92+2*k_}")
    a(f"buffer_store_dwordx4 v[{e}:{e+3}], v26, s[52:55], s15 offen offset:3072{ST}")
    a("s_add_u32 s15, s15, 4096")
    a("s_mov_b64 exec, 1")
    a(f"buffer_store_dwordx4 v[84:87], v26, s[52:55], s15 offen{ST}")
    a("s_mov_b64 exec, -1")

def kgen_table(a):
    a("s_and_b32 s14, s5, 3")
    a(f"s_mul_i32 s15, s14, {4*RS}")
    a("s_andn2_b32 s74, s72, 0x300")
    a("s_add_u32 s15, s15, s74")
    a("v_add_u32 v30, s15, v21")
    for i in range(4):
        a(f"ds_read_b128 v[{32+4*i}:{35+4*i}], v30 offset:{i*256}")
    L = a.newlabel("Lmt")
    a("s_bitcmp0_b32 s5, 1")
    a(f"s_cbranch_scc1 {L}")
    for r in range(4):
        a(f"v_mov_b32 v{TA[r]}, v{TA[4+r]}")
    a.label(L)
    a("s_and_b32 s15, s5, 1")
    a("s_lshl_b32 s15, s15, 8")
    for r in range(4):
        a(f"v_add_u32 v{TA[r]}, s15, v{TA[r]}")
    a("s_cmp_eq_u32 s14, 0")
    a("s_cselect_b32 s74, 1, 0")
    a("s_mov_b32 s75, 0")
    a("s_waitcnt lgkmcnt(0)")
    for r in range(4):
        a(f"v_add_f32 v{32+r}, v{32+r}, v{36+r}")
        a(f"v_add_f32 v{40+r}, v{40+r}, v{44+r}")
    for r in range(4):
        a(f"v_add_f32 v{32+r}, v{32+r}, v{40+r}")
    a("s_mov_b64 exec, s[74:75]")
    a("v_add_f32 v32, v32, v17")
    a("s_mov_b64 exec, -1")
    a("v_cvt_pk_bf16_f32 v36, v32, v33")
    a("v_cvt_pk_bf16_f32 v37, v34, v35")
    a(f"ds_write_b16 v{TA[0]}, v36")
    a(f"ds_write_b16_d16_hi v{TA[1]}, v36")
    a(f"ds_write_b16 v{TA[2]}, v37")
    a(f"ds_write_b16_d16_hi v{TA[3]}, v37")

def kgen_expand(a):
    L2, L3, Le = a.newlabel("Lm2"), a.newlabel("Lm3"), a.newlabel("Lme")
    a("s_and_b32 s14, s5, 3")
    a(f"s_mul_i32 s15, s7, {KT_ROW}")
    a("s_lshl_b32 s74, s14, 10")
    a("s_add_u32 s77, s15, 4096")
    a("s_add_u32 s15, s15, s74")
    a("s_mov_b32 s74, 0x05040504")
    a("s_mov_b32 s75, 0x01000100")
    a("s_mov_b32 s76, 0x01000504")
    a("v_mov_b32 v84, 0\nv_mov_b32 v85, 0\nv_mov_b32 v86, 0\nv_mov_b32 v87, 0")
    a("s_cmp_eq_u32 s14, 3")
    a(f"s_cbranch_scc1 {L3}")
    a("s_cmp_eq_u32 s14, 2")
    a(f"s_cbranch_scc1 {L2}")
    a("s_lshl_b32 s14, s14, 10")
    a("v_subrev_u32 v28, s14, v27")
    a("ds_read_u16 v80, v28 offset:3072")
    a("ds_read_u16 v81, v28 offset:3088")
    a("v_and_b32 v31, 1, v2")
    a("v_mul_u32_u24 v31, 0x0404, v31")
    a("v_lshlrev_b32 v31, 16, v31")
    a("v_sub_u32 v31, 0x05040504, v31")
    a("s_waitcnt lgkmcnt(0)")
    a("v_perm_b32 v48, v81, v80, s74")
    a("v_perm_b32 v49, v81, v80, v31")
    a("v_perm_b32 v50, v81, v80, s75")
    a("v_perm_b32 v51, v81, v80, s75")
    a(f"s_branch {Le}")
    a.label(L2)
    a("ds_read_u16 v88, v27 offset:1024")
    a("ds_read_u16 v89, v27 offset:1032")
    a("ds_read_u16 v90, v27 offset:1040")
    a("s_waitcnt lgkmcnt(0)")
    a("v_perm_b32 v48, v90, v90, s75")
    a("v_perm_b32 v49, v89, v88, s74")
    a("v_perm_b32 v50, v89, v88, s76")
    a("v_perm_b32 v51, v89, v88, s75")
    a(f"s_branch {Le}")
    a.label(L3)
    a("v_cmp_gt_u32 vcc, 32, v2")
    a("s_nop 1")
    a("v_cndmask_b32_e64 v28, 0, 2, vcc")
    a("v_add_u32 v29, v27, v28")
    a("v_sub_u32 v30, v27, v28")
    for k_, (reg, idx) in enumerate(((29, 7), (27, 6), (30, 5), (27, 4), (29, 3), (27, 2), (30, 1), (27, 0))):
        a(f"ds_read_u16 v{92+k_}, v{reg} offset:{2*idx}")
    a("s_waitcnt lgkmcnt(0)")
    for k_ in range(4):
        a(f"v_lshl_or_b32 v{48+k_}, v{93+2*k_}, 16, v{92+2*k_}")
    a.label(Le)
    a(f"buffer_store_dwordx4 v[48:51], v26, s[52:55], s15 offen{ST}")
    a("s_mov_b64 exec, 1")
    a(f"buffer_store_dwordx4 v[84:87], v26, s[52:55], s77 offen{ST}")
    a("s_mov_b64 exec, -1")

def set_flag(a, soff, nl=1):
    a("v_mov_b32 v139, 1")
    a(f"s_mov_b64 exec, {(1 << nl) - 1}")
    a(f"buffer_store_dword v139, v138, s[56:59], s{soff} offen sc1")
    a("s_mov_b64 exec, -1")

def phase1_gemm(a):
    a.comment("---- GEMM WGs: waves 0..3 run one K-gen pass first, waves 4..7 start the loads ----")
    a("s_mul_i32 s7, s3, 24")
    a("s_add_u32 s7, s7, s4")
    a("s_and_b32 s6, s7, 0xe0")
    a("s_add_u32 s7, s7, s6")
    a("s_lshr_b32 s65, s5, 2")
    a("s_cmp_ge_u32 s5, 4")
    a("s_cbranch_scc1 L_g_dec")
    kgen_addr(a)
    a("s_lshl_b32 s72, s5, 8")
    a("s_waitcnt lgkmcnt(0)")
    stamp(a, 0)
    kgen_load(a)
    a.label("L_g_dec")
    a("s_lshr_b32 s6, s3, 1")
    a("s_lshl_b32 s6, s6, 2")
    a("s_and_b32 s60, s3, 1")
    a("s_lshr_b32 s8, s4, 2")
    a("s_add_u32 s8, s8, s6")
    a("s_and_b32 s9, s4, 3")
    a("s_lshl_b32 s10, s60, 2")
    a("s_add_u32 s9, s9, s10")
    a("s_mul_i32 s10, s9, 112")
    a("s_add_u32 s11, s10, 1792")
    a("s_add_u32 s10, s10, 896")
    a("s_sub_u32 s12, s4, 16")
    a("s_lshr_b32 s61, s12, 1")
    a("s_add_u32 s61, s61, s6")
    a("s_and_b32 s12, s12, 1")
    a("s_lshl_b32 s14, s60, 1")
    a("s_add_u32 s12, s12, s14")
    a("s_mul_i32 s14, s12, 224")
    a("s_add_u32 s15, s14, 112")
    a("s_cmp_lt_u32 s4, 16")
    a("s_cselect_b32 s8, s8, s61")
    a("s_cselect_b32 s9, s9, s12")
    a("s_cselect_b32 s10, s10, s14")
    a("s_cselect_b32 s11, s11, s15")
    a("s_and_b32 s60, s5, 3")
    a("v_lshrrev_b32 v164, 3, v2")
    a("v_lshrrev_b32 v165, 4, v2")
    a("v_and_b32 v166, 7, v2")
    a("s_lshl_b32 s12, s8, 7")
    a("s_lshl_b32 s61, s60, 5")
    a("s_add_u32 s12, s12, s61")
    a("v_add_u32 v167, s12, v164")
    a("v_mul_u32_u24 v167, 896, v167")
    a("v_xor_b32 v168, v166, v165")
    a("v_lshl_add_u32 v128, v168, 4, v167")
    a("v_xor_b32 v168, 4, v168")
    a("v_lshl_add_u32 v129, v168, 4, v167")
    a("v_add_u32 v129, 7168, v129")
    a("s_lshl_b32 s61, s60, 4")
    a("v_add_u32 v167, s61, v164")
    a("v_mul_u32_u24 v167, 2688, v167")
    a("v_and_b32 v168, 1, v165")
    a("v_lshlrev_b32 v168, 2, v168")
    a("v_xor_b32 v168, v168, v166")
    a("v_lshl_add_u32 v167, v168, 4, v167")
    a("v_add_u32 v130, s10, v167")
    a("v_add_u32 v131, s11, v167")
    a("s_lshl_b32 s10, s60, 12")
    a("s_lshl_b32 s11, s60, 11")
    a("s_add_u32 s11, s11, 16384")
    a("s_waitcnt lgkmcnt(0)")
    srd(a, 44, P_X, 2048 * 896)
    srd(a, 48, P_W, 448 * 2688)
    a("s_and_b32 s73, s8, 3")
    a("s_lshl_b32 s73, s73, 1")
    a("s_and_b32 s61, s9, 3")
    a("s_and_b32 s62, s9, 1")
    a("s_add_u32 s62, s62, 4")
    a("s_cmp_lt_u32 s4, 16")
    a("s_cselect_b32 s61, s61, s62")
    a("s_add_u32 s73, s73, s61")
    a("s_sub_u32 s61, s73, 7")
    a("s_cmp_ge_u32 s73, 7")
    a("s_cselect_b32 s73, s61, s73")
    if "norot" in OPT: a("s_mov_b32 s73, 0")
    def dma(c, i):
        so = SLOT_OFF[c % 4]; h = i // 4; i = i % 4
        if i == 0:
            if h == 0:
                a("s_lshl_b32 s6, s73, 7")
                a("s_mul_i32 s12, s73, 172032")
                a("s_add_u32 s73, s73, 1")
                a("s_cmp_eq_u32 s73, 7")
                a("s_cselect_b32 s73, 0, s73")
            else:
                a("s_add_u32 s6, s6, 14336")
                a("s_add_u32 s12, s12, 21504")
            a(f"s_add_u32 m0, s10, {so + h*2048}")
            a("s_nop 0")
            a("buffer_load_dwordx4 v128, s[44:47], s6 offen lds")
        elif i == 1:
            a(f"s_add_u32 m0, s11, {so + h*1024}")
            a("s_nop 0")
            a("buffer_load_dwordx4 v130, s[48:51], s12 offen lds")
        elif i == 2:
            a(f"s_add_u32 m0, s10, {so + h*2048 + 1024}")
            a("s_nop 0")
            a("buffer_load_dwordx4 v129, s[44:47], s6 offen lds")
        else:
            a(f"s_add_u32 m0, s11, {so + h*1024 + 8192}")
            a("s_nop 0")
            a("buffer_load_dwordx4 v131, s[48:51], s12 offen lds")
    def only(lo, body):
        L = a.newlabel("Lo")
        a(f"s_cmp_{'ge' if lo else 'lt'}_u32 s5, 4")
        a(f"s_cbranch_scc1 {L}")
        body()
        a.label(L)
    UP = 4
    U1 = optint("up", 2)
    def upfront():
        stamp(a, 0)
        for c in range(U1):
            for i in range(8): dma(c, i)
        if U1 < 4:
            a(f"s_waitcnt vmcnt({8*(U1-1)})")
        stamp(a, 1)
        for c in range(U1, 4):
            for i in range(8): dma(c, i)
    only(False, upfront)
    def adv4():
        a("s_add_u32 s73, s73, 4")
        a("s_sub_u32 s61, s73, 7")
        a("s_cmp_ge_u32 s73, 7")
        a("s_cselect_b32 s73, s61, s73")
    only(True, adv4)
    a("s_mul_i32 s42, s65, 14336")
    a("s_mul_i32 s43, s65, 21504")
    a("s_lshl_b32 s61, s65, 11")
    a("s_add_u32 s10, s10, s61")
    a("s_lshl_b32 s61, s65, 10")
    a("s_add_u32 s11, s11, s61")
    def dma2(c, i):
        so = SLOT_OFF[c % 4]
        if i == 0:
            a("s_lshl_b32 s6, s73, 7")
            a("s_mul_i32 s12, s73, 172032")
            a("s_add_u32 s73, s73, 1")
            a("s_cmp_eq_u32 s73, 7")
            a("s_cselect_b32 s73, 0, s73")
            a("s_add_u32 s6, s6, s42")
            a(f"s_add_u32 m0, s10, {so}")
            a("s_add_u32 s12, s12, s43")
            a("buffer_load_dwordx4 v128, s[44:47], s6 offen lds")
        elif i == 1:
            a(f"s_add_u32 m0, s11, {so}")
            a("s_nop 0")
            a("buffer_load_dwordx4 v130, s[48:51], s12 offen lds")
        elif i == 2:
            a(f"s_add_u32 m0, s10, {so + 1024}")
            a("s_nop 0")
            a("buffer_load_dwordx4 v129, s[44:47], s6 offen lds")
        else:
            a(f"s_add_u32 m0, s11, {so + 8192}")
            a("s_nop 0")
            a("buffer_load_dwordx4 v131, s[48:51], s12 offen lds")
    a("v_and_b32 v164, 31, v2")
    a("v_lshrrev_b32 v165, 5, v2")
    a("v_bfe_u32 v166, v2, 1, 3")
    a("v_xor_b32 v166, v166, v165")
    a("s_lshl_b32 s15, s60, 12")
    a("v_lshlrev_b32 v164, 7, v164")
    a("v_lshl_add_u32 v164, v166, 4, v164")
    a("v_add_u32 v132, s15, v164")
    a("v_xor_b32 v133, 32, v132")
    a("v_xor_b32 v134, 64, v132")
    a("v_xor_b32 v135, 0x60, v132")
    a("s_mul_i32 s15, s65, 56")
    a("v_bfe_u32 v164, v2, 4, 1")
    a("v_lshlrev_b32 v164, 5, v164")
    a("v_and_b32 v166, 3, v2")
    a("v_lshl_add_u32 v164, v166, 3, v164")
    a("v_add_u32 v164, s15, v164")
    a("v_bfe_u32 v166, v2, 3, 1")
    a("v_lshlrev_b32 v166, 6, v166")
    a("v_xor_b32 v164, v164, v166")
    a("v_bfe_u32 v166, v2, 2, 2")
    a("v_lshl_add_u32 v166, v165, 3, v166")
    a("v_lshl_add_u32 v164, v166, 7, v164")
    a("v_add_u32 v136, 16384, v164")
    for r in range(5):
        a(f"v_add_u32 v{140+r}, 0x10000, v{132+r}")
        a(f"v_add_u32 v{148+r}, 0x20000, v{132+r}")
    a("v_lshlrev_b32 v138, 2, v2")
    a("v_and_b32 v146, 28, v138")
    srd(a, 52, P_WS, 448 * KT_ROW, WS_KT)
    a("v_lshlrev_b32 v26, 4, v2")
    srd(a, 56, P_WS, FL_BYTES, WS_FL)
    srd(a, 60, P_DBG, 256)
    def kg():
        a(f"s_movk_i32 s13, {TAB_L + 16}")
        kgen_setup(a, 0)
        stamp(a, 1)
        kgen_pass(a, lambda k: None)
        stamp(a, 2)
    only(True, kg)
    a(f"s_mov_b32 s66, {fhex(LOG2E)}")
    a(f"s_mov_b32 s67, {fhex(1e-6)}")
    a(f"s_waitcnt vmcnt({8*(UP-1)}) lgkmcnt(0)")
    a("s_barrier")
    stamp(a, 3)
    a("s_cmp_ge_u32 s4, 16")
    a("s_cbranch_scc1 L_q")

    FR = 160
    ACC0, ACC1 = 208, 224
    def main_loop(is_q):
        def adr(c, k):
            so = SLOT_OFF[c % 4]
            if so + SLOT > 65536:
                if so >= 65536: return 140 + k, so - 65536
            return 132 + k, so
        def reads(c, k):
            f = FR + 12 * k
            so = SLOT_OFF[c % 4]
            def pick(reg, off):
                return (reg + 8 * (off >> 16), off & 65535)
            r, o = pick(132 + k, so)
            a(f"ds_read_b128 v[{f}:{f+3}], v{r} offset:{o}")
            for seg in range(2):
                for jj in range(2):
                    d = f + 4 + 4 * seg + 2 * jj
                    r, o = pick(136, so + seg * 8192 + (16 * k + 4 * jj) * 128)
                    a(f"ds_read_b64_tr_b16 v[{d}:{d+1}], v{r} offset:{o}")
        def mfma(c, k):
            f = FR + 12 * k
            for seg, acc in ((0, ACC0), (1, ACC1)):
                wf = f + 4 + 4 * seg
                cin = "0" if (c == 0 and k == 0) else f"v[{acc}:{acc+15}]"
                if is_q:
                    a(f"v_mfma_f32_32x32x16_bf16 v[{acc}:{acc+15}], v[{wf}:{wf+3}], v[{f}:{f+3}], {cin}")
                else:
                    a(f"v_mfma_f32_32x32x16_bf16 v[{acc}:{acc+15}], v[{f}:{f+3}], v[{wf}:{wf+3}], {cin}")
        issued = [UP]
        pend = []
        def plan(b):
            n = issued[0]
            if n <= 6 and b >= n - 2:
                pend.extend((n, i) for i in range(4))
                issued[0] += 1
        def drip(k):
            k = (k + 1) // 2
            for _ in range(min(k, len(pend))):
                dma2(*pend.pop(0))
        reads(0, 0); reads(0, 1)
        plan(0)
        for c in range(7):
            reads(c, 2)
            a("s_waitcnt lgkmcnt(10)")
            mfma(c, 0)
            drip(4 if c == 0 else 2)
            reads(c, 3)
            a("s_waitcnt lgkmcnt(10)")
            mfma(c, 1)
            drip(8)
            if c == 0:
                only(True, lambda: (kgen_table(a), a("s_waitcnt lgkmcnt(0)")))
            if c == 1:
                only(True, lambda: kgen_expand(a))
            if c < 6:
                a(f"s_waitcnt vmcnt({[16, 8, 4, 4, 4, 0][c]})")
                a("s_barrier")
                plan(c + 1)
                if c == 3:
                    only(True, lambda: a("buffer_load_dword v145, v146, s[60:63], 0 offen sc1"))
            a("s_waitcnt lgkmcnt(5)")
            mfma(c, 2)
            drip(2)
            if c < 6:
                reads(c + 1, 0)
                a("s_waitcnt lgkmcnt(5)")
            else:
                a("s_waitcnt lgkmcnt(0)")
            mfma(c, 3)
            drip(2)
            if c < 6:
                reads(c + 1, 1)
            if c == 5:
                L = a.newlabel("Lkf")
                a("s_cmp_lg_u32 s5, 0")
                a(f"s_cbranch_scc1 {L}")
                wait_init(a, 145, 60, True)
                a(f"s_lshl_b32 s14, s7, {FSH}")
                a(f"s_add_u32 s14, s14, {FL_K}")
                set_flag(a, 14, 1)
                a.label(L)
        stamp(a, 4)

    main_loop(False)
    srd(a, 52, P_WS, 0x10000, WS_KV)
    PK, VV, TMP = 32, 40, 48
    XB = SLOT_OFF[0]
    a("v_lshlrev_b32 v10, 4, v2")
    a("s_lshl_b32 s14, s5, 12")
    a(f"s_add_u32 s14, s14, {XB}")
    a("v_add_u32 v11, s14, v10")
    a("s_and_b32 s14, s5, 3")
    a("s_lshl_b32 s14, s14, 10")
    a("s_lshl_b32 s15, s65, 14")
    a("s_add_u32 s14, s14, s15")
    a(f"s_add_u32 s14, s14, {XB}")
    a("v_add_u32 v12, s14, v138")
    a("s_nop 1")
    phi_pack(a, ACC0, PK, TMP, 66, 67)
    for p in range(8):
        a(f"v_cvt_pk_bf16_f32 v{VV+p}, v{ACC1+2*p}, v{ACC1+2*p+1}")
    if "epi" in OPT: stamp(a, 0)
    a("s_mov_b32 exec_lo, 0x10000000")
    a("s_mov_b32 exec_hi, 0x10000000")
    for p in range(8):
        a(f"v_mov_b32 v{VV+p}, 0x3f803f80")
    a("s_mov_b64 exec, -1")
    a("s_nop 1")
    KV = 56
    a(f"v_mfma_f32_32x32x16_bf16 v[{KV}:{KV+15}], v[{PK}:{PK+3}], v[{VV}:{VV+3}], 0")
    a(f"v_mfma_f32_32x32x16_bf16 v[{KV}:{KV+15}], v[{PK+4}:{PK+7}], v[{VV+4}:{VV+7}], v[{KV}:{KV+15}]")
    a("s_lshl_b32 s14, s9, 1")
    a("s_add_u32 s14, s14, s65")
    a("s_lshl_b32 s14, s14, 12")
    a("s_and_b32 s15, s5, 3")
    a("s_lshl_b32 s15, s15, 10")
    a("s_add_u32 s14, s14, s15")
    a("s_nop 6")
    for q in range(4):
        a(f"ds_write_b128 v11, v[{KV+4*q}:{KV+4*q+3}] offset:{q*1024}")
    a("s_waitcnt lgkmcnt(0)")
    a("s_barrier")
    if "epi" in OPT: stamp(a, 1)
    for i in range(4):
        a(f"ds_read2st64_b32 v[{32+4*i}:{33+4*i}], v12 offset0:{i} offset1:{16+i}")
        a(f"ds_read2st64_b32 v[{34+4*i}:{35+4*i}], v12 offset0:{32+i} offset1:{48+i}")
    for i in range(4):
        a(f"s_waitcnt lgkmcnt({6-2*i})")
        b = 32 + 4 * i
        a(f"v_add_f32 v{b}, v{b}, v{b+1}")
        a(f"v_add_f32 v{b+2}, v{b+2}, v{b+3}")
        a(f"v_add_f32 v{b}, v{b}, v{b+2}")
        a(f"buffer_atomic_add_f32 v{b}, v138, s[52:55], s14 offen offset:{i*256}")
    if "epi" in OPT: stamp(a, 2)
    a("s_waitcnt vmcnt(0)")
    if "epi" in OPT: stamp(a, 3)
    a("s_barrier")
    L = a.newlabel("Lvf")
    a("s_cmp_lg_u32 s5, 0")
    a(f"s_cbranch_scc1 {L}")
    a("s_lshl_b32 s14, s3, 4")
    a("s_add_u32 s14, s14, s4")
    a(f"s_lshl_b32 s14, s14, {FSH}")
    a(f"s_add_u32 s14, s14, {FL_KV}")
    set_flag(a, 14)
    a.label(L)
    stamp(a, 5)
    a("s_cmp_lt_u32 s4, 14")
    a("s_cbranch_scc1 L_w4")
    stamp_flush(a, 0)
    a("s_endpgm")

    a.label("L_q")
    main_loop(True)
    srd(a, 52, P_WS, 0x200000, WS_PQ)
    a("s_lshl_b32 s14, s8, 2")
    a("s_and_b32 s15, s5, 3")
    a("s_add_u32 s14, s14, s15")
    a("s_lshl_b32 s14, s14, 4")
    a("s_lshl_b32 s15, s9, 2")
    a("s_add_u32 s14, s14, s15")
    a("s_add_u32 s14, s14, s65")
    a("s_lshl_b32 s14, s14, 11")
    a("s_add_u32 s15, s14, 4096")
    a("v_lshlrev_b32 v10, 4, v2")
    phi_pack(a, ACC0, 32, 48, 66, 67)
    a(f"buffer_store_dwordx4 v[32:35], v10, s[52:55], s14 offen{ST}")
    a(f"buffer_store_dwordx4 v[36:39], v10, s[52:55], s14 offen offset:1024{ST}")
    phi_pack(a, ACC1, 40, 48, 66, 67)
    a(f"buffer_store_dwordx4 v[40:43], v10, s[52:55], s15 offen{ST}")
    a(f"buffer_store_dwordx4 v[44:47], v10, s[52:55], s15 offen offset:1024{ST}")
    a("s_lshl_b32 s14, s8, 2")
    a("s_add_u32 s14, s14, s9")
    a(f"s_lshl_b32 s14, s14, {FSH}")
    a(f"s_add_u32 s66, s14, {FL_Q}")
    stamp(a, 5)
    a("s_sub_u32 s4, s4, 16")
    a("s_cmp_lt_u32 s3, 7")
    a("s_cbranch_scc1 L_conv")
    a("s_waitcnt vmcnt(0)")
    a("s_barrier")
    L = a.newlabel("Lqf")
    a("s_cmp_lg_u32 s5, 0")
    a(f"s_cbranch_scc1 {L}")
    set_flag(a, 66)
    a.label(L)
    stamp_flush(a, 0)
    a("s_endpgm")

def phase1_a(a):
    a.comment("---- A WGs ----")
    a("s_sub_u32 s6, s4, 24")
    a("v_lshlrev_b32 v138, 2, v2")
    a("v_and_b32 v146, 28, v138")
    a("s_cmp_ge_u32 s5, 6")
    a("s_cbranch_scc1 L_ut")
    a("s_cmp_ge_u32 s5, 4")
    a("s_cbranch_scc1 L_touch")
    a("s_lshl_b32 s7, s3, 6")
    a("s_add_u32 s7, s7, 32")
    a("s_cmp_eq_u32 s3, 7")
    a("s_cselect_b32 s7, 384, s7")
    a("s_lshl_b32 s14, s6, 2")
    a("s_add_u32 s7, s7, s14")
    a("s_add_u32 s7, s7, s5")
    a("v_lshlrev_b32 v3, 3, v2")
    a("s_lshl_b32 s14, s7, 9")
    a("v_add_u32 v3, s14, v3")
    a("s_lshl_b32 s14, s7, 1")
    a("v_mov_b32 v4, s14")
    a("s_lshl_b32 s72, s5, 8")
    a(f"s_mul_i32 s13, s5, {TSTR}")
    a(f"s_add_u32 s13, s13, {A_TAB + 16}")
    a("s_waitcnt lgkmcnt(0)")
    stamp(a, 0)
    kgen_load4(a)
    for i in range(16):
        a(f"v_mov_b32 v{ACC+i}, 0")
    kgen_setup(a, 0, True)
    stamp(a, 1)
    a("s_mov_b32 s73, 4")
    a.label("L_apass")
    a("v_mov_b32 v10, v148")
    a("v_mov_b32 v11, v150")
    a("v_mov_b32 v8, v152")
    a("v_mov_b32 v9, v154")
    for r in (148, 150, 152, 154):
        a(f"v_lshrrev_b64 v[{r}:{r+1}], 16, v[{r}:{r+1}]")
    kgen_pass(a, lambda k: None, True)
    a("s_sub_u32 s73, s73, 1")
    a("s_cmp_lg_u32 s73, 0")
    a("s_cbranch_scc1 L_apass")
    stamp(a, 2)
    kgen_scale(a, False)
    kgen_solo(a)
    stamp(a, 3)
    srd(a, 56, P_WS, FL_BYTES, WS_FL)
    srd(a, 60, P_DBG, 256)
    wait_init(a, 145, 60, False)
    a(f"s_lshl_b32 s14, s7, {FSH}")
    a(f"s_add_u32 s14, s14, {FL_K}")
    set_flag(a, 14, 1)
    a("s_branch L_a_done")

    a.label("L_touch")
    a("s_setprio 3")
    a("s_lshl_b32 s8, s6, 1")
    a("s_add_u32 s8, s8, s5")
    a("s_sub_u32 s8, s8, 4")
    a("v_mul_u32_u24 v5, 43, v2")
    a("v_lshrrev_b32 v5, 9, v5")
    a("v_mul_u32_u24 v6, 12, v5")
    a("v_sub_u32 v6, v2, v6")
    a("s_lshl_b32 s9, s8, 2")
    a("v_add_u32 v5, s9, v5")
    a("v_mul_u32_u24 v5, 2688, v5")
    a("v_lshl_add_u32 v5, v6, 7, v5")
    a("v_lshrrev_b32 v6, 2, v6")
    a("v_mul_u32_u24 v6, 384, v6")
    a("v_add_u32 v5, v5, v6")
    T0 = optint("tfrom", 0); WIN = optint("win", 3)
    a("s_and_b32 s9, s3, 1")
    a("s_mul_i32 s9, s9, 384")
    a(f"s_add_u32 s9, s9, {T0*172032}")
    a("s_lshl_b32 s10, s8, 5")
    a("s_lshr_b32 s11, s3, 1")
    a("s_lshl_b32 s11, s11, 9")
    a("s_add_u32 s10, s10, s11")
    a("v_add_u32 v6, s10, v2")
    a("v_mul_u32_u24 v6, 896, v6")
    a(f"s_movk_i32 s10, {T0*128}")
    a("s_waitcnt lgkmcnt(0)")
    stamp(a, 0)
    srd(a, 44, P_X, 2048 * 896)
    srd(a, 48, P_W, 448 * 2688)
    NT = 0 if 'notouch' in OPT else 7 - T0
    for c in range(NT):
        if c >= WIN:
            a(f"s_waitcnt vmcnt({2*(WIN-1)})")
        a("s_mov_b32 exec_hi, 0xffff")
        a("buffer_load_dword v13, v5, s[48:51], s9 offen")
        a("s_mov_b32 exec_hi, 0")
        a("buffer_load_dword v13, v6, s[44:47], s10 offen")
        a("s_add_u32 s9, s9, 172032")
        a("s_add_u32 s10, s10, 128")
    a("s_mov_b64 exec, -1")
    stamp(a, 3)
    srd(a, 48, P_WO, 448 * 896)
    a(f"s_mul_i32 s9, s8, {196*128}")
    a("v_lshlrev_b32 v5, 7, v2")
    a("s_waitcnt vmcnt(2)")
    for i in range(4):
        if i == 3: a("s_mov_b64 exec, 15")
        a("buffer_load_dword v13, v5, s[48:51], s9 offen")
        a("s_add_u32 s9, s9, 8192")
    a("s_mov_b64 exec, -1")
    a("s_setprio 0")
    a("s_branch L_a_done")

    a.label("L_ut")
    a("s_sub_u32 s7, s5, 6")
    a("s_lshl_b32 s9, s3, 3")
    a("s_add_u32 s9, s9, s6")
    a("s_lshl_b32 s9, s9, 1")
    a("s_add_u32 s9, s9, s7")
    a("s_mul_i32 s10, s9, 14336")
    a("s_mul_i32 s11, s7, 14336")
    a(f"s_add_u32 s11, s11, {A_UT}")
    a("v_lshlrev_b32 v4, 4, v2")
    a("v_mov_b32 v8, 0\nv_mov_b32 v9, 0\nv_mov_b32 v10, 0\nv_mov_b32 v11, 0")
    a("s_waitcnt lgkmcnt(0)")
    stamp(a, 0)
    srd(a, 44, P_U, 2048 * 896)
    srd(a, 48, P_WS, UB_IMG, WS_UB)
    srd(a, 52, P_WS, 0x10000, WS_KV)
    srd(a, 56, P_WS, FL_BYTES, WS_FL)
    srd(a, 60, P_DBG, 256)
    Lz = a.newlabel("Lnz")
    a("s_cmp_lg_u32 s6, 1")
    a(f"s_cbranch_scc1 {Lz}")
    a("s_cmp_lg_u32 s7, 0")
    a(f"s_cbranch_scc1 {Lz}")
    a("s_lshl_b32 s12, s3, 13")
    for i in range(8):
        a(f"buffer_store_dwordx4 v[8:11], v4, s[52:55], s12 offen offset:{(i%4)*1024} sc1")
        if i == 3: a("s_add_u32 s12, s12, 4096")
    a(f"s_lshl_b32 s12, s3, {7 + FSH}")
    a(f"v_lshlrev_b32 v12, {FSH}, v2")
    a("buffer_store_dword v8, v12, s[56:59], s12 offen sc1")
    a(f"s_add_u32 s12, s12, {64 << FSH}")
    a("buffer_store_dword v8, v12, s[56:59], s12 offen sc1")
    a("s_waitcnt vmcnt(0)")
    a("v_mov_b32 v12, 1")
    a("s_lshl_b32 s12, s3, 2")
    a("s_mov_b64 exec, 1")
    a("buffer_store_dword v12, v8, s[60:63], s12 offen sc1")
    a("s_mov_b64 exec, -1")
    a.label(Lz)
    for i in range(14):
        a(f"s_add_u32 m0, s11, {i*1024}")
        a("s_nop 0")
        a("buffer_load_dwordx4 v4, s[44:47], s10 offen lds")
        a("s_add_u32 s10, s10, 1024")
    a("v_bfe_u32 v5, v2, 2, 2")
    a("v_and_b32 v6, 1, v2")
    a("v_lshl_add_u32 v5, v6, 3, v5")
    a("v_mul_u32_u24 v5, 896, v5")
    a("v_lshrrev_b32 v6, 4, v2")
    a("v_lshl_add_u32 v5, v6, 4, v5")
    a("v_bfe_u32 v6, v2, 1, 1")
    a("v_lshl_add_u32 v5, v6, 3, v5")
    a("v_add_u32 v5, s11, v5")
    a("v_lshrrev_b32 v7, 3, v2")
    a("v_lshlrev_b32 v7, 14, v7")
    a("v_and_b32 v6, 7, v2")
    a("v_lshl_add_u32 v7, v6, 4, v7")
    a("s_lshl_b32 s10, s9, 7")
    a("s_waitcnt vmcnt(0)")
    stamp(a, 2)
    UR = 32
    for cg in range(14):
        for jj in range(2):
            d = UR + 4 * cg + 2 * jj
            a(f"ds_read_b64_tr_b16 v[{d}:{d+1}], v5 offset:{cg*64 + jj*3584}")
        if cg == 6: a("s_waitcnt lgkmcnt(4)")
    for cg in range(14):
        if cg >= 7: a(f"s_waitcnt lgkmcnt({2*(13-cg)})")
        elif cg == 5: a("s_waitcnt lgkmcnt(14)")
        d = UR + 4 * cg
        a(f"buffer_store_dwordx4 v[{d}:{d+3}], v7, s[48:51], s10 offen{ST}")
        a(f"s_add_u32 s10, s10, {8*16384}")
    stamp(a, 3)
    wait_init(a, 145, 60, False)
    a(f"s_lshl_b32 s14, s9, {FSH}")
    set_flag(a, 14, 1)
    a.label("L_a_done")
    stamp(a, 5)
    a("s_add_u32 s4, s6, 8")
    a("s_mov_b32 s66, 0")
    a("s_cmp_lt_u32 s3, 7")
    a("s_cbranch_scc1 L_conv")
    stamp_flush(a, 0)
    a("s_endpgm")

def build():
    from gen13_p2 import p2_w4, p2_conv
    a = Asm()
    hdr = open("cdna_kernels/" + NAME + ".s.ref").read().split("; Override launch")[0]
    a.raw(hdr.rstrip("\n"))
    a.raw(f"; @launch grid=(256,1,1) block=(512,1,1) lds=163840")
    a.raw('.amdgcn_target "amdgcn-amd-amdhsa--gfx950"')
    a.raw(".text")
    a.raw(f".globl {KN}\n.p2align 8\n.type {KN},@function")
    a.label(KN)
    a("s_cmp_ge_u32 s2, 256")
    a("s_cbranch_scc1 L_end")
    stamp_init(a)
    a("s_load_dwordx16 s[16:31], s[0:1], 0")
    a("s_load_dwordx8 s[32:39], s[0:1], 64")
    a("s_load_dwordx2 s[40:41], s[0:1], 96")
    a("v_lshrrev_b32 v1, 6, v0")
    a("v_and_b32 v2, 63, v0")
    a("s_and_b32 s3, s2, 7")
    a("s_lshr_b32 s4, s2, 3")
    a("v_readfirstlane_b32 s5, v1")
    a("s_and_b32 s6, s4, 3")
    a("s_cmp_lg_u32 s6, 0")
    a("s_cbranch_scc1 L_nopf")
    a("s_cmp_ge_u32 s5, 4")
    a("s_cbranch_scc1 L_nopf")
    a("s_getpc_b64 s[60:61]")
    a.label("L_pc")
    a(f"s_sub_u32 s60, s60, L_pc-{KN}")
    a("s_subb_u32 s61, s61, 0")
    a("v_lshlrev_b32 v250, 7, v0")
    a("global_load_dword v251, v250, s[60:61]")
    a.label("L_nopf")
    if "pretouch" in OPT:
        a("s_cmp_lg_u32 s5, 7")
        a("s_cbranch_scc1 L_npt")
        a("v_lshlrev_b32 v252, 17, v2")
        a("v_add_u32 v252, 0x1f000, v252")
        a("v_lshlrev_b32 v253, 16, v2")
        a("s_waitcnt lgkmcnt(0)")
        srd(a, 44, P_WS, 0x880000)
        srd(a, 48, P_OUT, 2048 * 1792)
        srd(a, 52, P_WO, 448 * 896)
        a("buffer_load_dword v254, v252, s[44:47], 0 offen sc0 sc1")
        a("buffer_load_dword v254, v253, s[48:51], 0 offen sc0 sc1")
        a("buffer_load_dword v254, v253, s[52:55], 0 offen sc0 sc1")
        a("s_mov_b32 s6, 0x801000")
        a("s_mov_b64 exec, 1")
        a("buffer_load_dword v254, v253, s[44:47], s6 offen sc0 sc1")
        a("s_mov_b64 exec, -1")
        a.label("L_npt")
    a("s_cmp_ge_u32 s4, 24")
    a("s_cbranch_scc1 L_a")
    phase1_gemm(a)
    a.label("L_a")
    phase1_a(a)
    a.label("L_w4")
    p2_w4(a)
    a.label("L_conv")
    p2_conv(a)
    a.label("L_end")
    a("s_endpgm")
    a.raw("  .fill 2048, 4, 0xbf800000")
    a.raw('.section .rodata,"a"')
    a.raw(f""".p2align 6
.amdhsa_kernel {KN}
  .amdhsa_next_free_vgpr 256
  .amdhsa_next_free_sgpr 100
  .amdhsa_accum_offset 256
  .amdhsa_group_segment_fixed_size 0
  .amdhsa_kernarg_size 104
  .amdhsa_user_sgpr_count 2
  .amdhsa_user_sgpr_kernarg_segment_ptr 1
  .amdhsa_system_sgpr_workgroup_id_x 1
.end_amdhsa_kernel""")
    return a.text()

if __name__ == "__main__":
    if "stamps" in OPT: asmlib.STAMPS = True
    open(sys.argv[1], "w").write(build())
```

```python
import sys
from asmlib import *
import gen13 as G
from gen13 import srd, P_WS, P_WO, P_OUT, WS_KV, WS_PQ, WS_KT, WS_UB, UB_IMG, KT_ROW, WS_FL, FL_U, FL_KV, FL_Q, FL_K, FSH, FL_BYTES

def poll(a, loads, drain=False, done=None):
    L, Ls = a.newlabel("Lpo"), a.newlabel("Lps")
    n = len(loads)
    Lp_ = a.newlabel("Lpp")
    a("s_cmp_eq_u32 s5, 0")
    a(f"s_cbranch_scc1 {Lp_}")
    if drain: a("s_waitcnt vmcnt(0)")
    a(f"s_branch {Ls}")
    a.label(Lp_)
    a("s_movk_i32 s64, 4000")
    def issue(b):
        for i, (v, so) in enumerate(loads):
            a(f"buffer_load_dword v{b+i}, v{v}, s[68:71], {so} offen sc1")
    def check(b):
        a(f"s_waitcnt vmcnt({n})")
        for i in range(1, n):
            a(f"v_and_b32 v{b}, v{b}, v{b+i}")
        a(f"v_cmp_ne_u32 vcc, 1, v{b}")
        a("s_sub_u32 s64, s64, 1")
        a(f"s_cbranch_scc1 {Ls}")
        a(f"s_cbranch_vccz {Ls}")
    SL = G.optint("sl", 0)
    if SL:
        a.label(L)
        issue(240)
        a("s_waitcnt vmcnt(0)")
        check(240)
        a(f"s_sleep {SL}")
        a(f"s_branch {L}")
    else:
        issue(240)
        a("s_sleep 6")
        a.label(L)
        issue(244)
        check(240)
        issue(240)
        check(244)
        a(f"s_branch {L}")
    a.label(Ls)
    if done: a.label(done)
    a("s_barrier")

def p2_w4(a):
    WO_L, KVF_L, PART_L = 0, 57344, 90112
    PSTR = 272
    PHALF = 128 * PSTR
    stamp_mid(a)
    a("s_mov_b32 s6, s4")
    a("s_cmp_ge_u32 s6, 7")
    a("s_cselect_b32 s7, 1, 0")
    a("s_lshl_b32 s8, s3, 1")
    a("s_add_u32 s8, s8, s7")
    a("s_mul_i32 s7, s7, 7")
    a("s_sub_u32 s9, s6, s7")
    a("s_and_b32 s10, s5, 3")
    a("s_lshr_b32 s11, s5, 2")
    srd(a, 44, P_WS, 0x10000, WS_KV)
    srd(a, 48, P_WS, 0x200000, WS_PQ)
    srd(a, 52, P_WO, 448 * 896)
    srd(a, 56, P_OUT, 2048 * 1792)
    srd(a, 68, P_WS, FL_BYTES, WS_FL)
    a("v_lshrrev_b32 v5, 3, v2")
    a("v_bfe_u32 v6, v2, 4, 1")
    a("v_lshlrev_b32 v6, 2, v6")
    a("v_and_b32 v7, 7, v2")
    a("v_xor_b32 v6, v6, v7")
    a("v_lshlrev_b32 v6, 4, v6")
    a("s_mul_i32 s60, s10, 112")
    a("s_mul_i32 s61, s11, 14")
    a("s_add_u32 s60, s60, s61")
    a("s_mul_i32 s60, s60, 896")
    a("s_lshl_b32 s61, s9, 7")
    a("s_add_u32 s60, s60, s61")
    a("s_mul_i32 s61, s5, 7168")
    for i in range(7):
        a(f"v_add_u32 v7, {8*i}, v5")
        a("v_mul_u32_u24 v15, 37, v7")
        a("v_lshrrev_b32 v15, 9, v15")
        a("v_mad_u32_u24 v7, v15, 14, v7")
        a("v_mul_u32_u24 v7, 896, v7")
        a("v_add_u32 v7, v7, v6")
        a(f"s_add_u32 m0, s61, {WO_L + i*1024}")
        a("s_nop 0")
        a("buffer_load_dwordx4 v7, s[52:55], s60 offen lds")
    a("v_and_b32 v4, 3, v2")
    a(f"v_lshlrev_b32 v8, {FSH}, v4")
    a("v_bfe_u32 v5, v2, 3, 2")
    a("v_lshl_add_u32 v4, v5, 2, v4")
    a("v_bfe_u32 v5, v2, 2, 1")
    a("v_add_u32 v6, 2, v4")
    a("v_lshrrev_b32 v6, 4, v6")
    a("v_or_b32 v5, v5, v6")
    a("v_mad_u32_u24 v4, v5, 14, v4")
    a("v_and_b32 v5, 32, v2")
    a("v_add_lshl_u32 v3, v4, v5, 4")
    a("v_lshlrev_b32 v4, 4, v2")
    a(f"v_lshlrev_b32 v9, {FSH}, v2")
    a("s_lshl_b32 s12, s5, 13")
    a("s_add_u32 s13, s12, 4096")
    a("s_lshl_b32 s14, s8, 2")
    a("s_add_u32 s14, s14, s10")
    a("s_lshl_b32 s14, s14, 4")
    a("s_lshl_b32 s15, s11, 3")
    a("s_add_u32 s14, s14, s15")
    a("s_lshl_b32 s14, s14, 11")
    a(f"s_lshl_b32 s15, s8, {2 + FSH}")
    a(f"s_add_u32 s15, s15, {FL_Q}")
    KVR = 64
    PQR = 96
    a(f"s_mov_b32 s62, {FL_KV}")
    a(f"s_mov_b32 s63, {FL_KV + (64 << FSH)}")
    a("s_lshl_b32 s60, s6, 3")
    a("s_add_u32 s60, s60, s5")
    a("s_mul_i32 s60, s60, 640")
    a("s_lshl_b32 s61, s9, 3")
    a("s_add_u32 s61, s61, s5")
    a("s_mul_i32 s61, s61, 2432")
    a("s_lshl_b32 s65, s8, 17")
    a("s_add_u32 s61, s61, s65")
    a("v_lshlrev_b32 v10, 7, v2")
    a("s_lshl_b32 s65, s5, 12")
    a(f"s_add_u32 s65, s65, {KVF_L}")
    a("v_add_u32 v11, s65, v4")
    a("s_lshl_b32 s65, s11, 14")
    a(f"s_add_u32 s65, s65, {KVF_L}")
    a("v_add_u32 v5, s65, v4")
    a("v_lshrrev_b32 v6, 5, v2")
    a("v_mul_u32_u24 v6, 224, v6")
    a("v_bfe_u32 v7, v2, 2, 2")
    a("v_add_u32 v6, v6, v7")
    a("s_mul_i32 s65, s11, 112")
    a("v_add_u32 v6, s65, v6")
    a("v_lshlrev_b32 v6, 7, v6")
    a("v_bfe_u32 v7, v2, 4, 1")
    a("v_lshlrev_b32 v7, 5, v7")
    a("v_and_b32 v12, 3, v2")
    a("v_lshl_add_u32 v7, v12, 3, v7")
    a("v_bfe_u32 v12, v2, 3, 1")
    a("v_lshl_add_u32 v7, v12, 6, v7")
    a("v_add_u32 v6, v6, v7")
    a("v_xor_b32 v7, 64, v6")
    poll(a, [(8, "s15"), (9, "s62"), (9, "s63")])
    stamp(a, 0)
    a("s_mov_b64 exec, 31")
    a("buffer_load_dword v12, v10, s[44:47], s60 offen")
    a("s_mov_b64 exec, 0x7ffff")
    a("buffer_load_dword v13, v10, s[48:51], s61 offen")
    a("s_mov_b64 exec, -1")
    a(f"s_mov_b32 s62, {fhex(1e-6)}")
    a("s_waitcnt vmcnt(0)")
    stamp(a, 1)
    for hh in range(2):
        for q in range(4):
            d = KVR + 16 * hh + 4 * q
            a(f"buffer_load_dwordx4 v[{d}:{d+3}], v3, s[44:47], s{12+hh} offen offset:{q*1024}")
    def pq(i0, i1):
        for i in range(i0, i1):
            a(f"buffer_load_dwordx4 v[{PQR+4*i}:{PQR+4*i+3}], v4, s[48:51], s14 offen offset:{(i%4)*1024}")
            if i % 4 == 3 and i != 15:
                a("s_add_u32 s14, s14, 4096")
    NP0 = G.optint("np", 2)
    pq(0, NP0)
    a(f"s_waitcnt vmcnt({NP0})")
    for i in range(16):
        a(f"v_cvt_pk_bf16_f32 v{32+i}, v{KVR+2*i}, v{KVR+2*i+1}")
    a("s_mov_b32 exec_lo, 0")
    for hh in range(2):
        a(f"v_mov_b32 v{32+8*hh+6}, 0")
        a(f"v_mov_b32 v{32+8*hh+7}, 0")
    a("s_mov_b64 exec, -1")
    for i in range(4):
        a(f"ds_write_b128 v11, v[{32+4*i}:{35+4*i}] offset:{i*1024}")
    pq(NP0, 6)
    a("s_waitcnt lgkmcnt(0)")
    a("s_barrier")
    pq(6, 8)
    KF = 160
    for i in range(16):
        a(f"ds_read_b128 v[{KF+4*i}:{KF+4*i+3}], v5 offset:{i*1024}")
        if i == 11: a("s_waitcnt lgkmcnt(8)")
    N0, N1 = 32, 48
    D0, D1 = 224, 240
    OFB = PQR - 8
    WF = 8
    def num(hI):
        D = N0 if hI % 2 == 0 else N1
        k = KF + 8 * hI; p = PQR + 8 * hI
        a(f"v_mfma_f32_32x32x16_bf16 v[{D}:{D+15}], v[{k}:{k+3}], v[{p}:{p+3}], 0")
        a(f"v_mfma_f32_32x32x16_bf16 v[{D}:{D+15}], v[{k+4}:{k+7}], v[{p+4}:{p+7}], v[{D}:{D+15}]")
    def fin_ops(hI):
        D = N0 if hI % 2 == 0 else N1
        o = [f"v_add_f32 v64, s62, v{D+14}", "v_rcp_f32 v64, v64", "s_nop 0"]
        for p in range(7):
            o.append(f"v_mul_f32 v{D+2*p}, v{D+2*p}, v64")
            o.append(f"v_mul_f32 v{D+2*p+1}, v{D+2*p+1}, v64")
        for p in range(7):
            o.append(f"v_cvt_pk_bf16_f32 v{OFB+7*hI+p}, v{D+2*p}, v{D+2*p+1}")
        return o
    def rd(k):
        f = WF + 8 * (k % 3)
        for nt in range(2):
            for jj in range(2):
                d = f + 4 * nt + 2 * jj
                a(f"ds_read_b64_tr_b16 v[{d}:{d+1}], v{6+nt} offset:{WO_L + k*1024 + jj*512}")
    def og(k):
        f = WF + 8 * (k % 3)
        o = OFB + 4 * k
        r = []
        for nt, D in ((0, D0), (1, D1)):
            cin = "0" if k == 0 else f"v[{D}:{D+15}]"
            r.append(f"v_mfma_f32_32x32x16_bf16 v[{D}:{D+15}], v[{f+4*nt}:{f+4*nt+3}], v[{o}:{o+3}], {cin}")
        return r
    a("s_waitcnt vmcnt(6) lgkmcnt(0)")
    stamp(a, 2)
    num(0)
    rd(0); rd(1)
    kdone = 0
    nrd = 2
    for hI in range(8):
        if hI < 4:
            pq(8 + 2 * hI, 10 + 2 * hI)
        if hI < 7:
            npq = min(16, 10 + 2 * hI)
            a(f"s_waitcnt vmcnt({npq - 2*(hI+2)})")
            num(hI + 1)
        avail = (14 * hI) // 8
        ms = []
        ks = list(range(kdone, avail))
        ops = fin_ops(hI)
        step = max(1, len(ops) // (len(ks) + 1)) if ks else len(ops)
        pos = 0
        for kk in ks:
            for o_ in ops[pos:pos + step]: a(o_)
            pos += step
            a(f"s_waitcnt lgkmcnt({4*(nrd-1-kk)})")
            for m_ in og(kk): a(m_)
            if nrd < 14:
                rd(nrd); nrd += 1
        for o_ in ops[pos:]: a(o_)
        kdone = avail
    stamp(a, 3)
    a("s_nop 1")
    for kk in range(kdone, 14):
        a(f"s_waitcnt lgkmcnt({4*(nrd-1-kk)})")
        for m_ in og(kk): a(m_)
        if nrd < 14:
            rd(nrd); nrd += 1
    stamp(a, 4)
    BST = 144
    a("s_lshl_b32 s12, s5, 12")
    a(f"s_add_u32 s12, s12, {PART_L}")
    a("v_add_u32 v6, s12, v4")
    a("s_xor_b32 s13, s5, 4")
    a("s_lshl_b32 s13, s13, 12")
    a(f"s_add_u32 s13, s13, {PART_L}")
    a("v_add_u32 v7, s13, v4")
    a("v_and_b32 v8, 31, v2")
    a("s_lshl_b32 s12, s10, 5")
    a("v_add_u32 v8, s12, v8")
    a(f"v_mul_u32_u24 v8, {BST}, v8")
    a("v_lshrrev_b32 v9, 5, v2")
    a("v_lshl_add_u32 v8, v9, 3, v8")
    a("s_lshl_b32 s12, s11, 6")
    a(f"s_add_u32 s12, s12, {PART_L + 32768}")
    a("v_add_u32 v8, s12, v8")
    Lh, Lj = a.newlabel("Leh"), a.newlabel("Lej")
    a("s_cmp_lg_u32 s11, 0")
    a(f"s_cbranch_scc1 {Lh}")
    for q in range(4):
        a(f"ds_write_b128 v6, v[{D1+4*q}:{D1+4*q+3}] offset:{q*1024}")
    a(f"s_branch {Lj}")
    a.label(Lh)
    for q in range(4):
        a(f"ds_write_b128 v6, v[{D0+4*q}:{D0+4*q+3}] offset:{q*1024}")
    for i in range(16):
        a(f"v_mov_b32 v{D0+i}, v{D1+i}")
    a.label(Lj)
    a("v_lshrrev_b32 v9, 3, v0")
    a("v_and_b32 v10, 7, v0")
    a(f"v_mul_u32_u24 v12, {BST}, v9")
    a("v_lshl_add_u32 v12, v10, 4, v12")
    a(f"v_add_u32 v12, {PART_L + 32768}, v12")
    a("v_mul_u32_u24 v11, 1792, v9")
    a("v_lshl_add_u32 v11, v10, 4, v11")
    a(f"s_mul_i32 s12, s8, {128*1792}")
    a("s_lshl_b32 s13, s9, 7")
    a("s_add_u32 s12, s12, s13")
    a("s_add_u32 s12, s12, 896")
    a(f"s_add_u32 s13, s12, {64*1792}")
    a("s_waitcnt lgkmcnt(0)")
    a("s_barrier")
    for q in range(4):
        a(f"ds_read_b128 v[{64+4*q}:{67+4*q}], v7 offset:{q*1024}")
    for q in range(4):
        a(f"s_waitcnt lgkmcnt({3-q+q*0 if q==0 else 3})" if False else f"s_waitcnt lgkmcnt({3})" if q == 0 else f"s_waitcnt lgkmcnt(3)")
        for r in range(4):
            a(f"v_add_f32 v{64+4*q+r}, v{64+4*q+r}, v{D0+4*q+r}")
        a(f"v_cvt_pk_bf16_f32 v{80+2*q}, v{64+4*q}, v{65+4*q}")
        a(f"v_cvt_pk_bf16_f32 v{81+2*q}, v{66+4*q}, v{67+4*q}")
        a(f"ds_write_b64 v8, v[{80+2*q}:{81+2*q}] offset:{q*16}")
    a("s_waitcnt lgkmcnt(0)")
    a("s_barrier")
    for t in range(2):
        a(f"ds_read_b128 v[{96+4*t}:{99+4*t}], v12 offset:{t*64*BST}")
    for t in range(2):
        a(f"s_waitcnt lgkmcnt({1-t})")
        a(f"buffer_store_dwordx4 v[{96+4*t}:{99+4*t}], v11, s[56:59], s{12+t} offen" + (" sc1" if "osc" in G.OPT else ""))
    stamp(a, 5)
    stamp_flush(a, 1)
    a("s_endpgm")

U_L = 0
KS = 4288
KI_L = 288 * 64
EPA_L = KI_L + 16 * KS
EPB_L = EPA_L + 32768

def p2_conv(a):
    a.comment("---- conv role ----")
    stamp_mid(a)
    a("s_lshl_b32 s6, s3, 6")
    a("s_lshl_b32 s7, s4, 2")
    a("s_add_u32 s6, s6, s7")
    a("s_and_b32 s7, s5, 3")
    a("s_lshr_b32 s8, s5, 2")
    a("v_lshrrev_b32 v3, 4, v2")
    a("v_sub_u32 v3, v2, v3")
    a("v_and_b32 v3, 3, v3")
    a("v_and_b32 v4, 60, v2")
    a("v_add_lshl_u32 v3, v3, v4, 4")
    a("s_lshl_b32 s9, s5, 10")
    a("s_lshl_b32 s10, s6, 12")
    a("s_add_u32 s9, s9, s10")
    a("s_lshl_b32 s10, s5, 10")
    a(f"s_add_u32 s10, s10, {U_L + 2048}")
    a("v_lshlrev_b32 v4, 4, v2")
    a("s_add_u32 s11, s6, s7")
    a(f"s_mul_i32 s11, s11, {KT_ROW}")
    a("s_lshl_b32 s12, s7, 2")
    a("s_add_u32 s12, s12, s8")
    a(f"s_mul_i32 s12, s12, {KS}")
    a(f"s_add_u32 s12, s12, {KI_L}")
    a("v_mov_b32 v8, 0\nv_mov_b32 v9, 0\nv_mov_b32 v10, 0\nv_mov_b32 v11, 0")
    srd(a, 44, P_WS, UB_IMG, WS_UB)
    srd(a, 48, P_WS, 448 * KT_ROW, WS_KT)
    srd(a, 52, P_OUT, 2048 * 1792)
    srd(a, 68, P_WS, FL_BYTES, WS_FL)
    a(f"v_lshlrev_b32 v5, {FSH}, v2")
    a(f"v_and_b32 v6, {3 << FSH}, v5")
    a(f"s_lshl_b32 s13, s6, {FSH}")
    a(f"s_add_u32 s13, s13, {FL_K}")
    a(f"s_mov_b32 s14, {64 << FSH}")
    a("s_waitcnt lgkmcnt(0)")
    Lq = a.newlabel("Lnq")
    a("s_cmp_eq_u32 s66, 0")
    a(f"s_cbranch_scc1 {Lq}")
    Lq0 = a.newlabel("Lq0")
    a("s_cmp_lg_u32 s5, 0")
    a(f"s_cbranch_scc1 {Lq0}")
    a("buffer_load_dword v248, v5, s[68:71], 0 offen sc1")
    a("buffer_load_dword v249, v5, s[68:71], s14 offen sc1")
    a("buffer_load_dword v250, v6, s[68:71], s13 offen sc1")
    a("s_waitcnt vmcnt(3)")
    a("s_barrier")
    a("s_waitcnt vmcnt(0)")
    a("v_and_b32 v248, v248, v249")
    a("v_and_b32 v248, v248, v250")
    a("v_cmp_ne_u32 vcc, 1, v248")
    a("s_nop 4")
    a("s_cbranch_vccz L_cp_done")
    a(f"s_branch {Lq}")
    a.label(Lq0)
    a("s_waitcnt vmcnt(0)")
    a("s_barrier")
    a("s_cmp_lg_u32 s5, 1")
    a(f"s_cbranch_scc1 {Lq}")
    a("v_mov_b32 v7, 1")
    a("s_mov_b64 exec, 1")
    a("buffer_store_dword v7, v5, s[68:71], s66 offen sc1")
    a("s_mov_b64 exec, -1")
    a("s_branch L_cp_done")
    a.label(Lq)
    poll(a, [(5, "0"), (5, "s14"), (6, "s13")], True, "L_cp_done")
    stamp(a, 0)
    def kdma(i, sh):
        a(f"s_add_u32 s13, s11, {i*1024 + 4*sh}")
        a(f"s_add_u32 m0, s12, {2*KS*sh + i*1024}")
        a("s_nop 0")
        a("buffer_load_dwordx4 v4, s[48:51], s13 offen lds")
    def udma(h):
        if h: a("s_add_u32 s9, s9, 8192")
        a(f"s_add_u32 m0, s10, {h*8192}")
        a("s_nop 0")
        a("buffer_load_dwordx4 v3, s[44:47], s9 offen lds")
    KR_ = 212
    def kreg(i):
        r = KR_ + 8 * i
        a(f"buffer_load_dwordx4 v[{r}:{r+3}], v4, s[48:51], s11 offen offset:{i*1024}")
        a(f"buffer_load_dwordx2 v[{r+4}:{r+5}], v4, s[48:51], s11 offen offset:{i*1024+16}")
    Lh, Lj = a.newlabel("Lch"), a.newlabel("Lcj")
    a("s_cmp_lg_u32 s8, 0")
    a(f"s_cbranch_scc1 {Lh}")
    udma(0); kdma(3, 0); kdma(3, 1); kdma(2, 0); kdma(2, 1)
    udma(1); kdma(1, 0); kdma(1, 1); kdma(0, 0); kdma(0, 1)
    a(f"s_branch {Lj}")
    a.label(Lh)
    udma(0); kreg(3); kreg(2)
    udma(1); kreg(1); kreg(0)
    a.label(Lj)
    a("v_add_u32 v20, s12, v4")
    def kbuild(i):
        r = KR_ + 8 * i; o = 244
        for k_ in range(5):
            a(f"v_alignbyte_b32 v{o+k_}, v{r+k_+1}, v{r+k_}, 2")
        for k_ in range(3):
            a(f"v_mov_b32 v{o+8+k_}, v{o+1+k_}")
        a(f"v_mov_b32 v{o+11}, v{o+4}")
        a(f"ds_write_b128 v20, v[{o}:{o+3}] offset:{i*1024}")
        a(f"ds_write_b128 v20, v[{o+8}:{o+11}] offset:{2*KS + i*1024}")
    a("s_lshl_b32 s13, s5, 10")
    a("v_add_u32 v5, s13, v4")
    a("s_cmp_lt_u32 s5, 2")
    a("s_cselect_b32 s14, -1, 0")
    a("s_cselect_b32 s15, -1, 0")
    a("s_mov_b64 exec, s[14:15]")
    a("ds_write_b128 v5, v[8:11]")
    a("s_mov_b64 exec, 15")
    a("v_add_u32 v5, s12, v4")
    a("ds_write_b128 v5, v[8:11] offset:4096")
    a(f"ds_write_b128 v5, v[8:11] offset:{4096 + 2*KS}")
    a("s_mov_b64 exec, -1")
    a("v_and_b32 v5, 15, v2")
    a("v_lshrrev_b32 v7, 4, v2")
    a("v_lshl_add_u32 v6, v5, 1, v7")
    a("s_lshl_b32 s13, s8, 4")
    a("s_sub_u32 s13, 30, s13")
    a("v_add_u32 v6, s13, v6")
    SAD = 12
    for it in range(4):
        a(f"v_subrev_u32 v8, {4*it}, v6")
        a("v_lshrrev_b32 v9, 2, v8")
        a("v_add_u32 v9, s7, v9")
        a("v_and_b32 v9, 3, v9")
        a("v_lshlrev_b32 v9, 4, v9")
        a(f"v_lshl_add_u32 v{SAD+it}, v8, 6, v9")
    a("v_sub_u32 v8, 3, v5")
    a("v_and_b32 v8, 3, v8")
    a(f"v_mul_u32_u24 v16, {KS}, v8")
    a("v_add_u32 v8, v8, v5")
    a("v_lshlrev_b32 v9, 3, v7")
    a("v_sub_u32 v9, v9, v8")
    a("v_lshl_add_u32 v16, v9, 1, v16")
    a(f"s_mul_i32 s13, s7, {4*KS}")
    a("s_lshl_b32 s14, s8, 8")
    a("s_sub_u32 s13, s13, s14")
    a(f"s_add_u32 s13, s13, {KI_L + 2*2031 - 512*7 - 64*3}")
    a("v_add_u32 v16, s13, v16")
    a("s_lshl_b32 s13, s5, 12")
    a(f"s_add_u32 s13, s13, {EPA_L}")
    a("v_add_u32 v17, s13, v4")
    a("v_lshlrev_b32 v18, 3, v0")
    a(f"v_add_u32 v18, {EPA_L}, v18")
    a("v_lshrrev_b32 v8, 5, v0")
    a("v_lshlrev_b32 v8, 6, v8")
    a("v_and_b32 v9, 1, v0")
    a("v_lshl_add_u32 v8, v9, 5, v8")
    a("v_bfe_u32 v9, v0, 1, 4")
    a("v_add_u32 v8, v8, v9")
    a("v_mul_u32_u24 v19, 1792, v8")
    a("s_lshl_b32 s60, s6, 1")
    a(f"s_add_u32 s61, s60, {16*1792}")
    a("s_waitcnt vmcnt(5)")
    Lb = a.newlabel("Lnb1")
    a("s_cmp_eq_u32 s8, 0")
    a(f"s_cbranch_scc1 {Lb}")
    kbuild(3); kbuild(2)
    a.label(Lb)
    a("s_waitcnt lgkmcnt(0)")
    a("s_barrier")
    stamp(a, 1)
    ACC = 32
    FA = 64
    FB = [192, 224]
    def sreg(it, k): return FA + 32 * it + 4 * k if k < 4 else FB[it % 2] + 4 * (k - 4)
    def freg(it, k): return sreg(it, k) + 16
    def rd_list(it, ks):
        ops = []
        for k_ in ks:
            s_ = sreg(it, k_); f = freg(it, k_)
            ops.append(f"ds_read_b128 v[{s_}:{s_+3}], v{SAD+it} offset:{2048*k_}")
            for jj in range(2):
                d = f + 2 * jj
                ops.append(f"ds_read_b64 v[{d}:{d+1}], v16 offset:{512*(7-k_) + 8*jj + 64*(3-it)}")
        return ops
    first = set()
    def mf(it, v, w):
        d = ACC + 4 * (v + w)
        cin = f"v[{d}:{d+3}]" if d in first else "0"
        first.add(d)
        s_ = sreg(it, v); f = freg(it, w)
        a(f"v_mfma_f32_16x16x32_bf16 v[{d}:{d+3}], v[{s_}:{s_+3}], v[{f}:{f+3}], {cin}")
    R = ACC
    def store_ops():
        ops = []
        for c in range(4):
            for r in range(2):
                ops.append(f"v_add_f32 v{R+2*c+r}, v{R+2*c+r}, v{R+8+2*c+r}")
        for r in range(2):
            ops.append(f"v_cvt_pk_bf16_f32 v{22+2*r}, v{R+r}, v{R+2+r}")
            ops.append(f"v_cvt_pk_bf16_f32 v{23+2*r}, v{R+4+r}, v{R+6+r}")
            ops.append(f"buffer_store_dwordx2 v[{22+2*r}:{23+2*r}], v19, s[52:55], s{60+r} offen" + (" sc1" if "csc" in G.OPT else (" nt" if "cnt" in G.OPT else "")))
        return ops
    pa = sorted([(v, w) for v in range(4) for w in range(4) if v + w <= 3], key=lambda p: (p[1], p[0]))
    for o in rd_list(0, range(4)): a(o)
    for it in range(4):
        nxt = rd_list(it + 1, range(4)) if it < 3 else []
        for o in nxt[:3]: a(o)
        a(f"s_waitcnt lgkmcnt({3 if nxt else 0})")
        nxt = nxt[3:]
        for i, (v, w) in enumerate(pa):
            mf(it, v, w)
            if nxt: a(nxt.pop(0))
    a("s_waitcnt vmcnt(0)")
    Lb2 = a.newlabel("Lnb2")
    a("s_cmp_eq_u32 s8, 0")
    a(f"s_cbranch_scc1 {Lb2}")
    kbuild(1); kbuild(0)
    a.label(Lb2)
    a("s_nop 4")
    for n in range(4):
        a(f"ds_write_b128 v17, v[{ACC+4*n}:{ACC+4*n+3}] offset:{n*1024}")
    a("s_waitcnt lgkmcnt(0)")
    a("s_barrier")
    stamp(a, 2)
    pb = [(v, w) for v in range(8) for w in range(8) if 4 <= v + w <= 7]
    pb_old = sorted([p for p in pb if p[0] < 4 and p[1] < 4], key=lambda p: (p[1], p[0]))
    pb_new = sorted([p for p in pb if not (p[0] < 4 and p[1] < 4)], key=lambda p: (max(p), p[1], p[0]))
    def spread(lst):
        out = []; lst = list(lst)
        while lst:
            for i, p in enumerate(lst):
                if not out or (p[0] + p[1]) != (out[-1][0] + out[-1][1]):
                    out.append(lst.pop(i)); break
            else:
                out.append(lst.pop(0))
        return out
    pb_old, pb_new = spread(pb_old), spread(pb_new)
    for o in rd_list(0, range(4, 8)): a(o)
    for it in range(4):
        pre = []
        if it == 0:
            pre = [f"ds_read_b64 v[{R+2*w}:{R+2*w+1}], v18 offset:{w*4096}" for w in range(8)]
        for (v, w) in pb_old:
            mf(it, v, w)
        a("s_waitcnt lgkmcnt(0)")
        fill = pre + (rd_list(it + 1, range(4, 8)) if it < 3 else [])
        ex = store_ops() if it == 1 else []
        cnt = 0
        for (v, w) in pb_new:
            mf(it, v, w)
            if fill:
                a(fill.pop(0)); cnt += 1
                if cnt == 12: a("s_waitcnt lgkmcnt(8)")
            if ex: a(ex.pop(0))
        for o in fill + ex: a(o)
    stamp(a, 4)
    a(f"s_add_u32 s60, s60, {1024*1792}")
    a(f"s_add_u32 s61, s61, {1024*1792}")
    a("s_nop 5")
    for n in range(4):
        a(f"ds_write_b128 v17, v[{ACC+16+4*n}:{ACC+16+4*n+3}] offset:{32768 + n*1024}")
    a("s_waitcnt lgkmcnt(0)")
    a("s_barrier")
    for w in range(8):
        a(f"ds_read_b64 v[{R+2*w}:{R+2*w+1}], v18 offset:{32768 + w*4096}")
    a("s_waitcnt lgkmcnt(0)")
    for o in store_ops(): a(o)
    stamp(a, 5)
    stamp_flush(a, 1)
    a("s_endpgm")
```

```python
import sys
from asmlib import *
import gen13 as G
from gen13 import srd, P_WS, P_WO, P_OUT, WS_KV, WS_PQ, WS_KT, WS_UB, UB_IMG, KT_ROW, WS_FL, FL_U, FL_KV, FL_Q, FL_K, FSH, FL_BYTES

def poll(a, loads, drain=False, done=None):
    L, Ls = a.newlabel("Lpo"), a.newlabel("Lps")
    n = len(loads)
    Lp_ = a.newlabel("Lpp")
    a("s_cmp_eq_u32 s5, 0")
    a(f"s_cbranch_scc1 {Lp_}")
    if drain: a("s_waitcnt vmcnt(0)")
    a(f"s_branch {Ls}")
    a.label(Lp_)
    a("s_movk_i32 s64, 4000")
    def issue(b):
        for i, (v, so) in enumerate(loads):
            a(f"buffer_load_dword v{b+i}, v{v}, s[68:71], {so} offen sc1")
    def check(b):
        a(f"s_waitcnt vmcnt({n})")
        for i in range(1, n):
            a(f"v_and_b32 v{b}, v{b}, v{b+i}")
        a(f"v_cmp_ne_u32 vcc, 1, v{b}")
        a("s_sub_u32 s64, s64, 1")
        a(f"s_cbranch_scc1 {Ls}")
        a(f"s_cbranch_vccz {Ls}")
    SL = G.optint("sl", 0)
    if SL:
        a.label(L)
        issue(240)
        a("s_waitcnt vmcnt(0)")
        check(240)
        a(f"s_sleep {SL}")
        a(f"s_branch {L}")
    else:
        issue(240)
        a("s_sleep 6")
        a.label(L)
        issue(244)
        check(240)
        issue(240)
        check(244)
        a(f"s_branch {L}")
    a.label(Ls)
    if done: a.label(done)
    a("s_barrier")

def p2_w4(a):
    WO_L, KVF_L, PART_L = 0, 57344, 90112
    PSTR = 272
    PHALF = 128 * PSTR
    stamp_mid(a)
    a("s_mov_b32 s6, s4")
    a("s_cmp_ge_u32 s6, 7")
    a("s_cselect_b32 s7, 1, 0")
    a("s_lshl_b32 s8, s3, 1")
    a("s_add_u32 s8, s8, s7")
    a("s_mul_i32 s7, s7, 7")
    a("s_sub_u32 s9, s6, s7")
    a("s_and_b32 s10, s5, 3")
    a("s_lshr_b32 s11, s5, 2")
    srd(a, 44, P_WS, 0x10000, WS_KV)
    srd(a, 48, P_WS, 0x200000, WS_PQ)
    srd(a, 52, P_WO, 448 * 896)
    srd(a, 56, P_OUT, 2048 * 1792)
    srd(a, 68, P_WS, FL_BYTES, WS_FL)
    a("v_lshrrev_b32 v5, 3, v2")
    a("v_bfe_u32 v6, v2, 4, 1")
    a("v_lshlrev_b32 v6, 2, v6")
    a("v_and_b32 v7, 7, v2")
    a("v_xor_b32 v6, v6, v7")
    a("v_lshlrev_b32 v6, 4, v6")
    a("s_mul_i32 s60, s10, 112")
    a("s_mul_i32 s61, s11, 14")
    a("s_add_u32 s60, s60, s61")
    a("s_mul_i32 s60, s60, 896")
    a("s_lshl_b32 s61, s9, 7")
    a("s_add_u32 s60, s60, s61")
    a("s_mul_i32 s61, s5, 7168")
    for i in range(7):
        a(f"v_add_u32 v7, {8*i}, v5")
        a("v_mul_u32_u24 v15, 37, v7")
        a("v_lshrrev_b32 v15, 9, v15")
        a("v_mad_u32_u24 v7, v15, 14, v7")
        a("v_mul_u32_u24 v7, 896, v7")
        a("v_add_u32 v7, v7, v6")
        a(f"s_add_u32 m0, s61, {WO_L + i*1024}")
        a("s_nop 0")
        a("buffer_load_dwordx4 v7, s[52:55], s60 offen lds")
    a("v_and_b32 v4, 3, v2")
    a(f"v_lshlrev_b32 v8, {FSH}, v4")
    a("v_bfe_u32 v5, v2, 3, 2")
    a("v_lshl_add_u32 v4, v5, 2, v4")
    a("v_bfe_u32 v5, v2, 2, 1")
    a("v_add_u32 v6, 2, v4")
    a("v_lshrrev_b32 v6, 4, v6")
    a("v_or_b32 v5, v5, v6")
    a("v_mad_u32_u24 v4, v5, 14, v4")
    a("v_and_b32 v5, 32, v2")
    a("v_add_lshl_u32 v3, v4, v5, 4")
    a("v_lshlrev_b32 v4, 4, v2")
    a(f"v_lshlrev_b32 v9, {FSH}, v2")
    a("s_lshl_b32 s12, s5, 13")
    a("s_add_u32 s13, s12, 4096")
    a("s_lshl_b32 s14, s8, 2")
    a("s_add_u32 s14, s14, s10")
    a("s_lshl_b32 s14, s14, 4")
    a("s_lshl_b32 s15, s11, 3")
    a("s_add_u32 s14, s14, s15")
    a("s_lshl_b32 s14, s14, 11")
    a(f"s_lshl_b32 s15, s8, {2 + FSH}")
    a(f"s_add_u32 s15, s15, {FL_Q}")
    KVR = 64
    PQR = 96
    a(f"s_mov_b32 s62, {FL_KV}")
    a(f"s_mov_b32 s63, {FL_KV + (64 << FSH)}")
    a("s_lshl_b32 s60, s6, 3")
    a("s_add_u32 s60, s60, s5")
    a("s_mul_i32 s60, s60, 640")
    a("s_lshl_b32 s61, s9, 3")
    a("s_add_u32 s61, s61, s5")
    a("s_mul_i32 s61, s61, 2432")
    a("s_lshl_b32 s65, s8, 17")
    a("s_add_u32 s61, s61, s65")
    a("v_lshlrev_b32 v10, 7, v2")
    a("s_lshl_b32 s65, s5, 12")
    a(f"s_add_u32 s65, s65, {KVF_L}")
    a("v_add_u32 v11, s65, v4")
    a("s_lshl_b32 s65, s11, 14")
    a(f"s_add_u32 s65, s65, {KVF_L}")
    a("v_add_u32 v5, s65, v4")
    a("v_lshrrev_b32 v6, 5, v2")
    a("v_mul_u32_u24 v6, 224, v6")
    a("v_bfe_u32 v7, v2, 2, 2")
    a("v_add_u32 v6, v6, v7")
    a("s_mul_i32 s65, s11, 112")
    a("v_add_u32 v6, s65, v6")
    a("v_lshlrev_b32 v6, 7, v6")
    a("v_bfe_u32 v7, v2, 4, 1")
    a("v_lshlrev_b32 v7, 5, v7")
    a("v_and_b32 v12, 3, v2")
    a("v_lshl_add_u32 v7, v12, 3, v7")
    a("v_bfe_u32 v12, v2, 3, 1")
    a("v_lshl_add_u32 v7, v12, 6, v7")
    a("v_add_u32 v6, v6, v7")
    a("v_xor_b32 v7, 64, v6")
    poll(a, [(8, "s15"), (9, "s62"), (9, "s63")])
    stamp(a, 0)
    a("s_mov_b64 exec, 31")
    a("buffer_load_dword v12, v10, s[44:47], s60 offen")
    a("s_mov_b64 exec, 0x7ffff")
    a("buffer_load_dword v13, v10, s[48:51], s61 offen")
    a("s_mov_b64 exec, -1")
    a(f"s_mov_b32 s62, {fhex(1e-6)}")
    a("s_waitcnt vmcnt(0)")
    stamp(a, 1)
    for hh in range(2):
        for q in range(4):
            d = KVR + 16 * hh + 4 * q
            a(f"buffer_load_dwordx4 v[{d}:{d+3}], v3, s[44:47], s{12+hh} offen offset:{q*1024}")
    def pq(i0, i1):
        for i in range(i0, i1):
            a(f"buffer_load_dwordx4 v[{PQR+4*i}:{PQR+4*i+3}], v4, s[48:51], s14 offen offset:{(i%4)*1024}")
            if i % 4 == 3 and i != 15:
                a("s_add_u32 s14, s14, 4096")
    NP0 = G.optint("np", 2)
    pq(0, NP0)
    a(f"s_waitcnt vmcnt({NP0})")
    for i in range(16):
        a(f"v_cvt_pk_bf16_f32 v{32+i}, v{KVR+2*i}, v{KVR+2*i+1}")
    a("s_mov_b32 exec_lo, 0")
    for hh in range(2):
        a(f"v_mov_b32 v{32+8*hh+6}, 0")
        a(f"v_mov_b32 v{32+8*hh+7}, 0")
    a("s_mov_b64 exec, -1")
    for i in range(4):
        a(f"ds_write_b128 v11, v[{32+4*i}:{35+4*i}] offset:{i*1024}")
    pq(NP0, 6)
    a("s_waitcnt lgkmcnt(0)")
    a("s_barrier")
    pq(6, 8)
    KF = 160
    for i in range(16):
        a(f"ds_read_b128 v[{KF+4*i}:{KF+4*i+3}], v5 offset:{i*1024}")
        if i == 11: a("s_waitcnt lgkmcnt(8)")
    N0, N1 = 32, 48
    D0, D1 = 224, 240
    OFB = PQR - 8
    WF = 8
    def num(hI):
        D = N0 if hI % 2 == 0 else N1
        k = KF + 8 * hI; p = PQR + 8 * hI
        a(f"v_mfma_f32_32x32x16_bf16 v[{D}:{D+15}], v[{k}:{k+3}], v[{p}:{p+3}], 0")
        a(f"v_mfma_f32_32x32x16_bf16 v[{D}:{D+15}], v[{k+4}:{k+7}], v[{p+4}:{p+7}], v[{D}:{D+15}]")
    def fin_ops(hI):
        D = N0 if hI % 2 == 0 else N1
        o = [f"v_add_f32 v64, s62, v{D+14}", "v_rcp_f32 v64, v64", "s_nop 0"]
        for p in range(7):
            o.append(f"v_mul_f32 v{D+2*p}, v{D+2*p}, v64")
            o.append(f"v_mul_f32 v{D+2*p+1}, v{D+2*p+1}, v64")
        for p in range(7):
            o.append(f"v_cvt_pk_bf16_f32 v{OFB+7*hI+p}, v{D+2*p}, v{D+2*p+1}")
        return o
    def rd(k):
        f = WF + 8 * (k % 3)
        for nt in range(2):
            for jj in range(2):
                d = f + 4 * nt + 2 * jj
                a(f"ds_read_b64_tr_b16 v[{d}:{d+1}], v{6+nt} offset:{WO_L + k*1024 + jj*512}")
    def og(k):
        f = WF + 8 * (k % 3)
        o = OFB + 4 * k
        r = []
        for nt, D in ((0, D0), (1, D1)):
            cin = "0" if k == 0 else f"v[{D}:{D+15}]"
            r.append(f"v_mfma_f32_32x32x16_bf16 v[{D}:{D+15}], v[{f+4*nt}:{f+4*nt+3}], v[{o}:{o+3}], {cin}")
        return r
    a("s_waitcnt vmcnt(6) lgkmcnt(0)")
    stamp(a, 2)
    num(0)
    rd(0); rd(1)
    kdone = 0
    nrd = 2
    for hI in range(8):
        if hI < 4:
            pq(8 + 2 * hI, 10 + 2 * hI)
        if hI < 7:
            npq = min(16, 10 + 2 * hI)
            a(f"s_waitcnt vmcnt({npq - 2*(hI+2)})")
            num(hI + 1)
        avail = (14 * hI) // 8
        ms = []
        ks = list(range(kdone, avail))
        ops = fin_ops(hI)
        step = max(1, len(ops) // (len(ks) + 1)) if ks else len(ops)
        pos = 0
        for kk in ks:
            for o_ in ops[pos:pos + step]: a(o_)
            pos += step
            a(f"s_waitcnt lgkmcnt({4*(nrd-1-kk)})")
            for m_ in og(kk): a(m_)
            if nrd < 14:
                rd(nrd); nrd += 1
        for o_ in ops[pos:]: a(o_)
        kdone = avail
    stamp(a, 3)
    a("s_nop 1")
    for kk in range(kdone, 14):
        a(f"s_waitcnt lgkmcnt({4*(nrd-1-kk)})")
        for m_ in og(kk): a(m_)
        if nrd < 14:
            rd(nrd); nrd += 1
    stamp(a, 4)
    BST = 144
    a("s_lshl_b32 s12, s5, 12")
    a(f"s_add_u32 s12, s12, {PART_L}")
    a("v_add_u32 v6, s12, v4")
    a("s_xor_b32 s13, s5, 4")
    a("s_lshl_b32 s13, s13, 12")
    a(f"s_add_u32 s13, s13, {PART_L}")
    a("v_add_u32 v7, s13, v4")
    a("v_and_b32 v8, 31, v2")
    a("s_lshl_b32 s12, s10, 5")
    a("v_add_u32 v8, s12, v8")
    a(f"v_mul_u32_u24 v8, {BST}, v8")
    a("v_lshrrev_b32 v9, 5, v2")
    a("v_lshl_add_u32 v8, v9, 3, v8")
    a("s_lshl_b32 s12, s11, 6")
    a(f"s_add_u32 s12, s12, {PART_L + 32768}")
    a("v_add_u32 v8, s12, v8")
    Lh, Lj = a.newlabel("Leh"), a.newlabel("Lej")
    a("s_cmp_lg_u32 s11, 0")
    a(f"s_cbranch_scc1 {Lh}")
    for q in range(4):
        a(f"ds_write_b128 v6, v[{D1+4*q}:{D1+4*q+3}] offset:{q*1024}")
    a(f"s_branch {Lj}")
    a.label(Lh)
    for q in range(4):
        a(f"ds_write_b128 v6, v[{D0+4*q}:{D0+4*q+3}] offset:{q*1024}")
    for i in range(16):
        a(f"v_mov_b32 v{D0+i}, v{D1+i}")
    a.label(Lj)
    a("v_lshrrev_b32 v9, 3, v0")
    a("v_and_b32 v10, 7, v0")
    a(f"v_mul_u32_u24 v12, {BST}, v9")
    a("v_lshl_add_u32 v12, v10, 4, v12")
    a(f"v_add_u32 v12, {PART_L + 32768}, v12")
    a("v_mul_u32_u24 v11, 1792, v9")
    a("v_lshl_add_u32 v11, v10, 4, v11")
    a(f"s_mul_i32 s12, s8, {128*1792}")
    a("s_lshl_b32 s13, s9, 7")
    a("s_add_u32 s12, s12, s13")
    a("s_add_u32 s12, s12, 896")
    a(f"s_add_u32 s13, s12, {64*1792}")
    a("s_waitcnt lgkmcnt(0)")
    a("s_barrier")
    for q in range(4):
        a(f"ds_read_b128 v[{64+4*q}:{67+4*q}], v7 offset:{q*1024}")
    for q in range(4):
        a(f"s_waitcnt lgkmcnt({3-q+q*0 if q==0 else 3})" if False else f"s_waitcnt lgkmcnt({3})" if q == 0 else f"s_waitcnt lgkmcnt(3)")
        for r in range(4):
            a(f"v_add_f32 v{64+4*q+r}, v{64+4*q+r}, v{D0+4*q+r}")
        a(f"v_cvt_pk_bf16_f32 v{80+2*q}, v{64+4*q}, v{65+4*q}")
        a(f"v_cvt_pk_bf16_f32 v{81+2*q}, v{66+4*q}, v{67+4*q}")
        a(f"ds_write_b64 v8, v[{80+2*q}:{81+2*q}] offset:{q*16}")
    a("s_waitcnt lgkmcnt(0)")
    a("s_barrier")
    for t in range(2):
        a(f"ds_read_b128 v[{96+4*t}:{99+4*t}], v12 offset:{t*64*BST}")
    for t in range(2):
        a(f"s_waitcnt lgkmcnt({1-t})")
        a(f"buffer_store_dwordx4 v[{96+4*t}:{99+4*t}], v11, s[56:59], s{12+t} offen" + (" sc1" if "osc" in G.OPT else ""))
    stamp(a, 5)
    stamp_flush(a, 1)
    a("s_endpgm")

U_L = 0
KS = 4288
KI_L = 288 * 64
EPA_L = KI_L + 16 * KS
EPB_L = EPA_L + 32768

def p2_conv(a):
    a.comment("---- conv role ----")
    stamp_mid(a)
    a("s_lshl_b32 s6, s3, 6")
    a("s_lshl_b32 s7, s4, 2")
    a("s_add_u32 s6, s6, s7")
    a("s_and_b32 s7, s5, 3")
    a("s_lshr_b32 s8, s5, 2")
    a("v_lshrrev_b32 v3, 4, v2")
    a("v_sub_u32 v3, v2, v3")
    a("v_and_b32 v3, 3, v3")
    a("v_and_b32 v4, 60, v2")
    a("v_add_lshl_u32 v3, v3, v4, 4")
    a("s_lshl_b32 s9, s5, 10")
    a("s_lshl_b32 s10, s6, 12")
    a("s_add_u32 s9, s9, s10")
    a("s_lshl_b32 s10, s5, 10")
    a(f"s_add_u32 s10, s10, {U_L + 2048}")
    a("v_lshlrev_b32 v4, 4, v2")
    a("s_add_u32 s11, s6, s7")
    a(f"s_mul_i32 s11, s11, {KT_ROW}")
    a("s_lshl_b32 s12, s7, 2")
    a("s_add_u32 s12, s12, s8")
    a(f"s_mul_i32 s12, s12, {KS}")
    a(f"s_add_u32 s12, s12, {KI_L}")
    a("v_mov_b32 v8, 0\nv_mov_b32 v9, 0\nv_mov_b32 v10, 0\nv_mov_b32 v11, 0")
    srd(a, 44, P_WS, UB_IMG, WS_UB)
    srd(a, 48, P_WS, 448 * KT_ROW, WS_KT)
    srd(a, 52, P_OUT, 2048 * 1792)
    srd(a, 68, P_WS, FL_BYTES, WS_FL)
    a(f"v_lshlrev_b32 v5, {FSH}, v2")
    a(f"v_and_b32 v6, {3 << FSH}, v5")
    a(f"s_lshl_b32 s13, s6, {FSH}")
    a(f"s_add_u32 s13, s13, {FL_K}")
    a(f"s_mov_b32 s14, {64 << FSH}")
    a("s_waitcnt lgkmcnt(0)")
    Lq = a.newlabel("Lnq")
    a("s_cmp_eq_u32 s66, 0")
    a(f"s_cbranch_scc1 {Lq}")
    Lq0 = a.newlabel("Lq0")
    a("s_cmp_lg_u32 s5, 0")
    a(f"s_cbranch_scc1 {Lq0}")
    a("buffer_load_dword v248, v5, s[68:71], 0 offen sc1")
    a("buffer_load_dword v249, v5, s[68:71], s14 offen sc1")
    a("buffer_load_dword v250, v6, s[68:71], s13 offen sc1")
    a("s_waitcnt vmcnt(3)")
    a("s_barrier")
    a("s_waitcnt vmcnt(0)")
    a("v_and_b32 v248, v248, v249")
    a("v_and_b32 v248, v248, v250")
    a("v_cmp_ne_u32 vcc, 1, v248")
    a("s_nop 4")
    a("s_cbranch_vccz L_cp_done")
    a(f"s_branch {Lq}")
    a.label(Lq0)
    a("s_waitcnt vmcnt(0)")
    a("s_barrier")
    a("s_cmp_lg_u32 s5, 1")
    a(f"s_cbranch_scc1 {Lq}")
    a("v_mov_b32 v7, 1")
    a("s_mov_b64 exec, 1")
    a("buffer_store_dword v7, v5, s[68:71], s66 offen sc1")
    a("s_mov_b64 exec, -1")
    a("s_branch L_cp_done")
    a.label(Lq)
    poll(a, [(5, "0"), (5, "s14"), (6, "s13")], True, "L_cp_done")
    stamp(a, 0)
    def kdma(i, sh):
        a(f"s_add_u32 s13, s11, {i*1024 + 4*sh}")
        a(f"s_add_u32 m0, s12, {2*KS*sh + i*1024}")
        a("s_nop 0")
        a("buffer_load_dwordx4 v4, s[48:51], s13 offen lds")
    def udma(h):
        if h: a("s_add_u32 s9, s9, 8192")
        a(f"s_add_u32 m0, s10, {h*8192}")
        a("s_nop 0")
        a("buffer_load_dwordx4 v3, s[44:47], s9 offen lds")
    KR_ = 212
    def kreg(i):
        r = KR_ + 8 * i
        a(f"buffer_load_dwordx4 v[{r}:{r+3}], v4, s[48:51], s11 offen offset:{i*1024}")
        a(f"buffer_load_dwordx2 v[{r+4}:{r+5}], v4, s[48:51], s11 offen offset:{i*1024+16}")
    Lh, Lj = a.newlabel("Lch"), a.newlabel("Lcj")
    a("s_cmp_lg_u32 s8, 0")
    a(f"s_cbranch_scc1 {Lh}")
    udma(0); kdma(3, 0); kdma(3, 1); kdma(2, 0); kdma(2, 1)
    udma(1); kdma(1, 0); kdma(1, 1); kdma(0, 0); kdma(0, 1)
    a(f"s_branch {Lj}")
    a.label(Lh)
    udma(0); kreg(3); kreg(2)
    udma(1); kreg(1); kreg(0)
    a.label(Lj)
    a("v_add_u32 v20, s12, v4")
    def kbuild(i):
        r = KR_ + 8 * i; o = 244
        for k_ in range(5):
            a(f"v_alignbyte_b32 v{o+k_}, v{r+k_+1}, v{r+k_}, 2")
        for k_ in range(3):
            a(f"v_mov_b32 v{o+8+k_}, v{o+1+k_}")
        a(f"v_mov_b32 v{o+11}, v{o+4}")
        a(f"ds_write_b128 v20, v[{o}:{o+3}] offset:{i*1024}")
        a(f"ds_write_b128 v20, v[{o+8}:{o+11}] offset:{2*KS + i*1024}")
    a("s_lshl_b32 s13, s5, 10")
    a("v_add_u32 v5, s13, v4")
    a("s_cmp_lt_u32 s5, 2")
    a("s_cselect_b32 s14, -1, 0")
    a("s_cselect_b32 s15, -1, 0")
    a("s_mov_b64 exec, s[14:15]")
    a("ds_write_b128 v5, v[8:11]")
    a("s_mov_b64 exec, 15")
    a("v_add_u32 v5, s12, v4")
    a("ds_write_b128 v5, v[8:11] offset:4096")
    a(f"ds_write_b128 v5, v[8:11] offset:{4096 + 2*KS}")
    a("s_mov_b64 exec, -1")
    a("v_and_b32 v5, 15, v2")
    a("v_lshrrev_b32 v7, 4, v2")
    a("v_lshl_add_u32 v6, v5, 1, v7")
    a("s_lshl_b32 s13, s8, 4")
    a("s_sub_u32 s13, 30, s13")
    a("v_add_u32 v6, s13, v6")
    SAD = 12
    for it in range(4):
        a(f"v_subrev_u32 v8, {4*it}, v6")
        a("v_lshrrev_b32 v9, 2, v8")
        a("v_add_u32 v9, s7, v9")
        a("v_and_b32 v9, 3, v9")
        a("v_lshlrev_b32 v9, 4, v9")
        a(f"v_lshl_add_u32 v{SAD+it}, v8, 6, v9")
    a("v_sub_u32 v8, 3, v5")
    a("v_and_b32 v8, 3, v8")
    a(f"v_mul_u32_u24 v16, {KS}, v8")
    a("v_add_u32 v8, v8, v5")
    a("v_lshlrev_b32 v9, 3, v7")
    a("v_sub_u32 v9, v9, v8")
    a("v_lshl_add_u32 v16, v9, 1, v16")
    a(f"s_mul_i32 s13, s7, {4*KS}")
    a("s_lshl_b32 s14, s8, 8")
    a("s_sub_u32 s13, s13, s14")
    a(f"s_add_u32 s13, s13, {KI_L + 2*2031 - 512*7 - 64*3}")
    a("v_add_u32 v16, s13, v16")
    a("s_lshl_b32 s13, s5, 12")
    a(f"s_add_u32 s13, s13, {EPA_L}")
    a("v_add_u32 v17, s13, v4")
    a("v_lshlrev_b32 v18, 3, v0")
    a(f"v_add_u32 v18, {EPA_L}, v18")
    a("v_lshrrev_b32 v8, 5, v0")
    a("v_lshlrev_b32 v8, 6, v8")
    a("v_and_b32 v9, 1, v0")
    a("v_lshl_add_u32 v8, v9, 5, v8")
    a("v_bfe_u32 v9, v0, 1, 4")
    a("v_add_u32 v8, v8, v9")
    a("v_mul_u32_u24 v19, 1792, v8")
    a("s_lshl_b32 s60, s6, 1")
    a(f"s_add_u32 s61, s60, {16*1792}")
    a("s_waitcnt vmcnt(5)")
    Lb = a.newlabel("Lnb1")
    a("s_cmp_eq_u32 s8, 0")
    a(f"s_cbranch_scc1 {Lb}")
    kbuild(3); kbuild(2)
    a.label(Lb)
    a("s_waitcnt lgkmcnt(0)")
    a("s_barrier")
    stamp(a, 1)
    ACC = 32
    FA = 64
    FB = [192, 224]
    def sreg(it, k): return FA + 32 * it + 4 * k if k < 4 else FB[it % 2] + 4 * (k - 4)
    def freg(it, k): return sreg(it, k) + 16
    def rd_list(it, ks):
        ops = []
        for k_ in ks:
            s_ = sreg(it, k_); f = freg(it, k_)
            ops.append(f"ds_read_b128 v[{s_}:{s_+3}], v{SAD+it} offset:{2048*k_}")
            for jj in range(2):
                d = f + 2 * jj
                ops.append(f"ds_read_b64 v[{d}:{d+1}], v16 offset:{512*(7-k_) + 8*jj + 64*(3-it)}")
        return ops
    first = set()
    def mf(it, v, w):
        d = ACC + 4 * (v + w)
        cin = f"v[{d}:{d+3}]" if d in first else "0"
        first.add(d)
        s_ = sreg(it, v); f = freg(it, w)
        a(f"v_mfma_f32_16x16x32_bf16 v[{d}:{d+3}], v[{s_}:{s_+3}], v[{f}:{f+3}], {cin}")
    R = ACC
    def store_ops():
        ops = []
        for c in range(4):
            for r in range(2):
                ops.append(f"v_add_f32 v{R+2*c+r}, v{R+2*c+r}, v{R+8+2*c+r}")
        for r in range(2):
            ops.append(f"v_cvt_pk_bf16_f32 v{22+2*r}, v{R+r}, v{R+2+r}")
            ops.append(f"v_cvt_pk_bf16_f32 v{23+2*r}, v{R+4+r}, v{R+6+r}")
            ops.append(f"buffer_store_dwordx2 v[{22+2*r}:{23+2*r}], v19, s[52:55], s{60+r} offen" + (" sc1" if "csc" in G.OPT else (" nt" if "cnt" in G.OPT else "")))
        return ops
    pa = sorted([(v, w) for v in range(4) for w in range(4) if v + w <= 3], key=lambda p: (p[1], p[0]))
    for o in rd_list(0, range(4)): a(o)
    for it in range(4):
        nxt = rd_list(it + 1, range(4)) if it < 3 else []
        for o in nxt[:3]: a(o)
        a(f"s_waitcnt lgkmcnt({3 if nxt else 0})")
        nxt = nxt[3:]
        for i, (v, w) in enumerate(pa):
            mf(it, v, w)
            if nxt: a(nxt.pop(0))
    a("s_waitcnt vmcnt(0)")
    Lb2 = a.newlabel("Lnb2")
    a("s_cmp_eq_u32 s8, 0")
    a(f"s_cbranch_scc1 {Lb2}")
    kbuild(1); kbuild(0)
    a.label(Lb2)
    a("s_nop 4")
    for n in range(4):
        a(f"ds_write_b128 v17, v[{ACC+4*n}:{ACC+4*n+3}] offset:{n*1024}")
    a("s_waitcnt lgkmcnt(0)")
    a("s_barrier")
    stamp(a, 2)
    pb = [(v, w) for v in range(8) for w in range(8) if 4 <= v + w <= 7]
    pb_old = sorted([p for p in pb if p[0] < 4 and p[1] < 4], key=lambda p: (p[1], p[0]))
    pb_new = sorted([p for p in pb if not (p[0] < 4 and p[1] < 4)], key=lambda p: (max(p), p[1], p[0]))
    def spread(lst):
        out = []; lst = list(lst)
        while lst:
            for i, p in enumerate(lst):
                if not out or (p[0] + p[1]) != (out[-1][0] + out[-1][1]):
                    out.append(lst.pop(i)); break
            else:
                out.append(lst.pop(0))
        return out
    pb_old, pb_new = spread(pb_old), spread(pb_new)
    for o in rd_list(0, range(4, 8)): a(o)
    for it in range(4):
        pre = []
        if it == 0:
            pre = [f"ds_read_b64 v[{R+2*w}:{R+2*w+1}], v18 offset:{w*4096}" for w in range(8)]
        for (v, w) in pb_old:
            mf(it, v, w)
        a("s_waitcnt lgkmcnt(0)")
        fill = pre + (rd_list(it + 1, range(4, 8)) if it < 3 else [])
        ex = store_ops() if it == 1 else []
        cnt = 0
        for (v, w) in pb_new:
            mf(it, v, w)
            if fill:
                a(fill.pop(0)); cnt += 1
                if cnt == 12: a("s_waitcnt lgkmcnt(8)")
            if ex: a(ex.pop(0))
        for o in fill + ex: a(o)
    stamp(a, 4)
    if "wbmid" in G.OPT:
        Lw = a.newlabel("Lnwm")
        a("s_cmp_lg_u32 s5, 0")
        a(f"s_cbranch_scc1 {Lw}")
        a("s_cmp_lg_u32 s4, 0")
        a(f"s_cbranch_scc1 {Lw}")
        a("buffer_wbl2 sc1")
        a.label(Lw)
    a(f"s_add_u32 s60, s60, {1024*1792}")
    a(f"s_add_u32 s61, s61, {1024*1792}")
    a("s_nop 5")
    for n in range(4):
        a(f"ds_write_b128 v17, v[{ACC+16+4*n}:{ACC+16+4*n+3}] offset:{32768 + n*1024}")
    a("s_waitcnt lgkmcnt(0)")
    a("s_barrier")
    for w in range(8):
        a(f"ds_read_b64 v[{R+2*w}:{R+2*w+1}], v18 offset:{32768 + w*4096}")
    a("s_waitcnt lgkmcnt(0)")
    for o in store_ops(): a(o)
    if "wb" in G.OPT or "wball" in G.OPT:
        Lw = a.newlabel("Lnwb")
        a("s_cmp_lg_u32 s5, 0")
        a(f"s_cbranch_scc1 {Lw}")
        if "wb" in G.OPT:
            a("s_cmp_lg_u32 s4, 8")
            a(f"s_cbranch_scc1 {Lw}")
        a("s_waitcnt vmcnt(0)")
        a("buffer_wbl2 sc1")
        a.label(Lw)
    stamp(a, 5)
    stamp_flush(a, 1)
    a("s_endpgm")
```

```python
import sys
from asmlib import *
import gen13 as G
from gen13 import srd, P_WS, P_WO, P_OUT, WS_KV, WS_PQ, WS_KT, WS_UB, UB_IMG, KT_ROW, WS_FL, FL_U, FL_KV, FL_Q, FL_K, FSH, FL_BYTES

def poll(a, loads, drain=False, done=None):
    L, Ls = a.newlabel("Lpo"), a.newlabel("Lps")
    n = len(loads)
    Lp_ = a.newlabel("Lpp")
    a("s_cmp_eq_u32 s5, 0")
    a(f"s_cbranch_scc1 {Lp_}")
    if drain: a("s_waitcnt vmcnt(0)")
    a(f"s_branch {Ls}")
    a.label(Lp_)
    a("s_movk_i32 s64, 4000")
    def issue(b):
        for i, (v, so) in enumerate(loads):
            a(f"buffer_load_dword v{b+i}, v{v}, s[68:71], {so} offen sc1")
    def check(b):
        a(f"s_waitcnt vmcnt({n})")
        for i in range(1, n):
            a(f"v_and_b32 v{b}, v{b}, v{b+i}")
        a(f"v_cmp_ne_u32 vcc, 1, v{b}")
        a("s_sub_u32 s64, s64, 1")
        a(f"s_cbranch_scc1 {Ls}")
        a(f"s_cbranch_vccz {Ls}")
    SL = G.optint("sl", 0)
    if SL:
        a.label(L)
        issue(240)
        a("s_waitcnt vmcnt(0)")
        check(240)
        a(f"s_sleep {SL}")
        a(f"s_branch {L}")
    else:
        issue(240)
        a("s_sleep 6")
        a.label(L)
        issue(244)
        check(240)
        issue(240)
        check(244)
        a(f"s_branch {L}")
    a.label(Ls)
    if done: a.label(done)
    a("s_barrier")

def p2_w4(a):
    WO_L, KVF_L, PART_L = 0, 57344, 90112
    PSTR = 272
    PHALF = 128 * PSTR
    stamp_mid(a)
    a("s_mov_b32 s6, s4")
    a("s_cmp_ge_u32 s6, 7")
    a("s_cselect_b32 s7, 1, 0")
    a("s_lshl_b32 s8, s3, 1")
    a("s_add_u32 s8, s8, s7")
    a("s_mul_i32 s7, s7, 7")
    a("s_sub_u32 s9, s6, s7")
    a("s_and_b32 s10, s5, 3")
    a("s_lshr_b32 s11, s5, 2")
    srd(a, 44, P_WS, 0x10000, WS_KV)
    srd(a, 48, P_WS, 0x200000, WS_PQ)
    srd(a, 52, P_WO, 448 * 896)
    srd(a, 56, P_OUT, 2048 * 1792)
    srd(a, 68, P_WS, FL_BYTES, WS_FL)
    a("v_lshrrev_b32 v5, 3, v2")
    a("v_bfe_u32 v6, v2, 4, 1")
    a("v_lshlrev_b32 v6, 2, v6")
    a("v_and_b32 v7, 7, v2")
    a("v_xor_b32 v6, v6, v7")
    a("v_lshlrev_b32 v6, 4, v6")
    a("s_mul_i32 s60, s10, 112")
    a("s_mul_i32 s61, s11, 14")
    a("s_add_u32 s60, s60, s61")
    a("s_mul_i32 s60, s60, 896")
    a("s_lshl_b32 s61, s9, 7")
    a("s_add_u32 s60, s60, s61")
    a("s_mul_i32 s61, s5, 7168")
    for i in range(7):
        a(f"v_add_u32 v7, {8*i}, v5")
        a("v_mul_u32_u24 v15, 37, v7")
        a("v_lshrrev_b32 v15, 9, v15")
        a("v_mad_u32_u24 v7, v15, 14, v7")
        a("v_mul_u32_u24 v7, 896, v7")
        a("v_add_u32 v7, v7, v6")
        a(f"s_add_u32 m0, s61, {WO_L + i*1024}")
        a("s_nop 0")
        a("buffer_load_dwordx4 v7, s[52:55], s60 offen lds")
    a("v_and_b32 v4, 3, v2")
    a(f"v_lshlrev_b32 v8, {FSH}, v4")
    a("v_bfe_u32 v5, v2, 3, 2")
    a("v_lshl_add_u32 v4, v5, 2, v4")
    a("v_bfe_u32 v5, v2, 2, 1")
    a("v_add_u32 v6, 2, v4")
    a("v_lshrrev_b32 v6, 4, v6")
    a("v_or_b32 v5, v5, v6")
    a("v_mad_u32_u24 v4, v5, 14, v4")
    a("v_and_b32 v5, 32, v2")
    a("v_add_lshl_u32 v3, v4, v5, 4")
    a("v_lshlrev_b32 v4, 4, v2")
    a(f"v_lshlrev_b32 v9, {FSH}, v2")
    a("s_lshl_b32 s12, s5, 13")
    a("s_add_u32 s13, s12, 4096")
    a("s_lshl_b32 s14, s8, 2")
    a("s_add_u32 s14, s14, s10")
    a("s_lshl_b32 s14, s14, 4")
    a("s_lshl_b32 s15, s11, 3")
    a("s_add_u32 s14, s14, s15")
    a("s_lshl_b32 s14, s14, 11")
    a(f"s_lshl_b32 s15, s8, {2 + FSH}")
    a(f"s_add_u32 s15, s15, {FL_Q}")
    KVR = 64
    PQR = 96
    a(f"s_mov_b32 s62, {FL_KV}")
    a(f"s_mov_b32 s63, {FL_KV + (64 << FSH)}")
    a("s_lshl_b32 s60, s6, 3")
    a("s_add_u32 s60, s60, s5")
    a("s_mul_i32 s60, s60, 640")
    a("s_lshl_b32 s61, s9, 3")
    a("s_add_u32 s61, s61, s5")
    a("s_mul_i32 s61, s61, 2432")
    a("s_lshl_b32 s65, s8, 17")
    a("s_add_u32 s61, s61, s65")
    a("v_lshlrev_b32 v10, 7, v2")
    a("s_lshl_b32 s65, s5, 12")
    a(f"s_add_u32 s65, s65, {KVF_L}")
    a("v_add_u32 v11, s65, v4")
    a("s_lshl_b32 s65, s11, 14")
    a(f"s_add_u32 s65, s65, {KVF_L}")
    a("v_add_u32 v5, s65, v4")
    a("v_lshrrev_b32 v6, 5, v2")
    a("v_mul_u32_u24 v6, 224, v6")
    a("v_bfe_u32 v7, v2, 2, 2")
    a("v_add_u32 v6, v6, v7")
    a("s_mul_i32 s65, s11, 112")
    a("v_add_u32 v6, s65, v6")
    a("v_lshlrev_b32 v6, 7, v6")
    a("v_bfe_u32 v7, v2, 4, 1")
    a("v_lshlrev_b32 v7, 5, v7")
    a("v_and_b32 v12, 3, v2")
    a("v_lshl_add_u32 v7, v12, 3, v7")
    a("v_bfe_u32 v12, v2, 3, 1")
    a("v_lshl_add_u32 v7, v12, 6, v7")
    a("v_add_u32 v6, v6, v7")
    a("v_xor_b32 v7, 64, v6")
    poll(a, [(8, "s15"), (9, "s62"), (9, "s63")])
    stamp(a, 0)
    TM = G.optint("tm", 0)
    if TM == 0:
        a("s_mov_b64 exec, 31")
        a("buffer_load_dword v12, v10, s[44:47], s60 offen")
    if TM <= 1:
        a("s_mov_b64 exec, 0x7ffff")
        a("buffer_load_dword v13, v10, s[48:51], s61 offen")
        a("s_mov_b64 exec, -1")
    a(f"s_mov_b32 s62, {fhex(1e-6)}")
    if TM == 0: a("s_waitcnt vmcnt(0)")
    stamp(a, 1)
    for hh in range(2):
        for q in range(4):
            d = KVR + 16 * hh + 4 * q
            a(f"buffer_load_dwordx4 v[{d}:{d+3}], v3, s[44:47], s{12+hh} offen offset:{q*1024}")
    def pq(i0, i1):
        for i in range(i0, i1):
            a(f"buffer_load_dwordx4 v[{PQR+4*i}:{PQR+4*i+3}], v4, s[48:51], s14 offen offset:{(i%4)*1024}")
            if i % 4 == 3 and i != 15:
                a("s_add_u32 s14, s14, 4096")
    NP0 = G.optint("np", 2)
    pq(0, NP0)
    a(f"s_waitcnt vmcnt({NP0})")
    for i in range(16):
        a(f"v_cvt_pk_bf16_f32 v{32+i}, v{KVR+2*i}, v{KVR+2*i+1}")
    a("s_mov_b32 exec_lo, 0")
    for hh in range(2):
        a(f"v_mov_b32 v{32+8*hh+6}, 0")
        a(f"v_mov_b32 v{32+8*hh+7}, 0")
    a("s_mov_b64 exec, -1")
    for i in range(4):
        a(f"ds_write_b128 v11, v[{32+4*i}:{35+4*i}] offset:{i*1024}")
    pq(NP0, 6)
    a("s_waitcnt lgkmcnt(0)")
    a("s_barrier")
    pq(6, 8)
    KF = 160
    for i in range(8):
        a(f"ds_read_b128 v[{KF+4*i}:{KF+4*i+3}], v5 offset:{i*1024}")
    N0, N1 = 32, 48
    D0, D1 = 224, 240
    OFB = PQR - 8
    WF = 8
    def num(hI):
        D = N0 if hI % 2 == 0 else N1
        k = KF + 8 * hI; p = PQR + 8 * hI
        a(f"v_mfma_f32_32x32x16_bf16 v[{D}:{D+15}], v[{k}:{k+3}], v[{p}:{p+3}], 0")
        a(f"v_mfma_f32_32x32x16_bf16 v[{D}:{D+15}], v[{k+4}:{k+7}], v[{p+4}:{p+7}], v[{D}:{D+15}]")
    def fin_ops(hI):
        D = N0 if hI % 2 == 0 else N1
        o = [f"v_add_f32 v64, s62, v{D+14}", "v_rcp_f32 v64, v64", "s_nop 0"]
        for p in range(7):
            o.append(f"v_mul_f32 v{D+2*p}, v{D+2*p}, v64")
            o.append(f"v_mul_f32 v{D+2*p+1}, v{D+2*p+1}, v64")
        for p in range(7):
            o.append(f"v_cvt_pk_bf16_f32 v{OFB+7*hI+p}, v{D+2*p}, v{D+2*p+1}")
        return o
    def rd(k):
        f = WF + 8 * (k % 3)
        for nt in range(2):
            for jj in range(2):
                d = f + 4 * nt + 2 * jj
                a(f"ds_read_b64_tr_b16 v[{d}:{d+1}], v{6+nt} offset:{WO_L + k*1024 + jj*512}")
    def og(k):
        f = WF + 8 * (k % 3)
        o = OFB + 4 * k
        r = []
        for nt, D in ((0, D0), (1, D1)):
            cin = "0" if k == 0 else f"v[{D}:{D+15}]"
            r.append(f"v_mfma_f32_32x32x16_bf16 v[{D}:{D+15}], v[{f+4*nt}:{f+4*nt+3}], v[{o}:{o+3}], {cin}")
        return r
    a("s_waitcnt vmcnt(6) lgkmcnt(6)")
    stamp(a, 2)
    num(0)
    for i in range(8, 16):
        a(f"ds_read_b128 v[{KF+4*i}:{KF+4*i+3}], v5 offset:{i*1024}")
    a("s_waitcnt lgkmcnt(7)")
    rd(0); rd(1)
    kdone = 0
    nrd = 2
    for hI in range(8):
        if hI < 4:
            pq(8 + 2 * hI, 10 + 2 * hI)
        if hI < 7:
            npq = min(16, 10 + 2 * hI)
            a(f"s_waitcnt vmcnt({npq - 2*(hI+2)})")
            num(hI + 1)
        avail = (14 * hI) // 8
        ms = []
        ks = list(range(kdone, avail))
        ops = fin_ops(hI)
        step = max(1, len(ops) // (len(ks) + 1)) if ks else len(ops)
        pos = 0
        for kk in ks:
            for o_ in ops[pos:pos + step]: a(o_)
            pos += step
            a(f"s_waitcnt lgkmcnt({4*(nrd-1-kk)})")
            for m_ in og(kk): a(m_)
            if nrd < 14:
                rd(nrd); nrd += 1
        for o_ in ops[pos:]: a(o_)
        kdone = avail
    stamp(a, 3)
    a("s_nop 1")
    for kk in range(kdone, 14):
        a(f"s_waitcnt lgkmcnt({4*(nrd-1-kk)})")
        for m_ in og(kk): a(m_)
        if nrd < 14:
            rd(nrd); nrd += 1
    stamp(a, 4)
    BST = 144
    a("s_lshl_b32 s12, s5, 12")
    a(f"s_add_u32 s12, s12, {PART_L}")
    a("v_add_u32 v6, s12, v4")
    a("s_xor_b32 s13, s5, 4")
    a("s_lshl_b32 s13, s13, 12")
    a(f"s_add_u32 s13, s13, {PART_L}")
    a("v_add_u32 v7, s13, v4")
    a("v_and_b32 v8, 31, v2")
    a("s_lshl_b32 s12, s10, 5")
    a("v_add_u32 v8, s12, v8")
    a(f"v_mul_u32_u24 v8, {BST}, v8")
    a("v_lshrrev_b32 v9, 5, v2")
    a("v_lshl_add_u32 v8, v9, 3, v8")
    a("s_lshl_b32 s12, s11, 6")
    a(f"s_add_u32 s12, s12, {PART_L + 32768}")
    a("v_add_u32 v8, s12, v8")
    Lh, Lj = a.newlabel("Leh"), a.newlabel("Lej")
    a("s_cmp_lg_u32 s11, 0")
    a(f"s_cbranch_scc1 {Lh}")
    for q in range(4):
        a(f"ds_write_b128 v6, v[{D1+4*q}:{D1+4*q+3}] offset:{q*1024}")
    a(f"s_branch {Lj}")
    a.label(Lh)
    for q in range(4):
        a(f"ds_write_b128 v6, v[{D0+4*q}:{D0+4*q+3}] offset:{q*1024}")
    for i in range(16):
        a(f"v_mov_b32 v{D0+i}, v{D1+i}")
    a.label(Lj)
    a("v_lshrrev_b32 v9, 3, v0")
    a("v_and_b32 v10, 7, v0")
    a(f"v_mul_u32_u24 v12, {BST}, v9")
    a("v_lshl_add_u32 v12, v10, 4, v12")
    a(f"v_add_u32 v12, {PART_L + 32768}, v12")
    a("v_mul_u32_u24 v11, 1792, v9")
    a("v_lshl_add_u32 v11, v10, 4, v11")
    a(f"s_mul_i32 s12, s8, {128*1792}")
    a("s_lshl_b32 s13, s9, 7")
    a("s_add_u32 s12, s12, s13")
    a("s_add_u32 s12, s12, 896")
    a(f"s_add_u32 s13, s12, {64*1792}")
    a("s_waitcnt lgkmcnt(0)")
    a("s_barrier")
    for q in range(4):
        a(f"ds_read_b128 v[{64+4*q}:{67+4*q}], v7 offset:{q*1024}")
    for q in range(4):
        a(f"s_waitcnt lgkmcnt({3-q+q*0 if q==0 else 3})" if False else f"s_waitcnt lgkmcnt({3})" if q == 0 else f"s_waitcnt lgkmcnt(3)")
        for r in range(4):
            a(f"v_add_f32 v{64+4*q+r}, v{64+4*q+r}, v{D0+4*q+r}")
        a(f"v_cvt_pk_bf16_f32 v{80+2*q}, v{64+4*q}, v{65+4*q}")
        a(f"v_cvt_pk_bf16_f32 v{81+2*q}, v{66+4*q}, v{67+4*q}")
        a(f"ds_write_b64 v8, v[{80+2*q}:{81+2*q}] offset:{q*16}")
    a("s_waitcnt lgkmcnt(0)")
    a("s_barrier")
    for t in range(2):
        a(f"ds_read_b128 v[{96+4*t}:{99+4*t}], v12 offset:{t*64*BST}")
    for t in range(2):
        a(f"s_waitcnt lgkmcnt({1-t})")
        a(f"buffer_store_dwordx4 v[{96+4*t}:{99+4*t}], v11, s[56:59], s{12+t} offen" + (" sc1" if "osc" in G.OPT else ""))
    stamp(a, 5)
    stamp_flush(a, 1)
    a("s_endpgm")

U_L = 0
KS = 4288
KI_L = 288 * 64
EPA_L = KI_L + 16 * KS
EPB_L = EPA_L + 32768

def p2_conv(a):
    a.comment("---- conv role ----")
    stamp_mid(a)
    a("s_lshl_b32 s6, s3, 6")
    a("s_lshl_b32 s7, s4, 2")
    a("s_add_u32 s6, s6, s7")
    a("s_and_b32 s7, s5, 3")
    a("s_lshr_b32 s8, s5, 2")
    a("v_lshrrev_b32 v3, 4, v2")
    a("v_sub_u32 v3, v2, v3")
    a("v_and_b32 v3, 3, v3")
    a("v_and_b32 v4, 60, v2")
    a("v_add_lshl_u32 v3, v3, v4, 4")
    a("s_lshl_b32 s9, s5, 10")
    a("s_lshl_b32 s10, s6, 12")
    a("s_add_u32 s9, s9, s10")
    a("s_lshl_b32 s10, s5, 10")
    a(f"s_add_u32 s10, s10, {U_L + 2048}")
    a("v_lshlrev_b32 v4, 4, v2")
    a("s_add_u32 s11, s6, s7")
    a(f"s_mul_i32 s11, s11, {KT_ROW}")
    a("s_lshl_b32 s12, s7, 2")
    a("s_add_u32 s12, s12, s8")
    a(f"s_mul_i32 s12, s12, {KS}")
    a(f"s_add_u32 s12, s12, {KI_L}")
    a("v_mov_b32 v8, 0\nv_mov_b32 v9, 0\nv_mov_b32 v10, 0\nv_mov_b32 v11, 0")
    srd(a, 44, P_WS, UB_IMG, WS_UB)
    srd(a, 48, P_WS, 448 * KT_ROW, WS_KT)
    srd(a, 52, P_OUT, 2048 * 1792)
    srd(a, 68, P_WS, FL_BYTES, WS_FL)
    a(f"v_lshlrev_b32 v5, {FSH}, v2")
    a(f"v_and_b32 v6, {3 << FSH}, v5")
    a(f"s_lshl_b32 s13, s6, {FSH}")
    a(f"s_add_u32 s13, s13, {FL_K}")
    a(f"s_mov_b32 s14, {64 << FSH}")
    a("s_waitcnt lgkmcnt(0)")
    Lq = a.newlabel("Lnq")
    a("s_cmp_eq_u32 s66, 0")
    a(f"s_cbranch_scc1 {Lq}")
    Lq0 = a.newlabel("Lq0")
    a("s_cmp_lg_u32 s5, 0")
    a(f"s_cbranch_scc1 {Lq0}")
    a("buffer_load_dword v248, v5, s[68:71], 0 offen sc1")
    a("buffer_load_dword v249, v5, s[68:71], s14 offen sc1")
    a("buffer_load_dword v250, v6, s[68:71], s13 offen sc1")
    a("s_waitcnt vmcnt(3)")
    a("s_barrier")
    a("s_waitcnt vmcnt(0)")
    a("v_and_b32 v248, v248, v249")
    a("v_and_b32 v248, v248, v250")
    a("v_cmp_ne_u32 vcc, 1, v248")
    a("s_nop 4")
    a("s_cbranch_vccz L_cp_done")
    a(f"s_branch {Lq}")
    a.label(Lq0)
    a("s_waitcnt vmcnt(0)")
    a("s_barrier")
    a("s_cmp_lg_u32 s5, 1")
    a(f"s_cbranch_scc1 {Lq}")
    a("v_mov_b32 v7, 1")
    a("s_mov_b64 exec, 1")
    a("buffer_store_dword v7, v5, s[68:71], s66 offen sc1")
    a("s_mov_b64 exec, -1")
    a("s_branch L_cp_done")
    a.label(Lq)
    poll(a, [(5, "0"), (5, "s14"), (6, "s13")], True, "L_cp_done")
    stamp(a, 0)
    def kdma(i, sh):
        a(f"s_add_u32 s13, s11, {i*1024 + 4*sh}")
        a(f"s_add_u32 m0, s12, {2*KS*sh + i*1024}")
        a("s_nop 0")
        a("buffer_load_dwordx4 v4, s[48:51], s13 offen lds")
    def udma(h):
        if h: a("s_add_u32 s9, s9, 8192")
        a(f"s_add_u32 m0, s10, {h*8192}")
        a("s_nop 0")
        a("buffer_load_dwordx4 v3, s[44:47], s9 offen lds")
    KR_ = 212
    def kreg(i):
        r = KR_ + 8 * i
        a(f"buffer_load_dwordx4 v[{r}:{r+3}], v4, s[48:51], s11 offen offset:{i*1024}")
        a(f"buffer_load_dwordx2 v[{r+4}:{r+5}], v4, s[48:51], s11 offen offset:{i*1024+16}")
    Lh, Lj = a.newlabel("Lch"), a.newlabel("Lcj")
    a("s_cmp_lg_u32 s8, 0")
    a(f"s_cbranch_scc1 {Lh}")
    udma(0); kdma(3, 0); kdma(3, 1); kdma(2, 0); kdma(2, 1)
    udma(1); kdma(1, 0); kdma(1, 1); kdma(0, 0); kdma(0, 1)
    a(f"s_branch {Lj}")
    a.label(Lh)
    udma(0); kreg(3); kreg(2)
    udma(1); kreg(1); kreg(0)
    a.label(Lj)
    a("v_add_u32 v20, s12, v4")
    def kbuild(i):
        r = KR_ + 8 * i; o = 244
        for k_ in range(5):
            a(f"v_alignbyte_b32 v{o+k_}, v{r+k_+1}, v{r+k_}, 2")
        for k_ in range(3):
            a(f"v_mov_b32 v{o+8+k_}, v{o+1+k_}")
        a(f"v_mov_b32 v{o+11}, v{o+4}")
        a(f"ds_write_b128 v20, v[{o}:{o+3}] offset:{i*1024}")
        a(f"ds_write_b128 v20, v[{o+8}:{o+11}] offset:{2*KS + i*1024}")
    a("s_lshl_b32 s13, s5, 10")
    a("v_add_u32 v5, s13, v4")
    a("s_cmp_lt_u32 s5, 2")
    a("s_cselect_b32 s14, -1, 0")
    a("s_cselect_b32 s15, -1, 0")
    a("s_mov_b64 exec, s[14:15]")
    a("ds_write_b128 v5, v[8:11]")
    a("s_mov_b64 exec, 15")
    a("v_add_u32 v5, s12, v4")
    a("ds_write_b128 v5, v[8:11] offset:4096")
    a(f"ds_write_b128 v5, v[8:11] offset:{4096 + 2*KS}")
    a("s_mov_b64 exec, -1")
    a("v_and_b32 v5, 15, v2")
    a("v_lshrrev_b32 v7, 4, v2")
    a("v_lshl_add_u32 v6, v5, 1, v7")
    a("s_lshl_b32 s13, s8, 4")
    a("s_sub_u32 s13, 30, s13")
    a("v_add_u32 v6, s13, v6")
    SAD = 12
    for it in range(4):
        a(f"v_subrev_u32 v8, {4*it}, v6")
        a("v_lshrrev_b32 v9, 2, v8")
        a("v_add_u32 v9, s7, v9")
        a("v_and_b32 v9, 3, v9")
        a("v_lshlrev_b32 v9, 4, v9")
        a(f"v_lshl_add_u32 v{SAD+it}, v8, 6, v9")
    a("v_sub_u32 v8, 3, v5")
    a("v_and_b32 v8, 3, v8")
    a(f"v_mul_u32_u24 v16, {KS}, v8")
    a("v_add_u32 v8, v8, v5")
    a("v_lshlrev_b32 v9, 3, v7")
    a("v_sub_u32 v9, v9, v8")
    a("v_lshl_add_u32 v16, v9, 1, v16")
    a(f"s_mul_i32 s13, s7, {4*KS}")
    a("s_lshl_b32 s14, s8, 8")
    a("s_sub_u32 s13, s13, s14")
    a(f"s_add_u32 s13, s13, {KI_L + 2*2031 - 512*7 - 64*3}")
    a("v_add_u32 v16, s13, v16")
    a("s_lshl_b32 s13, s5, 12")
    a(f"s_add_u32 s13, s13, {EPA_L}")
    a("v_add_u32 v17, s13, v4")
    a("v_lshlrev_b32 v18, 3, v0")
    a(f"v_add_u32 v18, {EPA_L}, v18")
    a("v_lshrrev_b32 v8, 5, v0")
    a("v_lshlrev_b32 v8, 6, v8")
    a("v_and_b32 v9, 1, v0")
    a("v_lshl_add_u32 v8, v9, 5, v8")
    a("v_bfe_u32 v9, v0, 1, 4")
    a("v_add_u32 v8, v8, v9")
    a("v_mul_u32_u24 v19, 1792, v8")
    a("s_lshl_b32 s60, s6, 1")
    a(f"s_add_u32 s61, s60, {16*1792}")
    a("s_waitcnt vmcnt(5)")
    Lb = a.newlabel("Lnb1")
    a("s_cmp_eq_u32 s8, 0")
    a(f"s_cbranch_scc1 {Lb}")
    kbuild(3); kbuild(2)
    a.label(Lb)
    a("s_waitcnt lgkmcnt(0)")
    a("s_barrier")
    stamp(a, 1)
    ACC = 32
    FA = 64
    FB = [192, 224]
    def sreg(it, k): return FA + 32 * it + 4 * k if k < 4 else FB[it % 2] + 4 * (k - 4)
    def freg(it, k): return sreg(it, k) + 16
    def rd_list(it, ks):
        ops = []
        for k_ in ks:
            s_ = sreg(it, k_); f = freg(it, k_)
            ops.append(f"ds_read_b128 v[{s_}:{s_+3}], v{SAD+it} offset:{2048*k_}")
            for jj in range(2):
                d = f + 2 * jj
                ops.append(f"ds_read_b64 v[{d}:{d+1}], v16 offset:{512*(7-k_) + 8*jj + 64*(3-it)}")
        return ops
    first = set()
    def mf(it, v, w):
        d = ACC + 4 * (v + w)
        cin = f"v[{d}:{d+3}]" if d in first else "0"
        first.add(d)
        s_ = sreg(it, v); f = freg(it, w)
        a(f"v_mfma_f32_16x16x32_bf16 v[{d}:{d+3}], v[{s_}:{s_+3}], v[{f}:{f+3}], {cin}")
    R = ACC
    def store_ops():
        ops = []
        for c in range(4):
            for r in range(2):
                ops.append(f"v_add_f32 v{R+2*c+r}, v{R+2*c+r}, v{R+8+2*c+r}")
        for r in range(2):
            ops.append(f"v_cvt_pk_bf16_f32 v{22+2*r}, v{R+r}, v{R+2+r}")
            ops.append(f"v_cvt_pk_bf16_f32 v{23+2*r}, v{R+4+r}, v{R+6+r}")
            ops.append(f"buffer_store_dwordx2 v[{22+2*r}:{23+2*r}], v19, s[52:55], s{60+r} offen" + (" sc1" if "csc" in G.OPT else (" nt" if "cnt" in G.OPT else "")))
        return ops
    pa = sorted([(v, w) for v in range(4) for w in range(4) if v + w <= 3], key=lambda p: (p[1], p[0]))
    for o in rd_list(0, range(4)): a(o)
    for it in range(4):
        nxt = rd_list(it + 1, range(4)) if it < 3 else []
        for o in nxt[:3]: a(o)
        a(f"s_waitcnt lgkmcnt({3 if nxt else 0})")
        nxt = nxt[3:]
        for i, (v, w) in enumerate(pa):
            mf(it, v, w)
            if nxt: a(nxt.pop(0))
    a("s_waitcnt vmcnt(0)")
    Lb2 = a.newlabel("Lnb2")
    a("s_cmp_eq_u32 s8, 0")
    a(f"s_cbranch_scc1 {Lb2}")
    kbuild(1); kbuild(0)
    a.label(Lb2)
    a("s_nop 4")
    for n in range(4):
        a(f"ds_write_b128 v17, v[{ACC+4*n}:{ACC+4*n+3}] offset:{n*1024}")
    a("s_waitcnt lgkmcnt(0)")
    a("s_barrier")
    stamp(a, 2)
    pb = [(v, w) for v in range(8) for w in range(8) if 4 <= v + w <= 7]
    pb_old = sorted([p for p in pb if p[0] < 4 and p[1] < 4], key=lambda p: (p[1], p[0]))
    pb_new = sorted([p for p in pb if not (p[0] < 4 and p[1] < 4)], key=lambda p: (max(p), p[1], p[0]))
    def spread(lst):
        out = []; lst = list(lst)
        while lst:
            for i, p in enumerate(lst):
                if not out or (p[0] + p[1]) != (out[-1][0] + out[-1][1]):
                    out.append(lst.pop(i)); break
            else:
                out.append(lst.pop(0))
        return out
    pb_old, pb_new = spread(pb_old), spread(pb_new)
    for o in rd_list(0, range(4, 8)): a(o)
    for it in range(4):
        pre = []
        if it == 0:
            pre = [f"ds_read_b64 v[{R+2*w}:{R+2*w+1}], v18 offset:{w*4096}" for w in range(8)]
        for (v, w) in pb_old:
            mf(it, v, w)
        a("s_waitcnt lgkmcnt(0)")
        fill = pre + (rd_list(it + 1, range(4, 8)) if it < 3 else [])
        ex = store_ops() if it == 1 else []
        cnt = 0
        for (v, w) in pb_new:
            mf(it, v, w)
            if fill:
                a(fill.pop(0)); cnt += 1
                if cnt == 12: a("s_waitcnt lgkmcnt(8)")
            if ex: a(ex.pop(0))
        for o in fill + ex: a(o)
    stamp(a, 4)
    if "wbmid" in G.OPT:
        Lw = a.newlabel("Lnwm")
        a("s_cmp_lg_u32 s5, 0")
        a(f"s_cbranch_scc1 {Lw}")
        a("s_cmp_lg_u32 s4, 0")
        a(f"s_cbranch_scc1 {Lw}")
        a("buffer_wbl2 sc1")
        a.label(Lw)
    a(f"s_add_u32 s60, s60, {1024*1792}")
    a(f"s_add_u32 s61, s61, {1024*1792}")
    a("s_nop 5")
    for n in range(4):
        a(f"ds_write_b128 v17, v[{ACC+16+4*n}:{ACC+16+4*n+3}] offset:{32768 + n*1024}")
    a("s_waitcnt lgkmcnt(0)")
    a("s_barrier")
    for w in range(8):
        a(f"ds_read_b64 v[{R+2*w}:{R+2*w+1}], v18 offset:{32768 + w*4096}")
    a("s_waitcnt lgkmcnt(0)")
    for o in store_ops(): a(o)
    if "wb" in G.OPT or "wball" in G.OPT:
        Lw = a.newlabel("Lnwb")
        a("s_cmp_lg_u32 s5, 0")
        a(f"s_cbranch_scc1 {Lw}")
        if "wb" in G.OPT:
            a("s_cmp_lg_u32 s4, 8")
            a(f"s_cbranch_scc1 {Lw}")
        a("s_waitcnt vmcnt(0)")
        a("buffer_wbl2 sc1")
        a.label(Lw)
    stamp(a, 5)
    stamp_flush(a, 1)
    a("s_endpgm")
```

```python
import sys, math, struct
from asmlib import *
import asmlib

NAME = "concat_heads__ssm_conv_s4d__linear_attn_block__prompt"
KN = NAME + "_kernel"
OPT = set(sys.argv[2:])
def optint(prefix, default):
    v = [o for o in OPT if o.startswith(prefix) and o[len(prefix):].isdigit()]
    return int(v[0][len(prefix):]) if v else default

WS_KV = 0x0
WS_PQ = 0x10000
WS_KT = 0x210000
KT_ROW = 4224
WS_UB = 0x600000
UB_IMG = 256 * 448 * 16
WS_FL = 0x800000
FSH = optint("fsh", 2)
FL_U, FL_KV, FL_Q, FL_K = 0, 128 << FSH, 256 << FSH, 512 << FSH
FL_BYTES = 1024 << FSH
LOG2E = 1.4426950408889634
INV2PI = 0.15915494309189535
C_HI = struct.unpack("<f", struct.pack("<f", INV2PI))[0]
C_LO = INV2PI - C_HI
ST = " sc1"
P_U, P_LA, P_AI, P_CR, P_CI, P_LDT, P_D, P_X, P_W, P_WO, P_OUT, P_DBG, P_WS = 16, 18, 20, 22, 24, 26, 28, 30, 32, 34, 36, 38, 40

def srd(a, d, p, nbytes, off=0):
    if off:
        a(f"s_add_u32 s{d}, s{p}, 0x{off:x}")
        a(f"s_addc_u32 s{d+1}, s{p+1}, 0")
    else:
        a(f"s_mov_b32 s{d}, s{p}")
        a(f"s_mov_b32 s{d+1}, s{p+1}")
    a(f"s_mov_b32 s{d+2}, 0x{nbytes:x}")
    a(f"s_mov_b32 s{d+3}, 0x20000")

def prefetch_code(a, n, vtmp, stmp):
    lab = a.newlabel("Lpc")
    a(f"s_getpc_b64 s[{stmp}:{stmp+1}]")
    a.label(lab)
    a(f"s_sub_u32 s{stmp}, s{stmp}, {lab}-{KN}")
    a(f"s_subb_u32 s{stmp+1}, s{stmp+1}, 0")
    a(f"v_lshlrev_b32 v{vtmp}, 7, v2")
    for i in range(n):
        a(f"global_load_dword v{vtmp+1}, v{vtmp}, s[{stmp}:{stmp+1}]")
        if i < n - 1:
            a(f"v_add_u32 v{vtmp}, 8192, v{vtmp}")

def phi_pack(a, acc, dst, tmp, s_log2e, s_eps):
    for p in range(0, 8, 2):
        t = tmp
        for q in range(2):
            r = 2 * (p + q)
            a(f"v_cvt_pk_bf16_f32 v{t+4*q}, v{acc+r}, v{acc+r+1}")
        for q in range(2):
            a(f"v_and_b32 v{t+4*q+1}, 0xffff0000, v{t+4*q}")
            a(f"v_lshlrev_b32 v{t+4*q}, 16, v{t+4*q}")
        for q in range(2):
            a(f"v_mul_f32 v{t+4*q+2}, s{s_log2e}, v{t+4*q}")
            a(f"v_mul_f32 v{t+4*q+3}, s{s_log2e}, v{t+4*q+1}")
        for q in range(2):
            a(f"v_exp_f32_e64 v{t+4*q+2}, v{t+4*q+2} clamp")
            a(f"v_exp_f32_e64 v{t+4*q+3}, v{t+4*q+3} clamp")
        for q in range(2):
            a(f"v_max_f32 v{t+4*q}, s{s_eps}, v{t+4*q}")
            a(f"v_max_f32 v{t+4*q+1}, s{s_eps}, v{t+4*q+1}")
        for q in range(2):
            a(f"v_add_f32 v{t+4*q}, v{t+4*q}, v{t+4*q+2}")
            a(f"v_add_f32 v{t+4*q+1}, v{t+4*q+1}, v{t+4*q+3}")
        for q in range(2):
            a(f"v_cvt_pk_bf16_f32 v{dst+p+q}, v{t+4*q}, v{t+4*q+1}")

def cmul_ops(d, x, y):
    return [f"v_pk_mul_f32 v[{d}:{d+1}], v[{x}:{x+1}], v[{y}:{y+1}] op_sel:[0,0] op_sel_hi:[1,0]",
            f"v_pk_fma_f32 v[{d}:{d+1}], v[{x}:{x+1}], v[{y}:{y+1}], v[{d}:{d+1}] op_sel:[1,1,0] op_sel_hi:[0,1,1] neg_lo:[1,0,0]"]
def hmul_ops(d, x, y):
    return [f"v_pk_mul_f16 v{d}, v{x}, v{y} op_sel:[0,0] op_sel_hi:[1,0]",
            f"v_pk_fma_f16 v{d}, v{x}, v{y}, v{d} op_sel:[1,1,0] op_sel_hi:[0,1,1] neg_lo:[1,0,0]"]
def interleave(a, streams):
    idx = [0] * len(streams)
    live = True
    while live:
        live = False
        for i, s in enumerate(streams):
            if idx[i] < len(s):
                a(s[idx[i]]); idx[i] += 1; live = True


import re as _re
def _regs(tok):
    out = []
    for m in _re.finditer(r"v\[(\d+):(\d+)\]|v(\d+)", tok):
        if m.group(1): out += list(range(int(m.group(1)), int(m.group(2)) + 1))
        else: out.append(int(m.group(3)))
    return out
def _rw(ins):
    op, rest = ins.split(None, 1)
    ops = rest.split(" op_sel")[0].split(" offset")[0].split(",")
    if op.startswith("ds_write"):
        return [], _regs(rest.split(" offset")[0]), "ds"
    w = _regs(ops[0]); r = [x for o in ops[1:] for x in _regs(o)]
    if op in ("v_fmac_f32",): r += w
    kind = "ds" if op.startswith("ds_") else ("tr" if op.split("_")[1] in ("exp", "sin", "cos", "rcp") else "v")
    return w, r, kind
def schedule(a, instrs, lat=3, dslat=4):
    n = len(instrs); info = [_rw(i) for i in instrs]
    preds = [dict() for _ in range(n)]
    lastw = {}; readers = {}; lastds = None
    for i, (w, r, k) in enumerate(info):
        for x in r:
            if x in lastw:
                j = lastw[x]
                d = dslat if k == "ds" else (lat + 1 if info[j][2] == "tr" else lat)
                preds[i][j] = max(preds[i].get(j, 0), d)
        for x in w:
            if x in lastw: preds[i][lastw[x]] = max(preds[i].get(lastw[x], 0), 1)
            for j in readers.get(x, []):
                if j != i: preds[i][j] = max(preds[i].get(j, 0), 1)
        if k == "ds":
            if lastds is not None: preds[i][lastds] = max(preds[i].get(lastds, 0), 1)
            lastds = i
        for x in r: readers.setdefault(x, []).append(i)
        for x in w:
            lastw[x] = i; readers[x] = []
    succ = [[] for _ in range(n)]
    for i in range(n):
        for j, d in preds[i].items(): succ[j].append((i, d))
    prio = [0] * n
    for i in range(n - 1, -1, -1):
        prio[i] = max([d + prio[k] for k, d in succ[i]], default=0)
    done = {}; t = 0; left = set(range(n))
    while left:
        ready = [i for i in left if all(j in done for j in preds[i])]
        ok = [i for i in ready if all(done[j] + d <= t for j, d in preds[i].items())]
        if ok:
            i = max(ok, key=lambda i: (prio[i], -i))
        else:
            i = min(ready, key=lambda i: (max(done[j] + d for j, d in preds[i].items()), -prio[i]))
            if any(info[j][2] == "tr" and done[j] == t - 1 and set(info[j][0]) & set(info[i][1]) for j in preds[i]):
                a("s_nop 0"); t += 1
        a(instrs[i]); done[i] = t; t += 1; left.discard(i)

class Collect:
    def __init__(self): self.l = []
    def __call__(self, s):
        if not s.startswith("s_nop"): self.l.append(s)

def wait_init(a, v, sdbg, pre):
    L, Lk = a.newlabel("Lwi"), a.newlabel("Lwik")
    a("s_movk_i32 s64, 3000")
    if not pre:
        a(f"buffer_load_dword v{v}, v{v+1}, s[{sdbg}:{sdbg+3}], 0 offen sc1")
    a.label(L)
    a("s_waitcnt vmcnt(0)")
    a(f"v_cmp_ne_u32 vcc, 1, v{v}")
    a("s_sub_u32 s64, s64, 1")
    a(f"s_cbranch_scc1 {Lk}")
    a(f"s_cbranch_vccz {Lk}")
    a("s_sleep 2")
    a(f"buffer_load_dword v{v}, v{v+1}, s[{sdbg}:{sdbg+3}], 0 offen sc1")
    a(f"s_branch {L}")
    a.label(Lk)

RS = 4 * 256 + 32
SCRG = 16 * RS
TSTR = 4736
SLOT = 32768
SB0 = 21760
SLOT_OFF = [SB0 + i * SLOT for i in range(4)]
TAB_L = SCRG
A_TAB = SCRG
A_UT = 36864

ACC = 112
TA = [3, 4, 5, 6, 7, 14, 15, 18]
def kbase(mt, q, r):
    if mt == 0:
        return [r, 4 + r, 256 + 2 * r, 512 + 4 * (r & 1) + 256 * (r >> 1)][q]
    if q == 0: return 1024 + 256 * r
    if q == 1 and r == 0: return 2048
    return 2049

def kgen_load4(a):
    a(f"global_load_dwordx2 v[148:149], v3, s[{P_CR}:{P_CR+1}]")
    a(f"global_load_dwordx2 v[150:151], v3, s[{P_CI}:{P_CI+1}]")
    a(f"global_load_short_d16_hi v16, v4, s[{P_LDT}:{P_LDT+1}]")
    a(f"global_load_dwordx2 v[152:153], v3, s[{P_LA}:{P_LA+1}]")
    a(f"global_load_dwordx2 v[154:155], v3, s[{P_AI}:{P_AI+1}]")
    a(f"global_load_short_d16_hi v17, v4, s[{P_D}:{P_D+1}]")

def kgen_load(a):
    a(f"global_load_dword v10, v3, s[{P_CR}:{P_CR+1}]")
    a(f"global_load_dword v11, v3, s[{P_CI}:{P_CI+1}]")
    a(f"global_load_short_d16_hi v16, v4, s[{P_LDT}:{P_LDT+1}]")
    a(f"global_load_dword v8, v3, s[{P_LA}:{P_LA+1}]")
    a(f"global_load_dword v9, v3, s[{P_AI}:{P_AI+1}]")
    a(f"global_load_short_d16_hi v17, v4, s[{P_D}:{P_D+1}]")

def kgen_addr(a):
    a("v_lshlrev_b32 v3, 2, v2")
    a("s_lshl_b32 s14, s7, 9")
    a("s_bfe_u32 s15, s5, 0x10001")
    a("s_lshl_b32 s15, s15, 8")
    a("s_add_u32 s14, s14, s15")
    a("v_add_u32 v3, s14, v3")
    a("s_lshl_b32 s14, s7, 1")
    a("v_mov_b32 v4, s14")

def kgen_setup(a, younger, full=False):
    a(f"s_mov_b32 s66, {fhex(LOG2E)}")
    a(f"s_mov_b32 s67, {fhex(-LOG2E)}")
    a(f"s_mov_b32 s68, {fhex(C_HI)}")
    a(f"s_mov_b32 s69, {fhex(C_LO)}")
    a(f"s_mov_b32 s70, {fhex(8.0)}")
    a(f"s_mov_b32 s71, {fhex(256.0)}")
    a("v_and_b32 v24, 15, v2")
    a(f"v_mul_u32_u24 v20, {RS}, v24")
    a("v_lshrrev_b32 v21, 4, v2")
    a("v_lshl_add_u32 v20, v21, 4, v20")
    a("v_add_u32 v20, s72, v20")
    a(f"v_mul_u32_u24 v21, {RS}, v21")
    a("v_lshl_add_u32 v21, v24, 4, v21")
    a("v_mov_b32 v22, 0x00003c00")
    srd(a, 52, P_WS, 448 * KT_ROW, WS_KT)
    a("v_lshl_add_u32 v24, v24, 4, s13")
    for q in range(4):
        lo = (0xffff << (16 * q)) & 0xffffffff if q < 2 else 0
        hi_ = (0xffff << (16 * (q - 2))) & 0xffffffff if q >= 2 else 0
        a(f"s_mov_b32 exec_lo, 0x{lo:x}")
        a(f"s_mov_b32 exec_hi, 0x{hi_:x}")
        for mt in range(2):
            for r in range(4):
                a(f"v_add_u32 v{TA[4*mt+r]}, {2*kbase(mt,q,r)}, v24")
    a("s_mov_b64 exec, -1")
    a("s_mov_b32 m0, s72")
    a(f"s_waitcnt vmcnt({3 + younger})")
    if full:
        a("v_and_b32 v24, 0x7fff7fff, v148")
        a("v_and_b32 v25, 0x7fff7fff, v149")
        a("v_and_b32 v26, 0x7fff7fff, v150")
        a("v_and_b32 v27, 0x7fff7fff, v151")
        a("v_pk_max_u16 v24, v24, v26")
        a("v_pk_max_u16 v25, v25, v27")
    else:
        a("v_and_b32 v24, 0x7fff7fff, v10")
        a("v_and_b32 v25, 0x7fff7fff, v11")
    a("v_and_b32 v16, 0xffff0000, v16")
    a("v_pk_max_u16 v24, v24, v25")
    a("v_mul_f32 v16, s66, v16")
    a("v_exp_f32 v16, v16")
    a("v_lshrrev_b32 v25, 16, v24")
    a("v_and_b32 v24, 0xffff, v24")
    a("v_max_u32 v24, v24, v25")
    a("v_cvt_pk_bf16_f32 v16, v16, v16")
    a("v_and_b32 v16, 0xffff0000, v16")
    for ctl in ("row_shr:1 row_mask:0xf bank_mask:0xf", "row_shr:2 row_mask:0xf bank_mask:0xf",
                "row_shr:4 row_mask:0xf bank_mask:0xf", "row_shr:8 row_mask:0xf bank_mask:0xf",
                "row_bcast:15 row_mask:0xa bank_mask:0xf", "row_bcast:31 row_mask:0xc bank_mask:0xf"):
        a(f"v_max_u32_dpp v24, v24, v24 {ctl}")
        a("s_nop 1")
    a("v_readlane_b32 s74, v24, 63")
    a("v_readfirstlane_b32 s75, v16")
    a("s_nop 3")
    a("s_lshr_b32 s74, s74, 7")
    a("s_max_u32 s74, s74, 14")
    a("s_min_u32 s74, s74, 254")
    a("s_sub_u32 s76, 267, s74")
    a("s_lshl_b32 s76, s76, 23")
    a("s_sub_u32 s77, s74, 13")
    a("s_lshl_b32 s77, s77, 23")
    a(f"s_waitcnt vmcnt({younger})")
    if full: return
    Ls = a.newlabel("Lsh")
    a("s_bitcmp0_b32 s5, 0")
    a(f"s_cbranch_scc1 {Ls}")
    for r in range(8, 12):
        a(f"v_lshrrev_b32 v{r}, 16, v{r}")
    a.label(Ls)

def kgen_pass(a, hook, accum=False):
    real = a
    if "nosched" not in OPT: a = Collect()
    FX = 80
    Z1, Z2, Z4, Z256 = 32, 34, 36, 38
    Q1, Q2, Q3, Q4, QT = 40, 42, 44, 46, 48
    P1, P2 = 50, 52
    XA, XB_, RA, RB, SA, SB = 54, 56, 58, 60, 62, 12
    QH = [22, 64, 65, 66, 67, 68, 69, 70]
    PH = [None, 71, 72, 73]
    H1, H2, H3 = [74, 75, 156, 157], [76, 77, 158, 159], [78, 79]
    def wr(row, v):
        return f"ds_write_addtid_b32 v{v} offset:{(row % 16) * RS}"
    a("v_lshlrev_b32 v24, 16, v8")
    a("v_lshlrev_b32 v25, 16, v9")
    a("v_mul_f32 v24, s66, v24")
    a("v_exp_f32 v24, v24")
    a("v_mul_f32 v25, s75, v25")
    a("v_mul_f32 v26, s68, v25")
    a("v_cvt_pk_bf16_f32 v24, v24, v24")
    a("v_fma_f32 v27, v25, s68, -v26")
    a("v_and_b32 v24, 0xffff0000, v24")
    a("v_fmac_f32 v27, s69, v25")
    a("v_mul_f32 v24, s75, v24")
    a("v_mul_f32 v24, s67, v24")
    a(f"v_lshlrev_b32 v{XA}, 16, v10")
    a(f"v_lshlrev_b32 v{XA+1}, 16, v11")
    a(f"v_mul_f32 v{XA}, s76, v{XA}")
    a(f"v_mul_f32 v{XA+1}, s76, v{XA+1}")
    st = []
    for (dst, sm, t, neg) in ((Z1, None, 28, False), (Q1, 70, 74, True), (Z256, 71, 77, False)):
        s_ = []
        if sm is None:
            s_ += [f"v_exp_f32 v{t}, v24", f"v_fract_f32 v{t+1}, v26", f"v_add_f32 v{t+1}, v{t+1}, v27"]
        else:
            s_ += [f"v_mul_f32 v{t}, s{sm}, v24", f"v_exp_f32 v{t}, v{t}", f"v_mul_f32 v{t+1}, s{sm}, v26",
                   f"v_fract_f32 v{t+1}, v{t+1}", f"v_fmac_f32 v{t+1}, s{sm}, v27"]
        s_ += [f"v_cos_f32 v{t+2}, v{t+1}", f"v_sin_f32 v{t+1}, v{t+1}", "s_nop 0", f"v_mul_f32 v{dst}, v{t}, v{t+2}"]
        s_ += [f"v_mul_f32_e64 v{dst+1}, v{t}, {'-' if neg else ''}v{t+1}"]
        st.append(s_)
    interleave(a, st)
    hook(0)
    for s_ in cmul_ops(RA, XA, Z256): a(s_)
    def cvh(stream, hs, k, src, row):
        h = hs[k % len(hs)]
        stream.append(f"v_cvt_pk_f16_f32 v{h}, v{src}, v{src+1}")
        stream.append(wr(row, h))
    s1 = []
    cur, oth = XA, XB_
    cvh(s1, H1, 0, XA, 0)
    for f in range(1, 8):
        s1 += cmul_ops(oth, cur, Z1)
        cvh(s1, H1, f, oth, f)
        cur, oth = oth, cur
    s2 = cmul_ops(Z2, Z1, Z1) + cmul_ops(Z4, Z2, Z2)
    k = 0
    cvh(s2, H2, k, RA, 8); k += 1
    s2 += cmul_ops(RB, RA, Z256)
    s2 += cmul_ops(SA, RA, Z2); cvh(s2, H2, k, SA, 9); k += 1
    s2 += cmul_ops(SB, RA, Z4); cvh(s2, H2, k, SB, 10); k += 1
    s2 += cmul_ops(SA, SB, Z2); cvh(s2, H2, k, SA, 11); k += 1
    cvh(s2, H2, k, RB, 12); k += 1
    s2 += cmul_ops(RA, RB, Z256)
    s2 += cmul_ops(SA, RB, Z4); cvh(s2, H2, k, SA, 13); k += 1
    cvh(s2, H2, k, RA, 14); k += 1
    s2 += cmul_ops(RB, RA, Z256)
    s2 += cmul_ops(SA, RA, Z4); cvh(s2, H2, k, SA, 15); k += 1
    s3 = []
    def qcv(b, src):
        s3.append(f"v_cvt_pk_f16_f32 v{QH[b]}, v{src}, v{src+1}")
    qcv(1, Q1)
    s3 += cmul_ops(Q2, Q1, Q1); qcv(2, Q2)
    s3 += cmul_ops(Q4, Q2, Q2)
    s3 += cmul_ops(Q3, Q2, Q1); qcv(4, Q4); qcv(3, Q3)
    s3 += cmul_ops(P1, Q4, Q4)
    s3 += cmul_ops(QT, Q4, Q1); qcv(5, QT)
    s3 += cmul_ops(P2, P1, P1)
    s3 += cmul_ops(QT, Q4, Q2); qcv(6, QT)
    s3 += cmul_ops(QT, Q4, Q3); qcv(7, QT)
    s3 += cmul_ops(QT, P2, P1)
    s3.append(f"v_cvt_pk_f16_f32 v{PH[1]}, v{P1}, v{P1+1}")
    s3.append(f"v_cvt_pk_f16_f32 v{PH[2]}, v{P2}, v{P2+1}")
    s3.append(f"v_cvt_pk_f16_f32 v{PH[3]}, v{QT}, v{QT+1}")
    interleave(a, [s1[:16], s2[:16], s3[:16]])
    hook(1)
    interleave(a, [s1[16:], s2[16:], s3[16:]])
    def rdf(f0):
        for kk in range(4):
            f = f0 + 4 * kk
            a(f"ds_read_b128 v[{f}:{f+3}], v20 offset:{64*kk}")
    rdf(FX)
    hook(2)
    s4 = []
    c_, o_ = RB, RA
    for row in range(16, 21):
        cvh(s4, H2, row, c_, row)
        if row < 20:
            s4 += cmul_ops(o_, c_, Z256)
            c_, o_ = o_, c_
    s5 = []
    Y1 = [None, 32, 33, 34, 35, 36, 37, 40]
    for b in range(1, 8):
        s5 += hmul_ops(Y1[b], PH[1], QH[b])
    interleave(a, [s4, s5])
    rdf(FX + 16)
    hook(3)
    w0 = [wr(b, QH[b]) for b in range(8)] + [wr(8, PH[1])] + [wr(8 + b, Y1[b]) for b in range(1, 8)]
    Y2 = [None, 41, 42, 43, 44, 45, 46, 47]
    s6 = []
    for b in range(1, 8):
        s6 += hmul_ops(Y2[b], PH[2], QH[b])
    interleave(a, [w0, s6])
    rdf(48)
    w1 = [wr(0, PH[2])] + [wr(b, Y2[b]) for b in range(1, 8)] + [wr(8, PH[3])]
    s7 = []
    for b in range(1, 8):
        h = H1[b % 4]
        s7 += hmul_ops(h, PH[3], QH[b])
        s7.append(wr(8 + b, h))
    interleave(a, [w1, s7])
    rdf(32)
    if a is not real:
        schedule(real, a.l, optint("lat", 3), optint("dsl", 4))
        a = real
    def mm(nt, kk):
        for mt in range(2):
            fa = FX + 16 * mt + 4 * kk
            fb = (48 if nt == 0 else 32) + 4 * kk
            d = ACC + 8 * mt + 4 * nt
            cin = "0" if (kk == 0 and not accum) else f"v[{d}:{d+3}]"
            a(f"v_mfma_f32_16x16x32_f16 v[{d}:{d+3}], v[{fa}:{fa+3}], v[{fb}:{fb+3}], {cin}")
    a("s_waitcnt lgkmcnt(15)")
    for kk in range(4): mm(0, kk)
    for kk in range(4):
        a(f"s_waitcnt lgkmcnt({3-kk})")
        mm(1, kk)
    if accum: return
    kgen_scale(a, True)

def kgen_scale(a, publish):
    a("v_mov_b32 v25, s75")
    a("v_mul_f32 v25, s77, v25")
    a("v_add_f32 v25, v25, v25")
    a("v_add_u32 v30, s72, v21")
    a("v_lshlrev_b32 v26, 4, v2")
    a("v_and_b32 v17, 0xffff0000, v17")
    a(f"s_add_u32 s14, s13, {16*63}")
    a("v_sub_u32 v27, s14, v26")
    a("s_nop 1")
    for q in range(4):
        for r in range(4):
            a(f"v_mul_f32 v{ACC+4*q+r}, v25, v{ACC+4*q+r}")
        if publish:
            a(f"ds_write_b128 v30, v[{ACC+4*q}:{ACC+4*q+3}] offset:{4*q*RS}")

def kgen_solo(a):
    a("s_mov_b64 exec, 1")
    a(f"v_add_f32 v{ACC}, v{ACC}, v17")
    a("s_mov_b64 exec, -1")
    for mt in range(2):
        for r in range(4):
            a(f"v_cvt_pk_bf16_f32 v{40+4*mt+r}, v{ACC+8*mt+r}, v{ACC+8*mt+4+r}")
            a(f"ds_write_b16 v{TA[4*mt+r]}, v{40+4*mt+r}")
            a(f"ds_write_b16_d16_hi v{TA[4*mt+r]}, v{40+4*mt+r} offset:256")
    a("v_cmp_gt_u32 vcc, 32, v2")
    a("v_and_b32 v31, 1, v2")
    a("v_mul_u32_u24 v31, 0x0404, v31")
    a("v_cndmask_b32_e64 v28, 0, 2, vcc")
    a("v_add_u32 v29, v27, v28")
    a("v_sub_u32 v30, v27, v28")
    for m in range(2):
        o = (3 - m) * 1024
        a(f"ds_read_u16 v{80+2*m}, v27 offset:{o}")
        a(f"ds_read_u16 v{81+2*m}, v27 offset:{o+16}")
    a("ds_read_u16 v88, v27 offset:1024")
    a("ds_read_u16 v89, v27 offset:1032")
    a("ds_read_u16 v90, v27 offset:1040")
    for k_, (reg, idx) in enumerate(((29, 7), (27, 6), (30, 5), (27, 4), (29, 3), (27, 2), (30, 1), (27, 0))):
        a(f"ds_read_u16 v{92+k_}, v{reg} offset:{2*idx}")
    a("s_mov_b32 s60, 0x05040504")
    a("s_mov_b32 s61, 0x01000100")
    a("s_mov_b32 s62, 0x01000504")
    a(f"s_mul_i32 s15, s7, {KT_ROW}")
    a("v_mov_b32 v84, 0\nv_mov_b32 v85, 0\nv_mov_b32 v86, 0\nv_mov_b32 v87, 0")
    a("v_lshlrev_b32 v31, 16, v31")
    a("v_sub_u32 v31, 0x05040504, v31")
    E = 48
    a("s_waitcnt lgkmcnt(8)")
    for m in range(2):
        ra, rb = 80 + 2 * m, 81 + 2 * m
        e = E + 4 * m
        a(f"v_perm_b32 v{e}, v{rb}, v{ra}, s60")
        a(f"v_perm_b32 v{e+1}, v{rb}, v{ra}, v31")
        a(f"v_perm_b32 v{e+2}, v{rb}, v{ra}, s61")
        a(f"v_perm_b32 v{e+3}, v{rb}, v{ra}, s61")
        a(f"buffer_store_dwordx4 v[{e}:{e+3}], v26, s[52:55], s15 offen offset:{m*1024}{ST}")
    e = E + 8
    a(f"v_perm_b32 v{e}, v90, v90, s61")
    a(f"v_perm_b32 v{e+1}, v89, v88, s60")
    a(f"v_perm_b32 v{e+2}, v89, v88, s62")
    a(f"v_perm_b32 v{e+3}, v89, v88, s61")
    a(f"buffer_store_dwordx4 v[{e}:{e+3}], v26, s[52:55], s15 offen offset:2048{ST}")
    a("s_waitcnt lgkmcnt(0)")
    e = E + 12
    for k_ in range(4):
        a(f"v_lshl_or_b32 v{e+k_}, v{93+2*k_}, 16, v{92+2*k_}")
    a(f"buffer_store_dwordx4 v[{e}:{e+3}], v26, s[52:55], s15 offen offset:3072{ST}")
    a("s_add_u32 s15, s15, 4096")
    a("s_mov_b64 exec, 1")
    a(f"buffer_store_dwordx4 v[84:87], v26, s[52:55], s15 offen{ST}")
    a("s_mov_b64 exec, -1")

def kgen_table(a):
    a("s_and_b32 s14, s5, 3")
    a(f"s_mul_i32 s15, s14, {4*RS}")
    a("s_andn2_b32 s74, s72, 0x300")
    a("s_add_u32 s15, s15, s74")
    a("v_add_u32 v30, s15, v21")
    for i in range(4):
        a(f"ds_read_b128 v[{32+4*i}:{35+4*i}], v30 offset:{i*256}")
    L = a.newlabel("Lmt")
    a("s_bitcmp0_b32 s5, 1")
    a(f"s_cbranch_scc1 {L}")
    for r in range(4):
        a(f"v_mov_b32 v{TA[r]}, v{TA[4+r]}")
    a.label(L)
    a("s_and_b32 s15, s5, 1")
    a("s_lshl_b32 s15, s15, 8")
    for r in range(4):
        a(f"v_add_u32 v{TA[r]}, s15, v{TA[r]}")
    a("s_cmp_eq_u32 s14, 0")
    a("s_cselect_b32 s74, 1, 0")
    a("s_mov_b32 s75, 0")
    a("s_waitcnt lgkmcnt(0)")
    for r in range(4):
        a(f"v_add_f32 v{32+r}, v{32+r}, v{36+r}")
        a(f"v_add_f32 v{40+r}, v{40+r}, v{44+r}")
    for r in range(4):
        a(f"v_add_f32 v{32+r}, v{32+r}, v{40+r}")
    a("s_mov_b64 exec, s[74:75]")
    a("v_add_f32 v32, v32, v17")
    a("s_mov_b64 exec, -1")
    a("v_cvt_pk_bf16_f32 v36, v32, v33")
    a("v_cvt_pk_bf16_f32 v37, v34, v35")
    a(f"ds_write_b16 v{TA[0]}, v36")
    a(f"ds_write_b16_d16_hi v{TA[1]}, v36")
    a(f"ds_write_b16 v{TA[2]}, v37")
    a(f"ds_write_b16_d16_hi v{TA[3]}, v37")

def kgen_expand(a):
    L2, L3, Le = a.newlabel("Lm2"), a.newlabel("Lm3"), a.newlabel("Lme")
    a("s_and_b32 s14, s5, 3")
    a(f"s_mul_i32 s15, s7, {KT_ROW}")
    a("s_lshl_b32 s74, s14, 10")
    a("s_add_u32 s77, s15, 4096")
    a("s_add_u32 s15, s15, s74")
    a("s_mov_b32 s74, 0x05040504")
    a("s_mov_b32 s75, 0x01000100")
    a("s_mov_b32 s76, 0x01000504")
    a("v_mov_b32 v84, 0\nv_mov_b32 v85, 0\nv_mov_b32 v86, 0\nv_mov_b32 v87, 0")
    a("s_cmp_eq_u32 s14, 3")
    a(f"s_cbranch_scc1 {L3}")
    a("s_cmp_eq_u32 s14, 2")
    a(f"s_cbranch_scc1 {L2}")
    a("s_lshl_b32 s14, s14, 10")
    a("v_subrev_u32 v28, s14, v27")
    a("ds_read_u16 v80, v28 offset:3072")
    a("ds_read_u16 v81, v28 offset:3088")
    a("v_and_b32 v31, 1, v2")
    a("v_mul_u32_u24 v31, 0x0404, v31")
    a("v_lshlrev_b32 v31, 16, v31")
    a("v_sub_u32 v31, 0x05040504, v31")
    a("s_waitcnt lgkmcnt(0)")
    a("v_perm_b32 v48, v81, v80, s74")
    a("v_perm_b32 v49, v81, v80, v31")
    a("v_perm_b32 v50, v81, v80, s75")
    a("v_perm_b32 v51, v81, v80, s75")
    a(f"s_branch {Le}")
    a.label(L2)
    a("ds_read_u16 v88, v27 offset:1024")
    a("ds_read_u16 v89, v27 offset:1032")
    a("ds_read_u16 v90, v27 offset:1040")
    a("s_waitcnt lgkmcnt(0)")
    a("v_perm_b32 v48, v90, v90, s75")
    a("v_perm_b32 v49, v89, v88, s74")
    a("v_perm_b32 v50, v89, v88, s76")
    a("v_perm_b32 v51, v89, v88, s75")
    a(f"s_branch {Le}")
    a.label(L3)
    a("v_cmp_gt_u32 vcc, 32, v2")
    a("s_nop 1")
    a("v_cndmask_b32_e64 v28, 0, 2, vcc")
    a("v_add_u32 v29, v27, v28")
    a("v_sub_u32 v30, v27, v28")
    for k_, (reg, idx) in enumerate(((29, 7), (27, 6), (30, 5), (27, 4), (29, 3), (27, 2), (30, 1), (27, 0))):
        a(f"ds_read_u16 v{92+k_}, v{reg} offset:{2*idx}")
    a("s_waitcnt lgkmcnt(0)")
    for k_ in range(4):
        a(f"v_lshl_or_b32 v{48+k_}, v{93+2*k_}, 16, v{92+2*k_}")
    a.label(Le)
    a(f"buffer_store_dwordx4 v[48:51], v26, s[52:55], s15 offen{ST}")
    a("s_mov_b64 exec, 1")
    a(f"buffer_store_dwordx4 v[84:87], v26, s[52:55], s77 offen{ST}")
    a("s_mov_b64 exec, -1")

def set_flag(a, soff, nl=1):
    a("v_mov_b32 v139, 1")
    a(f"s_mov_b64 exec, {(1 << nl) - 1}")
    a(f"buffer_store_dword v139, v138, s[56:59], s{soff} offen sc1")
    a("s_mov_b64 exec, -1")

def phase1_gemm(a):
    a.comment("---- GEMM WGs: waves 0..3 run one K-gen pass first, waves 4..7 start the loads ----")
    a("s_mul_i32 s7, s3, 24")
    a("s_add_u32 s7, s7, s4")
    a("s_and_b32 s6, s7, 0xe0")
    a("s_add_u32 s7, s7, s6")
    a("s_lshr_b32 s65, s5, 2")
    a("s_cmp_ge_u32 s5, 4")
    a("s_cbranch_scc1 L_g_dec")
    kgen_addr(a)
    a("s_lshl_b32 s72, s5, 8")
    a("s_waitcnt lgkmcnt(0)")
    stamp(a, 0)
    kgen_load(a)
    a.label("L_g_dec")
    a("s_lshr_b32 s6, s3, 1")
    a("s_lshl_b32 s6, s6, 2")
    a("s_and_b32 s60, s3, 1")
    a("s_lshr_b32 s8, s4, 2")
    a("s_add_u32 s8, s8, s6")
    a("s_and_b32 s9, s4, 3")
    a("s_lshl_b32 s10, s60, 2")
    a("s_add_u32 s9, s9, s10")
    a("s_mul_i32 s10, s9, 112")
    a("s_add_u32 s11, s10, 1792")
    a("s_add_u32 s10, s10, 896")
    a("s_sub_u32 s12, s4, 16")
    a("s_lshr_b32 s61, s12, 1")
    a("s_add_u32 s61, s61, s6")
    a("s_and_b32 s12, s12, 1")
    a("s_lshl_b32 s14, s60, 1")
    a("s_add_u32 s12, s12, s14")
    a("s_mul_i32 s14, s12, 224")
    a("s_add_u32 s15, s14, 112")
    a("s_cmp_lt_u32 s4, 16")
    a("s_cselect_b32 s8, s8, s61")
    a("s_cselect_b32 s9, s9, s12")
    a("s_cselect_b32 s10, s10, s14")
    a("s_cselect_b32 s11, s11, s15")
    a("s_and_b32 s60, s5, 3")
    a("v_lshrrev_b32 v164, 3, v2")
    a("v_lshrrev_b32 v165, 4, v2")
    a("v_and_b32 v166, 7, v2")
    a("s_lshl_b32 s12, s8, 7")
    a("s_lshl_b32 s61, s60, 5")
    a("s_add_u32 s12, s12, s61")
    a("v_add_u32 v167, s12, v164")
    a("v_mul_u32_u24 v167, 896, v167")
    a("v_xor_b32 v168, v166, v165")
    a("v_lshl_add_u32 v128, v168, 4, v167")
    a("v_xor_b32 v168, 4, v168")
    a("v_lshl_add_u32 v129, v168, 4, v167")
    a("v_add_u32 v129, 7168, v129")
    a("s_lshl_b32 s61, s60, 4")
    a("v_add_u32 v167, s61, v164")
    a("v_mul_u32_u24 v167, 2688, v167")
    a("v_and_b32 v168, 1, v165")
    a("v_lshlrev_b32 v168, 2, v168")
    a("v_xor_b32 v168, v168, v166")
    a("v_lshl_add_u32 v167, v168, 4, v167")
    a("v_add_u32 v130, s10, v167")
    a("v_add_u32 v131, s11, v167")
    a("s_lshl_b32 s10, s60, 12")
    a("s_lshl_b32 s11, s60, 11")
    a("s_add_u32 s11, s11, 16384")
    a("s_waitcnt lgkmcnt(0)")
    srd(a, 44, P_X, 2048 * 896)
    srd(a, 48, P_W, 448 * 2688)
    a("s_and_b32 s73, s8, 3")
    a("s_lshl_b32 s73, s73, 1")
    a("s_and_b32 s61, s9, 3")
    a("s_and_b32 s62, s9, 1")
    a("s_add_u32 s62, s62, 4")
    a("s_cmp_lt_u32 s4, 16")
    a("s_cselect_b32 s61, s61, s62")
    a("s_add_u32 s73, s73, s61")
    a("s_sub_u32 s61, s73, 7")
    a("s_cmp_ge_u32 s73, 7")
    a("s_cselect_b32 s73, s61, s73")
    if "norot" in OPT: a("s_mov_b32 s73, 0")
    def dma(c, i):
        so = SLOT_OFF[c % 4]; h = i // 4; i = i % 4
        if i == 0:
            if h == 0:
                a("s_lshl_b32 s6, s73, 7")
                a("s_mul_i32 s12, s73, 172032")
                a("s_add_u32 s73, s73, 1")
                a("s_cmp_eq_u32 s73, 7")
                a("s_cselect_b32 s73, 0, s73")
            else:
                a("s_add_u32 s6, s6, 14336")
                a("s_add_u32 s12, s12, 21504")
            a(f"s_add_u32 m0, s10, {so + h*2048}")
            a("s_nop 0")
            a("buffer_load_dwordx4 v128, s[44:47], s6 offen lds")
        elif i == 1:
            a(f"s_add_u32 m0, s11, {so + h*1024}")
            a("s_nop 0")
            a("buffer_load_dwordx4 v130, s[48:51], s12 offen lds")
        elif i == 2:
            a(f"s_add_u32 m0, s10, {so + h*2048 + 1024}")
            a("s_nop 0")
            a("buffer_load_dwordx4 v129, s[44:47], s6 offen lds")
        else:
            a(f"s_add_u32 m0, s11, {so + h*1024 + 8192}")
            a("s_nop 0")
            a("buffer_load_dwordx4 v131, s[48:51], s12 offen lds")
    def only(lo, body):
        L = a.newlabel("Lo")
        a(f"s_cmp_{'ge' if lo else 'lt'}_u32 s5, 4")
        a(f"s_cbranch_scc1 {L}")
        body()
        a.label(L)
    UP = 4
    U1 = optint("up", 2)
    def upfront():
        stamp(a, 0)
        for c in range(U1):
            for i in range(8): dma(c, i)
        if U1 < 4:
            a(f"s_waitcnt vmcnt({8*(U1-1)})")
        stamp(a, 1)
        for c in range(U1, 4):
            for i in range(8): dma(c, i)
    only(False, upfront)
    def adv4():
        a("s_add_u32 s73, s73, 4")
        a("s_sub_u32 s61, s73, 7")
        a("s_cmp_ge_u32 s73, 7")
        a("s_cselect_b32 s73, s61, s73")
    only(True, adv4)
    a("s_mul_i32 s42, s65, 14336")
    a("s_mul_i32 s43, s65, 21504")
    a("s_lshl_b32 s61, s65, 11")
    a("s_add_u32 s10, s10, s61")
    a("s_lshl_b32 s61, s65, 10")
    a("s_add_u32 s11, s11, s61")
    def dma2(c, i):
        so = SLOT_OFF[c % 4]
        if i == 0:
            a("s_lshl_b32 s6, s73, 7")
            a("s_mul_i32 s12, s73, 172032")
            a("s_add_u32 s73, s73, 1")
            a("s_cmp_eq_u32 s73, 7")
            a("s_cselect_b32 s73, 0, s73")
            a("s_add_u32 s6, s6, s42")
            a(f"s_add_u32 m0, s10, {so}")
            a("s_add_u32 s12, s12, s43")
            a("buffer_load_dwordx4 v128, s[44:47], s6 offen lds")
        elif i == 1:
            a(f"s_add_u32 m0, s11, {so}")
            a("s_nop 0")
            a("buffer_load_dwordx4 v130, s[48:51], s12 offen lds")
        elif i == 2:
            a(f"s_add_u32 m0, s10, {so + 1024}")
            a("s_nop 0")
            a("buffer_load_dwordx4 v129, s[44:47], s6 offen lds")
        else:
            a(f"s_add_u32 m0, s11, {so + 8192}")
            a("s_nop 0")
            a("buffer_load_dwordx4 v131, s[48:51], s12 offen lds")
    a("v_and_b32 v164, 31, v2")
    a("v_lshrrev_b32 v165, 5, v2")
    a("v_bfe_u32 v166, v2, 1, 3")
    a("v_xor_b32 v166, v166, v165")
    a("s_lshl_b32 s15, s60, 12")
    a("v_lshlrev_b32 v164, 7, v164")
    a("v_lshl_add_u32 v164, v166, 4, v164")
    a("v_add_u32 v132, s15, v164")
    a("v_xor_b32 v133, 32, v132")
    a("v_xor_b32 v134, 64, v132")
    a("v_xor_b32 v135, 0x60, v132")
    a("s_mul_i32 s15, s65, 56")
    a("v_bfe_u32 v164, v2, 4, 1")
    a("v_lshlrev_b32 v164, 5, v164")
    a("v_and_b32 v166, 3, v2")
    a("v_lshl_add_u32 v164, v166, 3, v164")
    a("v_add_u32 v164, s15, v164")
    a("v_bfe_u32 v166, v2, 3, 1")
    a("v_lshlrev_b32 v166, 6, v166")
    a("v_xor_b32 v164, v164, v166")
    a("v_bfe_u32 v166, v2, 2, 2")
    a("v_lshl_add_u32 v166, v165, 3, v166")
    a("v_lshl_add_u32 v164, v166, 7, v164")
    a("v_add_u32 v136, 16384, v164")
    for r in range(5):
        a(f"v_add_u32 v{140+r}, 0x10000, v{132+r}")
        a(f"v_add_u32 v{148+r}, 0x20000, v{132+r}")
    a("v_lshlrev_b32 v138, 2, v2")
    a("v_and_b32 v146, 28, v138")
    srd(a, 52, P_WS, 448 * KT_ROW, WS_KT)
    a("v_lshlrev_b32 v26, 4, v2")
    srd(a, 56, P_WS, FL_BYTES, WS_FL)
    srd(a, 60, P_DBG, 256)
    def kg():
        a(f"s_movk_i32 s13, {TAB_L + 16}")
        kgen_setup(a, 0)
        stamp(a, 1)
        kgen_pass(a, lambda k: None)
        stamp(a, 2)
    only(True, kg)
    a(f"s_mov_b32 s66, {fhex(LOG2E)}")
    a(f"s_mov_b32 s67, {fhex(1e-6)}")
    a(f"s_waitcnt vmcnt({8*(UP-1)}) lgkmcnt(0)")
    a("s_barrier")
    stamp(a, 3)
    a("s_cmp_ge_u32 s4, 16")
    a("s_cbranch_scc1 L_q")

    FR = 160
    ACC0, ACC1 = 208, 224
    def main_loop(is_q):
        def adr(c, k):
            so = SLOT_OFF[c % 4]
            if so + SLOT > 65536:
                if so >= 65536: return 140 + k, so - 65536
            return 132 + k, so
        def reads(c, k):
            f = FR + 12 * k
            so = SLOT_OFF[c % 4]
            def pick(reg, off):
                return (reg + 8 * (off >> 16), off & 65535)
            r, o = pick(132 + k, so)
            a(f"ds_read_b128 v[{f}:{f+3}], v{r} offset:{o}")
            for seg in range(2):
                for jj in range(2):
                    d = f + 4 + 4 * seg + 2 * jj
                    r, o = pick(136, so + seg * 8192 + (16 * k + 4 * jj) * 128)
                    a(f"ds_read_b64_tr_b16 v[{d}:{d+1}], v{r} offset:{o}")
        def mfma(c, k):
            f = FR + 12 * k
            for seg, acc in ((0, ACC0), (1, ACC1)):
                wf = f + 4 + 4 * seg
                cin = "0" if (c == 0 and k == 0) else f"v[{acc}:{acc+15}]"
                if is_q:
                    a(f"v_mfma_f32_32x32x16_bf16 v[{acc}:{acc+15}], v[{wf}:{wf+3}], v[{f}:{f+3}], {cin}")
                else:
                    a(f"v_mfma_f32_32x32x16_bf16 v[{acc}:{acc+15}], v[{f}:{f+3}], v[{wf}:{wf+3}], {cin}")
        issued = [UP]
        pend = []
        def plan(b):
            n = issued[0]
            if n <= 6 and b >= n - 2:
                pend.extend((n, i) for i in range(4))
                issued[0] += 1
        def drip(k):
            k = (k + 1) // 2
            for _ in range(min(k, len(pend))):
                dma2(*pend.pop(0))
        reads(0, 0); reads(0, 1)
        plan(0)
        for c in range(7):
            reads(c, 2)
            a("s_waitcnt lgkmcnt(10)")
            mfma(c, 0)
            drip(4 if c == 0 else 2)
            reads(c, 3)
            a("s_waitcnt lgkmcnt(10)")
            mfma(c, 1)
            drip(8)
            if c == 0:
                only(True, lambda: (kgen_table(a), a("s_waitcnt lgkmcnt(0)")))
            if c == 1:
                only(True, lambda: kgen_expand(a))
            if c < 6:
                a(f"s_waitcnt vmcnt({[16, 8, 4, 4, 4, 0][c]})")
                a("s_barrier")
                plan(c + 1)
                if c == 3:
                    only(True, lambda: a("buffer_load_dword v145, v146, s[60:63], 0 offen sc1"))
            a("s_waitcnt lgkmcnt(5)")
            mfma(c, 2)
            drip(2)
            if c < 6:
                reads(c + 1, 0)
                a("s_waitcnt lgkmcnt(5)")
            else:
                a("s_waitcnt lgkmcnt(0)")
            mfma(c, 3)
            drip(2)
            if c < 6:
                reads(c + 1, 1)
            if c == 5:
                L = a.newlabel("Lkf")
                a("s_cmp_lg_u32 s5, 0")
                a(f"s_cbranch_scc1 {L}")
                wait_init(a, 145, 60, True)
                a(f"s_lshl_b32 s14, s7, {FSH}")
                a(f"s_add_u32 s14, s14, {FL_K}")
                set_flag(a, 14, 1)
                a.label(L)
        stamp(a, 4)

    main_loop(False)
    srd(a, 52, P_WS, 0x10000, WS_KV)
    PK, VV, TMP = 32, 40, 48
    XB = SLOT_OFF[0]
    a("v_lshlrev_b32 v10, 4, v2")
    a("s_lshl_b32 s14, s5, 12")
    a(f"s_add_u32 s14, s14, {XB}")
    a("v_add_u32 v11, s14, v10")
    a("s_and_b32 s14, s5, 3")
    a("s_lshl_b32 s14, s14, 10")
    a("s_lshl_b32 s15, s65, 14")
    a("s_add_u32 s14, s14, s15")
    a(f"s_add_u32 s14, s14, {XB}")
    a("v_add_u32 v12, s14, v138")
    a("s_nop 1")
    phi_pack(a, ACC0, PK, TMP, 66, 67)
    for p in range(8):
        a(f"v_cvt_pk_bf16_f32 v{VV+p}, v{ACC1+2*p}, v{ACC1+2*p+1}")
    if "epi" in OPT: stamp(a, 0)
    a("s_mov_b32 exec_lo, 0x10000000")
    a("s_mov_b32 exec_hi, 0x10000000")
    for p in range(8):
        a(f"v_mov_b32 v{VV+p}, 0x3f803f80")
    a("s_mov_b64 exec, -1")
    a("s_nop 1")
    KV = 56
    a(f"v_mfma_f32_32x32x16_bf16 v[{KV}:{KV+15}], v[{PK}:{PK+3}], v[{VV}:{VV+3}], 0")
    a(f"v_mfma_f32_32x32x16_bf16 v[{KV}:{KV+15}], v[{PK+4}:{PK+7}], v[{VV+4}:{VV+7}], v[{KV}:{KV+15}]")
    a("s_lshl_b32 s14, s9, 1")
    a("s_add_u32 s14, s14, s65")
    a("s_lshl_b32 s14, s14, 12")
    a("s_and_b32 s15, s5, 3")
    a("s_lshl_b32 s15, s15, 10")
    a("s_add_u32 s14, s14, s15")
    a("s_nop 6")
    for q in range(4):
        a(f"ds_write_b128 v11, v[{KV+4*q}:{KV+4*q+3}] offset:{q*1024}")
    a("s_waitcnt lgkmcnt(0)")
    a("s_barrier")
    if "epi" in OPT: stamp(a, 1)
    for i in range(4):
        a(f"ds_read2st64_b32 v[{32+4*i}:{33+4*i}], v12 offset0:{i} offset1:{16+i}")
        a(f"ds_read2st64_b32 v[{34+4*i}:{35+4*i}], v12 offset0:{32+i} offset1:{48+i}")
    for i in range(4):
        a(f"s_waitcnt lgkmcnt({6-2*i})")
        b = 32 + 4 * i
        a(f"v_add_f32 v{b}, v{b}, v{b+1}")
        a(f"v_add_f32 v{b+2}, v{b+2}, v{b+3}")
        a(f"v_add_f32 v{b}, v{b}, v{b+2}")
        a(f"buffer_atomic_add_f32 v{b}, v138, s[52:55], s14 offen offset:{i*256}")
    if "epi" in OPT: stamp(a, 2)
    a("s_waitcnt vmcnt(0)")
    if "epi" in OPT: stamp(a, 3)
    a("s_barrier")
    L = a.newlabel("Lvf")
    a("s_cmp_lg_u32 s5, 0")
    a(f"s_cbranch_scc1 {L}")
    a("s_lshl_b32 s14, s3, 4")
    a("s_add_u32 s14, s14, s4")
    a(f"s_lshl_b32 s14, s14, {FSH}")
    a(f"s_add_u32 s14, s14, {FL_KV}")
    set_flag(a, 14)
    a.label(L)
    stamp(a, 5)
    a("s_cmp_lt_u32 s4, 14")
    a("s_cbranch_scc1 L_w4")
    stamp_flush(a, 0)
    a("s_endpgm")

    a.label("L_q")
    main_loop(True)
    srd(a, 52, P_WS, 0x200000, WS_PQ)
    a("s_lshl_b32 s14, s8, 2")
    a("s_and_b32 s15, s5, 3")
    a("s_add_u32 s14, s14, s15")
    a("s_lshl_b32 s14, s14, 4")
    a("s_lshl_b32 s15, s9, 2")
    a("s_add_u32 s14, s14, s15")
    a("s_add_u32 s14, s14, s65")
    a("s_lshl_b32 s14, s14, 11")
    a("s_add_u32 s15, s14, 4096")
    a("v_lshlrev_b32 v10, 4, v2")
    phi_pack(a, ACC0, 32, 48, 66, 67)
    a(f"buffer_store_dwordx4 v[32:35], v10, s[52:55], s14 offen{ST}")
    a(f"buffer_store_dwordx4 v[36:39], v10, s[52:55], s14 offen offset:1024{ST}")
    phi_pack(a, ACC1, 40, 48, 66, 67)
    a(f"buffer_store_dwordx4 v[40:43], v10, s[52:55], s15 offen{ST}")
    a(f"buffer_store_dwordx4 v[44:47], v10, s[52:55], s15 offen offset:1024{ST}")
    a("s_lshl_b32 s14, s8, 2")
    a("s_add_u32 s14, s14, s9")
    a(f"s_lshl_b32 s14, s14, {FSH}")
    a(f"s_add_u32 s66, s14, {FL_Q}")
    stamp(a, 5)
    a("s_sub_u32 s4, s4, 16")
    a("s_cmp_lt_u32 s3, 7")
    a("s_cbranch_scc1 L_conv")
    a("s_waitcnt vmcnt(0)")
    a("s_barrier")
    L = a.newlabel("Lqf")
    a("s_cmp_lg_u32 s5, 0")
    a(f"s_cbranch_scc1 {L}")
    set_flag(a, 66)
    a.label(L)
    stamp_flush(a, 0)
    a("s_endpgm")

def phase1_a(a):
    a.comment("---- A WGs ----")
    a("s_sub_u32 s6, s4, 24")
    a("v_lshlrev_b32 v138, 2, v2")
    a("v_and_b32 v146, 28, v138")
    a("s_cmp_ge_u32 s5, 6")
    a("s_cbranch_scc1 L_ut")
    a("s_cmp_ge_u32 s5, 4")
    a("s_cbranch_scc1 L_touch")
    a("s_lshl_b32 s7, s3, 6")
    a("s_add_u32 s7, s7, 32")
    a("s_cmp_eq_u32 s3, 7")
    a("s_cselect_b32 s7, 384, s7")
    a("s_lshl_b32 s14, s6, 2")
    a("s_add_u32 s7, s7, s14")
    a("s_add_u32 s7, s7, s5")
    a("v_lshlrev_b32 v3, 3, v2")
    a("s_lshl_b32 s14, s7, 9")
    a("v_add_u32 v3, s14, v3")
    a("s_lshl_b32 s14, s7, 1")
    a("v_mov_b32 v4, s14")
    a("s_lshl_b32 s72, s5, 8")
    a(f"s_mul_i32 s13, s5, {TSTR}")
    a(f"s_add_u32 s13, s13, {A_TAB + 16}")
    a("s_waitcnt lgkmcnt(0)")
    stamp(a, 0)
    kgen_load4(a)
    for i in range(16):
        a(f"v_mov_b32 v{ACC+i}, 0")
    kgen_setup(a, 0, True)
    stamp(a, 1)
    a("s_mov_b32 s73, 4")
    a.label("L_apass")
    a("v_mov_b32 v10, v148")
    a("v_mov_b32 v11, v150")
    a("v_mov_b32 v8, v152")
    a("v_mov_b32 v9, v154")
    for r in (148, 150, 152, 154):
        a(f"v_lshrrev_b64 v[{r}:{r+1}], 16, v[{r}:{r+1}]")
    kgen_pass(a, lambda k: None, True)
    a("s_sub_u32 s73, s73, 1")
    a("s_cmp_lg_u32 s73, 0")
    a("s_cbranch_scc1 L_apass")
    stamp(a, 2)
    kgen_scale(a, False)
    kgen_solo(a)
    stamp(a, 3)
    srd(a, 56, P_WS, FL_BYTES, WS_FL)
    srd(a, 60, P_DBG, 256)
    wait_init(a, 145, 60, False)
    a(f"s_lshl_b32 s14, s7, {FSH}")
    a(f"s_add_u32 s14, s14, {FL_K}")
    set_flag(a, 14, 1)
    a("s_branch L_a_done")

    a.label("L_touch")
    a("s_setprio 3")
    a("s_lshl_b32 s8, s6, 1")
    a("s_add_u32 s8, s8, s5")
    a("s_sub_u32 s8, s8, 4")
    a("v_mul_u32_u24 v5, 43, v2")
    a("v_lshrrev_b32 v5, 9, v5")
    a("v_mul_u32_u24 v6, 12, v5")
    a("v_sub_u32 v6, v2, v6")
    a("s_lshl_b32 s9, s8, 2")
    a("v_add_u32 v5, s9, v5")
    a("v_mul_u32_u24 v5, 2688, v5")
    a("v_lshl_add_u32 v5, v6, 7, v5")
    a("v_lshrrev_b32 v6, 2, v6")
    a("v_mul_u32_u24 v6, 384, v6")
    a("v_add_u32 v5, v5, v6")
    T0 = optint("tfrom", 0); WIN = optint("win", 3)
    a("s_and_b32 s9, s3, 1")
    a("s_mul_i32 s9, s9, 384")
    a(f"s_add_u32 s9, s9, {T0*172032}")
    a("s_lshl_b32 s10, s8, 5")
    a("s_lshr_b32 s11, s3, 1")
    a("s_lshl_b32 s11, s11, 9")
    a("s_add_u32 s10, s10, s11")
    a("v_add_u32 v6, s10, v2")
    a("v_mul_u32_u24 v6, 896, v6")
    a(f"s_movk_i32 s10, {T0*128}")
    a("s_waitcnt lgkmcnt(0)")
    stamp(a, 0)
    srd(a, 44, P_X, 2048 * 896)
    srd(a, 48, P_W, 448 * 2688)
    NT = 0 if 'notouch' in OPT else 7 - T0
    for c in range(NT):
        if c >= WIN:
            a(f"s_waitcnt vmcnt({2*(WIN-1)})")
        a("s_mov_b32 exec_hi, 0xffff")
        a("buffer_load_dword v13, v5, s[48:51], s9 offen")
        a("s_mov_b32 exec_hi, 0")
        a("buffer_load_dword v13, v6, s[44:47], s10 offen")
        a("s_add_u32 s9, s9, 172032")
        a("s_add_u32 s10, s10, 128")
    a("s_mov_b64 exec, -1")
    stamp(a, 3)
    srd(a, 48, P_WO, 448 * 896)
    a(f"s_mul_i32 s9, s8, {196*128}")
    a("v_lshlrev_b32 v5, 7, v2")
    a("s_waitcnt vmcnt(2)")
    for i in range(4):
        if i == 3: a("s_mov_b64 exec, 15")
        a("buffer_load_dword v13, v5, s[48:51], s9 offen")
        a("s_add_u32 s9, s9, 8192")
    a("s_mov_b64 exec, -1")
    a("s_setprio 1" if "prio" in OPT else "s_setprio 0")
    a("s_branch L_a_done")

    a.label("L_ut")
    a("s_sub_u32 s7, s5, 6")
    a("s_lshl_b32 s9, s3, 3")
    a("s_add_u32 s9, s9, s6")
    a("s_lshl_b32 s9, s9, 1")
    a("s_add_u32 s9, s9, s7")
    a("s_mul_i32 s10, s9, 14336")
    a("s_mul_i32 s11, s7, 14336")
    a(f"s_add_u32 s11, s11, {A_UT}")
    a("v_lshlrev_b32 v4, 4, v2")
    a("v_mov_b32 v8, 0\nv_mov_b32 v9, 0\nv_mov_b32 v10, 0\nv_mov_b32 v11, 0")
    a("s_waitcnt lgkmcnt(0)")
    stamp(a, 0)
    srd(a, 44, P_U, 2048 * 896)
    srd(a, 48, P_WS, UB_IMG, WS_UB)
    srd(a, 52, P_WS, 0x10000, WS_KV)
    srd(a, 56, P_WS, FL_BYTES, WS_FL)
    srd(a, 60, P_DBG, 256)
    Lz = a.newlabel("Lnz")
    a("s_cmp_lg_u32 s6, 1")
    a(f"s_cbranch_scc1 {Lz}")
    a("s_cmp_lg_u32 s7, 0")
    a(f"s_cbranch_scc1 {Lz}")
    a("s_lshl_b32 s12, s3, 13")
    for i in range(8):
        a(f"buffer_store_dwordx4 v[8:11], v4, s[52:55], s12 offen offset:{(i%4)*1024} sc1")
        if i == 3: a("s_add_u32 s12, s12, 4096")
    a(f"s_lshl_b32 s12, s3, {7 + FSH}")
    a(f"v_lshlrev_b32 v12, {FSH}, v2")
    a("buffer_store_dword v8, v12, s[56:59], s12 offen sc1")
    a(f"s_add_u32 s12, s12, {64 << FSH}")
    a("buffer_store_dword v8, v12, s[56:59], s12 offen sc1")
    a("s_waitcnt vmcnt(0)")
    a("v_mov_b32 v12, 1")
    a("s_lshl_b32 s12, s3, 2")
    a("s_mov_b64 exec, 1")
    a("buffer_store_dword v12, v8, s[60:63], s12 offen sc1")
    a("s_mov_b64 exec, -1")
    a.label(Lz)
    for i in range(14):
        a(f"s_add_u32 m0, s11, {i*1024}")
        a("s_nop 0")
        a("buffer_load_dwordx4 v4, s[44:47], s10 offen lds")
        a("s_add_u32 s10, s10, 1024")
    a("v_bfe_u32 v5, v2, 2, 2")
    a("v_and_b32 v6, 1, v2")
    a("v_lshl_add_u32 v5, v6, 3, v5")
    a("v_mul_u32_u24 v5, 896, v5")
    a("v_lshrrev_b32 v6, 4, v2")
    a("v_lshl_add_u32 v5, v6, 4, v5")
    a("v_bfe_u32 v6, v2, 1, 1")
    a("v_lshl_add_u32 v5, v6, 3, v5")
    a("v_add_u32 v5, s11, v5")
    a("v_lshrrev_b32 v7, 3, v2")
    a("v_lshlrev_b32 v7, 14, v7")
    a("v_and_b32 v6, 7, v2")
    a("v_lshl_add_u32 v7, v6, 4, v7")
    a("s_lshl_b32 s10, s9, 7")
    a("s_waitcnt vmcnt(0)")
    stamp(a, 2)
    UR = 32
    for cg in range(14):
        for jj in range(2):
            d = UR + 4 * cg + 2 * jj
            a(f"ds_read_b64_tr_b16 v[{d}:{d+1}], v5 offset:{cg*64 + jj*3584}")
        if cg == 6: a("s_waitcnt lgkmcnt(4)")
    for cg in range(14):
        if cg >= 7: a(f"s_waitcnt lgkmcnt({2*(13-cg)})")
        elif cg == 5: a("s_waitcnt lgkmcnt(14)")
        d = UR + 4 * cg
        a(f"buffer_store_dwordx4 v[{d}:{d+3}], v7, s[48:51], s10 offen{ST}")
        a(f"s_add_u32 s10, s10, {8*16384}")
    stamp(a, 3)
    wait_init(a, 145, 60, False)
    a(f"s_lshl_b32 s14, s9, {FSH}")
    set_flag(a, 14, 1)
    a.label("L_a_done")
    stamp(a, 5)
    a("s_add_u32 s4, s6, 8")
    a("s_mov_b32 s66, 0")
    a("s_cmp_lt_u32 s3, 7")
    a("s_cbranch_scc1 L_conv")
    stamp_flush(a, 0)
    a("s_endpgm")

def build():
    from gen13_p2 import p2_w4, p2_conv
    a = Asm()
    hdr = open("cdna_kernels/" + NAME + ".s.ref").read().split("; Override launch")[0]
    a.raw(hdr.rstrip("\n"))
    a.raw(f"; @launch grid=(256,1,1) block=(512,1,1) lds=163840")
    a.raw('.amdgcn_target "amdgcn-amd-amdhsa--gfx950"')
    a.raw(".text")
    a.raw(f".globl {KN}\n.p2align 8\n.type {KN},@function")
    a.label(KN)
    a("s_cmp_ge_u32 s2, 256")
    a("s_cbranch_scc1 L_end")
    stamp_init(a)
    a("s_load_dwordx16 s[16:31], s[0:1], 0")
    a("s_load_dwordx8 s[32:39], s[0:1], 64")
    a("s_load_dwordx2 s[40:41], s[0:1], 96")
    a("v_lshrrev_b32 v1, 6, v0")
    a("v_and_b32 v2, 63, v0")
    a("s_and_b32 s3, s2, 7")
    a("s_lshr_b32 s4, s2, 3")
    a("v_readfirstlane_b32 s5, v1")
    if "pfa" in OPT:
        a("s_and_b32 s6, s4, 27")
        a("s_cmp_lg_u32 s6, 24")
        a("s_cbranch_scc1 L_nopf")
        a("s_cmp_lt_u32 s5, 4")
    else:
        a("s_and_b32 s6, s4, 3")
        a("s_cmp_lg_u32 s6, 0")
        a("s_cbranch_scc1 L_nopf")
        a("s_cmp_ge_u32 s5, 4")
    a("s_cbranch_scc1 L_nopf")
    a("s_getpc_b64 s[60:61]")
    a.label("L_pc")
    a(f"s_sub_u32 s60, s60, L_pc-{KN}")
    a("s_subb_u32 s61, s61, 0")
    a("v_and_b32 v250, 255, v0")
    a("v_lshlrev_b32 v250, 7, v250")
    a("global_load_dword v251, v250, s[60:61]")
    a.label("L_nopf")
    if "prio" in OPT:
        a("s_cmp_lt_u32 s5, 4")
        a("s_cbranch_scc1 L_nprio")
        a("s_setprio 1")
        a.label("L_nprio")
    if "pretouch" in OPT:
        a("s_cmp_lg_u32 s5, 7")
        a("s_cbranch_scc1 L_npt")
        a("v_lshlrev_b32 v252, 17, v2")
        a("v_add_u32 v252, 0x1f000, v252")
        a("v_lshlrev_b32 v253, 16, v2")
        a("s_waitcnt lgkmcnt(0)")
        srd(a, 44, P_WS, 0x880000)
        srd(a, 48, P_OUT, 2048 * 1792)
        srd(a, 52, P_WO, 448 * 896)
        a("buffer_load_dword v254, v252, s[44:47], 0 offen sc0 sc1")
        a("buffer_load_dword v254, v253, s[48:51], 0 offen sc0 sc1")
        a("buffer_load_dword v254, v253, s[52:55], 0 offen sc0 sc1")
        a("s_mov_b32 s6, 0x801000")
        a("s_mov_b64 exec, 1")
        a("buffer_load_dword v254, v253, s[44:47], s6 offen sc0 sc1")
        a("s_mov_b64 exec, -1")
        a.label("L_npt")
    a("s_cmp_ge_u32 s4, 24")
    a("s_cbranch_scc1 L_a")
    phase1_gemm(a)
    a.label("L_a")
    phase1_a(a)
    a.label("L_w4")
    p2_w4(a)
    a.label("L_conv")
    p2_conv(a)
    a.label("L_end")
    a("s_endpgm")
    a.raw("  .fill 2048, 4, 0xbf800000")
    a.raw('.section .rodata,"a"')
    a.raw(f""".p2align 6
.amdhsa_kernel {KN}
  .amdhsa_next_free_vgpr 256
  .amdhsa_next_free_sgpr 100
  .amdhsa_accum_offset 256
  .amdhsa_group_segment_fixed_size 0
  .amdhsa_kernarg_size 104
  .amdhsa_user_sgpr_count 2
  .amdhsa_user_sgpr_kernarg_segment_ptr 1
  .amdhsa_system_sgpr_workgroup_id_x 1
.end_amdhsa_kernel""")
    return a.text()

if __name__ == "__main__":
    if "stamps" in OPT: asmlib.STAMPS = True
    open(sys.argv[1], "w").write(build())
```
